```python
import torch

def _softmax(x, axis=-1):
    return torch.softmax(x, dim=axis)
def _gelu(x):
    return torch.nn.functional.gelu(x, approximate="tanh")
def _silu(x):
    return torch.nn.functional.silu(x)
def _sigmoid(x):
    return torch.sigmoid(x)
def _layernorm(x, axis=-1, eps=1e-5):
    m = x.mean(dim=axis, keepdim=True)
    v = x.var(dim=axis, keepdim=True, unbiased=False)
    return (x - m) / torch.sqrt(v + eps)
def _scatter_add(tgt, idx, src, axis=0):
    return tgt.clone().index_add_(axis, idx, src)
def _segment_sum(src, seg, n):
    out = torch.zeros((n,) + src.shape[1:], dtype=src.dtype)
    return out.index_add_(0, seg, src)
def _pad(x, pw):
    flat = tuple(v for pair in reversed(pw) for v in pair)
    return torch.nn.functional.pad(x, flat)

kernel_name = 'interleave_layers__gqa_block_cached__mixer_channel_mlp__decode'

def setup_inputs():

    _w = (lambda a: (lambda t: t.to(torch.bfloat16) if t.is_floating_point() else t)(torch.as_tensor(a)))
    def _A_setup():
        B, Sq, D = 1, 1, 640
        Hq, Hkv, Sk, Dh = 32, 32, 4096, 128
        assert Hq % Hkv == 0, (Hq, Hkv)
        return {
            "x": _w((lambda *s: torch.randn(*s, dtype=torch.bfloat16) * 0.05)(B, Sq, D)),
            "k_cache": _w((lambda *s: torch.randn(*s, dtype=torch.bfloat16) * 3.2)(B, Hkv, Sk, Dh)),
            "v_cache": _w((lambda *s: torch.randn(*s, dtype=torch.bfloat16) * 0.4)(B, Hkv, Sk, Dh)),
            "wq": _w((lambda *s: torch.randn(*s, dtype=torch.bfloat16) * 3.2)(D, Hq * Dh) * (D ** -0.5)),
            "wo": _w((lambda *s: torch.randn(*s, dtype=torch.bfloat16) * 0.4)(Hq * Dh, D) * ((Hq * Dh) ** -0.5)),
        }
    _A_in = _A_setup()

    def _B_setup():
        B, S, D, F = 1, 1, 640, 1728
        return {
            "x": _w((lambda *s: torch.randn(*s, dtype=torch.bfloat16) * 0.05)(B, S, D)),
            "w1": _w((lambda *s: torch.randn(*s, dtype=torch.bfloat16) * 0.4)(D, F) * (D ** -0.5)),
            "b1": _w((lambda *s: torch.randn(*s, dtype=torch.bfloat16) * 0.4)(F)),
            "w2": _w((lambda *s: torch.randn(*s, dtype=torch.bfloat16) * 0.4)(F, D) * (F ** -0.5)),
            "b2": _w((lambda *s: torch.randn(*s, dtype=torch.bfloat16) * 0.2)(D)),
        }
    _B_in = _B_setup()

    return {
        "A_x": _A_in["x"],
        "A_k_cache": _A_in["k_cache"],
        "A_v_cache": _A_in["v_cache"],
        "A_wq": _A_in["wq"],
        "A_wo": _A_in["wo"],
        "B_x": _B_in["x"],
        "B_w1": _B_in["w1"],
        "B_b1": _B_in["b1"],
        "B_w2": _B_in["w2"],
        "B_b2": _B_in["b2"],
    }

def reference(A_x, A_k_cache, A_v_cache, A_wq, A_wo, B_x, B_w1, B_b1, B_w2, B_b2):
    def _A_ref(x, k_cache, v_cache, wq, wo):
        B, Sq, D = x.shape
        Hq, Dh = 32, 128
        Hkv = k_cache.shape[1]
        rep = Hq // Hkv
        q = (lambda x, *d: x.permute(*d))((x @ wq).reshape(B, Sq, Hq, Dh), 0, 2, 1, 3)
        k = (lambda x, n, axis: torch.repeat_interleave(x, n, dim=axis))(k_cache, rep, axis=1)
        v = (lambda x, n, axis: torch.repeat_interleave(x, n, dim=axis))(v_cache, rep, axis=1)
        scores = torch.einsum("bhqd,bhkd->bhqk", q, k) * (Dh ** -0.5)
        p = _softmax(scores, axis=-1)
        o = torch.einsum("bhqk,bhkd->bhqd", p, v)
        return (lambda x, *d: x.permute(*d))(o, 0, 2, 1, 3).reshape(B, Sq, Hq * Dh) @ wo

    def _B_ref(x, w1, b1, w2, b2):
        y = _layernorm(x, axis=-1)
        h = _gelu(torch.einsum("bsd,df->bsf", y, w1) + b1)
        return torch.einsum("bsf,fd->bsd", h, w2) + b2

    x = A_x
    x = x + _A_ref(_layernorm(x, axis=-1), A_k_cache, A_v_cache, A_wq, A_wo)
    x = x + _B_ref(_layernorm(x, axis=-1), B_w1, B_b1, B_w2, B_b2)
    x = x + _A_ref(_layernorm(x, axis=-1), A_k_cache, A_v_cache, A_wq, A_wo)
    x = x + _B_ref(_layernorm(x, axis=-1), B_w1, B_b1, B_w2, B_b2)
    return x
```

```python
import re
NAME = 'interleave_layers__gqa_block_cached__mixer_channel_mlp__decode'

_REG = re.compile(r'^(v|a|s)(\d+)$')
_RNG = re.compile(r'^(v|a|s)\[(\d+):(\d+)\]$')
TRANS = ('v_exp_f32', 'v_log_f32', 'v_rcp_f32', 'v_rsq_f32', 'v_sqrt_f32', 'v_sin_f32', 'v_cos_f32')


def regs_of(tok):
    tok = tok.strip().lstrip('-').strip('|')
    m = _REG.match(tok)
    if m:
        return {(m.group(1), int(m.group(2)))}
    m = _RNG.match(tok)
    if m:
        return {(m.group(1), i) for i in range(int(m.group(2)), int(m.group(3)) + 1)}
    if tok in ('vcc', 'vcc_lo', 'vcc_hi'):
        return {('s', 'vcc')}
    if tok in ('exec', 'exec_lo', 'exec_hi'):
        return {('s', 'exec')}
    if tok == 'm0':
        return {('s', 'm0')}
    return set()


def split_ops(rest):
    ops = []
    depth = 0
    cur = ''
    for ch in rest:
        if ch == '[':
            depth += 1
        if ch == ']':
            depth -= 1
        if ch == ',' and depth == 0:
            ops.append(cur.strip())
            cur = ''
        else:
            cur += ch
    if cur.strip():
        ops.append(cur.strip())
    return ops


class Ins:
    def __init__(self, text):
        self.text = text
        t = text.split(';')[0].strip()
        self.label = None
        self.op = ''
        self.w = set()
        self.r = set()
        self.dpp_src = set()
        self.srcC = set()
        self.srcAB = set()
        self.kind = 'other'
        self.states = 1
        self.target = None
        self.wide_store = set()
        if t.endswith(':'):
            self.label = t[:-1]
            self.kind = 'label'
            self.states = 0
            return
        parts = t.split(None, 1)
        self.op = op = parts[0]
        rest = parts[1] if len(parts) > 1 else ''
        ops = split_ops(rest)
        mods = ''
        if ops:
            lw = ops[-1].split(None, 1)
            if len(lw) > 1:
                ops[-1] = lw[0]
                mods = lw[1]
        self.mods = mods
        R = [regs_of(o) for o in ops]
        if op == 's_nop':
            self.kind = 'nop'
            self.states = int(ops[0], 0) + 1
        elif op.startswith('s_cbranch') or op == 's_branch':
            self.kind = 'branch'
            self.target = ops[0]
        elif op == 's_endpgm':
            self.kind = 'end'
        elif op.startswith('s_'):
            self.kind = 'salu'
            if op.startswith('s_cmp') or op in ('s_waitcnt', 's_barrier', 's_sleep', 's_setprio'):
                for x in R: self.r |= x
            else:
                if R: self.w |= R[0]
                for x in R[1:]: self.r |= x
        elif op.startswith('v_mfma'):
            self.kind = 'mfma'
            self.w = R[0]
            self.srcAB = R[1] | R[2]
            self.srcC = R[3] if len(R) > 3 else set()
            self.r = self.srcAB | self.srcC
        elif op.startswith('v_'):
            self.kind = 'valu'
            self.trans = op.replace('_e32', '').replace('_e64', '') in TRANS
            if op.startswith('v_permlane'):
                self.w = R[0] | R[1]
                self.r = R[0] | R[1]
                self.kind2 = 'permlane'
            else:
                self.w = R[0]
                for x in R[1:]: self.r |= x
                if op.startswith('v_fmac') or op.startswith('v_mac') or op.startswith('v_pk_fmac') or op.startswith('v_writelane'):
                    self.r |= R[0]
                if op.startswith('v_cmpx'):
                    self.w = self.w | {('s', 'exec')}
                if op.startswith('v_cndmask') and len(ops) == 3:
                    self.r |= {('s', 'vcc')}
                if 'row_' in mods or 'quad_perm' in mods or '_dpp' in op:
                    self.dpp_src = R[1]
        elif op.startswith('buffer_load'):
            self.kind = 'vmem'
            self.w = R[0]
            for x in R[1:]: self.r |= x
        elif op.startswith('buffer_store') or op.startswith('buffer_atomic'):
            self.kind = 'vmem'
            for x in R: self.r |= x
            if 'x3' in op or 'x4' in op:
                self.wide_store = R[0]
        elif op.startswith('ds_read'):
            self.kind = 'ds'
            self.w = R[0]
            for x in R[1:]: self.r |= x
        elif op.startswith('ds_'):
            self.kind = 'ds'
            for x in R: self.r |= x
        else:
            raise ValueError('unknown op ' + text)

    def is_valu(self):
        return self.kind == 'valu'


def need(p, c):
    n = 0
    if p.kind == 'valu':
        vw = {x for x in p.w if x[0] in 'va'}
        sw = {x for x in p.w if x[0] == 's'}
        if c.kind == 'valu':
            if c.dpp_src & vw: n = max(n, 2)
            if c.op.startswith('v_permlane') and (c.r & vw): n = max(n, 2)
            if (c.op.startswith('v_readlane') or c.op.startswith('v_readfirstlane')) and (c.r & vw): n = max(n, 1)
            if getattr(p, 'trans', False) and (c.r & vw): n = max(n, 1)
            if sw & c.r:
                n = max(n, 4 if c.op.startswith('v_readlane') or c.op.startswith('v_writelane') else 2)
            if ('s', 'exec') in sw: n = max(n, 5)
        if c.kind == 'mfma':
            if c.r & vw: n = max(n, 2)
            if ('s', 'exec') in sw: n = max(n, 4)
        if c.kind in ('vmem', 'ds'):
            if sw & c.r: n = max(n, 5)
            if getattr(p, 'trans', False) and (c.r & vw): n = max(n, 1)
        if c.kind == 'salu' and (sw & c.r): n = max(n, 1)
    if p.kind == 'mfma':
        D = p.w
        if c.kind == 'mfma':
            if c.srcC & D:
                n = max(n, 0 if c.srcC == D else 6)
            if c.srcAB & D: n = max(n, 8)
            if (c.w & D) and not (c.srcC == D): n = max(n, 8)
        if c.kind == 'valu':
            if (c.r | c.w) & D: n = max(n, 8)
            if c.w & p.srcC: n = max(n, 3)
        if c.kind in ('vmem', 'ds'):
            if (c.r | c.w) & D: n = max(n, 8)
    if p.kind == 'vmem' and p.wide_store:
        if c.w & p.wide_store:
            n = max(n, 2 if c.kind == 'valu' else 1)
    if p.kind == 'salu' and ('s', 'm0') in p.w and c.kind == 'valu' and ('s', 'm0') in c.r:
        n = max(n, 1)
    return n


class Prog:
    def __init__(self):
        self.items = []
        self.nlab = 0

    def __call__(self, s):
        for l in s.split('\n'):
            l = l.strip()
            if l:
                self.items.append(Ins(l))

    def label(self, base='L'):
        self.nlab += 1
        return f'{base}_{self.nlab}'

    def finalize(self):
        items = self.items
        out = []
        branches = {}
        for it in items:
            if it.kind == 'branch':
                branches.setdefault(it.target, []).append(it)
        pos_orig = {id(it): i for i, it in enumerate(items)}
        pos_out = {}
        MAXD = 10

        def walk(lst, posmap, idx, dist, cons, best, seen):
            while idx >= 0 and dist < MAXD:
                it = lst[idx]
                if it.kind == 'label':
                    for b in branches.get(it.label, []):
                        key = (id(b), dist)
                        if key in seen: continue
                        seen.add(key)
                        if id(b) in pos_out:
                            walk(out, pos_out, pos_out[id(b)], dist, cons, best, seen)
                        else:
                            walk(items, pos_orig, pos_orig[id(b)], dist, cons, best, seen)
                    idx -= 1
                    if idx >= 0 and (lst[idx].op == 's_branch' or lst[idx].kind == 'end'):
                        return
                    continue
                nd = need(it, cons)
                if nd > dist:
                    best[0] = max(best[0], nd - dist)
                dist += it.states
                idx -= 1
                if idx >= 0 and (lst[idx].op == 's_branch' or lst[idx].kind == 'end'):
                    return

        nn = 0
        for it in items:
            if it.kind not in ('label', 'nop'):
                best = [0]
                if out and not (out[-1].op == 's_branch' or out[-1].kind == 'end'):
                    walk(out, pos_out, len(out) - 1, 0, it, best, set())
                if best[0] > 0:
                    nop = Ins(f's_nop {best[0]-1}')
                    pos_out[id(nop)] = len(out)
                    out.append(nop)
                    nn += 1
            pos_out[id(it)] = len(out)
            out.append(it)
        self.nnops = nn
        lines = []
        for it in out:
            lines.append(it.text if it.kind == 'label' else '    ' + it.text)
        return '\n'.join(lines) + '\n'


def header(grid, block, lds, kname=NAME + '_kernel', comment=''):
    return comment + f'''; @launch grid=({grid},1,1) block=({block},1,1) lds={lds}
.amdgcn_target "amdgcn-amd-amdhsa--gfx950"
.text
.globl {kname}
.p2align 8
.type {kname},@function
{kname}:
'''


def footer(vgpr=512, sgpr=102, accum=256, kname=NAME + '_kernel'):
    return f'''.section .rodata,"a"
.p2align 6
.amdhsa_kernel {kname}
  .amdhsa_next_free_vgpr {vgpr}
  .amdhsa_next_free_sgpr {sgpr}
  .amdhsa_accum_offset {accum}
  .amdhsa_group_segment_fixed_size 0
  .amdhsa_kernarg_size 104
  .amdhsa_user_sgpr_count 2
  .amdhsa_user_sgpr_kernarg_segment_ptr 1
  .amdhsa_system_sgpr_workgroup_id_x 1
.end_amdhsa_kernel
'''
```

```python
import sys, struct, math, argparse
from asmlib2 import *

def f2u(x): return struct.unpack('<I', struct.pack('<f', x))[0]
def H(x): return f'0x{x & 0xffffffff:x}'

LSTR = 0x100000
QP = 0x0
OP = 0x50000
HP = 0x60000
XAo = 0x88000
XMo = 0xB0000
ST = 0xD8000
OS = 0xDC000
CSL = 2 * LSTR
DUM = 3 * LSTR
CPS = 0x5000
OOB = 0x80000000
L_Q, L_ML, L_J1, L_O, L_R, L_J2 = 0, 256, 512, 1024, 3072, 5120
LDS_SIZE = 8192
sX, sC, sJ, sS, sW = 's3', 's4', 's5', 's6', 's7'
SRD = dict(K=8, V=12, WS=16, X=20, WQ=24, WO=28, W1=32, B1=36, W2=40, B2=44, OUT=48, DBG=52)
KOFF = dict(X=0, K=8, V=16, WQ=24, WO=32, W1=48, B1=56, W2=64, B2=72, OUT=80, DBG=88, WS=96)
SIZE = dict(X=1280, K=1 << 25, V=1 << 25, WQ=640 * 8192, WO=4096 * 1280, W1=640 * 3456, B1=3456, W2=1728 * 1280,
            B2=1280, OUT=1280, DBG=256, WS=1 << 28)
def srd(n): return f's[{SRD[n]}:{SRD[n]+3}]'
sKV = 56
sL, sLH4, sLM, sT, sT2, sBud, sLo, sHi, sMc, sIA, sIB, sFlag, sState, sT3 = [f's{i}' for i in range(64, 78)]
sMB = 80
sMF = 88
sSTAMP = 92
vLane, a16 = 'v0', 'v1'
vQW, vQR, vQR3, vSW, vSRQ, vSRH, vOW, vOR, vOSW, vOSR, vXW, vXR, vHW, vHR = [f'v{i}' for i in range(2, 16)]
lQW, lQR, lMW, lMR, lOW, lOR, lRW, lRR = [f'v{i}' for i in range(16, 24)]
CSQ, CS1, B1v, vC = 'v24', 'v25', 'v26', 'v27'
MK, XA, XB, XR, B2, BQ, PA, ACC, T = 28, 32, 36, 40, 44, 48, 64, 72, 104
VB = 126
vFL = 'v124'
vSTAMP = 'v125'
aWQ, aWO, aW1, aW2, aX, aB2, aB1, aC1 = 128, 160, 192, 208, 224, 226, 228, 232
def v(i): return f'v{i}'
def vr(i, n): return f'v[{i}:{i+n-1}]'
def ar(i, n): return f'a[{i}:{i+n-1}]'
DF = 'row_mask:0xf bank_mask:0xf'
MFMA = 'v_mfma_f32_16x16x32_bf16'
CSC = (128 ** -0.5) * math.log2(math.e)
EPS = 1e-5


class G:
    def __init__(self, opt):
        self.p = Prog()
        self.o = opt
        self.vm = 0
        self.tags = {}
        self.pend = []
        self.ool = []
        self.nst = 0

    def __call__(self, s): self.p(s)

    def vmem(self, s, tag=None, optional=False):
        self.p(s)
        if not optional:
            self.vm += 1
        if tag: self.tags[tag] = self.vm
    def wait(self, tag):
        n = self.vm - self.tags[tag]
        assert 0 <= n
        self.p(f's_waitcnt vmcnt({min(n, 63)})')
    def stamp(self, k):
        if not self.o.stamps: return
        if len(self.pend) >= 5: self.lgkm(0)
        r = sSTAMP + 2 * (self.nst % 5); self.nst += 1
        self.p(f's_memrealtime s[{r}:{r+1}]')
        self.pend.append((k, r))
    def lgkm(self, n):
        if self.pend:
            self.p('s_waitcnt lgkmcnt(0)')
            for k, r in self.pend:
                if isinstance(k, tuple):
                    self.p(f's_mul_i32 {sT3}, {sState}, {k[1]}')
                    self.p(f's_add_u32 m0, {sT3}, {k[0]}')
                    self.p(f'v_writelane_b32 {vSTAMP}, s{r}, m0')
                else:
                    self.p(f'v_writelane_b32 {vSTAMP}, s{r}, {k}')
            self.pend = []
        else:
            self.p(f's_waitcnt lgkmcnt({n})')
    def flush(self):
        if self.pend: self.lgkm(0)

    def transpose(self, abase, W, tmp, tmp2):
        p = self.p
        n = 8 * W
        for k in range(n):
            p(f'v_accvgpr_read_b32 v{tmp+k}, a{abase+k}')
        cnt = 0
        for dp in range(W):
            for hi in range(2):
                for tau in range(4):
                    t = tmp2 + (cnt & 1); cnt += 1
                    p(f'v_perm_b32 v{t}, v{tmp+(2*tau+1)*W+dp}, v{tmp+(2*tau)*W+dp}, {sHi if hi else sLo}')
                    p(f'v_accvgpr_write_b32 a{abase+(2*dp+hi)*4+tau}, v{t}')

    def build_xa(self):
        p = self.p
        p(f'v_mov_b32_dpp v{XA+2}, v{XA} row_ror:8 {DF}')
        p(f'v_mov_b32_dpp v{XA+3}, v{XA+1} row_ror:8 {DF}')

    def xb_ops(self):
        return [f'v_mov_b32_dpp v{XB+k}, v{XA+k} quad_perm:[0,1,2,3] row_mask:0xf bank_mask:0x3' for k in range(4)]

    def unpack_xr(self, addb2):
        ops = [f'v_lshlrev_b32 v{XR}, 16, v{XA}', f'v_and_b32 v{XR+1}, 0xffff0000, v{XA}',
               f'v_lshlrev_b32 v{XR+2}, 16, v{XA+1}', f'v_and_b32 v{XR+3}, 0xffff0000, v{XA+1}']
        if addb2:
            ops += [f'v_pk_add_f32 {vr(XR,2)}, {vr(XR,2)}, {vr(B2,2)}', f'v_pk_add_f32 {vr(XR+2,2)}, {vr(XR+2,2)}, {vr(B2+2,2)}']
        return ops

    def qp(self, A, soff, fl, stats, track, post=()):
        p = self.p
        st = T + 16
        xb = self.xb_ops() if stats else []
        order = [0, 4, 1, 5, 2, 6, 3, 7]
        mov = {}
        for d in range(8):
            if d == 0: mov[d] = None
            elif d < 4: mov[d] = f'v_mov_b32_dpp v{ACC+d}, v{ACC+4*d} quad_perm:[0,1,2,3] row_mask:0x1 bank_mask:0xf'
            else: mov[d] = f'v_mov_b32_dpp v{ACC+d-4}, v{ACC+4*d} quad_perm:[0,1,2,3] row_mask:0x2 bank_mask:0xf'
        for n, d in enumerate(order):
            p(f'{MFMA} {vr(ACC+4*d,4)}, {vr(A,4)}, {ar(aWQ+4*d,4)}, 0')
            if n < 2 and xb:
                p(xb[2*n]); p(xb[2*n+1])
            if n == 3 and stats:
                p(f'{MFMA} {vr(st,4)}, {vr(XA,4)}, {vr(XB,4)}, 0')
        p('s_mov_b32 exec_hi, 0')
        for d in order[1:]:
            p(mov[d])
        self.vmem(f'buffer_store_dwordx4 {vr(ACC,4)}, {vQW}, {srd("WS")}, {soff} offen {fl}', optional=not track)
        if stats:
            p('s_mov_b64 exec, 0x101')
            self.vmem(f'buffer_store_dword v{st}, {vSW}, {srd("WS")}, {soff} offen {fl}', optional=not track)
        p('s_mov_b64 exec, -1')
        for s in post: p(s)

    def w1(self, A, soff, fl, stats, track, post=()):
        p = self.p
        st = T + 16
        xb = self.xb_ops() if stats else []
        for d in range(4):
            p(f'{MFMA} {vr(ACC+4*d,4)}, {vr(A,4)}, {ar(aW1+4*d,4)}, 0')
            if d < 2 and xb:
                p(xb[2*d]); p(xb[2*d+1])
        if stats:
            p(f'{MFMA} {vr(st,4)}, {vr(XA,4)}, {vr(XB,4)}, 0')
        p('s_mov_b64 exec, 0xffff')
        for d in range(1, 4):
            p(f'v_mov_b32 v{ACC+d}, v{ACC+4*d}')
        self.vmem(f'buffer_store_dwordx4 {vr(ACC,4)}, {vHW}, {srd("WS")}, {soff} offen {fl}', optional=not track)
        if stats:
            p('s_mov_b64 exec, 0x101')
            self.vmem(f'buffer_store_dword v{st}, {vSW}, {srd("WS")}, {soff} offen offset:256 {fl}', optional=not track)
        p('s_mov_b64 exec, -1')
        for s in post: p(s)

    def rs4(self, a, out):
        return [f'v_permlane32_swap_b32 v{a}, v{a+1}', f'v_permlane32_swap_b32 v{a+2}, v{a+3}',
                f'v_add_f32 v{a}, v{a}, v{a+1}', f'v_add_f32 v{a+2}, v{a+2}, v{a+3}',
                f'v_permlane16_swap_b32 v{a}, v{a+2}', f'v_add_f32 {out}, v{a}, v{a+2}']

    def stats_ops(self, s4, st, mean, sc, second):
        inv = H(f2u(1.0 / 640))
        ops = [f'v_pk_add_f32 {vr(s4,2)}, {vr(s4,2)}, {vr(s4+2,2)}',
               f'v_add_f32 v{st}, v{s4}, v{s4+1}',
               f'v_add_f32_dpp v{st}, v{st}, v{st} row_ror:2 {DF}',
               f'v_add_f32_dpp v{st}, v{st}, v{st} row_ror:4 {DF}',
               f'v_add_f32_dpp v{st}, v{st}, v{st} row_ror:8 {DF}',
               f'v_mul_f32 v{st}, {inv}, v{st}',
               f'v_mov_b32_dpp v{mean}, v{st} quad_perm:[0,0,2,2] {DF}',
               f'v_mov_b32_dpp v{sc}, v{st} quad_perm:[1,1,3,3] {DF}',
               f'v_fma_f32 v{sc}, -v{mean}, v{mean}, v{sc}',
               f'v_max_f32 v{sc}, 0, v{sc}']
        if second:
            ops += [f'v_mul_f32 v{sc}, {H(f2u(1.0 + EPS))}, v{sc}', f'v_add_f32 v{sc}, {H(f2u(EPS * EPS))}, v{sc}']
        else:
            ops += [f'v_add_f32 v{sc}, {H(f2u(EPS))}, v{sc}']
        ops += [f'v_rsq_f32 v{sc}, v{sc}']
        return ops

    def merge(self, *lists):
        lists = [list(l) for l in lists]
        while any(lists):
            for l in lists:
                if l: self.p(l.pop(0))

    def retry(self, Lp, Lok, extra=()):
        Lr = self.p.label('Lretry')
        code = [f'{Lr}:', f's_cmp_eq_u32 {sState}, 0', f's_cbranch_scc1 {Lok}',
                f's_cmp_eq_u32 {sBud}, 0', f's_cbranch_scc1 {Lok}', f's_sub_u32 {sBud}, {sBud}, 1'] + list(extra) + [f's_branch {Lp}']
        self.ool.append(code)
        return Lr

    def qa2a_loads(self, base, soff, track, tag=None):
        for t in range(3):
            self.vmem(f'buffer_load_dwordx4 {vr(base+4*t,4)}, {vQR3 if t == 2 else vQR}, {srd("WS")}, {soff} offen offset:{1024*t} sc1',
                      optional=not track, tag=tag)
    def qa2a_sum(self, base, out):
        return [f'v_pk_add_f32 {vr(base,2)}, {vr(base,2)}, {vr(base+4,2)}', f'v_pk_add_f32 {vr(base+2,2)}, {vr(base+2,2)}, {vr(base+6,2)}',
                f'v_pk_add_f32 {vr(base,2)}, {vr(base,2)}, {vr(base+8,2)}', f'v_pk_add_f32 {vr(base+2,2)}, {vr(base+2,2)}, {vr(base+10,2)}'] \
            + self.rs4(base, out) + [f'v_add_f32_dpp {out}, {out}, {out} row_ror:8 {DF}']

    def q_finish(self, u, st, mean, sc, Lp):
        p = self.p
        Lok = p.label('Lok')
        Lr = self.retry(Lp, Lok)
        p(f'v_fma_f32 v{u}, -v{mean}, {CSQ}, v{u}')
        p(f'v_mul_f32 v{u}, v{u}, v{sc}')
        p(f'v_cvt_pk_bf16_f32 v{sc}, v{u}, v{u}')
        p(f'v_cmp_u_f32 vcc, v{u}, v{st}')
        p(f's_cbranch_vccnz {Lr}')
        p(f'{Lok}:')
        p(f'ds_write_b16 {lQW}, v{sc}')
        self.lgkm(0)
        p('s_barrier')

    def qk_softmax(self):
        p = self.p
        S = [T, T + 1]
        for b in range(4):
            p(f's_mov_b64 exec, s[{sMB+2*b}:{sMB+2*b+1}]')
            p(f'ds_read_b128 {vr(BQ+4*b,4)}, {lQR}')
        p('s_mov_b64 exec, -1')
        def adds(e):
            h, be = e >> 2, e & 3
            D = ACC + 4 * e
            first = True
            out = []
            for u in range(4):
                if u == be: continue
                src1 = f'v{D+be}' if first else f'v{S[h]}'
                out.append(f'v_add_f32_dpp v{S[h]}, v{D+u}, {src1} row_ror:{(4*(be-u)) % 16} row_mask:0xf bank_mask:{1<<be:#x}')
                first = False
            return out
        for b in range(4):
            self.lgkm(3 - b)
            for e in range(8):
                h, be = e >> 2, e & 3
                mb = 8 * be + 2 * b + h
                c = '0' if b == 0 else vr(ACC + 4 * e, 4)
                p(f'{MFMA} {vr(ACC+4*e,4)}, {ar(4*mb,4)}, {vr(BQ+4*b,4)}, {c}')
                if b == 3 and e >= 3:
                    for s in adds(e - 3): p(s)
        for e in (5, 6, 7):
            for s in adds(e): p(s)
        M = T + 2
        p(f'v_max_f32 v{M}, v{S[0]}, v{S[1]}')
        for n in (1, 2, 4, 8):
            p(f'v_max_f32_dpp v{M}, v{M}, v{M} row_ror:{n} {DF}')
        p(f'v_max_f32_dpp v{M}, v{M}, v{M} row_bcast:15 row_mask:0xa bank_mask:0xf')
        p(f'v_max_f32_dpp v{M}, v{M}, v{M} row_bcast:31 row_mask:0xc bank_mask:0xf')
        p(f'v_mul_f32 v{M}, v{M}, {vC}')
        p(f'v_readlane_b32 {sMc}, v{M}, 63')
        p(f'v_fma_f32 v{S[0]}, v{S[0]}, {vC}, -{sMc}')
        p(f'v_fma_f32 v{S[1]}, v{S[1]}, {vC}, -{sMc}')
        p(f'v_exp_f32 v{S[0]}, v{S[0]}')
        p(f'v_exp_f32 v{S[1]}, v{S[1]}')
        p(f'v_cvt_pk_bf16_f32 v{T+4}, v{S[0]}, v{S[1]}')

    def ml_ops(self, fl):
        P, M, Ls = T + 4, T + 2, T + 3
        m2, l2, mc, f = T + 6, T + 7, T + 8, T + 5
        lc = T + 9
        ops = [f'v_lshlrev_b32 v{Ls}, 16, v{P}', f'v_and_b32 v{T}, 0xffff0000, v{P}', f'v_add_f32 v{Ls}, v{Ls}, v{T}']
        for n in (1, 2, 4, 8):
            ops += [f'v_add_f32_dpp v{Ls}, v{Ls}, v{Ls} row_ror:{n} {DF}', None]
        ops += [f'v_add_f32_dpp v{Ls}, v{Ls}, v{Ls} row_bcast:15 row_mask:0xa bank_mask:0xf', None,
                f'v_add_f32_dpp v{Ls}, v{Ls}, v{Ls} row_bcast:31 row_mask:0xc bank_mask:0xf',
                f'ds_write_b64 {lMW}, {vr(M,2)}', None, None,
                lambda: (self.lgkm(0), self.p('s_barrier'), self.p(f'ds_read_b64 {vr(m2,2)}, {lMR}')), None, None, None,
                lambda: self.lgkm(0),
                f'v_max_f32_dpp v{mc}, v{m2}, v{m2} quad_perm:[1,0,3,2] {DF}', None,
                f'v_max_f32_dpp v{mc}, v{mc}, v{mc} quad_perm:[2,3,0,1] {DF}',
                f'v_sub_f32 v{f}, v{m2}, v{mc}', f'v_exp_f32 v{f}, v{f}', None,
                f'v_mul_f32 v{lc}, v{f}, v{l2}', None,
                f'v_add_f32_dpp v{lc}, v{lc}, v{lc} quad_perm:[1,0,3,2] {DF}', None,
                f'v_add_f32_dpp v{lc}, v{lc}, v{lc} quad_perm:[2,3,0,1] {DF}']
        def st():
            Ls_ = self.p.label('Lnos')
            self.p(f's_cmp_lg_u32 {sW}, 0'); self.p(f's_cbranch_scc1 {Ls_}')
            self.p('s_mov_b64 exec, 1')
            self.vmem(f'buffer_store_dwordx2 {vr(mc,2)}, {vOSW}, {srd("WS")}, {sL} offen {fl}', optional=True)
            self.p('s_mov_b64 exec, -1')
            self.p(f'{Ls_}:')
        ops.append(st)
        return ops

    def run_op(self, o):
        if o is None: return
        if callable(o): o()
        else: self.p(o)

    def pv(self, extras, layer0):
        p = self.p
        P = T + 4
        Da, Db = ACC, ACC + 4
        def build(pp):
            return [f'v_mov_b32_dpp v{PA+4*(pp&1)+t}, v{P} row_newbcast:{pp} row_mask:0xf bank_mask:{1<<t:#x}' for t in range(4)]
        def perms(pp):
            A, Bq, o = VB + 2 + 8 * pp, VB + 6 + 8 * pp, VB + 8 * pp
            seq = [(0, 0), (0, 1), (1, 0), (1, 1), (3, 0), (3, 1), (2, 1), (2, 0)]
            return [f'v_perm_b32 v{o+2*dp+hi}, v{Bq+dp}, v{A+dp}, {sHi if hi else sLo}' for dp, hi in seq]
        extras = list(extras)
        if layer0:
            for o in extras: self.run_op(o)
            extras = []
        for s in build(0): p(s)
        for pp in range(16):
            nb = build(pp + 1) if pp < 15 else []
            if layer0:
                self.wait(f'V{2*pp+1}')
                for s in perms(pp): p(s)
            c = '0' if pp == 0 else None
            p(f'{MFMA} {vr(Da,4)}, {vr(PA+4*(pp&1),4)}, {vr(VB+8*pp,4)}, {c or vr(Da,4)}')
            for s in nb[:3]: p(s)
            p(f'{MFMA} {vr(Db,4)}, {vr(PA+4*(pp&1),4)}, {vr(VB+8*pp+4,4)}, {c or vr(Db,4)}')
            for s in nb[3:]: p(s)
            for _ in range(2):
                if extras: self.run_op(extras.pop(0))
        for o in extras: self.run_op(o)

    def reduce_publish(self, y, soff, ldsoff):
        p = self.p
        p(f'v_permlane16_swap_b32 v{y}, v{y+2}')
        p(f'v_permlane16_swap_b32 v{y+1}, v{y+3}')
        p(f'v_pk_add_f32 {vr(y,2)}, {vr(y,2)}, {vr(y+2,2)}')
        p(f'ds_write_b64 {lRW}, {vr(y,2)} offset:{ldsoff}')
        p(f's_cmp_lg_u32 {sW}, 0')
        self.lgkm(0)
        if self.o.stamps: p(f's_cmp_lg_u32 {sW}, 0')
        p('s_barrier')
        Ls = p.label('Lsk')
        p(f's_cbranch_scc1 {Ls}')
        for k in range(4):
            p(f'ds_read_b128 {vr(ACC+4*k,4)}, {lRR} offset:{ldsoff+256*k}')
        self.lgkm(2)
        p(f'v_pk_add_f32 {vr(ACC,2)}, {vr(ACC,2)}, {vr(ACC+4,2)}')
        p(f'v_pk_add_f32 {vr(ACC+2,2)}, {vr(ACC+2,2)}, {vr(ACC+6,2)}')
        self.lgkm(0)
        p(f'v_pk_add_f32 {vr(ACC+8,2)}, {vr(ACC+8,2)}, {vr(ACC+12,2)}')
        p(f'v_pk_add_f32 {vr(ACC+10,2)}, {vr(ACC+10,2)}, {vr(ACC+14,2)}')
        p(f'v_pk_add_f32 {vr(ACC,2)}, {vr(ACC,2)}, {vr(ACC+8,2)}')
        p(f'v_pk_add_f32 {vr(ACC+2,2)}, {vr(ACC+2,2)}, {vr(ACC+10,2)}')
        for k in range(4):
            p(f'v_add_f32_dpp v{ACC+k}, v{ACC+k}, v{ACC+k} row_ror:8 {DF}')
        self.vmem(f'buffer_store_dwordx4 {vr(ACC,4)}, {vXW}, {srd("WS")}, {soff} offen sc1', optional=True)
        p(f'{Ls}:')

    def poll_head(self):
        p = self.p
        Lp, Lsk = p.label('Lp'), p.label('Lskip')
        p(f's_cmp_eq_u32 {sState}, 0')
        p(f's_cbranch_scc1 {Lsk}')
        p(f'{Lp}:')
        return Lp, Lsk

    def x8(self, soff):
        p = self.p
        Y = T
        p(f's_mov_b32 {sT}, {soff}')
        p(f's_add_u32 {sT2}, {soff}, {CPS*7}')
        for _ in range(self.o.x8delay): p('s_nop 15')
        Lp, Lsk = self.poll_head()
        self.vmem(f'buffer_load_dwordx4 {vr(Y,4)}, {vXR}, {srd("WS")}, {sT} offen sc1', optional=True)
        p('s_waitcnt vmcnt(0)')
        p(f'{Lsk}:')
        for c in ('quad_perm:[1,0,3,2]', 'quad_perm:[2,3,0,1]', 'row_half_mirror'):
            for k in range(4):
                p(f'v_add_f32_dpp v{Y+k}, v{Y+k}, v{Y+k} {c} {DF}')
        p(f'v_pk_add_f32 {vr(Y,2)}, {vr(Y,2)}, {vr(XR,2)}')
        p(f'v_pk_add_f32 {vr(Y+2,2)}, {vr(Y+2,2)}, {vr(XR+2,2)}')
        p(f'v_cvt_pk_bf16_f32 v{XA}, v{Y}, v{Y+1}')
        p(f'v_cvt_pk_bf16_f32 v{XA+1}, v{Y+2}, v{Y+3}')
        p(f'v_pk_add_f32 {vr(Y,2)}, {vr(Y,2)}, {vr(Y+2,2)}')
        p(f'v_cmp_u_f32 vcc, v{Y}, v{Y+1}')
        self.build_xa()
        Lok = p.label('Lok')
        Lr = self.retry(Lp, Lok, [f's_add_u32 {sT}, {sT}, {CPS}', f's_min_u32 {sT}, {sT}, {sT2}'])
        p(f's_cbranch_vccnz {Lr}')
        p(f'{Lok}:')

    def oa2a(self):
        p = self.p
        AO = T
        ml = T + 8
        M, f, Lq, ck = T + 10, T + 11, T + 12, T + 13
        y = T + 16
        Lp, Lsk = self.poll_head()
        self.vmem(f'buffer_load_dwordx2 {vr(ml,2)}, {vOSR}, {srd("WS")}, {sL} offen sc1', optional=True)
        for t in range(2):
            self.vmem(f'buffer_load_dwordx4 {vr(AO+4*t,4)}, {vOR}, {srd("WS")}, {sL} offen offset:{128*t} sc1', optional=True)
        p('s_waitcnt vmcnt(0)')
        p(f'{Lsk}:')
        Lok = p.label('Lok')
        Lr = self.retry(Lp, Lok)
        chk = [f'v_max3_u32 v{ck}, v{AO}, v{AO+1}, v{AO+2}', f'v_max3_u32 v{ck}, v{ck}, v{AO+3}, v{AO+4}',
               f'v_max3_u32 v{ck}, v{ck}, v{AO+5}, v{AO+6}', f'v_max3_u32 v{ck}, v{ck}, v{AO+7}, v{ml}',
               f'v_max_u32 v{ck}, v{ck}, v{ml+1}', f'v_cmp_eq_u32 vcc, -1, v{ck}']
        sc = [f'v_max_f32_dpp v{M}, v{ml}, v{ml} quad_perm:[1,0,3,2] {DF}',
              f'v_max_f32_dpp v{M}, v{M}, v{M} quad_perm:[2,3,0,1] {DF}',
              f'v_max_f32_dpp v{M}, v{M}, v{M} row_half_mirror {DF}',
              f'v_sub_f32 v{f}, v{ml}, v{M}', f'v_exp_f32 v{f}, v{f}',
              f'v_mul_f32 v{Lq}, v{f}, v{ml+1}',
              f'v_add_f32_dpp v{Lq}, v{Lq}, v{Lq} quad_perm:[1,0,3,2] {DF}',
              f'v_add_f32_dpp v{Lq}, v{Lq}, v{Lq} quad_perm:[2,3,0,1] {DF}',
              f'v_add_f32_dpp v{Lq}, v{Lq}, v{Lq} row_half_mirror {DF}',
              f'v_rcp_f32 v{Lq}, v{Lq}', f'v_mul_f32 v{f}, v{f}, v{Lq}']
        mf = []
        for t in range(2):
            for d in range(4):
                c = '0' if t == 0 else vr(ACC + 4 * d, 4)
                mf.append(f'{MFMA} {vr(ACC+4*d,4)}, {vr(AO+4*t,4)}, {ar(aWO+16*t+4*d,4)}, {c}')
        p(mf[0]); p(chk[0]); p(chk[1]); p(sc[0])
        p(mf[1]); p(chk[2]); p(chk[3]); p(sc[1])
        p(mf[2]); p(chk[4]); p(chk[5]); p(sc[2])
        p(f's_cbranch_vccnz {Lr}')
        p(f'{Lok}:')
        p(mf[3]); p(sc[3]); p(sc[4])
        p(mf[4]); p(sc[5])
        p(mf[5]); p(sc[6])
        p(mf[6]); p(sc[7])
        p(mf[7]); p(sc[8]); p(sc[9]); p(sc[10])
        for d in range(4):
            for r in range(4):
                op = 'v_mul_f32_dpp' if r == 0 else 'v_fmac_f32_dpp'
                p(f'{op} v{y+d}, v{f}, v{ACC+4*d+r} row_newbcast:{r} {DF}')
        self.reduce_publish(y, sL, 0)

    def ha2a_loads(self, base, acc, s0, s4, track, tag=None):
        for t in range(5):
            r = ar(base + 4 * t, 4) if acc else vr(base + 4 * t, 4)
            self.vmem(f'buffer_load_dwordx4 {r}, {vHR}, {srd("WS")}, {s4 if t == 4 else s0} offen offset:{1024*(t&3)} sc1',
                      optional=not track, tag=tag)
    def ha2a_sum(self, b, out):
        ops = []
        for (x, y) in ((0, 4), (8, 12), (0, 16), (0, 8)):
            ops += [f'v_pk_add_f32 {vr(b+x,2)}, {vr(b+x,2)}, {vr(b+y,2)}', f'v_pk_add_f32 {vr(b+x+2,2)}, {vr(b+x+2,2)}, {vr(b+y+2,2)}']
        return ops + self.rs4(b, out)

    def ha2a(self):
        p = self.p
        s4 = ACC + 20
        u, st, mean, sc, t1, e = T, T + 1, T + 2, T + 3, T + 4, T + 5
        A = T + 8
        y = T + 16
        Lp, Lsk = self.poll_head()
        self.vmem(f'buffer_load_dwordx4 {vr(s4,4)}, {vSRH}, {srd("WS")}, {sL} offen offset:256 sc1', optional=True)
        self.ha2a_loads(ACC, False, sL, sLH4, False)
        p('s_waitcnt vmcnt(5)')
        so = self.stats_ops(s4, st, mean, sc, True)
        for s in so[:2]: p(s)
        p('s_waitcnt vmcnt(0)')
        p(f'{Lsk}:')
        self.merge(self.ha2a_sum(ACC, f'v{u}'), so[2:])
        Lok = p.label('Lok')
        Lr = self.retry(Lp, Lok)
        c0 = -2.0 * math.sqrt(2.0 / math.pi) * math.log2(math.e)
        c1 = c0 * 0.044715
        p(f'v_fma_f32 v{u}, -v{mean}, {CS1}, v{u}')
        p(f'v_fma_f32 v{u}, v{u}, v{sc}, {B1v}')
        p(f'v_mul_f32 v{t1}, v{u}, v{u}')
        p(f'v_cmp_u_f32 vcc, v{u}, v{st}')
        p(f'v_mul_f32 v{t1}, {H(f2u(c1))}, v{t1}')
        p(f'v_add_f32 v{t1}, {H(f2u(c0))}, v{t1}')
        p(f's_cbranch_vccnz {Lr}')
        p(f'{Lok}:')
        p(f'v_mul_f32 v{t1}, v{t1}, v{u}')
        p(f'v_exp_f32 v{e}, v{t1}')
        p(f'v_add_f32 v{e}, 1.0, v{e}')
        p(f'v_rcp_f32 v{e}, v{e}')
        p(f'v_mul_f32 v{u}, v{u}, v{e}')
        p(f'v_cvt_pk_bf16_f32 v{u}, v{u}, v{u}')
        for k in range(4):
            p(f'v_and_b32 v{A+k}, v{u}, v{MK+k}')
        for d in range(4):
            p(f'{MFMA} {vr(ACC+4*d,4)}, {vr(A,4)}, {ar(aW2+4*d,4)}, 0')
        for d in range(4):
            p(f'v_pk_add_f32 {vr(ACC+4*d,2)}, {vr(ACC+4*d,2)}, {vr(ACC+4*d+2,2)}')
            p(f'v_add_f32 v{y+d}, v{ACC+4*d}, v{ACC+4*d+1}')
        self.reduce_publish(y, sLM, 1024)

    def combine(self, fl):
        p = self.p
        f = T + 5
        p(f'v_mul_f32_dpp v{T}, v{f}, v{ACC} quad_perm:[0,0,0,0] {DF}')
        p(f'v_mul_f32_dpp v{T+1}, v{f}, v{ACC+4} quad_perm:[0,0,0,0] {DF}')
        p(f'ds_write2_b32 {lOW}, v{T}, v{T+1} offset0:0 offset1:64')
        p(f's_cmp_lg_u32 {sW}, 0')
        self.lgkm(0)
        if self.o.stamps: p(f's_cmp_lg_u32 {sW}, 0')
        p('s_barrier')
        Ls = p.label('Lsk')
        p(f's_cbranch_scc1 {Ls}')
        p(f'ds_read2_b64 {vr(ACC,4)}, {lOR} offset0:0 offset1:64')
        p(f'ds_read2_b64 {vr(ACC+4,4)}, {lOR} offset0:128 offset1:192')
        self.lgkm(1)
        p(f'v_pk_add_f32 {vr(ACC,2)}, {vr(ACC,2)}, {vr(ACC+2,2)}')
        self.lgkm(0)
        p(f'v_pk_add_f32 {vr(ACC+4,2)}, {vr(ACC+4,2)}, {vr(ACC+6,2)}')
        p(f'v_pk_add_f32 {vr(ACC,2)}, {vr(ACC,2)}, {vr(ACC+4,2)}')
        p(f'v_cvt_pk_bf16_f32 v{ACC}, v{ACC}, v{ACC+1}')
        self.vmem(f'buffer_store_dword v{ACC}, {vOW}, {srd("WS")}, {sL} offen {fl}', optional=True)
        p(f'{Ls}:')

    def set_layer(self, off):
        p = self.p
        p(f's_mov_b32 {sL}, {H(off)}')
        p(f's_mov_b32 {sLH4}, {H(off + 4096)}')
        p(f's_mov_b32 {sLM}, {H(off + XMo - XAo)}')

    def finish(self):
        p = self.p
        if self.o.stamps:
            self.stamp(31)
            self.flush()
            Le = p.label('Lend')
            p(f's_cmp_lg_u32 {sW}, 0'); p(f's_cbranch_scc1 {Le}')
            p(f's_lshl_b32 {sT}, s2, 8'); p(f's_add_u32 {sT}, {sT}, 0x8000000')
            p(f'v_lshlrev_b32 v{T}, 2, {vLane}')
            p(f'buffer_store_dword {vSTAMP}, v{T}, {srd("WS")}, {sT} offen')
            p(f'{Le}:')
        p('s_endpgm')

    def loop(self, A, B, fast, name, dryret):
        p = self.p
        fl = '' if fast else 'sc1'
        NS = 10
        def stp(k): self.stamp((k - 2, NS))
        p(f'{name}:')
        stp(2)
        self.combine(fl)
        stp(3)
        if B:
            self.oa2a()
            stp(4)
        if A:
            self.x8(sL)
            stp(5)
            self.w1(XA, sL, fl, True, False, post=self.unpack_xr(True))
            stp(6)
        if B:
            self.ha2a()
            stp(7)
        Lc = p.label('Lcont')
        if A:
            p(f's_cmp_lg_u32 {sState}, 2'); p(f's_cbranch_scc1 {Lc}')
            Lf = p.label('Lfin')
            p(f's_or_b32 {sT}, {sX}, {sW}')
            p(f's_cmp_eq_u32 {sT}, 0'); p(f's_cbranch_scc1 {Lc}')
            self.flush()
            p(f's_branch {Lf}')
            p(f'{Lc}:')
            self.x8(sLM)
            Lc2 = p.label('Lcont')
            p(f's_cmp_lg_u32 {sState}, 2'); p(f's_cbranch_scc1 {Lc2}')
            p(f's_mov_b64 exec, s[{sMF}:{sMF+1}]')
            p(f's_lshl_b32 {sT}, {sIA}, 6')
            p(f'buffer_store_dwordx2 {vr(XA,2)}, {vLane}, {srd("OUT")}, {sT} offen')
            p('s_mov_b64 exec, -1')
            self.flush()
            p(f'{Lf}:')
            self.finish()
            p(f'{Lc2}:')
            stp(8)
        else:
            p(f's_cmp_lg_u32 {sState}, 2'); p(f's_cbranch_scc1 {Lc}')
            self.finish()
            p(f'{Lc}:')
        Ld = p.label('Ldry')
        p(f's_cmp_eq_u32 {sState}, 0'); p(f's_cbranch_scc1 {Ld}')
        self.set_layer(LSTR)
        p(f'{Ld}:')
        if A:
            self.qp(XA, sL, fl, True, False, post=self.unpack_xr(False))
            stp(9)
        s4 = ACC + 12
        u, st, mean, sc = T, T + 1, T + 2, T + 3
        Lp, Lsk = self.poll_head()
        self.vmem(f'buffer_load_dwordx4 {vr(s4,4)}, {vSRQ}, {srd("WS")}, {sL} offen sc1', optional=True)
        self.qa2a_loads(ACC, sL, False)
        p('s_waitcnt vmcnt(3)')
        so = self.stats_ops(s4, st, mean, sc, False)
        for s in so[:2]: p(s)
        p('s_waitcnt vmcnt(0)')
        p(f'{Lsk}:')
        self.merge(self.qa2a_sum(ACC, f'v{u}'), so[2:])
        self.q_finish(u, st, mean, sc, Lp)
        stp(10)
        self.flush()
        self.qk_softmax()
        stp(11)
        self.pv(self.ml_ops(fl), False)
        self.flush()
        if dryret:
            p(f's_cmp_eq_u32 {sState}, 0'); p(f's_cbranch_scc1 {dryret}')
        p(f's_mov_b32 {sState}, 2')
        p(f's_branch {name}')
        for code in self.ool:
            for s in code: p(s)
        self.ool = []

    def kload(self, mb):
        self.vmem(f'buffer_load_dwordx4 {ar(4*mb,4)}, {vFL}, {srd("K")}, s{sKV+(mb>>2)} offen offset:{1024*(mb&3)} nt', tag=f'K{mb}')
    def vload(self, mb):
        self.vmem(f'buffer_load_dwordx4 {vr(VB+2+4*mb,4)}, {a16}, {srd("V")}, s{sKV+(mb>>2)} offen offset:{1024*(mb&3)} nt', tag=f'V{mb}')

    def head(self):
        p = self.p
        p('s_cmp_ge_u32 s2, 256'); p('s_cbranch_scc1 L_exit')
        for n in ('K', 'V', 'WS'):
            p(f's_load_dwordx2 s[{SRD[n]}:{SRD[n]+1}], s[0:1], {KOFF[n]}')
        if self.o.stamps:
            p(f's_memrealtime s[{sSTAMP}:{sSTAMP+1}]')
        p('v_lshrrev_b32 v1, 6, v0')
        p('v_and_b32 v0, 63, v0')
        p(f'v_readfirstlane_b32 {sW}, v1')
        p(f's_and_b32 {sX}, s2, 7'); p(f's_lshr_b32 {sC}, s2, 3'); p(f's_and_b32 {sJ}, {sC}, 3'); p(f's_lshr_b32 {sS}, {sC}, 2')
        p(f's_lshl_b32 s{sKV}, {sX}, 22'); p(f's_lshl_b32 {sT}, {sJ}, 20'); p(f's_add_u32 s{sKV}, s{sKV}, {sT}')
        p(f's_lshl_b32 {sT}, {sS}, 17'); p(f's_add_u32 s{sKV}, s{sKV}, {sT}')
        p(f's_lshl_b32 {sT}, {sW}, 15'); p(f's_add_u32 s{sKV}, s{sKV}, {sT}')
        for k in range(1, 8): p(f's_add_u32 s{sKV+k}, s{sKV}, {4096*k}')
        for n in ('K', 'V', 'WS'):
            p(f's_mov_b32 s{SRD[n]+2}, {H(SIZE[n])}'); p(f's_mov_b32 s{SRD[n]+3}, 0x00020000')
        aK = 124
        p(f'v_lshlrev_b32 {a16}, 4, v0')
        p(f'v_bfe_u32 v{T}, v0, 2, 2'); p(f'v_lshlrev_b32 v{aK}, 8, v{T}')
        p(f'v_lshrrev_b32 v{T}, 4, v0'); p(f'v_lshl_add_u32 v{aK}, v{T}, 6, v{aK}')
        p(f'v_and_b32 v{T}, 3, v0'); p(f'v_lshl_add_u32 v{aK}, v{T}, 4, v{aK}')
        p('s_waitcnt lgkmcnt(0)')
        for mb in range(8): self.kload(mb)
        if self.o.stamps:
            p(f'v_mov_b32 {vSTAMP}, 0')
            p(f'v_writelane_b32 {vSTAMP}, s{sSTAMP}, 0')
        for n in ('X', 'WQ', 'WO', 'W1', 'B1', 'W2', 'B2'):
            p(f's_load_dwordx2 s[{SRD[n]}:{SRD[n]+1}], s[0:1], {KOFF[n]}')
        for n in ('X', 'WQ', 'WO', 'W1', 'B1', 'W2', 'B2', 'OUT', 'DBG'):
            p(f's_mov_b32 s{SRD[n]+2}, {H(SIZE[n])}'); p(f's_mov_b32 s{SRD[n]+3}, 0x00020000')
        p(f's_mov_b32 {sLo}, 0x05040100'); p(f's_mov_b32 {sHi}, 0x07060302')
        p(f's_mov_b32 {sBud}, 100000')
        for b in range(4):
            p(f's_mov_b32 s{sMB+2*b}, {H(0x11111111 << b)}'); p(f's_mov_b32 s{sMB+2*b+1}, {H(0x11111111 << b)}')
        p(f's_mov_b32 s{sMF}, 0x01010101'); p(f's_mov_b32 s{sMF+1}, 0x01010101')
        p(f's_mov_b32 {sIA}, {sC}'); p(f's_sub_u32 {sIB}, {sC}, 12')
        p(f's_getreg_b32 {sFlag}, hwreg(HW_REG_XCC_ID)'); p(f's_and_b32 {sFlag}, {sFlag}, 15'); p(f's_or_b32 {sFlag}, {sFlag}, 0x80')
        p('s_waitcnt lgkmcnt(0)')
        for n in ('OUT', 'DBG'):
            p(f's_load_dwordx2 s[{SRD[n]}:{SRD[n]+1}], s[0:1], {KOFF[n]}')
        p(f's_cmp_lt_u32 {sC}, 12'); p('s_cbranch_scc1 L_roleA')
        p(f's_cmp_lt_u32 {sC}, 20'); p('s_cbranch_scc1 L_roleAB')
        p('s_branch L_roleB')
        p('L_exit:')
        p('s_endpgm')

    def prologue(self, A, B, name):
        p = self.p
        vm0, tags0 = self.vm, dict(self.tags)
        p(f'L_role{name}:')
        vR, vG, t0, t1, t2, vD = T, T + 1, T + 2, T + 3, T + 4, T + 5
        sXW, sXJ = 's78', 's79'
        p(f'v_and_b32 v{vR}, 15, v0'); p(f'v_lshrrev_b32 v{vG}, 4, v0')
        p(f's_lshl_b32 {sXW}, {sX}, 2'); p(f's_add_u32 {sXJ}, {sXW}, {sJ}'); p(f's_add_u32 {sXW}, {sXW}, {sW}')
        p(f'v_and_b32 v{t0}, 1, v{vG}'); p(f'v_lshrrev_b32 v{vD}, 1, v{vG}'); p(f'v_lshl_add_u32 v{vD}, v{t0}, 1, v{vD}')
        SN = T + 8
        for k in range(4): p(f'v_mov_b32 v{SN+k}, -1')
        p(f's_lshl_b32 {sT}, {sXJ}, 3'); p(f's_add_u32 {sT}, {sT}, {sS}')
        p(f's_lshl_b32 {sT2}, {sT}, 8'); p(f's_add_u32 {sT2}, {sT2}, {H(OP)}')
        p(f'v_lshlrev_b32 {vOW}, 2, v0'); p(f'v_add_u32 {vOW}, {sT2}, {vOW}')
        p(f's_lshl_b32 {sT2}, {sT}, 3'); p(f's_add_u32 {sT2}, {sT2}, {H(OS)}')
        p(f'v_mov_b32 {vOSW}, {sT2}')
        p(f's_and_b32 {sT3}, {sW}, 1'); p(f's_lshl_b32 {sT3}, {sT3}, 20')
        self.vmem(f'buffer_store_dword v{SN}, {vOW}, {srd("WS")}, {sT3} offen sc1', tag='CLR')
        p('s_mov_b64 exec, 1')
        self.vmem(f'buffer_store_dwordx2 {vr(SN,2)}, {vOSW}, {srd("WS")}, {sT3} offen sc1', tag='CLR')
        p('s_mov_b64 exec, -1')
        if B:
            p(f'v_lshrrev_b32 v{t0}, 3, v0'); p(f'v_mul_u32_u24 {vXW}, {H(CPS)}, v{t0}')
            p(f'v_and_b32 v{t0}, 7, v0'); p(f'v_lshl_add_u32 {vXW}, v{t0}, 4, {vXW}')
            p(f's_lshl_b32 {sT}, {sIB}, 10'); p(f's_lshl_b32 {sT2}, {sX}, 7'); p(f's_add_u32 {sT}, {sT}, {sT2}'); p(f's_add_u32 {sT}, {sT}, {H(XAo)}')
            p(f'v_add_u32 {vXW}, {sT}, {vXW}')
            p(f's_lshr_b32 {sT}, {sW}, 1'); p(f's_mul_i32 {sT}, {sT}, {H(XMo-XAo)}'); p(f's_add_u32 {sT}, {sT}, {sT3}')
            self.vmem(f'buffer_store_dwordx4 {vr(SN,4)}, {vXW}, {srd("WS")}, {sT} offen sc1', tag='CLR')
        if A:
            p(f'v_lshrrev_b32 v{t0}, 2, v{vR}'); p(f'v_mul_u32_u24 {vQW}, 2560, v{t0}')
            p(f'v_and_b32 v{t0}, 3, v{vR}'); p(f'v_lshl_add_u32 {vQW}, v{t0}, 5, {vQW}')
            p(f'v_lshl_add_u32 {vQW}, v{vG}, 4, {vQW}')
            p(f's_mul_i32 {sT}, {sXW}, 0x2800'); p(f's_lshl_b32 {sT2}, {sIA}, 7'); p(f's_add_u32 {sT}, {sT}, {sT2}')
            p(f'v_add_u32 {vQW}, {sT}, {vQW}')
            p(f's_mul_i32 {sT}, {sXW}, 0x1400'); p(f's_lshl_b32 {sT2}, {sIA}, 8'); p(f's_add_u32 {sT}, {sT}, {sT2}'); p(f's_add_u32 {sT}, {sT}, {H(HP)}')
            p(f'v_add_u32 {vHW}, {sT}, {a16}')
            p(f's_lshl_b32 {sT}, {sXW}, 9'); p(f's_lshl_b32 {sT2}, {sIA}, 2'); p(f's_add_u32 {sT}, {sT}, {sT2}'); p(f's_add_u32 {sT}, {sT}, {H(ST)}')
            p(f'v_mov_b32 {vSW}, {sT}'); p(f's_add_u32 {sT}, {sT}, 80'); p(f'v_writelane_b32 {vSW}, {sT}, 0')
            p(f's_mov_b32 {sT}, {H(LSTR)}'); p(f's_mov_b32 {sT2}, {H(CSL)}')
            p('s_mov_b32 exec_hi, 0')
            for so in ('0', sT, sT2):
                self.vmem(f'buffer_store_dwordx4 {vr(SN,4)}, {vQW}, {srd("WS")}, {so} offen sc1', tag='CLR')
            p('s_mov_b64 exec, 0xffff')
            for so in ('0', sT, sT2):
                self.vmem(f'buffer_store_dwordx4 {vr(SN,4)}, {vHW}, {srd("WS")}, {so} offen sc1', tag='CLR')
            p('s_mov_b64 exec, 0x101')
            for so in ('0', sT):
                for off in (0, 256):
                    self.vmem(f'buffer_store_dword v{SN}, {vSW}, {srd("WS")}, {so} offen offset:{off} sc1', tag='CLR')
            p('s_mov_b64 exec, -1')
            p(f'v_and_b32 v{t0}, 0x38, v0')
            p(f's_lshl_b32 {sT}, {sIA}, 6')
            self.vmem(f'buffer_load_dwordx2 {ar(aX,2)}, v{t0}, {srd("X")}, {sT} offen', tag='XL')
            self.vmem(f'buffer_load_dwordx2 {ar(aB2,2)}, v{t0}, {srd("B2")}, {sT} offen', tag='XL')
            p(f'v_lshlrev_b32 v{t0}, 16, v{vG}'); p(f'v_lshl_add_u32 v{t0}, v{vR}, 4, v{t0}')
            p(f's_lshl_b32 {sT}, {sIA}, 18'); p(f's_lshl_b32 {sT2}, {sXW}, 8'); p(f's_add_u32 {sT}, {sT}, {sT2}')
            for jj in range(8):
                self.vmem(f'buffer_load_dwordx4 {ar(aWQ+4*jj,4)}, v{t0}, {srd("WQ")}, {sT} offen', tag='WQ')
                if jj < 7: p(f's_add_u32 {sT}, {sT}, 8192')
            p(f'v_mul_u32_u24 v{t0}, {8*3456}, v{vG}'); p(f'v_lshl_add_u32 v{t0}, v{vR}, 3, v{t0}')
            p(f's_mul_i32 {sT}, {sIA}, {32*3456}'); p(f's_mul_i32 {sT2}, {sX}, 432'); p(f's_add_u32 {sT}, {sT}, {sT2}')
            p(f's_lshl_b32 {sT2}, {sW}, 7'); p(f's_add_u32 {sT}, {sT}, {sT2}')
            for jj in range(8):
                self.vmem(f'buffer_load_dwordx2 {ar(aW1+2*jj,2)}, v{t0}, {srd("W1")}, {sT} offen', tag='W1')
                if jj < 7: p(f's_add_u32 {sT}, {sT}, 3456')
        for mb in range(8, 24): self.kload(mb)
        p(f's_mul_i32 {sT}, {sXJ}, 0x2800'); p(f's_mul_i32 {sT2}, {sW}, 2560'); p(f's_add_u32 {sT}, {sT}, {sT2}')
        p(f'v_add_u32 {vQR}, {sT}, {a16}')
        p(f'v_mov_b32 v{t1}, {H(OOB)}')
        p(f'v_cmp_gt_u32 vcc, 32, v0'); p(f'v_cndmask_b32 {vQR3}, v{t1}, {vQR}, vcc')
        p(f'v_and_b32 v{t0}, 1, v{vR}'); p(f'v_mul_u32_u24 v{t0}, 80, v{t0}')
        p(f'v_lshrrev_b32 v{t2}, 1, v{vR}'); p(f'v_lshl_add_u32 v{t0}, v{t2}, 4, v{t0}')
        p(f'v_cmp_gt_u32 vcc, 10, v{vR}'); p(f'v_cndmask_b32 v{t0}, v{t1}, v{t0}, vcc')
        p(f's_lshl_b32 {sT}, {sXJ}, 9'); p(f's_add_u32 {sT}, {sT}, {H(ST)}'); p(f'v_add_u32 {vSRQ}, {sT}, v{t0}')
        if B:
            p(f's_lshl_b32 {sT}, {sXW}, 9'); p(f's_add_u32 {sT}, {sT}, {H(ST)}'); p(f'v_add_u32 {vSRH}, {sT}, v{t0}')
            p(f'v_and_b32 v{t0}, 7, v0'); p(f'v_lshlrev_b32 {vOR}, 8, v{t0}')
            p(f'v_lshrrev_b32 v{t0}, 3, v{vR}'); p(f'v_lshl_add_u32 {vOR}, v{t0}, 6, {vOR}')
            p(f'v_lshl_add_u32 {vOR}, v{vG}, 4, {vOR}')
            p(f's_lshl_b32 {sT}, {sXW}, 11'); p(f's_add_u32 {sT}, {sT}, {H(OP)}'); p(f'v_add_u32 {vOR}, {sT}, {vOR}')
            p(f'v_lshl_add_u32 v{t0}, v{vG}, 2, v{vR}'); p(f'v_and_b32 v{t0}, 7, v{t0}'); p(f'v_lshlrev_b32 v{t0}, 3, v{t0}')
            p(f's_lshl_b32 {sT}, {sXW}, 6'); p(f's_add_u32 {sT}, {sT}, {H(OS)}'); p(f'v_add_u32 {vOSR}, {sT}, v{t0}')
            p(f's_mul_i32 {sT}, {sXW}, 0x1400'); p(f's_add_u32 {sT}, {sT}, {H(HP)}'); p(f'v_add_u32 {vHR}, {sT}, {a16}')
            p(f'v_lshrrev_b32 v{t0}, 3, v{vR}')
            p(f'v_lshlrev_b32 {lRW}, 7, v{t0}')
            p(f'v_and_b32 v{t2}, 7, v0'); p(f'v_lshl_add_u32 {lRW}, v{t2}, 4, {lRW}')
            p(f'v_add_u32 {lRR}, {L_R}, {lRW}')
            p(f'v_and_b32 v{t2}, 1, v{vG}'); p(f'v_lshl_add_u32 {lRW}, v{t2}, 3, {lRW}')
            p(f's_lshl_b32 {sT}, {sW}, 8'); p(f's_add_u32 {sT}, {sT}, {L_R}'); p(f'v_add_u32 {lRW}, {sT}, {lRW}')
            p(f'v_lshrrev_b32 v{t2}, 1, v{vG}'); p(f'v_cmp_eq_u32 vcc, v{t0}, v{t2}')
            p(f'v_lshlrev_b32 v{t2}, 3, v0'); p(f'v_add_u32 v{t2}, {L_J2}, v{t2}')
            p(f'v_cndmask_b32 {lRW}, v{t2}, {lRW}, vcc')
            p(f'v_lshl_add_u32 v{t0}, v{vR}, 2, v{vD}'); p(f's_lshl_b32 {sT}, {sW}, 6'); p(f'v_add_u32 v{t0}, {sT}, v{t0}')
            p(f'v_and_b32 v{t2}, 1, v0'); p(f'v_lshlrev_b32 v{t2}, 4, v{t2}'); p(f'v_mov_b32 v{t1}, 0xffff'); p(f'v_lshlrev_b32 v{t1}, v{t2}, v{t1}')
            p(f'v_cmp_gt_u32 vcc, 216, v{t0}'); p(f'v_cndmask_b32 v{t1}, 0, v{t1}, vcc')
            p(f'v_bfe_u32 v{t2}, v0, 1, 2')
            for k in range(4):
                p(f'v_cmp_eq_u32 vcc, {k}, v{t2}'); p(f'v_cndmask_b32 v{MK+k}, 0, v{t1}, vcc')
            p(f'v_lshlrev_b32 v{T+12}, 1, v{t0}')
            p(f'v_and_b32 v{t0}, 1, v{vG}'); p(f'v_lshlrev_b32 v{t0}, 6, v{t0}')
            p(f'v_lshrrev_b32 v{t2}, 3, v{vR}'); p(f'v_lshl_add_u32 v{t0}, v{t2}, 1, v{t0}')
            p(f'v_lshrrev_b32 v{t1}, 1, v{vG}'); p(f'v_add_u32 v{t0}, v{t0}, v{t1}')
            p(f'v_mul_u32_u24 v{t0}, 1280, v{t0}')
            p(f'v_and_b32 v{t1}, 7, v0'); p(f'v_lshl_add_u32 v{T+13}, v{t1}, 3, v{t0}')
            p(f'v_lshl_add_u32 v{t0}, v{t2}, 5, v{vD}'); p(f'v_mul_u32_u24 v{t0}, 1280, v{t0}')
            p(f'v_lshl_add_u32 v{T+14}, v{t1}, 3, v{t0}')
        if A:
            p(f'v_and_b32 v{t0}, 7, v0'); p(f'v_lshlrev_b32 {vXR}, 7, v{t0}')
            p(f'v_lshrrev_b32 v{t0}, 3, v0'); p(f'v_lshl_add_u32 {vXR}, v{t0}, 4, {vXR}')
            p(f's_lshl_b32 {sT}, {sIA}, 10'); p(f's_add_u32 {sT}, {sT}, {H(XAo)}'); p(f'v_add_u32 {vXR}, {sT}, {vXR}')
            for k in range(4): p(f'v_mov_b32 v{XB+k}, 0x3f803f80')
        p(f'v_and_b32 v{t0}, 7, v0'); p(f'v_lshl_add_u32 v{t0}, v{t0}, 2, v{vD}'); p(f's_lshl_b32 {sT}, {sW}, 5'); p(f'v_add_u32 v{t0}, {sT}, v{t0}')
        p(f'v_lshlrev_b32 {lQW}, 1, v{t0}')
        p(f'v_lshrrev_b32 v{t0}, 2, v0'); p(f'v_lshlrev_b32 {lQR}, 4, v{t0}')
        p(f'v_lshlrev_b32 {lMW}, 3, v0'); p(f'v_add_u32 {lMW}, {L_J1}, {lMW}')
        p(f's_lshl_b32 {sT}, {sW}, 3'); p(f's_add_u32 {sT}, {sT}, {L_ML}'); p(f'v_writelane_b32 {lMW}, {sT}, 63')
        p(f'v_add_u32 v{t0}, {sW}, v0'); p(f'v_and_b32 v{t0}, 3, v{t0}'); p(f'v_lshlrev_b32 v{t0}, 3, v{t0}'); p(f'v_add_u32 {lMR}, {L_ML}, v{t0}')
        p(f's_lshl_b32 {sT}, {sW}, 9'); p(f's_add_u32 {sT}, {sT}, {L_O}'); p(f'v_lshlrev_b32 {lOW}, 2, v0'); p(f'v_add_u32 {lOW}, {sT}, {lOW}')
        p(f'v_lshlrev_b32 {lOR}, 3, v0'); p(f'v_add_u32 {lOR}, {L_O}, {lOR}')
        p(f'v_mov_b32 {vC}, {H(f2u(CSC))}')
        for k in range(24): p(f'v_mov_b32 v{BQ+k}, 0')
        p(f'v_lshlrev_b32 v{T+15}, 2, v0')
        p(f'v_mov_b32 v{t0}, {sFlag}'); p(f'v_mov_b32 v{t1}, s2')
        self.wait('CLR')
        self.lgkm(0)
        p('s_barrier')
        p('s_mov_b64 exec, 1')
        self.vmem(f'buffer_store_byte v{t0}, v{t1}, {srd("DBG")}, 0 offen sc1')
        p('s_mov_b64 exec, -1')
        self.stamp(1)
        if A:
            self.wait('WQ')
            p(f'v_accvgpr_read_b32 v{XA}, a{aX}'); p(f'v_accvgpr_read_b32 v{XA+1}, a{aX+1}')
            self.transpose(aWQ, 4, ACC, T + 2)
            self.build_xa()
            self.qp(XA, '0', 'sc1', True, True)
            ON = T + 4
            for k in range(4): p(f'v_mov_b32 v{ON+k}, 0x3f803f80')
            p(f's_mov_b32 {sT2}, {H(CSL)}')
            self.qp(ON, sT2, 'sc1', False, True)
            self.wait('W1')
            self.transpose(aW1, 2, ACC, T + 2)
            self.w1(ON, sT2, 'sc1', False, True)
            self.stamp(2)
        for mb in range(24, 32): self.kload(mb)
        if B:
            p(f's_mul_i32 {sT}, {sX}, 432')
            self.vmem(f'buffer_load_ushort a{aB1}, v{T+12}, {srd("B1")}, {sT} offen', tag='B1')
            p(f's_mul_i32 {sT}, {sXW}, {128*1280}'); p(f's_lshl_b32 {sT2}, {sIB}, 6'); p(f's_add_u32 {sT}, {sT}, {sT2}')
            for t in range(2):
                for jj in range(8):
                    p(f's_add_u32 {sT3}, {sT}, {(8*jj+4*t)*1280}')
                    self.vmem(f'buffer_load_dwordx2 {ar(aWO+16*t+2*jj,2)}, v{T+13}, {srd("WO")}, {sT3} offen', tag='WO')
            p(f's_mul_i32 {sT}, {sX}, {216*1280}'); p(f's_add_u32 {sT}, {sT}, {sT2}')
            p(f's_mul_i32 {sT2}, {sW}, {64*1280}'); p(f's_add_u32 {sT}, {sT}, {sT2}')
            for jj in range(8):
                p(f's_add_u32 {sT3}, {sT}, {4*jj*1280}')
                self.vmem(f'buffer_load_dwordx2 {ar(aW2+2*jj,2)}, v{T+14}, {srd("W2")}, {sT3} offen', tag='W2')
        nv0 = self.o.nv0
        for mb in range(0, nv0): self.vload(mb)
        self.vmem(f'buffer_load_dword {vFL}, v{T+15}, {srd("DBG")}, 0 offen sc1', tag='FL')
        for mb in range(nv0, 16): self.vload(mb)
        self.stamp(3)
        self.flush()
        Lret = f'L_dryret{name}'
        if self.o.dry:
            p(f's_mov_b32 {sState}, 0')
            self.set_layer(DUM)
            if self.o.stamps: p(f'v_accvgpr_write_b32 a255, {vSTAMP}')
            p(f's_branch L_loop{name}_fast')
            p(f'{Lret}:')
            if self.o.stamps: p(f'v_accvgpr_read_b32 {vSTAMP}, a255')
        p(f's_mov_b32 {sState}, 1')
        self.set_layer(0)
        self.stamp(4)
        self.wait('FL')
        Lfp, Lfok, Lfc = p.label('Lfp'), p.label('Lfok'), p.label('Lfc')
        p(f'{Lfc}:')
        p(f'v_and_b32 v{t0}, 0x80808080, {vFL}')
        p(f'v_cmp_ne_u32 vcc, 0x80808080, v{t0}')
        Lr = self.retry(Lfp, Lfok)
        self.ool.append([f'{Lfp}:', f'v_lshlrev_b32 v{t0}, 2, v0', f'buffer_load_dword {vFL}, v{t0}, {srd("DBG")}, 0 offen sc1',
                         's_waitcnt vmcnt(0)', f's_branch {Lfc}'])
        p(f's_cbranch_vccnz {Lr}')
        p(f'{Lfok}:')
        self.stamp(5)
        s4 = ACC + 24
        p(f's_mov_b32 {sT2}, {H(CSL)}'); p(f's_mov_b32 {sT3}, {H(CSL+4096)}')
        self.vmem(f'buffer_load_dwordx4 {vr(s4,4)}, {vSRQ}, {srd("WS")}, 0 offen sc1', tag='Q0')
        self.qa2a_loads(ACC, '0', True, 'Q0')
        self.qa2a_loads(ACC + 12, sT2, True, 'Q0')
        if B: self.ha2a_loads(aC1, True, sT2, sT3, True, 'C1')
        for mb in range(16, 32): self.vload(mb)
        sMode = 's78'
        p(f's_and_b32 {sT}, {sX}, 3'); p(f's_lshl_b32 {sT}, {sT}, 3')
        p(f'v_bfe_u32 v{t0}, {vFL}, {sT}, 8')
        p(f'v_cmp_ne_u32 vcc, {sFlag}, v{t0}')
        p(f's_lshr_b32 {sT}, {sX}, 2'); p(f's_lshl_b32 {sT}, 0x55555555, {sT}')
        p(f's_or_b32 {sMode}, vcc_lo, vcc_hi'); p(f's_and_b32 {sMode}, {sMode}, {sT}')
        if self.o.forceslow: p(f's_mov_b32 {sMode}, 1')
        if A:
            p(f'v_accvgpr_read_b32 v{XA}, a{aX}'); p(f'v_accvgpr_read_b32 v{XA+1}, a{aX+1}')
            for s in self.unpack_xr(False): p(s)
            p(f'v_accvgpr_read_b32 v{t0}, a{aB2}'); p(f'v_accvgpr_read_b32 v{t1}, a{aB2+1}')
            p(f'v_lshlrev_b32 v{B2}, 16, v{t0}'); p(f'v_and_b32 v{B2+1}, 0xffff0000, v{t0}')
            p(f'v_lshlrev_b32 v{B2+2}, 16, v{t1}'); p(f'v_and_b32 v{B2+3}, 0xffff0000, v{t1}')
        if B:
            p(f'v_accvgpr_read_b32 {B1v}, a{aB1}'); p(f'v_lshlrev_b32 {B1v}, 16, {B1v}')
            self.transpose(aWO, 2, T, T + 16)
            self.transpose(aWO + 16, 2, T, T + 16)
            self.transpose(aW2, 2, T, T + 16)
        u, st, mean, sc = T, T + 1, T + 2, T + 3
        self.wait('Q0')
        Lq, Lqp = p.label('Lq'), p.label('Lqp')
        p(f'{Lq}:')
        self.merge(self.qa2a_sum(ACC, f'v{u}'), self.qa2a_sum(ACC + 12, CSQ), self.stats_ops(s4, st, mean, sc, False))
        rl = [f'{Lqp}:', f's_mov_b32 {sT2}, {H(CSL)}', f'buffer_load_dwordx4 {vr(s4,4)}, {vSRQ}, {srd("WS")}, 0 offen sc1']
        for base, so in ((ACC, '0'), (ACC + 12, sT2)):
            for t in range(3):
                rl.append(f'buffer_load_dwordx4 {vr(base+4*t,4)}, {vQR3 if t == 2 else vQR}, {srd("WS")}, {so} offen offset:{1024*t} sc1')
        rl += ['s_waitcnt vmcnt(0)', f's_branch {Lq}']
        self.ool.append(rl)
        self.q_finish(u, st, mean, sc, Lqp)
        self.stamp(6)
        self.flush()
        self.qk_softmax()
        self.stamp(7)
        if B:
            self.wait('C1')
            Lc, Lcp, Lcok = p.label('Lc'), p.label('Lcp'), p.label('Lcok')
            p(f'{Lc}:')
            cb = ACC + 8
            for k in range(20): p(f'v_accvgpr_read_b32 v{cb+k}, a{aC1+k}')
            for s in self.ha2a_sum(cb, CS1): p(s)
            p(f'v_cmp_u_f32 vcc, {CS1}, {CS1}')
            Lr = self.retry(Lcp, Lcok)
            rl = [f'{Lcp}:', f's_mov_b32 {sT2}, {H(CSL)}', f's_mov_b32 {sT3}, {H(CSL+4096)}']
            for t in range(5):
                rl.append(f'buffer_load_dwordx4 {ar(aC1+4*t,4)}, {vHR}, {srd("WS")}, {sT3 if t == 4 else sT2} offen offset:{1024*(t&3)} sc1')
            rl += ['s_waitcnt vmcnt(0)', f's_branch {Lc}']
            self.ool.append(rl)
            p(f's_cbranch_vccnz {Lr}')
            p(f'{Lcok}:')
        self.pv(self.ml_ops('sc1'), True)
        self.flush()
        p(f's_cmp_eq_u32 {sMode}, 0'); p(f's_cbranch_scc1 L_loop{name}_fast')
        p(f's_branch L_loop{name}_slow')
        for code in self.ool:
            for s in code: p(s)
        self.ool = []
        self.loop(A, B, True, f'L_loop{name}_fast', Lret if self.o.dry else None)
        self.loop(A, B, False, f'L_loop{name}_slow', None)
        self.vm, self.tags = vm0, tags0


def main():
    ap = argparse.ArgumentParser()
    ap.add_argument('out')
    ap.add_argument('--stamps', type=int, default=0)
    ap.add_argument('--dry', type=int, default=1)
    ap.add_argument('--x8delay', type=int, default=0)
    ap.add_argument('--nv0', type=int, default=8)
    ap.add_argument('--forceslow', type=int, default=0)
    o = ap.parse_args()
    g = G(o)
    g.head()
    g.prologue(True, False, 'A')
    g.prologue(True, True, 'AB')
    g.prologue(False, True, 'B')
    body = g.p.finalize()
    ref = open('cdna_kernels/' + NAME + '.s.ref').read()
    comment = ''.join(l + '\n' for l in ref.split('\n') if l.startswith(';') and '@launch' not in l)
    open(o.out, 'w').write(header(256, 256, LDS_SIZE, comment=comment) + body + footer())
    print('instrs', len(g.p.items), 'nops inserted', g.p.nnops)

main()
```

```python
import sys, struct, math, argparse
from asmlib2 import *

def f2u(x): return struct.unpack('<I', struct.pack('<f', x))[0]
def H(x): return f'0x{x & 0xffffffff:x}'

LSTR = 0xDD000
QP = 0x0
OP = 0x50000
HP = 0x60000
XAo = 0x88000
XMo = 0xB0000
ST = 0xD8000
OS = 0xDC000
CSL = 2 * LSTR
DUM = 3 * LSTR
CPS = 0x5000
CLR0 = OP
CLRN = (2 * LSTR - CLR0) // 1024
OOB = 0x80000000
L_Q, L_ML, L_J1, L_O, L_R, L_J2 = 0, 256, 512, 1024, 3072, 5120
LDS_SIZE = 8192
sX, sC, sJ, sS, sW = 's3', 's4', 's5', 's6', 's7'
SRD = dict(K=8, V=12, WS=16, X=20, WQ=24, WO=28, W1=32, B1=36, W2=40, B2=44, OUT=48, DBG=52)
KOFF = dict(X=0, K=8, V=16, WQ=24, WO=32, W1=48, B1=56, W2=64, B2=72, OUT=80, DBG=88, WS=96)
SIZE = dict(X=1280, K=1 << 25, V=1 << 25, WQ=640 * 8192, WO=4096 * 1280, W1=640 * 3456, B1=3456, W2=1728 * 1280,
            B2=1280, OUT=1280, DBG=256, WS=1 << 28)
def srd(n): return f's[{SRD[n]}:{SRD[n]+3}]'
sKV = 56
sL, sLH4, sLM, sT, sT2, sBud, sLo, sHi, sMc, sIA, sIB, sFlag, sState, sT3 = [f's{i}' for i in range(64, 78)]
sMode = 's78'
sMB = 80
sMF = 88
sSTAMP = 92
vLane, a16 = 'v0', 'v1'
vQW, vQR, vQR3, vSW, vSRQ, vSRH, vOW, vOR, vOSW, vOSR, vXW, vXR, vHW, vHR = [f'v{i}' for i in range(2, 16)]
lQW, lQR, lMW, lMR, lOW, lOR, lRW, lRR = [f'v{i}' for i in range(16, 24)]
CSQ, CS1, B1v, vC = 'v24', 'v25', 'v26', 'v27'
MK, XA, XB, XR, B2, BQ, PA, ACC, T = 28, 32, 36, 40, 44, 48, 64, 72, 104
VB = 126
vFL = 'v124'
vSTAMP = 'v125'
aWQ, aWO, aW1, aW2, aX, aB2, aB1, aC1 = 128, 160, 192, 208, 224, 226, 228, 232
def v(i): return f'v{i}'
def vr(i, n): return f'v[{i}:{i+n-1}]'
def ar(i, n): return f'a[{i}:{i+n-1}]'
DF = 'row_mask:0xf bank_mask:0xf'
MFMA = 'v_mfma_f32_16x16x32_bf16'
CSC = (128 ** -0.5) * math.log2(math.e)
EPS = 1e-5


class G:
    def __init__(self, opt):
        self.p = Prog()
        self.o = opt
        self.vm = 0
        self.tags = {}
        self.pend = []
        self.ool = []
        self.nst = 0

    def __call__(self, s): self.p(s)

    def vmem(self, s, tag=None, optional=False):
        self.p(s)
        if not optional:
            self.vm += 1
        if tag: self.tags[tag] = self.vm
    def wait(self, tag):
        n = self.vm - self.tags[tag]
        assert 0 <= n
        self.p(f's_waitcnt vmcnt({min(n, 63)})')
    def stamp(self, k):
        if not self.o.stamps: return
        if len(self.pend) >= 5: self.lgkm(0)
        r = sSTAMP + 2 * (self.nst % 5); self.nst += 1
        self.p(f's_memrealtime s[{r}:{r+1}]')
        self.pend.append((k, r))
    def lgkm(self, n):
        if self.pend:
            self.p('s_waitcnt lgkmcnt(0)')
            for k, r in self.pend:
                if isinstance(k, tuple):
                    self.p(f's_mul_i32 {sT3}, {sState}, {k[1]}')
                    self.p(f's_add_u32 m0, {sT3}, {k[0]}')
                    self.p(f'v_writelane_b32 {vSTAMP}, s{r}, m0')
                else:
                    self.p(f'v_writelane_b32 {vSTAMP}, s{r}, {k}')
            self.pend = []
        else:
            self.p(f's_waitcnt lgkmcnt({n})')
    def flush(self):
        if self.pend: self.lgkm(0)

    def transpose(self, abase, W, tmp, tmp2):
        p = self.p
        n = 8 * W
        for k in range(n):
            p(f'v_accvgpr_read_b32 v{tmp+k}, a{abase+k}')
        cnt = 0
        for dp in range(W):
            for hi in range(2):
                for tau in range(4):
                    t = tmp2 + (cnt & 1); cnt += 1
                    p(f'v_perm_b32 v{t}, v{tmp+(2*tau+1)*W+dp}, v{tmp+(2*tau)*W+dp}, {sHi if hi else sLo}')
                    p(f'v_accvgpr_write_b32 a{abase+(2*dp+hi)*4+tau}, v{t}')

    def build_xa(self):
        p = self.p
        p(f'v_mov_b32_dpp v{XA+2}, v{XA} row_ror:8 {DF}')
        p(f'v_mov_b32_dpp v{XA+3}, v{XA+1} row_ror:8 {DF}')

    def xb_ops(self):
        return [f'v_mov_b32_dpp v{XB+k}, v{XA+k} quad_perm:[0,1,2,3] row_mask:0xf bank_mask:0x3' for k in range(4)]

    def unpack_xr(self, addb2):
        ops = [f'v_lshlrev_b32 v{XR}, 16, v{XA}', f'v_and_b32 v{XR+1}, 0xffff0000, v{XA}',
               f'v_lshlrev_b32 v{XR+2}, 16, v{XA+1}', f'v_and_b32 v{XR+3}, 0xffff0000, v{XA+1}']
        if addb2:
            ops += [f'v_pk_add_f32 {vr(XR,2)}, {vr(XR,2)}, {vr(B2,2)}', f'v_pk_add_f32 {vr(XR+2,2)}, {vr(XR+2,2)}, {vr(B2+2,2)}']
        return ops

    def qp(self, A, soff, fl, stats, track, post=()):
        p = self.p
        st = T + 16
        xb = self.xb_ops() if stats else []
        order = [0, 4, 1, 5, 2, 6, 3, 7]
        mov = {}
        for d in range(8):
            if d == 0: mov[d] = None
            elif d < 4: mov[d] = f'v_mov_b32_dpp v{ACC+d}, v{ACC+4*d} quad_perm:[0,1,2,3] row_mask:0x1 bank_mask:0xf'
            else: mov[d] = f'v_mov_b32_dpp v{ACC+d-4}, v{ACC+4*d} quad_perm:[0,1,2,3] row_mask:0x2 bank_mask:0xf'
        for n, d in enumerate(order):
            p(f'{MFMA} {vr(ACC+4*d,4)}, {vr(A,4)}, {ar(aWQ+4*d,4)}, 0')
            if n < 2 and xb:
                p(xb[2*n]); p(xb[2*n+1])
            if n == 3 and stats:
                p(f'{MFMA} {vr(st,4)}, {vr(XA,4)}, {vr(XB,4)}, 0')
        p('s_mov_b32 exec_hi, 0')
        for d in order[1:]:
            p(mov[d])
        self.vmem(f'buffer_store_dwordx4 {vr(ACC,4)}, {vQW}, {srd("WS")}, {soff} offen {fl}', optional=not track)
        if stats:
            p('s_mov_b64 exec, 0x101')
            self.vmem(f'buffer_store_dword v{st}, {vSW}, {srd("WS")}, {soff} offen {fl}', optional=not track)
        p('s_mov_b64 exec, -1')
        for s in post: p(s)

    def w1(self, A, soff, fl, stats, track, post=()):
        p = self.p
        st = T + 16
        xb = self.xb_ops() if stats else []
        for d in range(4):
            p(f'{MFMA} {vr(ACC+4*d,4)}, {vr(A,4)}, {ar(aW1+4*d,4)}, 0')
            if d < 2 and xb:
                p(xb[2*d]); p(xb[2*d+1])
        if stats:
            p(f'{MFMA} {vr(st,4)}, {vr(XA,4)}, {vr(XB,4)}, 0')
        p('s_mov_b64 exec, 0xffff')
        for d in range(1, 4):
            p(f'v_mov_b32 v{ACC+d}, v{ACC+4*d}')
        self.vmem(f'buffer_store_dwordx4 {vr(ACC,4)}, {vHW}, {srd("WS")}, {soff} offen {fl}', optional=not track)
        if stats:
            p('s_mov_b64 exec, 0x101')
            self.vmem(f'buffer_store_dword v{st}, {vSW}, {srd("WS")}, {soff} offen offset:256 {fl}', optional=not track)
        p('s_mov_b64 exec, -1')
        for s in post: p(s)

    def rs4(self, a, out):
        return [f'v_permlane32_swap_b32 v{a}, v{a+1}', f'v_permlane32_swap_b32 v{a+2}, v{a+3}',
                f'v_add_f32 v{a}, v{a}, v{a+1}', f'v_add_f32 v{a+2}, v{a+2}, v{a+3}',
                f'v_permlane16_swap_b32 v{a}, v{a+2}', f'v_add_f32 {out}, v{a}, v{a+2}']

    def stats_ops(self, s4, st, mean, sc, second):
        inv = H(f2u(1.0 / 640))
        ops = [f'v_pk_add_f32 {vr(s4,2)}, {vr(s4,2)}, {vr(s4+2,2)}',
               f'v_add_f32 v{st}, v{s4}, v{s4+1}',
               f'v_add_f32_dpp v{st}, v{st}, v{st} row_ror:2 {DF}',
               f'v_add_f32_dpp v{st}, v{st}, v{st} row_ror:4 {DF}',
               f'v_add_f32_dpp v{st}, v{st}, v{st} row_ror:8 {DF}',
               f'v_mul_f32 v{st}, {inv}, v{st}',
               f'v_mov_b32_dpp v{mean}, v{st} quad_perm:[0,0,2,2] {DF}',
               f'v_mov_b32_dpp v{sc}, v{st} quad_perm:[1,1,3,3] {DF}',
               f'v_fma_f32 v{sc}, -v{mean}, v{mean}, v{sc}',
               f'v_max_f32 v{sc}, 0, v{sc}']
        if second:
            ops += [f'v_mul_f32 v{sc}, {H(f2u(1.0 + EPS))}, v{sc}', f'v_add_f32 v{sc}, {H(f2u(EPS * EPS))}, v{sc}']
        else:
            ops += [f'v_add_f32 v{sc}, {H(f2u(EPS))}, v{sc}']
        ops += [f'v_rsq_f32 v{sc}, v{sc}']
        return ops

    def merge(self, *lists):
        lists = [list(l) for l in lists]
        while any(lists):
            for l in lists:
                if l: self.p(l.pop(0))

    def retry(self, Lp, Lok, extra=()):
        Lr = self.p.label('Lretry')
        code = [f'{Lr}:', f's_cmp_eq_u32 {sState}, 0', f's_cbranch_scc1 {Lok}',
                f's_cmp_eq_u32 {sBud}, 0', f's_cbranch_scc1 {Lok}', f's_sub_u32 {sBud}, {sBud}, 1'] + list(extra) + [f's_branch {Lp}']
        self.ool.append(code)
        return Lr

    def qa2a_loads(self, base, soff, track, tag=None):
        for t in range(3):
            self.vmem(f'buffer_load_dwordx4 {vr(base+4*t,4)}, {vQR3 if t == 2 else vQR}, {srd("WS")}, {soff} offen offset:{1024*t} sc1',
                      optional=not track, tag=tag)
    def qa2a_sum(self, base, out):
        return [f'v_pk_add_f32 {vr(base,2)}, {vr(base,2)}, {vr(base+4,2)}', f'v_pk_add_f32 {vr(base+2,2)}, {vr(base+2,2)}, {vr(base+6,2)}',
                f'v_pk_add_f32 {vr(base,2)}, {vr(base,2)}, {vr(base+8,2)}', f'v_pk_add_f32 {vr(base+2,2)}, {vr(base+2,2)}, {vr(base+10,2)}'] \
            + self.rs4(base, out) + [f'v_add_f32_dpp {out}, {out}, {out} row_ror:8 {DF}']

    def q_finish(self, u, st, mean, sc, Lp):
        p = self.p
        Lok = p.label('Lok')
        Lr = self.retry(Lp, Lok)
        p(f'v_fma_f32 v{u}, -v{mean}, {CSQ}, v{u}')
        p(f'v_mul_f32 v{u}, v{u}, v{sc}')
        p(f'v_cvt_pk_bf16_f32 v{sc}, v{u}, v{u}')
        p(f'v_cmp_u_f32 vcc, v{u}, v{st}')
        p(f's_cbranch_vccnz {Lr}')
        p(f'{Lok}:')
        p(f'ds_write_b16 {lQW}, v{sc}')
        self.lgkm(0)
        p('s_barrier')

    def qk_softmax(self):
        p = self.p
        S = [T, T + 1]
        for b in range(4):
            p(f's_mov_b64 exec, s[{sMB+2*b}:{sMB+2*b+1}]')
            p(f'ds_read_b128 {vr(BQ+4*b,4)}, {lQR}')
        p('s_mov_b64 exec, -1')
        def adds(e):
            h, be = e >> 2, e & 3
            D = ACC + 4 * e
            first = True
            out = []
            for u in range(4):
                if u == be: continue
                src1 = f'v{D+be}' if first else f'v{S[h]}'
                out.append(f'v_add_f32_dpp v{S[h]}, v{D+u}, {src1} row_ror:{(4*(be-u)) % 16} row_mask:0xf bank_mask:{1<<be:#x}')
                first = False
            return out
        for b in range(4):
            self.lgkm(3 - b)
            for e in range(8):
                h, be = e >> 2, e & 3
                mb = 8 * be + 2 * b + h
                c = '0' if b == 0 else vr(ACC + 4 * e, 4)
                p(f'{MFMA} {vr(ACC+4*e,4)}, {ar(4*mb,4)}, {vr(BQ+4*b,4)}, {c}')
                if b == 3 and e >= 3:
                    for s in adds(e - 3): p(s)
        for e in (5, 6, 7):
            for s in adds(e): p(s)
        M = T + 2
        p(f'v_max_f32 v{M}, v{S[0]}, v{S[1]}')
        for n in (1, 2, 4, 8):
            p(f'v_max_f32_dpp v{M}, v{M}, v{M} row_ror:{n} {DF}')
        p(f'v_max_f32_dpp v{M}, v{M}, v{M} row_bcast:15 row_mask:0xa bank_mask:0xf')
        p(f'v_max_f32_dpp v{M}, v{M}, v{M} row_bcast:31 row_mask:0xc bank_mask:0xf')
        p(f'v_mul_f32 v{M}, v{M}, {vC}')
        p(f'v_readlane_b32 {sMc}, v{M}, 63')
        p(f'v_fma_f32 v{S[0]}, v{S[0]}, {vC}, -{sMc}')
        p(f'v_fma_f32 v{S[1]}, v{S[1]}, {vC}, -{sMc}')
        p(f'v_exp_f32 v{S[0]}, v{S[0]}')
        p(f'v_exp_f32 v{S[1]}, v{S[1]}')
        p(f'v_cvt_pk_bf16_f32 v{T+4}, v{S[0]}, v{S[1]}')

    def ml_ops(self, fl):
        P, M, Ls = T + 4, T + 2, T + 3
        m2, l2, mc, f = T + 6, T + 7, T + 8, T + 5
        lc = T + 9
        ops = [f'v_lshlrev_b32 v{Ls}, 16, v{P}', f'v_and_b32 v{T}, 0xffff0000, v{P}', f'v_add_f32 v{Ls}, v{Ls}, v{T}']
        for n in (1, 2, 4, 8):
            ops += [f'v_add_f32_dpp v{Ls}, v{Ls}, v{Ls} row_ror:{n} {DF}', None]
        ops += [f'v_add_f32_dpp v{Ls}, v{Ls}, v{Ls} row_bcast:15 row_mask:0xa bank_mask:0xf', None,
                f'v_add_f32_dpp v{Ls}, v{Ls}, v{Ls} row_bcast:31 row_mask:0xc bank_mask:0xf',
                f'ds_write_b64 {lMW}, {vr(M,2)}', None, None,
                lambda: (self.lgkm(0), self.p('s_barrier'), self.p(f'ds_read_b64 {vr(m2,2)}, {lMR}')), None, None, None,
                lambda: self.lgkm(0),
                f'v_max_f32_dpp v{mc}, v{m2}, v{m2} quad_perm:[1,0,3,2] {DF}', None,
                f'v_max_f32_dpp v{mc}, v{mc}, v{mc} quad_perm:[2,3,0,1] {DF}',
                f'v_sub_f32 v{f}, v{m2}, v{mc}', f'v_exp_f32 v{f}, v{f}', None,
                f'v_mul_f32 v{lc}, v{f}, v{l2}', None,
                f'v_add_f32_dpp v{lc}, v{lc}, v{lc} quad_perm:[1,0,3,2] {DF}', None,
                f'v_add_f32_dpp v{lc}, v{lc}, v{lc} quad_perm:[2,3,0,1] {DF}']
        def st():
            Ls_ = self.p.label('Lnos')
            self.p(f's_cmp_lg_u32 {sW}, 0'); self.p(f's_cbranch_scc1 {Ls_}')
            self.p('s_mov_b64 exec, 1')
            if fl == 'mode':
                L1, L2 = self.p.label('Lm'), self.p.label('Lm')
                self.p(f's_cmp_eq_u32 {sMode}, 0'); self.p(f's_cbranch_scc1 {L1}')
                self.vmem(f'buffer_store_dwordx2 {vr(mc,2)}, {vOSW}, {srd("WS")}, {sL} offen sc1', optional=True)
                self.p(f's_branch {L2}')
                self.p(f'{L1}:')
                self.vmem(f'buffer_store_dwordx2 {vr(mc,2)}, {vOSW}, {srd("WS")}, {sL} offen', optional=True)
                self.p(f'{L2}:')
            else:
                self.vmem(f'buffer_store_dwordx2 {vr(mc,2)}, {vOSW}, {srd("WS")}, {sL} offen {fl}', optional=True)
            self.p('s_mov_b64 exec, -1')
            self.p(f'{Ls_}:')
        ops.append(st)
        return ops

    def run_op(self, o):
        if o is None: return
        if callable(o): o()
        else: self.p(o)

    def pv(self, extras, layer0):
        p = self.p
        P = T + 4
        Da, Db = ACC, ACC + 4
        def build(pp):
            return [f'v_mov_b32_dpp v{PA+4*(pp&1)+t}, v{P} row_newbcast:{pp} row_mask:0xf bank_mask:{1<<t:#x}' for t in range(4)]
        def perms(pp):
            A, Bq, o = VB + 2 + 8 * pp, VB + 6 + 8 * pp, VB + 8 * pp
            seq = [(0, 0), (0, 1), (1, 0), (1, 1), (3, 0), (3, 1), (2, 1), (2, 0)]
            return [f'v_perm_b32 v{o+2*dp+hi}, v{Bq+dp}, v{A+dp}, {sHi if hi else sLo}' for dp, hi in seq]
        extras = list(extras)
        if layer0:
            for o in extras: self.run_op(o)
            extras = []
        for s in build(0): p(s)
        for pp in range(16):
            nb = build(pp + 1) if pp < 15 else []
            if layer0:
                self.wait(f'V{2*pp+1}')
                for s in perms(pp): p(s)
            c = '0' if pp == 0 else None
            p(f'{MFMA} {vr(Da,4)}, {vr(PA+4*(pp&1),4)}, {vr(VB+8*pp,4)}, {c or vr(Da,4)}')
            for s in nb[:3]: p(s)
            p(f'{MFMA} {vr(Db,4)}, {vr(PA+4*(pp&1),4)}, {vr(VB+8*pp+4,4)}, {c or vr(Db,4)}')
            for s in nb[3:]: p(s)
            for _ in range(2):
                if extras: self.run_op(extras.pop(0))
        for o in extras: self.run_op(o)

    def reduce_publish(self, y, soff, ldsoff):
        p = self.p
        p(f'v_permlane16_swap_b32 v{y}, v{y+2}')
        p(f'v_permlane16_swap_b32 v{y+1}, v{y+3}')
        p(f'v_pk_add_f32 {vr(y,2)}, {vr(y,2)}, {vr(y+2,2)}')
        p(f'ds_write_b64 {lRW}, {vr(y,2)} offset:{ldsoff}')
        p(f's_cmp_lg_u32 {sW}, 0')
        self.lgkm(0)
        if self.o.stamps: p(f's_cmp_lg_u32 {sW}, 0')
        p('s_barrier')
        Ls = p.label('Lsk')
        p(f's_cbranch_scc1 {Ls}')
        for k in range(4):
            p(f'ds_read_b128 {vr(ACC+4*k,4)}, {lRR} offset:{ldsoff+256*k}')
        self.lgkm(2)
        p(f'v_pk_add_f32 {vr(ACC,2)}, {vr(ACC,2)}, {vr(ACC+4,2)}')
        p(f'v_pk_add_f32 {vr(ACC+2,2)}, {vr(ACC+2,2)}, {vr(ACC+6,2)}')
        self.lgkm(0)
        p(f'v_pk_add_f32 {vr(ACC+8,2)}, {vr(ACC+8,2)}, {vr(ACC+12,2)}')
        p(f'v_pk_add_f32 {vr(ACC+10,2)}, {vr(ACC+10,2)}, {vr(ACC+14,2)}')
        p(f'v_pk_add_f32 {vr(ACC,2)}, {vr(ACC,2)}, {vr(ACC+8,2)}')
        p(f'v_pk_add_f32 {vr(ACC+2,2)}, {vr(ACC+2,2)}, {vr(ACC+10,2)}')
        for k in range(4):
            p(f'v_add_f32_dpp v{ACC+k}, v{ACC+k}, v{ACC+k} row_ror:8 {DF}')
        self.vmem(f'buffer_store_dwordx4 {vr(ACC,4)}, {vXW}, {srd("WS")}, {soff} offen sc1', optional=True)
        p(f'{Ls}:')

    def poll_head(self):
        p = self.p
        Lp, Lsk = p.label('Lp'), p.label('Lskip')
        p(f's_cmp_eq_u32 {sState}, 0')
        p(f's_cbranch_scc1 {Lsk}')
        p(f'{Lp}:')
        return Lp, Lsk

    def x8(self, soff):
        p = self.p
        Y = T
        p(f's_mov_b32 {sT}, {soff}')
        p(f's_add_u32 {sT2}, {soff}, {CPS*7}')
        for _ in range(self.o.x8delay): p('s_nop 15')
        Lp, Lsk = self.poll_head()
        self.vmem(f'buffer_load_dwordx4 {vr(Y,4)}, {vXR}, {srd("WS")}, {sT} offen sc1', optional=True)
        p('s_waitcnt vmcnt(0)')
        p(f'{Lsk}:')
        for c in ('quad_perm:[1,0,3,2]', 'quad_perm:[2,3,0,1]', 'row_half_mirror'):
            for k in range(4):
                p(f'v_add_f32_dpp v{Y+k}, v{Y+k}, v{Y+k} {c} {DF}')
        p(f'v_pk_add_f32 {vr(Y,2)}, {vr(Y,2)}, {vr(XR,2)}')
        p(f'v_pk_add_f32 {vr(Y+2,2)}, {vr(Y+2,2)}, {vr(XR+2,2)}')
        p(f'v_cvt_pk_bf16_f32 v{XA}, v{Y}, v{Y+1}')
        p(f'v_cvt_pk_bf16_f32 v{XA+1}, v{Y+2}, v{Y+3}')
        p(f'v_pk_add_f32 {vr(Y,2)}, {vr(Y,2)}, {vr(Y+2,2)}')
        p(f'v_cmp_u_f32 vcc, v{Y}, v{Y+1}')
        self.build_xa()
        Lok = p.label('Lok')
        Lr = self.retry(Lp, Lok, [f's_add_u32 {sT}, {sT}, {CPS}', f's_min_u32 {sT}, {sT}, {sT2}'])
        p(f's_cbranch_vccnz {Lr}')
        p(f'{Lok}:')

    def oa2a(self):
        p = self.p
        AO = T
        ml = T + 8
        M, f, Lq, ck = T + 10, T + 11, T + 12, T + 13
        y = T + 16
        Lp, Lsk = self.poll_head()
        self.vmem(f'buffer_load_dwordx2 {vr(ml,2)}, {vOSR}, {srd("WS")}, {sL} offen sc1', optional=True)
        for t in range(2):
            self.vmem(f'buffer_load_dwordx4 {vr(AO+4*t,4)}, {vOR}, {srd("WS")}, {sL} offen offset:{128*t} sc1', optional=True)
        p('s_waitcnt vmcnt(0)')
        p(f'{Lsk}:')
        Lok = p.label('Lok')
        Lr = self.retry(Lp, Lok)
        chk = [f'v_max3_u32 v{ck}, v{AO}, v{AO+1}, v{AO+2}', f'v_max3_u32 v{ck}, v{ck}, v{AO+3}, v{AO+4}',
               f'v_max3_u32 v{ck}, v{ck}, v{AO+5}, v{AO+6}', f'v_max3_u32 v{ck}, v{ck}, v{AO+7}, v{ml}',
               f'v_max_u32 v{ck}, v{ck}, v{ml+1}', f'v_cmp_eq_u32 vcc, -1, v{ck}']
        sc = [f'v_max_f32_dpp v{M}, v{ml}, v{ml} quad_perm:[1,0,3,2] {DF}',
              f'v_max_f32_dpp v{M}, v{M}, v{M} quad_perm:[2,3,0,1] {DF}',
              f'v_max_f32_dpp v{M}, v{M}, v{M} row_half_mirror {DF}',
              f'v_sub_f32 v{f}, v{ml}, v{M}', f'v_exp_f32 v{f}, v{f}',
              f'v_mul_f32 v{Lq}, v{f}, v{ml+1}',
              f'v_add_f32_dpp v{Lq}, v{Lq}, v{Lq} quad_perm:[1,0,3,2] {DF}',
              f'v_add_f32_dpp v{Lq}, v{Lq}, v{Lq} quad_perm:[2,3,0,1] {DF}',
              f'v_add_f32_dpp v{Lq}, v{Lq}, v{Lq} row_half_mirror {DF}',
              f'v_rcp_f32 v{Lq}, v{Lq}', f'v_mul_f32 v{f}, v{f}, v{Lq}']
        mf = []
        for t in range(2):
            for d in range(4):
                c = '0' if t == 0 else vr(ACC + 4 * d, 4)
                mf.append(f'{MFMA} {vr(ACC+4*d,4)}, {vr(AO+4*t,4)}, {ar(aWO+16*t+4*d,4)}, {c}')
        p(mf[0]); p(chk[0]); p(chk[1]); p(sc[0])
        p(mf[1]); p(chk[2]); p(chk[3]); p(sc[1])
        p(mf[2]); p(chk[4]); p(chk[5]); p(sc[2])
        p(f's_cbranch_vccnz {Lr}')
        p(f'{Lok}:')
        p(mf[3]); p(sc[3]); p(sc[4])
        p(mf[4]); p(sc[5])
        p(mf[5]); p(sc[6])
        p(mf[6]); p(sc[7])
        p(mf[7]); p(sc[8]); p(sc[9]); p(sc[10])
        for d in range(4):
            for r in range(4):
                op = 'v_mul_f32_dpp' if r == 0 else 'v_fmac_f32_dpp'
                p(f'{op} v{y+d}, v{f}, v{ACC+4*d+r} row_newbcast:{r} {DF}')
        self.reduce_publish(y, sL, 0)

    def ha2a_loads(self, base, acc, s0, s4, track, tag=None):
        for t in range(5):
            r = ar(base + 4 * t, 4) if acc else vr(base + 4 * t, 4)
            self.vmem(f'buffer_load_dwordx4 {r}, {vHR}, {srd("WS")}, {s4 if t == 4 else s0} offen offset:{1024*(t&3)} sc1',
                      optional=not track, tag=tag)
    def ha2a_sum(self, b, out):
        ops = []
        for (x, y) in ((0, 4), (8, 12), (0, 16), (0, 8)):
            ops += [f'v_pk_add_f32 {vr(b+x,2)}, {vr(b+x,2)}, {vr(b+y,2)}', f'v_pk_add_f32 {vr(b+x+2,2)}, {vr(b+x+2,2)}, {vr(b+y+2,2)}']
        return ops + self.rs4(b, out)

    def ha2a(self):
        p = self.p
        s4 = ACC + 20
        u, st, mean, sc, t1, e = T, T + 1, T + 2, T + 3, T + 4, T + 5
        A = T + 8
        y = T + 16
        Lp, Lsk = self.poll_head()
        self.vmem(f'buffer_load_dwordx4 {vr(s4,4)}, {vSRH}, {srd("WS")}, {sL} offen offset:256 sc1', optional=True)
        self.ha2a_loads(ACC, False, sL, sLH4, False)
        p('s_waitcnt vmcnt(5)')
        so = self.stats_ops(s4, st, mean, sc, True)
        for s in so[:2]: p(s)
        p('s_waitcnt vmcnt(0)')
        p(f'{Lsk}:')
        self.merge(self.ha2a_sum(ACC, f'v{u}'), so[2:])
        Lok = p.label('Lok')
        Lr = self.retry(Lp, Lok)
        c0 = -2.0 * math.sqrt(2.0 / math.pi) * math.log2(math.e)
        c1 = c0 * 0.044715
        p(f'v_fma_f32 v{u}, -v{mean}, {CS1}, v{u}')
        p(f'v_fma_f32 v{u}, v{u}, v{sc}, {B1v}')
        p(f'v_mul_f32 v{t1}, v{u}, v{u}')
        p(f'v_cmp_u_f32 vcc, v{u}, v{st}')
        p(f'v_mul_f32 v{t1}, {H(f2u(c1))}, v{t1}')
        p(f'v_add_f32 v{t1}, {H(f2u(c0))}, v{t1}')
        p(f's_cbranch_vccnz {Lr}')
        p(f'{Lok}:')
        p(f'v_mul_f32 v{t1}, v{t1}, v{u}')
        p(f'v_exp_f32 v{e}, v{t1}')
        p(f'v_add_f32 v{e}, 1.0, v{e}')
        p(f'v_rcp_f32 v{e}, v{e}')
        p(f'v_mul_f32 v{u}, v{u}, v{e}')
        p(f'v_cvt_pk_bf16_f32 v{u}, v{u}, v{u}')
        for k in range(4):
            p(f'v_and_b32 v{A+k}, v{u}, v{MK+k}')
        for d in range(4):
            p(f'{MFMA} {vr(ACC+4*d,4)}, {vr(A,4)}, {ar(aW2+4*d,4)}, 0')
        for d in range(4):
            p(f'v_pk_add_f32 {vr(ACC+4*d,2)}, {vr(ACC+4*d,2)}, {vr(ACC+4*d+2,2)}')
            p(f'v_add_f32 v{y+d}, v{ACC+4*d}, v{ACC+4*d+1}')
        self.reduce_publish(y, sLM, 1024)

    def combine(self, fl):
        p = self.p
        f = T + 5
        p(f'v_mul_f32_dpp v{T}, v{f}, v{ACC} quad_perm:[0,0,0,0] {DF}')
        p(f'v_mul_f32_dpp v{T+1}, v{f}, v{ACC+4} quad_perm:[0,0,0,0] {DF}')
        p(f'ds_write2_b32 {lOW}, v{T}, v{T+1} offset0:0 offset1:64')
        p(f's_cmp_lg_u32 {sW}, 0')
        self.lgkm(0)
        if self.o.stamps: p(f's_cmp_lg_u32 {sW}, 0')
        p('s_barrier')
        Ls = p.label('Lsk')
        p(f's_cbranch_scc1 {Ls}')
        p(f'ds_read2_b64 {vr(ACC,4)}, {lOR} offset0:0 offset1:64')
        p(f'ds_read2_b64 {vr(ACC+4,4)}, {lOR} offset0:128 offset1:192')
        self.lgkm(1)
        p(f'v_pk_add_f32 {vr(ACC,2)}, {vr(ACC,2)}, {vr(ACC+2,2)}')
        self.lgkm(0)
        p(f'v_pk_add_f32 {vr(ACC+4,2)}, {vr(ACC+4,2)}, {vr(ACC+6,2)}')
        p(f'v_pk_add_f32 {vr(ACC,2)}, {vr(ACC,2)}, {vr(ACC+4,2)}')
        p(f'v_cvt_pk_bf16_f32 v{ACC}, v{ACC}, v{ACC+1}')
        self.vmem(f'buffer_store_dword v{ACC}, {vOW}, {srd("WS")}, {sL} offen {fl}', optional=True)
        p(f'{Ls}:')

    def set_layer(self, off):
        p = self.p
        p(f's_mov_b32 {sL}, {H(off)}')
        p(f's_mov_b32 {sLH4}, {H(off + 4096)}')
        p(f's_mov_b32 {sLM}, {H(off + XMo - XAo)}')

    def finish(self):
        p = self.p
        if self.o.stamps:
            self.stamp(31)
            self.flush()
            p(f'v_writelane_b32 {vSTAMP}, {sBud}, 33')
            p(f's_memtime s[{sSTAMP}:{sSTAMP+1}]'); p('s_waitcnt lgkmcnt(0)')
            p(f'v_writelane_b32 {vSTAMP}, s{sSTAMP}, 35')
            Le = p.label('Lend')
            p(f's_cmp_lg_u32 {sW}, 0'); p(f's_cbranch_scc1 {Le}')
            p(f's_lshl_b32 {sT}, s2, 8'); p(f's_add_u32 {sT}, {sT}, 0x8000000')
            p(f'v_lshlrev_b32 v{T}, 2, {vLane}')
            p(f'buffer_store_dword {vSTAMP}, v{T}, {srd("WS")}, {sT} offen')
            p(f'{Le}:')
        p('s_endpgm')

    def loop(self, A, B, fast, name, dryret):
        p = self.p
        fl = '' if fast else 'sc1'
        NS = 10
        def stp(k): self.stamp((k - 2, NS))
        p(f'{name}:')
        stp(2)
        self.combine(fl)
        stp(3)
        if B:
            self.oa2a()
            stp(4)
        if A:
            self.x8(sL)
            stp(5)
            self.w1(XA, sL, fl, True, False, post=self.unpack_xr(True))
            stp(6)
        if B:
            self.ha2a()
            stp(7)
        Lc = p.label('Lcont')
        if A:
            p(f's_cmp_lg_u32 {sState}, 2'); p(f's_cbranch_scc1 {Lc}')
            Lf = p.label('Lfin')
            p(f's_or_b32 {sT}, {sX}, {sW}')
            p(f's_cmp_eq_u32 {sT}, 0'); p(f's_cbranch_scc1 {Lc}')
            self.flush()
            p(f's_branch {Lf}')
            p(f'{Lc}:')
            self.x8(sLM)
            Lc2 = p.label('Lcont')
            p(f's_cmp_lg_u32 {sState}, 2'); p(f's_cbranch_scc1 {Lc2}')
            p(f's_mov_b64 exec, s[{sMF}:{sMF+1}]')
            p(f's_lshl_b32 {sT}, {sIA}, 6')
            p(f'buffer_store_dwordx2 {vr(XA,2)}, {vLane}, {srd("OUT")}, {sT} offen')
            p('s_mov_b64 exec, -1')
            self.flush()
            p(f'{Lf}:')
            self.finish()
            p(f'{Lc2}:')
            stp(8)
        else:
            p(f's_cmp_lg_u32 {sState}, 2'); p(f's_cbranch_scc1 {Lc}')
            self.finish()
            p(f'{Lc}:')
        Ld = p.label('Ldry')
        p(f's_cmp_eq_u32 {sState}, 0'); p(f's_cbranch_scc1 {Ld}')
        self.set_layer(LSTR)
        p(f'{Ld}:')
        if A:
            self.qp(XA, sL, fl, True, False, post=self.unpack_xr(False))
            stp(9)
        s4 = ACC + 12
        u, st, mean, sc = T, T + 1, T + 2, T + 3
        Lp, Lsk = self.poll_head()
        self.vmem(f'buffer_load_dwordx4 {vr(s4,4)}, {vSRQ}, {srd("WS")}, {sL} offen sc1', optional=True)
        self.qa2a_loads(ACC, sL, False)
        p('s_waitcnt vmcnt(3)')
        so = self.stats_ops(s4, st, mean, sc, False)
        for s in so[:2]: p(s)
        p('s_waitcnt vmcnt(0)')
        p(f'{Lsk}:')
        self.merge(self.qa2a_sum(ACC, f'v{u}'), so[2:])
        self.q_finish(u, st, mean, sc, Lp)
        stp(10)
        self.flush()
        self.qk_softmax()
        stp(11)
        self.pv(self.ml_ops(fl), False)
        self.flush()
        if dryret:
            p(f's_cmp_eq_u32 {sState}, 0'); p(f's_cbranch_scc1 {dryret}')
        p(f's_mov_b32 {sState}, 2')
        p(f's_branch {name}')
        for code in self.ool:
            for s in code: p(s)
        self.ool = []

    def kload(self, mb):
        self.vmem(f'buffer_load_dwordx4 {ar(4*mb,4)}, {vFL}, {srd("K")}, s{sKV+(mb>>2)} offen offset:{1024*(mb&3)} nt', tag=f'K{mb}')
    def vload(self, mb):
        self.vmem(f'buffer_load_dwordx4 {vr(VB+2+4*mb,4)}, {a16}, {srd("V")}, s{sKV+(mb>>2)} offen offset:{1024*(mb&3)} nt', tag=f'V{mb}')

    def head(self):
        p = self.p
        p('s_cmp_ge_u32 s2, 256'); p('s_cbranch_scc1 L_exit')
        for n in ('K', 'V', 'WS'):
            p(f's_load_dwordx2 s[{SRD[n]}:{SRD[n]+1}], s[0:1], {KOFF[n]}')
        if self.o.stamps:
            p(f's_memrealtime s[{sSTAMP}:{sSTAMP+1}]')
            p(f's_memtime s[{sSTAMP+2}:{sSTAMP+3}]')
        p('v_lshrrev_b32 v1, 6, v0')
        p('v_and_b32 v0, 63, v0')
        p(f'v_readfirstlane_b32 {sW}, v1')
        p(f's_and_b32 {sX}, s2, 7'); p(f's_lshr_b32 {sC}, s2, 3'); p(f's_and_b32 {sJ}, {sC}, 3'); p(f's_lshr_b32 {sS}, {sC}, 2')
        p(f's_lshl_b32 s{sKV}, {sX}, 22'); p(f's_lshl_b32 {sT}, {sJ}, 20'); p(f's_add_u32 s{sKV}, s{sKV}, {sT}')
        p(f's_lshl_b32 {sT}, {sS}, 17'); p(f's_add_u32 s{sKV}, s{sKV}, {sT}')
        p(f's_lshl_b32 {sT}, {sW}, 15'); p(f's_add_u32 s{sKV}, s{sKV}, {sT}')
        for k in range(1, 8): p(f's_add_u32 s{sKV+k}, s{sKV}, {4096*k}')
        for n in ('K', 'V', 'WS'):
            p(f's_mov_b32 s{SRD[n]+2}, {H(SIZE[n])}'); p(f's_mov_b32 s{SRD[n]+3}, 0x00020000')
        aK = 124
        p(f'v_lshlrev_b32 {a16}, 4, v0')
        p(f'v_bfe_u32 v{T}, v0, 2, 2'); p(f'v_lshlrev_b32 v{aK}, 8, v{T}')
        p(f'v_lshrrev_b32 v{T}, 4, v0'); p(f'v_lshl_add_u32 v{aK}, v{T}, 6, v{aK}')
        p(f'v_and_b32 v{T}, 3, v0'); p(f'v_lshl_add_u32 v{aK}, v{T}, 4, v{aK}')
        p('s_waitcnt lgkmcnt(0)')
        for mb in range(8): self.kload(mb)
        if self.o.stamps:
            p(f'v_mov_b32 {vSTAMP}, 0')
            p(f'v_writelane_b32 {vSTAMP}, s{sSTAMP}, 0')
            p(f'v_writelane_b32 {vSTAMP}, s{sSTAMP+2}, 34')
        for n in ('X', 'WQ', 'WO', 'W1', 'B1', 'W2', 'B2'):
            p(f's_load_dwordx2 s[{SRD[n]}:{SRD[n]+1}], s[0:1], {KOFF[n]}')
        for n in ('X', 'WQ', 'WO', 'W1', 'B1', 'W2', 'B2', 'OUT', 'DBG'):
            p(f's_mov_b32 s{SRD[n]+2}, {H(SIZE[n])}'); p(f's_mov_b32 s{SRD[n]+3}, 0x00020000')
        p(f's_mov_b32 {sLo}, 0x05040100'); p(f's_mov_b32 {sHi}, 0x07060302')
        p(f's_mov_b32 {sBud}, 100000')
        for b in range(4):
            p(f's_mov_b32 s{sMB+2*b}, {H(0x11111111 << b)}'); p(f's_mov_b32 s{sMB+2*b+1}, {H(0x11111111 << b)}')
        p(f's_mov_b32 s{sMF}, 0x01010101'); p(f's_mov_b32 s{sMF+1}, 0x01010101')
        p(f's_mov_b32 {sIA}, {sC}'); p(f's_sub_u32 {sIB}, {sC}, 12')
        p(f's_getreg_b32 {sFlag}, hwreg(HW_REG_XCC_ID)'); p(f's_and_b32 {sFlag}, {sFlag}, 15'); p(f's_or_b32 {sFlag}, {sFlag}, 0x80')
        p('s_waitcnt lgkmcnt(0)')
        for n in ('OUT', 'DBG'):
            p(f's_load_dwordx2 s[{SRD[n]}:{SRD[n]+1}], s[0:1], {KOFF[n]}')
        p(f's_cmp_lt_u32 {sC}, 12'); p('s_cbranch_scc1 L_roleA')
        p(f's_cmp_lt_u32 {sC}, 20'); p('s_cbranch_scc1 L_roleAB')
        p('s_branch L_roleB')
        p('L_exit:')
        p('s_endpgm')

    def prologue(self, A, B, name):
        p = self.p
        o = self.o
        vm0, tags0 = self.vm, dict(self.tags)
        p(f'L_role{name}:')
        vR, vG, t0, t1, t2, vD = T, T + 1, T + 2, T + 3, T + 4, T + 5
        sXW, sXJ = 's78', 's79'
        sSX, sSXX = 's90', 's91'
        XF = 40
        SN = T + 8
        kv = [('K', m) for m in range(8, 32)] + [('V', m) for m in range(32)]
        def stream(n):
            for _ in range(n):
                k, m = kv.pop(0)
                (self.kload if k == 'K' else self.vload)(m)
        def thr(n):
            if n >= 0: p(f's_waitcnt vmcnt({n})')
        for k in range(4): p(f'v_mov_b32 v{SN+k}, -1')
        p(f's_lshl_b32 {sT}, s2, 2'); p(f's_add_u32 {sT}, {sT}, {sW}'); p(f's_lshl_b32 {sT}, {sT}, 10')
        p(f's_add_u32 {sT}, {sT}, {H(CLR0)}')
        self.vmem(f'buffer_store_dwordx4 {vr(SN,4)}, {a16}, {srd("WS")}, {sT} offen sc1', tag='CLR')
        p(f's_add_u32 {sT}, {sT}, 0x100000')
        Lnc = p.label('Lnc')
        p(f's_cmp_ge_u32 {sT}, {H(2*LSTR)}'); p(f's_cbranch_scc1 {Lnc}')
        self.vmem(f'buffer_store_dwordx4 {vr(SN,4)}, {a16}, {srd("WS")}, {sT} offen sc1', tag='CLR', optional=True)
        p(f'{Lnc}:')
        p(f'v_and_b32 v{vR}, 15, v0'); p(f'v_lshrrev_b32 v{vG}, 4, v0')
        p(f's_lshl_b32 {sXW}, {sX}, 2'); p(f's_add_u32 {sXJ}, {sXW}, {sJ}'); p(f's_add_u32 {sXW}, {sXW}, {sW}')
        if A:
            p(f'v_lshrrev_b32 v{t0}, 2, v{vR}'); p(f'v_mul_u32_u24 {vQW}, 2560, v{t0}')
            p(f'v_and_b32 v{t0}, 3, v{vR}'); p(f'v_lshl_add_u32 {vQW}, v{t0}, 5, {vQW}')
            p(f'v_lshl_add_u32 {vQW}, v{vG}, 4, {vQW}')
            p(f's_mul_i32 {sT}, {sXW}, 0x2800'); p(f's_lshl_b32 {sT2}, {sIA}, 7'); p(f's_add_u32 {sT}, {sT}, {sT2}')
            p(f'v_add_u32 {vQW}, {sT}, {vQW}')
            p(f's_mul_i32 {sT}, {sXW}, 0x1400'); p(f's_lshl_b32 {sT2}, {sIA}, 8'); p(f's_add_u32 {sT}, {sT}, {sT2}'); p(f's_add_u32 {sT}, {sT}, {H(HP)}')
            p(f'v_add_u32 {vHW}, {sT}, {a16}')
            p(f's_mov_b32 {sT2}, {H(CSL)}')
            p('s_mov_b32 exec_hi, 0')
            for so in ('0', sT2):
                self.vmem(f'buffer_store_dwordx4 {vr(SN,4)}, {vQW}, {srd("WS")}, {so} offen sc1', tag='CLR')
            p('s_mov_b64 exec, 0xffff')
            self.vmem(f'buffer_store_dwordx4 {vr(SN,4)}, {vHW}, {srd("WS")}, {sT2} offen sc1', tag='CLR')
            p('s_mov_b64 exec, -1')
            p(f'v_and_b32 v{t0}, 0x38, v0')
            p(f's_lshl_b32 {sT}, {sIA}, 6')
            self.vmem(f'buffer_load_dwordx2 {ar(aX,2)}, v{t0}, {srd("X")}, {sT} offen', tag='XL')
            self.vmem(f'buffer_load_dwordx2 {ar(aB2,2)}, v{t0}, {srd("B2")}, {sT} offen', tag='XL')
            p(f'v_lshlrev_b32 v{t0}, 16, v{vG}'); p(f'v_lshl_add_u32 v{t0}, v{vR}, 4, v{t0}')
            p(f's_lshl_b32 {sT}, {sIA}, 18'); p(f's_lshl_b32 {sT2}, {sXW}, 8'); p(f's_add_u32 {sT}, {sT}, {sT2}')
            for jj in range(8):
                self.vmem(f'buffer_load_dwordx4 {ar(aWQ+4*jj,4)}, v{t0}, {srd("WQ")}, {sT} offen {o.wnt}', tag='WQ')
                if jj < 7: p(f's_add_u32 {sT}, {sT}, 8192')
            p(f'v_mul_u32_u24 v{t0}, {8*3456}, v{vG}'); p(f'v_lshl_add_u32 v{t0}, v{vR}, 3, v{t0}')
            p(f's_mul_i32 {sT}, {sIA}, {32*3456}'); p(f's_mul_i32 {sT2}, {sX}, 432'); p(f's_add_u32 {sT}, {sT}, {sT2}')
            p(f's_lshl_b32 {sT2}, {sW}, 7'); p(f's_add_u32 {sT}, {sT}, {sT2}')
            for jj in range(8):
                self.vmem(f'buffer_load_dwordx2 {ar(aW1+2*jj,2)}, v{t0}, {srd("W1")}, {sT} offen', tag='W1')
                if jj < 7: p(f's_add_u32 {sT}, {sT}, 3456')
        self.vmem(f'buffer_load_dwordx4 {vr(XF,4)}, {a16}, {srd("X")}, 0 offen', tag='XF')
        self.vmem(f'buffer_load_dwordx4 {vr(XF+4,4)}, {a16}, {srd("X")}, 0 offen offset:1024', tag='XF')
        stream(o.n1A if A else o.n1B)
        p(f'v_and_b32 v{t0}, 1, v{vG}'); p(f'v_lshrrev_b32 v{vD}, 1, v{vG}'); p(f'v_lshl_add_u32 v{vD}, v{t0}, 1, v{vD}')
        p(f's_lshl_b32 {sT}, {sXJ}, 3'); p(f's_add_u32 {sT}, {sT}, {sS}')
        p(f's_lshl_b32 {sT2}, {sT}, 8'); p(f's_add_u32 {sT2}, {sT2}, {H(OP)}')
        p(f'v_lshlrev_b32 {vOW}, 2, v0'); p(f'v_add_u32 {vOW}, {sT2}, {vOW}')
        p(f's_lshl_b32 {sT2}, {sT}, 3'); p(f's_add_u32 {sT2}, {sT2}, {H(OS)}')
        p(f'v_mov_b32 {vOSW}, {sT2}')
        p(f's_mul_i32 {sT}, {sXJ}, 0x2800'); p(f's_mul_i32 {sT2}, {sW}, 2560'); p(f's_add_u32 {sT}, {sT}, {sT2}')
        p(f'v_add_u32 {vQR}, {sT}, {a16}')
        p(f'v_mov_b32 v{t1}, {H(OOB)}')
        p(f'v_cmp_gt_u32 vcc, 32, v0'); p(f'v_cndmask_b32 {vQR3}, v{t1}, {vQR}, vcc')
        p(f'v_and_b32 v{t0}, 1, v{vR}'); p(f'v_mul_u32_u24 v{t0}, 80, v{t0}')
        p(f'v_lshrrev_b32 v{t2}, 1, v{vR}'); p(f'v_lshl_add_u32 v{t0}, v{t2}, 4, v{t0}')
        p(f'v_cmp_gt_u32 vcc, 10, v{vR}'); p(f'v_cndmask_b32 v{t0}, v{t1}, v{t0}, vcc')
        p(f's_lshl_b32 {sT}, {sXJ}, 9'); p(f's_add_u32 {sT}, {sT}, {H(ST)}'); p(f'v_add_u32 {vSRQ}, {sT}, v{t0}')
        if B:
            p(f's_lshl_b32 {sT}, {sXW}, 9'); p(f's_add_u32 {sT}, {sT}, {H(ST)}'); p(f'v_add_u32 {vSRH}, {sT}, v{t0}')
            p(f'v_lshrrev_b32 v{t0}, 3, v0'); p(f'v_mul_u32_u24 {vXW}, {H(CPS)}, v{t0}')
            p(f'v_and_b32 v{t0}, 7, v0'); p(f'v_lshl_add_u32 {vXW}, v{t0}, 4, {vXW}')
            p(f's_lshl_b32 {sT}, {sIB}, 10'); p(f's_lshl_b32 {sT2}, {sX}, 7'); p(f's_add_u32 {sT}, {sT}, {sT2}'); p(f's_add_u32 {sT}, {sT}, {H(XAo)}')
            p(f'v_add_u32 {vXW}, {sT}, {vXW}')
            p(f'v_and_b32 v{t0}, 7, v0'); p(f'v_lshlrev_b32 {vOR}, 8, v{t0}')
            p(f'v_lshrrev_b32 v{t0}, 3, v{vR}'); p(f'v_lshl_add_u32 {vOR}, v{t0}, 6, {vOR}')
            p(f'v_lshl_add_u32 {vOR}, v{vG}, 4, {vOR}')
            p(f's_lshl_b32 {sT}, {sXW}, 11'); p(f's_add_u32 {sT}, {sT}, {H(OP)}'); p(f'v_add_u32 {vOR}, {sT}, {vOR}')
            p(f'v_lshl_add_u32 v{t0}, v{vG}, 2, v{vR}'); p(f'v_and_b32 v{t0}, 7, v{t0}'); p(f'v_lshlrev_b32 v{t0}, 3, v{t0}')
            p(f's_lshl_b32 {sT}, {sXW}, 6'); p(f's_add_u32 {sT}, {sT}, {H(OS)}'); p(f'v_add_u32 {vOSR}, {sT}, v{t0}')
            p(f's_mul_i32 {sT}, {sXW}, 0x1400'); p(f's_add_u32 {sT}, {sT}, {H(HP)}'); p(f'v_add_u32 {vHR}, {sT}, {a16}')
            p(f'v_lshrrev_b32 v{t0}, 3, v{vR}')
            p(f'v_lshlrev_b32 {lRW}, 7, v{t0}')
            p(f'v_and_b32 v{t2}, 7, v0'); p(f'v_lshl_add_u32 {lRW}, v{t2}, 4, {lRW}')
            p(f'v_add_u32 {lRR}, {L_R}, {lRW}')
            p(f'v_and_b32 v{t2}, 1, v{vG}'); p(f'v_lshl_add_u32 {lRW}, v{t2}, 3, {lRW}')
            p(f's_lshl_b32 {sT}, {sW}, 8'); p(f's_add_u32 {sT}, {sT}, {L_R}'); p(f'v_add_u32 {lRW}, {sT}, {lRW}')
            p(f'v_lshrrev_b32 v{t2}, 1, v{vG}'); p(f'v_cmp_eq_u32 vcc, v{t0}, v{t2}')
            p(f'v_lshlrev_b32 v{t2}, 3, v0'); p(f'v_add_u32 v{t2}, {L_J2}, v{t2}')
            p(f'v_cndmask_b32 {lRW}, v{t2}, {lRW}, vcc')
            p(f'v_lshl_add_u32 v{t0}, v{vR}, 2, v{vD}'); p(f's_lshl_b32 {sT}, {sW}, 6'); p(f'v_add_u32 v{t0}, {sT}, v{t0}')
            p(f'v_and_b32 v{t2}, 1, v0'); p(f'v_lshlrev_b32 v{t2}, 4, v{t2}'); p(f'v_mov_b32 v{t1}, 0xffff'); p(f'v_lshlrev_b32 v{t1}, v{t2}, v{t1}')
            p(f'v_cmp_gt_u32 vcc, 216, v{t0}'); p(f'v_cndmask_b32 v{t1}, 0, v{t1}, vcc')
            p(f'v_bfe_u32 v{t2}, v0, 1, 2')
            for k in range(4):
                p(f'v_cmp_eq_u32 vcc, {k}, v{t2}'); p(f'v_cndmask_b32 v{MK+k}, 0, v{t1}, vcc')
            p(f'v_lshlrev_b32 v{T+12}, 1, v{t0}')
            p(f'v_and_b32 v{t0}, 1, v{vG}'); p(f'v_lshlrev_b32 v{t0}, 6, v{t0}')
            p(f'v_lshrrev_b32 v{t2}, 3, v{vR}'); p(f'v_lshl_add_u32 v{t0}, v{t2}, 1, v{t0}')
            p(f'v_lshrrev_b32 v{t1}, 1, v{vG}'); p(f'v_add_u32 v{t0}, v{t0}, v{t1}')
            p(f'v_mul_u32_u24 v{t0}, 1280, v{t0}')
            p(f'v_and_b32 v{t1}, 7, v0'); p(f'v_lshl_add_u32 v{T+13}, v{t1}, 3, v{t0}')
            p(f'v_lshl_add_u32 v{t0}, v{t2}, 5, v{vD}'); p(f'v_mul_u32_u24 v{t0}, 1280, v{t0}')
            p(f'v_lshl_add_u32 v{T+14}, v{t1}, 3, v{t0}')
        if A:
            p(f's_lshl_b32 {sT}, {sXW}, 9'); p(f's_lshl_b32 {sT2}, {sIA}, 2'); p(f's_add_u32 {sT}, {sT}, {sT2}'); p(f's_add_u32 {sT}, {sT}, {H(ST)}')
            p(f'v_mov_b32 {vSW}, {sT}'); p(f's_add_u32 {sT}, {sT}, 80'); p(f'v_writelane_b32 {vSW}, {sT}, 0')
            p(f'v_and_b32 v{t0}, 7, v0'); p(f'v_lshlrev_b32 {vXR}, 7, v{t0}')
            p(f'v_lshrrev_b32 v{t0}, 3, v0'); p(f'v_lshl_add_u32 {vXR}, v{t0}, 4, {vXR}')
            p(f's_lshl_b32 {sT}, {sIA}, 10'); p(f's_add_u32 {sT}, {sT}, {H(XAo)}'); p(f'v_add_u32 {vXR}, {sT}, {vXR}')
            for k in range(4): p(f'v_mov_b32 v{XB+k}, 0x3f803f80')
        p(f'v_and_b32 v{t0}, 7, v0'); p(f'v_lshl_add_u32 v{t0}, v{t0}, 2, v{vD}'); p(f's_lshl_b32 {sT}, {sW}, 5'); p(f'v_add_u32 v{t0}, {sT}, v{t0}')
        p(f'v_lshlrev_b32 {lQW}, 1, v{t0}')
        p(f'v_lshrrev_b32 v{t0}, 2, v0'); p(f'v_lshlrev_b32 {lQR}, 4, v{t0}')
        p(f'v_lshlrev_b32 {lMW}, 3, v0'); p(f'v_add_u32 {lMW}, {L_J1}, {lMW}')
        p(f's_lshl_b32 {sT}, {sW}, 3'); p(f's_add_u32 {sT}, {sT}, {L_ML}'); p(f'v_writelane_b32 {lMW}, {sT}, 63')
        p(f'v_add_u32 v{t0}, {sW}, v0'); p(f'v_and_b32 v{t0}, 3, v{t0}'); p(f'v_lshlrev_b32 v{t0}, 3, v{t0}'); p(f'v_add_u32 {lMR}, {L_ML}, v{t0}')
        p(f's_lshl_b32 {sT}, {sW}, 9'); p(f's_add_u32 {sT}, {sT}, {L_O}'); p(f'v_lshlrev_b32 {lOW}, 2, v0'); p(f'v_add_u32 {lOW}, {sT}, {lOW}')
        p(f'v_lshlrev_b32 {lOR}, 3, v0'); p(f'v_add_u32 {lOR}, {L_O}, {lOR}')
        p(f'v_mov_b32 {vC}, {H(f2u(CSC))}')
        for k in range(24): p(f'v_mov_b32 v{BQ+k}, 0')
        p(f'v_lshlrev_b32 v{T+15}, 2, v0')
        p(f'v_mov_b32 v{t0}, {sFlag}'); p(f'v_mov_b32 v{t1}, s2')
        self.wait('CLR')
        self.lgkm(0)
        p('s_barrier')
        Lnf = p.label('Lnf')
        p(f's_cmp_lg_u32 {sW}, 0'); p(f's_cbranch_scc1 {Lnf}')
        p('s_mov_b64 exec, 1')
        self.vmem(f'buffer_store_byte v{t0}, v{t1}, {srd("DBG")}, 0 offen sc1', optional=True)
        p('s_mov_b64 exec, -1')
        p(f'{Lnf}:')
        self.stamp(1)
        stream(o.n2)
        def bloads():
            p(f's_mul_i32 {sT}, {sX}, 432')
            self.vmem(f'buffer_load_ushort a{aB1}, v{T+12}, {srd("B1")}, {sT} offen', tag='B1')
            p(f's_mul_i32 {sT}, {sXW}, {128*1280}'); p(f's_lshl_b32 {sT2}, {sIB}, 6'); p(f's_add_u32 {sT}, {sT}, {sT2}')
            for t in range(2):
                for jj in range(8):
                    p(f's_add_u32 {sT3}, {sT}, {(8*jj+4*t)*1280}')
                    self.vmem(f'buffer_load_dwordx2 {ar(aWO+16*t+2*jj,2)}, v{T+13}, {srd("WO")}, {sT3} offen', tag='WO')
            p(f's_mul_i32 {sT}, {sX}, {216*1280}'); p(f's_add_u32 {sT}, {sT}, {sT2}')
            p(f's_mul_i32 {sT2}, {sW}, {64*1280}'); p(f's_add_u32 {sT}, {sT}, {sT2}')
            for jj in range(8):
                p(f's_add_u32 {sT3}, {sT}, {4*jj*1280}')
                self.vmem(f'buffer_load_dwordx2 {ar(aW2+2*jj,2)}, v{T+14}, {srd("W2")}, {sT3} offen', tag='W2')
        if B and not A: bloads()
        if A:
            self.wait('WQ')
            p(f'v_accvgpr_read_b32 v{XA}, a{aX}'); p(f'v_accvgpr_read_b32 v{XA+1}, a{aX+1}')
            self.transpose(aWQ, 4, ACC, T + 2)
            self.build_xa()
            self.qp(XA, '0', 'sc1', False, True)
            ON = T + 4
            for k in range(4): p(f'v_mov_b32 v{ON+k}, 0x3f803f80')
            p(f's_mov_b32 {sT2}, {H(CSL)}')
            self.qp(ON, sT2, 'sc1', False, True)
            self.wait('W1')
            self.transpose(aW1, 2, ACC, T + 2)
            self.w1(ON, sT2, 'sc1', False, True)
            self.stamp(2)
            if B: bloads()
        self.wait('XF')
        p(f'v_mov_b32 v{t0}, 0'); p(f'v_mov_b32 v{t1}, 0'); p(f'v_mov_b32 v{t2}, 0x3f803f80')
        for k in range(8):
            p(f'v_dot2_f32_bf16 v{t0}, v{XF+k}, v{t2}, v{t0}')
            p(f'v_dot2_f32_bf16 v{t1}, v{XF+k}, v{XF+k}, v{t1}')
        p('s_nop 3')
        p(f'v_permlane32_swap_b32 v{t0}, v{t1}')
        p(f'v_add_f32 v{t0}, v{t0}, v{t1}')
        for n in (1, 2, 4, 8): p(f'v_add_f32_dpp v{t0}, v{t0}, v{t0} row_ror:{n} {DF}')
        p(f'v_add_f32_dpp v{t0}, v{t0}, v{t0} row_bcast:15 row_mask:0xa bank_mask:0xf')
        p(f'v_mul_f32 v{t0}, {H(f2u(1.0 / 640))}, v{t0}')
        p(f'v_readlane_b32 {sSX}, v{t0}, 31'); p(f'v_readlane_b32 {sSXX}, v{t0}, 63')
        nk = sum(1 for k, m in kv if k == 'K')
        stream(nk + o.n3)
        thr(o.w1)
        self.vmem(f'buffer_load_dword {vFL}, v{T+15}, {srd("DBG")}, 0 offen sc1', tag='FL')
        stream(o.n4)
        self.stamp(3)
        self.flush()
        Lret = f'L_dryret{name}'
        if o.dry:
            p(f's_mov_b32 {sState}, 0')
            self.set_layer(DUM)
            if o.stamps: p(f'v_accvgpr_write_b32 a255, {vSTAMP}')
            p(f's_branch L_loop{name}_fast')
            p(f'{Lret}:')
            if o.stamps: p(f'v_accvgpr_read_b32 {vSTAMP}, a255')
        p(f's_mov_b32 {sState}, 1')
        self.set_layer(0)
        self.stamp(4)
        self.wait('FL')
        Lfp, Lfok, Lfc = p.label('Lfp'), p.label('Lfok'), p.label('Lfc')
        p(f'{Lfc}:')
        p(f'v_and_b32 v{t0}, 0x80808080, {vFL}')
        p(f'v_cmp_ne_u32 vcc, 0x80808080, v{t0}')
        Lr = self.retry(Lfp, Lfok)
        self.ool.append([f'{Lfp}:', f'v_lshlrev_b32 v{t0}, 2, v0', f'buffer_load_dword {vFL}, v{t0}, {srd("DBG")}, 0 offen sc1',
                         's_waitcnt vmcnt(0)', f's_branch {Lfc}'])
        p(f's_cbranch_vccnz {Lr}')
        p(f'{Lfok}:')
        self.stamp(5)
        p(f's_mov_b32 {sT2}, {H(CSL)}'); p(f's_mov_b32 {sT3}, {H(CSL+4096)}')
        self.qa2a_loads(ACC, '0', True, 'Q0')
        self.qa2a_loads(ACC + 12, sT2, True, 'Q0')
        if B: self.ha2a_loads(aC1, True, sT2, sT3, True, 'C1')
        stream(len(kv))
        p(f's_and_b32 {sT}, {sX}, 3'); p(f's_lshl_b32 {sT}, {sT}, 3')
        p(f'v_bfe_u32 v{t0}, {vFL}, {sT}, 8')
        p(f'v_cmp_ne_u32 vcc, {sFlag}, v{t0}')
        p(f's_lshr_b32 {sT}, {sX}, 2'); p(f's_lshl_b32 {sT}, 0x55555555, {sT}')
        p(f's_or_b32 {sMode}, vcc_lo, vcc_hi'); p(f's_and_b32 {sMode}, {sMode}, {sT}')
        if o.forceslow: p(f's_mov_b32 {sMode}, 1')
        if A:
            p(f'v_accvgpr_read_b32 v{XA}, a{aX}'); p(f'v_accvgpr_read_b32 v{XA+1}, a{aX+1}')
            for s in self.unpack_xr(False): p(s)
            p(f'v_accvgpr_read_b32 v{t0}, a{aB2}'); p(f'v_accvgpr_read_b32 v{t1}, a{aB2+1}')
            p(f'v_lshlrev_b32 v{B2}, 16, v{t0}'); p(f'v_and_b32 v{B2+1}, 0xffff0000, v{t0}')
            p(f'v_lshlrev_b32 v{B2+2}, 16, v{t1}'); p(f'v_and_b32 v{B2+3}, 0xffff0000, v{t1}')
        if B:
            p(f'v_accvgpr_read_b32 {B1v}, a{aB1}'); p(f'v_lshlrev_b32 {B1v}, 16, {B1v}')
            self.transpose(aWO, 2, T, T + 16)
            self.transpose(aWO + 16, 2, T, T + 16)
            self.transpose(aW2, 2, T, T + 16)
        u, st, mean, sc = T, T + 1, T + 2, T + 3
        self.wait('Q0')
        Lq, Lqp = p.label('Lq'), p.label('Lqp')
        p(f'{Lq}:')
        so = [f'v_mov_b32 v{mean}, {sSX}', f'v_mov_b32 v{sc}, {sSXX}', f'v_mov_b32 v{st}, 0',
              f'v_fma_f32 v{sc}, -v{mean}, v{mean}, v{sc}', f'v_max_f32 v{sc}, 0, v{sc}',
              f'v_add_f32 v{sc}, {H(f2u(EPS))}, v{sc}', f'v_rsq_f32 v{sc}, v{sc}']
        self.merge(self.qa2a_sum(ACC, f'v{u}'), self.qa2a_sum(ACC + 12, CSQ), so)
        rl = [f'{Lqp}:', f's_mov_b32 {sT2}, {H(CSL)}']
        for base, so in ((ACC, '0'), (ACC + 12, sT2)):
            for t in range(3):
                rl.append(f'buffer_load_dwordx4 {vr(base+4*t,4)}, {vQR3 if t == 2 else vQR}, {srd("WS")}, {so} offen offset:{1024*t} sc1')
        rl += ['s_waitcnt vmcnt(0)', f's_branch {Lq}']
        self.ool.append(rl)
        self.q_finish(u, st, mean, sc, Lqp)
        self.stamp(6)
        self.flush()
        self.qk_softmax()
        self.stamp(7)
        if B:
            self.wait('C1')
            Lc, Lcp, Lcok = p.label('Lc'), p.label('Lcp'), p.label('Lcok')
            p(f'{Lc}:')
            cb = ACC + 8
            for k in range(20): p(f'v_accvgpr_read_b32 v{cb+k}, a{aC1+k}')
            for s in self.ha2a_sum(cb, CS1): p(s)
            p(f'v_cmp_u_f32 vcc, {CS1}, {CS1}')
            Lr = self.retry(Lcp, Lcok)
            rl = [f'{Lcp}:', f's_mov_b32 {sT2}, {H(CSL)}', f's_mov_b32 {sT3}, {H(CSL+4096)}']
            for t in range(5):
                rl.append(f'buffer_load_dwordx4 {ar(aC1+4*t,4)}, {vHR}, {srd("WS")}, {sT3 if t == 4 else sT2} offen offset:{1024*(t&3)} sc1')
            rl += ['s_waitcnt vmcnt(0)', f's_branch {Lc}']
            self.ool.append(rl)
            p(f's_cbranch_vccnz {Lr}')
            p(f'{Lcok}:')
        self.pv(self.ml_ops('mode'), True)
        self.flush()
        p(f's_cmp_eq_u32 {sMode}, 0'); p(f's_cbranch_scc1 L_loop{name}_fast')
        p(f's_branch L_loop{name}_slow')
        for code in self.ool:
            for s in code: p(s)
        self.ool = []
        self.loop(A, B, True, f'L_loop{name}_fast', Lret if o.dry else None)
        self.loop(A, B, False, f'L_loop{name}_slow', None)
        self.vm, self.tags = vm0, tags0


def main():
    ap = argparse.ArgumentParser()
    ap.add_argument('out')
    ap.add_argument('--stamps', type=int, default=0)
    ap.add_argument('--dry', type=int, default=1)
    ap.add_argument('--x8delay', type=int, default=0)
    ap.add_argument('--n1A', type=int, default=4)
    ap.add_argument('--n1B', type=int, default=8)
    ap.add_argument('--n2', type=int, default=8)
    ap.add_argument('--n3', type=int, default=0)
    ap.add_argument('--w1', type=int, default=8)
    ap.add_argument('--n4', type=int, default=12)
    ap.add_argument('--wnt', type=str, default='')
    ap.add_argument('--forceslow', type=int, default=0)
    o = ap.parse_args()
    g = G(o)
    g.head()
    g.prologue(True, False, 'A')
    g.prologue(True, True, 'AB')
    g.prologue(False, True, 'B')
    body = g.p.finalize()
    ref = open('cdna_kernels/' + NAME + '.s.ref').read()
    comment = ''.join(l + '\n' for l in ref.split('\n') if l.startswith(';') and '@launch' not in l)
    open(o.out, 'w').write(header(256, 256, LDS_SIZE, comment=comment) + body + footer())
    print('instrs', len(g.p.items), 'nops inserted', g.p.nnops)

main()
```

```python
import sys, struct, math, argparse
from asmlib2 import *

def f2u(x): return struct.unpack('<I', struct.pack('<f', x))[0]
def H(x): return f'0x{x & 0xffffffff:x}'

LSTR = 0xDD000
QP = 0x0
OP = 0x50000
HP = 0x60000
XAo = 0x88000
XMo = 0xB0000
ST = 0xD8000
OS = 0xDC000
CSL = 2 * LSTR
DUM = 3 * LSTR
CPS = 0x5000
CLR0 = OP
CLRN = (2 * LSTR - CLR0) // 1024
OOB = 0x80000000
L_Q, L_ML, L_J1, L_O, L_R, L_J2 = 0, 256, 512, 1024, 3072, 5120
LDS_SIZE = 8192
sX, sC, sJ, sS, sW = 's3', 's4', 's5', 's6', 's7'
SRD = dict(K=8, V=12, WS=16, X=20, WQ=24, WO=28, W1=32, B1=36, W2=40, B2=44, OUT=48, DBG=52)
KOFF = dict(X=0, K=8, V=16, WQ=24, WO=32, W1=48, B1=56, W2=64, B2=72, OUT=80, DBG=88, WS=96)
SIZE = dict(X=1280, K=1 << 25, V=1 << 25, WQ=640 * 8192, WO=4096 * 1280, W1=640 * 3456, B1=3456, W2=1728 * 1280,
            B2=1280, OUT=1280, DBG=256, WS=1 << 28)
def srd(n): return f's[{SRD[n]}:{SRD[n]+3}]'
sKV = 56
sL, sLH4, sLM, sT, sT2, sBud, sLo, sHi, sMc, sIA, sIB, sFlag, sState, sT3 = [f's{i}' for i in range(64, 78)]
sMode = 's78'
sMB = 80
sMF = 88
sSTAMP = 92
vLane, a16 = 'v0', 'v1'
vQW, vQR, vQR3, vSW, vSRQ, vSRH, vOW, vOR, vOSW, vOSR, vXW, vXR, vHW, vHR = [f'v{i}' for i in range(2, 16)]
lQW, lQR, lMW, lMR, lOW, lOR, lRW, lRR = [f'v{i}' for i in range(16, 24)]
CSQ, CS1, B1v, vC = 'v24', 'v25', 'v26', 'v27'
MK, XA, XB, XR, B2, BQ, PA, ACC, T = 28, 32, 36, 40, 44, 48, 64, 72, 104
VB = 126
vFL = 'v124'
vSTAMP = 'v125'
aWQ, aWO, aW1, aW2, aX, aB2, aB1, aC1 = 128, 160, 192, 208, 224, 226, 228, 232
def v(i): return f'v{i}'
def vr(i, n): return f'v[{i}:{i+n-1}]'
def ar(i, n): return f'a[{i}:{i+n-1}]'
DF = 'row_mask:0xf bank_mask:0xf'
MFMA = 'v_mfma_f32_16x16x32_bf16'
CSC = (128 ** -0.5) * math.log2(math.e)
EPS = 1e-5


class G:
    def __init__(self, opt):
        self.p = Prog()
        self.o = opt
        self.vm = 0
        self.tags = {}
        self.pend = []
        self.ool = []
        self.nst = 0

    def __call__(self, s): self.p(s)

    def vmem(self, s, tag=None, optional=False):
        self.p(s)
        if not optional:
            self.vm += 1
        if tag: self.tags[tag] = self.vm
    def wait(self, tag):
        n = self.vm - self.tags[tag]
        assert 0 <= n
        self.p(f's_waitcnt vmcnt({min(n, 63)})')
    def stamp(self, k):
        if not self.o.stamps: return
        if len(self.pend) >= 5: self.lgkm(0)
        r = sSTAMP + 2 * (self.nst % 5); self.nst += 1
        self.p(f's_memrealtime s[{r}:{r+1}]')
        self.pend.append((k, r))
    def lgkm(self, n):
        if self.pend:
            self.p('s_waitcnt lgkmcnt(0)')
            for k, r in self.pend:
                if isinstance(k, tuple):
                    self.p(f's_mul_i32 {sT3}, {sState}, {k[1]}')
                    self.p(f's_add_u32 m0, {sT3}, {k[0]}')
                    self.p(f'v_writelane_b32 {vSTAMP}, s{r}, m0')
                else:
                    self.p(f'v_writelane_b32 {vSTAMP}, s{r}, {k}')
            self.pend = []
        else:
            self.p(f's_waitcnt lgkmcnt({n})')
    def flush(self):
        if self.pend: self.lgkm(0)

    def transpose(self, abase, W, tmp, tmp2):
        p = self.p
        n = 8 * W
        for k in range(n):
            p(f'v_accvgpr_read_b32 v{tmp+k}, a{abase+k}')
        cnt = 0
        for dp in range(W):
            for hi in range(2):
                for tau in range(4):
                    t = tmp2 + (cnt & 1); cnt += 1
                    p(f'v_perm_b32 v{t}, v{tmp+(2*tau+1)*W+dp}, v{tmp+(2*tau)*W+dp}, {sHi if hi else sLo}')
                    p(f'v_accvgpr_write_b32 a{abase+(2*dp+hi)*4+tau}, v{t}')

    def build_xa(self):
        p = self.p
        p(f'v_mov_b32_dpp v{XA+2}, v{XA} row_ror:8 {DF}')
        p(f'v_mov_b32_dpp v{XA+3}, v{XA+1} row_ror:8 {DF}')

    def xb_ops(self):
        return [f'v_mov_b32_dpp v{XB+k}, v{XA+k} quad_perm:[0,1,2,3] row_mask:0xf bank_mask:0x3' for k in range(4)]

    def unpack_xr(self, addb2):
        ops = [f'v_lshlrev_b32 v{XR}, 16, v{XA}', f'v_and_b32 v{XR+1}, 0xffff0000, v{XA}',
               f'v_lshlrev_b32 v{XR+2}, 16, v{XA+1}', f'v_and_b32 v{XR+3}, 0xffff0000, v{XA+1}']
        if addb2:
            ops += [f'v_pk_add_f32 {vr(XR,2)}, {vr(XR,2)}, {vr(B2,2)}', f'v_pk_add_f32 {vr(XR+2,2)}, {vr(XR+2,2)}, {vr(B2+2,2)}']
        return ops

    def qp(self, A, soff, fl, stats, track, post=()):
        p = self.p
        st = T + 16
        xb = self.xb_ops() if stats else []
        order = [0, 4, 1, 5, 2, 6, 3, 7]
        mov = {}
        for d in range(8):
            if d == 0: mov[d] = None
            elif d < 4: mov[d] = f'v_mov_b32_dpp v{ACC+d}, v{ACC+4*d} quad_perm:[0,1,2,3] row_mask:0x1 bank_mask:0xf'
            else: mov[d] = f'v_mov_b32_dpp v{ACC+d-4}, v{ACC+4*d} quad_perm:[0,1,2,3] row_mask:0x2 bank_mask:0xf'
        for n, d in enumerate(order):
            p(f'{MFMA} {vr(ACC+4*d,4)}, {vr(A,4)}, {ar(aWQ+4*d,4)}, 0')
            if n < 2 and xb:
                p(xb[2*n]); p(xb[2*n+1])
            if n == 3 and stats:
                p(f'{MFMA} {vr(st,4)}, {vr(XA,4)}, {vr(XB,4)}, 0')
        p('s_mov_b32 exec_hi, 0')
        for d in order[1:]:
            p(mov[d])
        self.vmem(f'buffer_store_dwordx4 {vr(ACC,4)}, {vQW}, {srd("WS")}, {soff} offen {fl}', optional=not track)
        if stats:
            p('s_mov_b64 exec, 0x101')
            self.vmem(f'buffer_store_dword v{st}, {vSW}, {srd("WS")}, {soff} offen {fl}', optional=not track)
        p('s_mov_b64 exec, -1')
        for s in post: p(s)

    def w1(self, A, soff, fl, stats, track, post=()):
        p = self.p
        st = T + 16
        xb = self.xb_ops() if stats else []
        for d in range(4):
            p(f'{MFMA} {vr(ACC+4*d,4)}, {vr(A,4)}, {ar(aW1+4*d,4)}, 0')
            if d < 2 and xb:
                p(xb[2*d]); p(xb[2*d+1])
        if stats:
            p(f'{MFMA} {vr(st,4)}, {vr(XA,4)}, {vr(XB,4)}, 0')
        p('s_mov_b64 exec, 0xffff')
        for d in range(1, 4):
            p(f'v_mov_b32 v{ACC+d}, v{ACC+4*d}')
        self.vmem(f'buffer_store_dwordx4 {vr(ACC,4)}, {vHW}, {srd("WS")}, {soff} offen {fl}', optional=not track)
        if stats:
            p('s_mov_b64 exec, 0x101')
            self.vmem(f'buffer_store_dword v{st}, {vSW}, {srd("WS")}, {soff} offen offset:256 {fl}', optional=not track)
        p('s_mov_b64 exec, -1')
        for s in post: p(s)

    def rs4(self, a, out):
        return [f'v_permlane32_swap_b32 v{a}, v{a+1}', f'v_permlane32_swap_b32 v{a+2}, v{a+3}',
                f'v_add_f32 v{a}, v{a}, v{a+1}', f'v_add_f32 v{a+2}, v{a+2}, v{a+3}',
                f'v_permlane16_swap_b32 v{a}, v{a+2}', f'v_add_f32 {out}, v{a}, v{a+2}']

    def stats_ops(self, s4, st, mean, sc, second):
        inv = H(f2u(1.0 / 640))
        ops = [f'v_pk_add_f32 {vr(s4,2)}, {vr(s4,2)}, {vr(s4+2,2)}',
               f'v_add_f32 v{st}, v{s4}, v{s4+1}',
               f'v_add_f32_dpp v{st}, v{st}, v{st} row_ror:2 {DF}',
               f'v_add_f32_dpp v{st}, v{st}, v{st} row_ror:4 {DF}',
               f'v_add_f32_dpp v{st}, v{st}, v{st} row_ror:8 {DF}',
               f'v_mul_f32 v{st}, {inv}, v{st}',
               f'v_mov_b32_dpp v{mean}, v{st} quad_perm:[0,0,2,2] {DF}',
               f'v_mov_b32_dpp v{sc}, v{st} quad_perm:[1,1,3,3] {DF}',
               f'v_fma_f32 v{sc}, -v{mean}, v{mean}, v{sc}',
               f'v_max_f32 v{sc}, 0, v{sc}']
        if second:
            ops += [f'v_mul_f32 v{sc}, {H(f2u(1.0 + EPS))}, v{sc}', f'v_add_f32 v{sc}, {H(f2u(EPS * EPS))}, v{sc}']
        else:
            ops += [f'v_add_f32 v{sc}, {H(f2u(EPS))}, v{sc}']
        ops += [f'v_rsq_f32 v{sc}, v{sc}']
        return ops

    def merge(self, *lists):
        lists = [list(l) for l in lists]
        while any(lists):
            for l in lists:
                if l: self.p(l.pop(0))

    def retry(self, Lp, Lok, extra=()):
        Lr = self.p.label('Lretry')
        code = [f'{Lr}:', f's_cmp_eq_u32 {sState}, 0', f's_cbranch_scc1 {Lok}',
                f's_cmp_eq_u32 {sBud}, 0', f's_cbranch_scc1 {Lok}', f's_sub_u32 {sBud}, {sBud}, 1'] + list(extra) + [f's_branch {Lp}']
        self.ool.append(code)
        return Lr

    def qa2a_loads(self, base, soff, track, tag=None):
        for t in range(3):
            self.vmem(f'buffer_load_dwordx4 {vr(base+4*t,4)}, {vQR3 if t == 2 else vQR}, {srd("WS")}, {soff} offen offset:{1024*t} sc1',
                      optional=not track, tag=tag)
    def qa2a_sum(self, base, out):
        return [f'v_pk_add_f32 {vr(base,2)}, {vr(base,2)}, {vr(base+4,2)}', f'v_pk_add_f32 {vr(base+2,2)}, {vr(base+2,2)}, {vr(base+6,2)}',
                f'v_pk_add_f32 {vr(base,2)}, {vr(base,2)}, {vr(base+8,2)}', f'v_pk_add_f32 {vr(base+2,2)}, {vr(base+2,2)}, {vr(base+10,2)}'] \
            + self.rs4(base, out) + [f'v_add_f32_dpp {out}, {out}, {out} row_ror:8 {DF}']

    def q_finish(self, u, st, mean, sc, Lp):
        p = self.p
        Lok = p.label('Lok')
        Lr = self.retry(Lp, Lok)
        p(f'v_fma_f32 v{u}, -v{mean}, {CSQ}, v{u}')
        p(f'v_mul_f32 v{u}, v{u}, v{sc}')
        p(f'v_cvt_pk_bf16_f32 v{sc}, v{u}, v{u}')
        p(f'v_cmp_u_f32 vcc, v{u}, v{st}')
        p(f's_cbranch_vccnz {Lr}')
        p(f'{Lok}:')
        p(f'ds_write_b16 {lQW}, v{sc}')
        self.lgkm(0)
        p('s_barrier')

    def qk_softmax(self):
        p = self.p
        S = [T, T + 1]
        for b in range(4):
            p(f's_mov_b64 exec, s[{sMB+2*b}:{sMB+2*b+1}]')
            p(f'ds_read_b128 {vr(BQ+4*b,4)}, {lQR}')
        p('s_mov_b64 exec, -1')
        def adds(e):
            h, be = e >> 2, e & 3
            D = ACC + 4 * e
            first = True
            out = []
            for u in range(4):
                if u == be: continue
                src1 = f'v{D+be}' if first else f'v{S[h]}'
                out.append(f'v_add_f32_dpp v{S[h]}, v{D+u}, {src1} row_ror:{(4*(be-u)) % 16} row_mask:0xf bank_mask:{1<<be:#x}')
                first = False
            return out
        for b in range(4):
            self.lgkm(3 - b)
            for e in range(8):
                h, be = e >> 2, e & 3
                mb = 8 * be + 2 * b + h
                c = '0' if b == 0 else vr(ACC + 4 * e, 4)
                p(f'{MFMA} {vr(ACC+4*e,4)}, {ar(4*mb,4)}, {vr(BQ+4*b,4)}, {c}')
                if b == 3 and e >= 3:
                    for s in adds(e - 3): p(s)
        for e in (5, 6, 7):
            for s in adds(e): p(s)
        M = T + 2
        p(f'v_max_f32 v{M}, v{S[0]}, v{S[1]}')
        for n in (1, 2, 4, 8):
            p(f'v_max_f32_dpp v{M}, v{M}, v{M} row_ror:{n} {DF}')
        p(f'v_max_f32_dpp v{M}, v{M}, v{M} row_bcast:15 row_mask:0xa bank_mask:0xf')
        p(f'v_max_f32_dpp v{M}, v{M}, v{M} row_bcast:31 row_mask:0xc bank_mask:0xf')
        p(f'v_mul_f32 v{M}, v{M}, {vC}')
        p(f'v_readlane_b32 {sMc}, v{M}, 63')
        p(f'v_fma_f32 v{S[0]}, v{S[0]}, {vC}, -{sMc}')
        p(f'v_fma_f32 v{S[1]}, v{S[1]}, {vC}, -{sMc}')
        p(f'v_exp_f32 v{S[0]}, v{S[0]}')
        p(f'v_exp_f32 v{S[1]}, v{S[1]}')
        p(f'v_cvt_pk_bf16_f32 v{T+4}, v{S[0]}, v{S[1]}')

    def ml_ops(self, fl):
        P, M, Ls = T + 4, T + 2, T + 3
        m2, l2, mc, f = T + 6, T + 7, T + 8, T + 5
        lc = T + 9
        ops = [f'v_lshlrev_b32 v{Ls}, 16, v{P}', f'v_and_b32 v{T}, 0xffff0000, v{P}', f'v_add_f32 v{Ls}, v{Ls}, v{T}']
        for n in (1, 2, 4, 8):
            ops += [f'v_add_f32_dpp v{Ls}, v{Ls}, v{Ls} row_ror:{n} {DF}', None]
        ops += [f'v_add_f32_dpp v{Ls}, v{Ls}, v{Ls} row_bcast:15 row_mask:0xa bank_mask:0xf', None,
                f'v_add_f32_dpp v{Ls}, v{Ls}, v{Ls} row_bcast:31 row_mask:0xc bank_mask:0xf',
                f'ds_write_b64 {lMW}, {vr(M,2)}', None, None,
                lambda: (self.lgkm(0), self.p('s_barrier'), self.p(f'ds_read_b64 {vr(m2,2)}, {lMR}')), None, None, None,
                lambda: self.lgkm(0),
                f'v_max_f32_dpp v{mc}, v{m2}, v{m2} quad_perm:[1,0,3,2] {DF}', None,
                f'v_max_f32_dpp v{mc}, v{mc}, v{mc} quad_perm:[2,3,0,1] {DF}',
                f'v_sub_f32 v{f}, v{m2}, v{mc}', f'v_exp_f32 v{f}, v{f}', None,
                f'v_mul_f32 v{lc}, v{f}, v{l2}', None,
                f'v_add_f32_dpp v{lc}, v{lc}, v{lc} quad_perm:[1,0,3,2] {DF}', None,
                f'v_add_f32_dpp v{lc}, v{lc}, v{lc} quad_perm:[2,3,0,1] {DF}']
        def st():
            Ls_ = self.p.label('Lnos')
            self.p(f's_cmp_lg_u32 {sW}, 0'); self.p(f's_cbranch_scc1 {Ls_}')
            self.p('s_mov_b64 exec, 1')
            if fl == 'mode':
                L1, L2 = self.p.label('Lm'), self.p.label('Lm')
                self.p(f's_cmp_eq_u32 {sMode}, 0'); self.p(f's_cbranch_scc1 {L1}')
                self.vmem(f'buffer_store_dwordx2 {vr(mc,2)}, {vOSW}, {srd("WS")}, {sL} offen sc1', optional=True)
                self.p(f's_branch {L2}')
                self.p(f'{L1}:')
                self.vmem(f'buffer_store_dwordx2 {vr(mc,2)}, {vOSW}, {srd("WS")}, {sL} offen', optional=True)
                self.p(f'{L2}:')
            else:
                self.vmem(f'buffer_store_dwordx2 {vr(mc,2)}, {vOSW}, {srd("WS")}, {sL} offen {fl}', optional=True)
            self.p('s_mov_b64 exec, -1')
            self.p(f'{Ls_}:')
        ops.append(st)
        return ops

    def run_op(self, o):
        if o is None: return
        if callable(o): o()
        else: self.p(o)

    def pv(self, extras, layer0):
        p = self.p
        P = T + 4
        Da, Db = ACC, ACC + 4
        def build(pp):
            return [f'v_mov_b32_dpp v{PA+4*(pp&1)+t}, v{P} row_newbcast:{pp} row_mask:0xf bank_mask:{1<<t:#x}' for t in range(4)]
        def perms(pp):
            A, Bq, o = VB + 2 + 8 * pp, VB + 6 + 8 * pp, VB + 8 * pp
            seq = [(0, 0), (0, 1), (1, 0), (1, 1), (3, 0), (3, 1), (2, 1), (2, 0)]
            return [f'v_perm_b32 v{o+2*dp+hi}, v{Bq+dp}, v{A+dp}, {sHi if hi else sLo}' for dp, hi in seq]
        extras = list(extras)
        if layer0:
            for o in extras: self.run_op(o)
            extras = []
        for s in build(0): p(s)
        for pp in range(16):
            nb = build(pp + 1) if pp < 15 else []
            if layer0:
                self.wait(f'V{2*pp+1}')
                for s in perms(pp): p(s)
            c = '0' if pp == 0 else None
            p(f'{MFMA} {vr(Da,4)}, {vr(PA+4*(pp&1),4)}, {vr(VB+8*pp,4)}, {c or vr(Da,4)}')
            for s in nb[:3]: p(s)
            p(f'{MFMA} {vr(Db,4)}, {vr(PA+4*(pp&1),4)}, {vr(VB+8*pp+4,4)}, {c or vr(Db,4)}')
            for s in nb[3:]: p(s)
            for _ in range(2):
                if extras: self.run_op(extras.pop(0))
        for o in extras: self.run_op(o)

    def reduce_publish(self, y, soff, ldsoff):
        p = self.p
        p(f'v_permlane16_swap_b32 v{y}, v{y+2}')
        p(f'v_permlane16_swap_b32 v{y+1}, v{y+3}')
        p(f'v_pk_add_f32 {vr(y,2)}, {vr(y,2)}, {vr(y+2,2)}')
        p(f'ds_write_b64 {lRW}, {vr(y,2)} offset:{ldsoff}')
        p(f's_cmp_lg_u32 {sW}, 0')
        self.lgkm(0)
        if self.o.stamps: p(f's_cmp_lg_u32 {sW}, 0')
        p('s_barrier')
        Ls = p.label('Lsk')
        p(f's_cbranch_scc1 {Ls}')
        for k in range(4):
            p(f'ds_read_b128 {vr(ACC+4*k,4)}, {lRR} offset:{ldsoff+256*k}')
        self.lgkm(2)
        p(f'v_pk_add_f32 {vr(ACC,2)}, {vr(ACC,2)}, {vr(ACC+4,2)}')
        p(f'v_pk_add_f32 {vr(ACC+2,2)}, {vr(ACC+2,2)}, {vr(ACC+6,2)}')
        self.lgkm(0)
        p(f'v_pk_add_f32 {vr(ACC+8,2)}, {vr(ACC+8,2)}, {vr(ACC+12,2)}')
        p(f'v_pk_add_f32 {vr(ACC+10,2)}, {vr(ACC+10,2)}, {vr(ACC+14,2)}')
        p(f'v_pk_add_f32 {vr(ACC,2)}, {vr(ACC,2)}, {vr(ACC+8,2)}')
        p(f'v_pk_add_f32 {vr(ACC+2,2)}, {vr(ACC+2,2)}, {vr(ACC+10,2)}')
        for k in range(4):
            p(f'v_add_f32_dpp v{ACC+k}, v{ACC+k}, v{ACC+k} row_ror:8 {DF}')
        self.vmem(f'buffer_store_dwordx4 {vr(ACC,4)}, {vXW}, {srd("WS")}, {soff} offen sc1', optional=True)
        p(f'{Ls}:')

    def poll_head(self):
        p = self.p
        Lp, Lsk = p.label('Lp'), p.label('Lskip')
        p(f's_cmp_eq_u32 {sState}, 0')
        p(f's_cbranch_scc1 {Lsk}')
        p(f'{Lp}:')
        return Lp, Lsk

    def x8(self, soff):
        p = self.p
        Y = T
        p(f's_mov_b32 {sT}, {soff}')
        p(f's_add_u32 {sT2}, {soff}, {CPS*7}')
        for _ in range(self.o.x8delay): p('s_nop 15')
        Lp, Lsk = self.poll_head()
        self.vmem(f'buffer_load_dwordx4 {vr(Y,4)}, {vXR}, {srd("WS")}, {sT} offen sc1', optional=True)
        p('s_waitcnt vmcnt(0)')
        p(f'{Lsk}:')
        for c in ('quad_perm:[1,0,3,2]', 'quad_perm:[2,3,0,1]', 'row_half_mirror'):
            for k in range(4):
                p(f'v_add_f32_dpp v{Y+k}, v{Y+k}, v{Y+k} {c} {DF}')
        p(f'v_pk_add_f32 {vr(Y,2)}, {vr(Y,2)}, {vr(XR,2)}')
        p(f'v_pk_add_f32 {vr(Y+2,2)}, {vr(Y+2,2)}, {vr(XR+2,2)}')
        p(f'v_cvt_pk_bf16_f32 v{XA}, v{Y}, v{Y+1}')
        p(f'v_cvt_pk_bf16_f32 v{XA+1}, v{Y+2}, v{Y+3}')
        p(f'v_pk_add_f32 {vr(Y,2)}, {vr(Y,2)}, {vr(Y+2,2)}')
        p(f'v_cmp_u_f32 vcc, v{Y}, v{Y+1}')
        self.build_xa()
        Lok = p.label('Lok')
        Lr = self.retry(Lp, Lok, [f's_add_u32 {sT}, {sT}, {CPS}', f's_min_u32 {sT}, {sT}, {sT2}'])
        p(f's_cbranch_vccnz {Lr}')
        p(f'{Lok}:')

    def oa2a(self):
        p = self.p
        AO = T
        ml = T + 8
        M, f, Lq, ck = T + 10, T + 11, T + 12, T + 13
        y = T + 16
        Lp, Lsk = self.poll_head()
        self.vmem(f'buffer_load_dwordx2 {vr(ml,2)}, {vOSR}, {srd("WS")}, {sL} offen sc1', optional=True)
        for t in range(2):
            self.vmem(f'buffer_load_dwordx4 {vr(AO+4*t,4)}, {vOR}, {srd("WS")}, {sL} offen offset:{128*t} sc1', optional=True)
        p('s_waitcnt vmcnt(0)')
        p(f'{Lsk}:')
        Lok = p.label('Lok')
        Lr = self.retry(Lp, Lok)
        chk = [f'v_max3_u32 v{ck}, v{AO}, v{AO+1}, v{AO+2}', f'v_max3_u32 v{ck}, v{ck}, v{AO+3}, v{AO+4}',
               f'v_max3_u32 v{ck}, v{ck}, v{AO+5}, v{AO+6}', f'v_max3_u32 v{ck}, v{ck}, v{AO+7}, v{ml}',
               f'v_max_u32 v{ck}, v{ck}, v{ml+1}', f'v_cmp_eq_u32 vcc, -1, v{ck}']
        sc = [f'v_max_f32_dpp v{M}, v{ml}, v{ml} quad_perm:[1,0,3,2] {DF}',
              f'v_max_f32_dpp v{M}, v{M}, v{M} quad_perm:[2,3,0,1] {DF}',
              f'v_max_f32_dpp v{M}, v{M}, v{M} row_half_mirror {DF}',
              f'v_sub_f32 v{f}, v{ml}, v{M}', f'v_exp_f32 v{f}, v{f}',
              f'v_mul_f32 v{Lq}, v{f}, v{ml+1}',
              f'v_add_f32_dpp v{Lq}, v{Lq}, v{Lq} quad_perm:[1,0,3,2] {DF}',
              f'v_add_f32_dpp v{Lq}, v{Lq}, v{Lq} quad_perm:[2,3,0,1] {DF}',
              f'v_add_f32_dpp v{Lq}, v{Lq}, v{Lq} row_half_mirror {DF}',
              f'v_rcp_f32 v{Lq}, v{Lq}', f'v_mul_f32 v{f}, v{f}, v{Lq}']
        mf = []
        for t in range(2):
            for d in range(4):
                c = '0' if t == 0 else vr(ACC + 4 * d, 4)
                mf.append(f'{MFMA} {vr(ACC+4*d,4)}, {vr(AO+4*t,4)}, {ar(aWO+16*t+4*d,4)}, {c}')
        p(mf[0]); p(chk[0]); p(chk[1]); p(sc[0])
        p(mf[1]); p(chk[2]); p(chk[3]); p(sc[1])
        p(mf[2]); p(chk[4]); p(chk[5]); p(sc[2])
        p(f's_cbranch_vccnz {Lr}')
        p(f'{Lok}:')
        p(mf[3]); p(sc[3]); p(sc[4])
        p(mf[4]); p(sc[5])
        p(mf[5]); p(sc[6])
        p(mf[6]); p(sc[7])
        p(mf[7]); p(sc[8]); p(sc[9]); p(sc[10])
        for d in range(4):
            for r in range(4):
                op = 'v_mul_f32_dpp' if r == 0 else 'v_fmac_f32_dpp'
                p(f'{op} v{y+d}, v{f}, v{ACC+4*d+r} row_newbcast:{r} {DF}')
        self.reduce_publish(y, sL, 0)

    def ha2a_loads(self, base, acc, s0, s4, track, tag=None):
        for t in range(5):
            r = ar(base + 4 * t, 4) if acc else vr(base + 4 * t, 4)
            self.vmem(f'buffer_load_dwordx4 {r}, {vHR}, {srd("WS")}, {s4 if t == 4 else s0} offen offset:{1024*(t&3)} sc1',
                      optional=not track, tag=tag)
    def ha2a_sum(self, b, out):
        ops = []
        for (x, y) in ((0, 4), (8, 12), (0, 16), (0, 8)):
            ops += [f'v_pk_add_f32 {vr(b+x,2)}, {vr(b+x,2)}, {vr(b+y,2)}', f'v_pk_add_f32 {vr(b+x+2,2)}, {vr(b+x+2,2)}, {vr(b+y+2,2)}']
        return ops + self.rs4(b, out)

    def ha2a(self):
        p = self.p
        s4 = ACC + 20
        u, st, mean, sc, t1, e = T, T + 1, T + 2, T + 3, T + 4, T + 5
        A = T + 8
        y = T + 16
        Lp, Lsk = self.poll_head()
        self.vmem(f'buffer_load_dwordx4 {vr(s4,4)}, {vSRH}, {srd("WS")}, {sL} offen offset:256 sc1', optional=True)
        self.ha2a_loads(ACC, False, sL, sLH4, False)
        p('s_waitcnt vmcnt(5)')
        so = self.stats_ops(s4, st, mean, sc, True)
        for s in so[:2]: p(s)
        p('s_waitcnt vmcnt(0)')
        p(f'{Lsk}:')
        self.merge(self.ha2a_sum(ACC, f'v{u}'), so[2:])
        Lok = p.label('Lok')
        Lr = self.retry(Lp, Lok)
        c0 = -2.0 * math.sqrt(2.0 / math.pi) * math.log2(math.e)
        c1 = c0 * 0.044715
        p(f'v_fma_f32 v{u}, -v{mean}, {CS1}, v{u}')
        p(f'v_fma_f32 v{u}, v{u}, v{sc}, {B1v}')
        p(f'v_mul_f32 v{t1}, v{u}, v{u}')
        p(f'v_cmp_u_f32 vcc, v{u}, v{st}')
        p(f'v_mul_f32 v{t1}, {H(f2u(c1))}, v{t1}')
        p(f'v_add_f32 v{t1}, {H(f2u(c0))}, v{t1}')
        p(f's_cbranch_vccnz {Lr}')
        p(f'{Lok}:')
        p(f'v_mul_f32 v{t1}, v{t1}, v{u}')
        p(f'v_exp_f32 v{e}, v{t1}')
        p(f'v_add_f32 v{e}, 1.0, v{e}')
        p(f'v_rcp_f32 v{e}, v{e}')
        p(f'v_mul_f32 v{u}, v{u}, v{e}')
        p(f'v_cvt_pk_bf16_f32 v{u}, v{u}, v{u}')
        for k in range(4):
            p(f'v_and_b32 v{A+k}, v{u}, v{MK+k}')
        for d in range(4):
            p(f'{MFMA} {vr(ACC+4*d,4)}, {vr(A,4)}, {ar(aW2+4*d,4)}, 0')
        for d in range(4):
            p(f'v_pk_add_f32 {vr(ACC+4*d,2)}, {vr(ACC+4*d,2)}, {vr(ACC+4*d+2,2)}')
            p(f'v_add_f32 v{y+d}, v{ACC+4*d}, v{ACC+4*d+1}')
        self.reduce_publish(y, sLM, 1024)

    def combine(self, fl):
        p = self.p
        f = T + 5
        p(f'v_mul_f32_dpp v{T}, v{f}, v{ACC} quad_perm:[0,0,0,0] {DF}')
        p(f'v_mul_f32_dpp v{T+1}, v{f}, v{ACC+4} quad_perm:[0,0,0,0] {DF}')
        p(f'ds_write2_b32 {lOW}, v{T}, v{T+1} offset0:0 offset1:64')
        p(f's_cmp_lg_u32 {sW}, 0')
        self.lgkm(0)
        if self.o.stamps: p(f's_cmp_lg_u32 {sW}, 0')
        p('s_barrier')
        Ls = p.label('Lsk')
        p(f's_cbranch_scc1 {Ls}')
        p(f'ds_read2_b64 {vr(ACC,4)}, {lOR} offset0:0 offset1:64')
        p(f'ds_read2_b64 {vr(ACC+4,4)}, {lOR} offset0:128 offset1:192')
        self.lgkm(1)
        p(f'v_pk_add_f32 {vr(ACC,2)}, {vr(ACC,2)}, {vr(ACC+2,2)}')
        self.lgkm(0)
        p(f'v_pk_add_f32 {vr(ACC+4,2)}, {vr(ACC+4,2)}, {vr(ACC+6,2)}')
        p(f'v_pk_add_f32 {vr(ACC,2)}, {vr(ACC,2)}, {vr(ACC+4,2)}')
        p(f'v_cvt_pk_bf16_f32 v{ACC}, v{ACC}, v{ACC+1}')
        self.vmem(f'buffer_store_dword v{ACC}, {vOW}, {srd("WS")}, {sL} offen {fl}', optional=True)
        p(f'{Ls}:')

    def set_layer(self, off):
        p = self.p
        p(f's_mov_b32 {sL}, {H(off)}')
        p(f's_mov_b32 {sLH4}, {H(off + 4096)}')
        p(f's_mov_b32 {sLM}, {H(off + XMo - XAo)}')

    def finish(self):
        p = self.p
        if self.o.stamps:
            self.stamp(31)
            self.flush()
            p(f'v_writelane_b32 {vSTAMP}, {sBud}, 33')
            p(f's_memtime s[{sSTAMP}:{sSTAMP+1}]'); p('s_waitcnt lgkmcnt(0)')
            p(f'v_writelane_b32 {vSTAMP}, s{sSTAMP}, 35')
            Le = p.label('Lend')
            p(f's_cmp_lg_u32 {sW}, 0'); p(f's_cbranch_scc1 {Le}')
            p(f's_lshl_b32 {sT}, s2, 8'); p(f's_add_u32 {sT}, {sT}, 0x8000000')
            p(f'v_lshlrev_b32 v{T}, 2, {vLane}')
            p(f'buffer_store_dword {vSTAMP}, v{T}, {srd("WS")}, {sT} offen')
            if self.o.dbgst:
                p(f's_cmp_lg_u32 s2, 0'); p(f's_cbranch_scc1 {Le}')
                for src, dst in ((31, 7), (20, 8), (18, 9), (23, 15), (16, 12)):
                    p(f'v_readlane_b32 {sT}, {vSTAMP}, {src}'); p(f'v_writelane_b32 {vSTAMP}, {sT}, {dst}')
                p(f'v_readlane_b32 {sT}, {vSTAMP}, 0')
                p(f'v_subrev_u32 {vSTAMP}, {sT}, {vSTAMP}')
                p(f'buffer_store_dword {vSTAMP}, v{T}, {srd("DBG")}, 0 offen sc1')
            p(f'{Le}:')
        p('s_endpgm')

    def loop(self, A, B, fast, name, dryret):
        p = self.p
        fl = '' if fast else 'sc1'
        NS = 10
        def stp(k): self.stamp((k - 2, NS))
        p(f'{name}:')
        stp(2)
        self.combine(fl)
        stp(3)
        if B:
            self.oa2a()
            stp(4)
        if A:
            self.x8(sL)
            stp(5)
            self.w1(XA, sL, fl, True, False, post=self.unpack_xr(True))
            stp(6)
        if B:
            self.ha2a()
            stp(7)
        Lc = p.label('Lcont')
        if A:
            p(f's_cmp_lg_u32 {sState}, 2'); p(f's_cbranch_scc1 {Lc}')
            Lf = p.label('Lfin')
            p(f's_or_b32 {sT}, {sX}, {sW}')
            p(f's_cmp_eq_u32 {sT}, 0'); p(f's_cbranch_scc1 {Lc}')
            self.flush()
            p(f's_branch {Lf}')
            p(f'{Lc}:')
            self.x8(sLM)
            Lc2 = p.label('Lcont')
            p(f's_cmp_lg_u32 {sState}, 2'); p(f's_cbranch_scc1 {Lc2}')
            p(f's_mov_b64 exec, s[{sMF}:{sMF+1}]')
            p(f's_lshl_b32 {sT}, {sIA}, 6')
            p(f'buffer_store_dwordx2 {vr(XA,2)}, {vLane}, {srd("OUT")}, {sT} offen')
            p('s_mov_b64 exec, -1')
            self.flush()
            p(f'{Lf}:')
            self.finish()
            p(f'{Lc2}:')
            stp(8)
        else:
            p(f's_cmp_lg_u32 {sState}, 2'); p(f's_cbranch_scc1 {Lc}')
            self.finish()
            p(f'{Lc}:')
        Ld = p.label('Ldry')
        p(f's_cmp_eq_u32 {sState}, 0'); p(f's_cbranch_scc1 {Ld}')
        self.set_layer(LSTR)
        p(f'{Ld}:')
        if A:
            self.qp(XA, sL, fl, True, False, post=self.unpack_xr(False))
            stp(9)
        s4 = ACC + 12
        u, st, mean, sc = T, T + 1, T + 2, T + 3
        Lp, Lsk = self.poll_head()
        self.vmem(f'buffer_load_dwordx4 {vr(s4,4)}, {vSRQ}, {srd("WS")}, {sL} offen sc1', optional=True)
        self.qa2a_loads(ACC, sL, False)
        p('s_waitcnt vmcnt(3)')
        so = self.stats_ops(s4, st, mean, sc, False)
        for s in so[:2]: p(s)
        p('s_waitcnt vmcnt(0)')
        p(f'{Lsk}:')
        self.merge(self.qa2a_sum(ACC, f'v{u}'), so[2:])
        self.q_finish(u, st, mean, sc, Lp)
        stp(10)
        self.flush()
        self.qk_softmax()
        stp(11)
        self.pv(self.ml_ops(fl), False)
        self.flush()
        if dryret:
            p(f's_cmp_eq_u32 {sState}, 0'); p(f's_cbranch_scc1 {dryret}')
        p(f's_mov_b32 {sState}, 2')
        p(f's_branch {name}')
        for code in self.ool:
            for s in code: p(s)
        self.ool = []

    def kload(self, mb):
        self.vmem(f'buffer_load_dwordx4 {ar(4*mb,4)}, {vFL}, {srd("K")}, s{sKV+(mb>>2)} offen offset:{1024*(mb&3)} nt', tag=f'K{mb}')
    def vload(self, mb):
        self.vmem(f'buffer_load_dwordx4 {vr(VB+2+4*mb,4)}, {a16}, {srd("V")}, s{sKV+(mb>>2)} offen offset:{1024*(mb&3)} nt', tag=f'V{mb}')

    def head(self):
        p = self.p
        p('s_cmp_ge_u32 s2, 256'); p('s_cbranch_scc1 L_exit')
        for n in ('K', 'V', 'WS'):
            p(f's_load_dwordx2 s[{SRD[n]}:{SRD[n]+1}], s[0:1], {KOFF[n]}')
        if self.o.stamps:
            p(f's_memrealtime s[{sSTAMP}:{sSTAMP+1}]')
            p(f's_memtime s[{sSTAMP+2}:{sSTAMP+3}]')
        p('v_lshrrev_b32 v1, 6, v0')
        p('v_and_b32 v0, 63, v0')
        p(f'v_readfirstlane_b32 {sW}, v1')
        p(f's_and_b32 {sX}, s2, 7'); p(f's_lshr_b32 {sC}, s2, 3'); p(f's_and_b32 {sJ}, {sC}, 3'); p(f's_lshr_b32 {sS}, {sC}, 2')
        p(f's_lshl_b32 s{sKV}, {sX}, 22'); p(f's_lshl_b32 {sT}, {sJ}, 20'); p(f's_add_u32 s{sKV}, s{sKV}, {sT}')
        p(f's_lshl_b32 {sT}, {sS}, 17'); p(f's_add_u32 s{sKV}, s{sKV}, {sT}')
        p(f's_lshl_b32 {sT}, {sW}, 15'); p(f's_add_u32 s{sKV}, s{sKV}, {sT}')
        for k in range(1, 8): p(f's_add_u32 s{sKV+k}, s{sKV}, {4096*k}')
        for n in ('K', 'V', 'WS'):
            p(f's_mov_b32 s{SRD[n]+2}, {H(SIZE[n])}'); p(f's_mov_b32 s{SRD[n]+3}, 0x00020000')
        aK = 124
        p(f'v_lshlrev_b32 {a16}, 4, v0')
        p(f'v_bfe_u32 v{T}, v0, 2, 2'); p(f'v_lshlrev_b32 v{aK}, 8, v{T}')
        p(f'v_lshrrev_b32 v{T}, 4, v0'); p(f'v_lshl_add_u32 v{aK}, v{T}, 6, v{aK}')
        p(f'v_and_b32 v{T}, 3, v0'); p(f'v_lshl_add_u32 v{aK}, v{T}, 4, v{aK}')
        p('s_waitcnt lgkmcnt(0)')
        for mb in range(8): self.kload(mb)
        if self.o.stamps:
            p(f'v_mov_b32 {vSTAMP}, 0')
            p(f'v_writelane_b32 {vSTAMP}, s{sSTAMP}, 0')
            p(f'v_writelane_b32 {vSTAMP}, s{sSTAMP+2}, 34')
        for n in ('X', 'WQ', 'WO', 'W1', 'B1', 'W2', 'B2'):
            p(f's_load_dwordx2 s[{SRD[n]}:{SRD[n]+1}], s[0:1], {KOFF[n]}')
        for n in ('X', 'WQ', 'WO', 'W1', 'B1', 'W2', 'B2', 'OUT', 'DBG'):
            p(f's_mov_b32 s{SRD[n]+2}, {H(SIZE[n])}'); p(f's_mov_b32 s{SRD[n]+3}, 0x00020000')
        p(f's_mov_b32 {sLo}, 0x05040100'); p(f's_mov_b32 {sHi}, 0x07060302')
        p(f's_mov_b32 {sBud}, 100000')
        for b in range(4):
            p(f's_mov_b32 s{sMB+2*b}, {H(0x11111111 << b)}'); p(f's_mov_b32 s{sMB+2*b+1}, {H(0x11111111 << b)}')
        p(f's_mov_b32 s{sMF}, 0x01010101'); p(f's_mov_b32 s{sMF+1}, 0x01010101')
        p(f's_mov_b32 {sIA}, {sC}'); p(f's_sub_u32 {sIB}, {sC}, 12')
        p(f's_getreg_b32 {sFlag}, hwreg(HW_REG_XCC_ID)'); p(f's_and_b32 {sFlag}, {sFlag}, 15'); p(f's_or_b32 {sFlag}, {sFlag}, 0x80')
        p('s_waitcnt lgkmcnt(0)')
        for n in ('OUT', 'DBG'):
            p(f's_load_dwordx2 s[{SRD[n]}:{SRD[n]+1}], s[0:1], {KOFF[n]}')
        p(f's_cmp_lt_u32 {sC}, 12'); p('s_cbranch_scc1 L_roleA')
        p(f's_cmp_lt_u32 {sC}, 20'); p('s_cbranch_scc1 L_roleAB')
        p('s_branch L_roleB')
        p('L_exit:')
        p('s_endpgm')

    def prologue(self, A, B, name):
        p = self.p
        o = self.o
        vm0, tags0 = self.vm, dict(self.tags)
        p(f'L_role{name}:')
        vR, vG, t0, t1, t2, vD = T, T + 1, T + 2, T + 3, T + 4, T + 5
        sXW, sXJ = 's78', 's79'
        sSX, sSXX = 's90', 's91'
        XF = 40
        SN = T + 8
        kv = [('K', m) for m in range(8, 32)] + [('V', m) for m in range(32)]
        def stream(n):
            for _ in range(n):
                k, m = kv.pop(0)
                (self.kload if k == 'K' else self.vload)(m)
        def thr(n):
            if n >= 0: p(f's_waitcnt vmcnt({n})')
        for k in range(4): p(f'v_mov_b32 v{SN+k}, -1')
        p(f's_lshl_b32 {sT}, s2, 2'); p(f's_add_u32 {sT}, {sT}, {sW}'); p(f's_lshl_b32 {sT}, {sT}, 10')
        p(f's_add_u32 {sT}, {sT}, {H(CLR0)}')
        self.vmem(f'buffer_store_dwordx4 {vr(SN,4)}, {a16}, {srd("WS")}, {sT} offen sc1', tag='CLR')
        p(f's_add_u32 {sT}, {sT}, 0x100000')
        Lnc = p.label('Lnc')
        p(f's_cmp_ge_u32 {sT}, {H(2*LSTR)}'); p(f's_cbranch_scc1 {Lnc}')
        self.vmem(f'buffer_store_dwordx4 {vr(SN,4)}, {a16}, {srd("WS")}, {sT} offen sc1', tag='CLR', optional=True)
        p(f'{Lnc}:')
        p(f'v_and_b32 v{vR}, 15, v0'); p(f'v_lshrrev_b32 v{vG}, 4, v0')
        p(f's_lshl_b32 {sXW}, {sX}, 2'); p(f's_add_u32 {sXJ}, {sXW}, {sJ}'); p(f's_add_u32 {sXW}, {sXW}, {sW}')
        if A:
            p(f'v_lshrrev_b32 v{t0}, 2, v{vR}'); p(f'v_mul_u32_u24 {vQW}, 2560, v{t0}')
            p(f'v_and_b32 v{t0}, 3, v{vR}'); p(f'v_lshl_add_u32 {vQW}, v{t0}, 5, {vQW}')
            p(f'v_lshl_add_u32 {vQW}, v{vG}, 4, {vQW}')
            p(f's_mul_i32 {sT}, {sXW}, 0x2800'); p(f's_lshl_b32 {sT2}, {sIA}, 7'); p(f's_add_u32 {sT}, {sT}, {sT2}')
            p(f'v_add_u32 {vQW}, {sT}, {vQW}')
            p(f's_mul_i32 {sT}, {sXW}, 0x1400'); p(f's_lshl_b32 {sT2}, {sIA}, 8'); p(f's_add_u32 {sT}, {sT}, {sT2}'); p(f's_add_u32 {sT}, {sT}, {H(HP)}')
            p(f'v_add_u32 {vHW}, {sT}, {a16}')
            p(f's_mov_b32 {sT2}, {H(CSL)}')
            p('s_mov_b32 exec_hi, 0')
            for so in ('0', sT2):
                self.vmem(f'buffer_store_dwordx4 {vr(SN,4)}, {vQW}, {srd("WS")}, {so} offen sc1', tag='CLR')
            p('s_mov_b64 exec, 0xffff')
            self.vmem(f'buffer_store_dwordx4 {vr(SN,4)}, {vHW}, {srd("WS")}, {sT2} offen sc1', tag='CLR')
            p('s_mov_b64 exec, -1')
            p(f'v_and_b32 v{t0}, 0x38, v0')
            p(f's_lshl_b32 {sT}, {sIA}, 6')
            self.vmem(f'buffer_load_dwordx2 {ar(aX,2)}, v{t0}, {srd("X")}, {sT} offen', tag='XL')
            self.vmem(f'buffer_load_dwordx2 {ar(aB2,2)}, v{t0}, {srd("B2")}, {sT} offen', tag='XL')
            p(f'v_lshlrev_b32 v{t0}, 16, v{vG}'); p(f'v_lshl_add_u32 v{t0}, v{vR}, 4, v{t0}')
            p(f's_lshl_b32 {sT}, {sIA}, 18'); p(f's_lshl_b32 {sT2}, {sXW}, 8'); p(f's_add_u32 {sT}, {sT}, {sT2}')
            for jj in range(8):
                self.vmem(f'buffer_load_dwordx4 {ar(aWQ+4*jj,4)}, v{t0}, {srd("WQ")}, {sT} offen {o.wnt}', tag='WQ')
                if jj < 7: p(f's_add_u32 {sT}, {sT}, 8192')
            p(f'v_mul_u32_u24 v{t0}, {8*3456}, v{vG}'); p(f'v_lshl_add_u32 v{t0}, v{vR}, 3, v{t0}')
            p(f's_mul_i32 {sT}, {sIA}, {32*3456}'); p(f's_mul_i32 {sT2}, {sX}, 432'); p(f's_add_u32 {sT}, {sT}, {sT2}')
            p(f's_lshl_b32 {sT2}, {sW}, 7'); p(f's_add_u32 {sT}, {sT}, {sT2}')
            for jj in range(8):
                self.vmem(f'buffer_load_dwordx2 {ar(aW1+2*jj,2)}, v{t0}, {srd("W1")}, {sT} offen', tag='W1')
                if jj < 7: p(f's_add_u32 {sT}, {sT}, 3456')
        self.vmem(f'buffer_load_dwordx4 {vr(XF,4)}, {a16}, {srd("X")}, 0 offen', tag='XF')
        self.vmem(f'buffer_load_dwordx4 {vr(XF+4,4)}, {a16}, {srd("X")}, 0 offen offset:1024', tag='XF')
        stream(o.n1A if A else o.n1B)
        p(f'v_and_b32 v{t0}, 1, v{vG}'); p(f'v_lshrrev_b32 v{vD}, 1, v{vG}'); p(f'v_lshl_add_u32 v{vD}, v{t0}, 1, v{vD}')
        p(f's_lshl_b32 {sT}, {sXJ}, 3'); p(f's_add_u32 {sT}, {sT}, {sS}')
        p(f's_lshl_b32 {sT2}, {sT}, 8'); p(f's_add_u32 {sT2}, {sT2}, {H(OP)}')
        p(f'v_lshlrev_b32 {vOW}, 2, v0'); p(f'v_add_u32 {vOW}, {sT2}, {vOW}')
        p(f's_lshl_b32 {sT2}, {sT}, 3'); p(f's_add_u32 {sT2}, {sT2}, {H(OS)}')
        p(f'v_mov_b32 {vOSW}, {sT2}')
        p(f's_mul_i32 {sT}, {sXJ}, 0x2800'); p(f's_mul_i32 {sT2}, {sW}, 2560'); p(f's_add_u32 {sT}, {sT}, {sT2}')
        p(f'v_add_u32 {vQR}, {sT}, {a16}')
        p(f'v_mov_b32 v{t1}, {H(OOB)}')
        p(f'v_cmp_gt_u32 vcc, 32, v0'); p(f'v_cndmask_b32 {vQR3}, v{t1}, {vQR}, vcc')
        p(f'v_and_b32 v{t0}, 1, v{vR}'); p(f'v_mul_u32_u24 v{t0}, 80, v{t0}')
        p(f'v_lshrrev_b32 v{t2}, 1, v{vR}'); p(f'v_lshl_add_u32 v{t0}, v{t2}, 4, v{t0}')
        p(f'v_cmp_gt_u32 vcc, 10, v{vR}'); p(f'v_cndmask_b32 v{t0}, v{t1}, v{t0}, vcc')
        p(f's_lshl_b32 {sT}, {sXJ}, 9'); p(f's_add_u32 {sT}, {sT}, {H(ST)}'); p(f'v_add_u32 {vSRQ}, {sT}, v{t0}')
        if B:
            p(f's_lshl_b32 {sT}, {sXW}, 9'); p(f's_add_u32 {sT}, {sT}, {H(ST)}'); p(f'v_add_u32 {vSRH}, {sT}, v{t0}')
            p(f'v_lshrrev_b32 v{t0}, 3, v0'); p(f'v_mul_u32_u24 {vXW}, {H(CPS)}, v{t0}')
            p(f'v_and_b32 v{t0}, 7, v0'); p(f'v_lshl_add_u32 {vXW}, v{t0}, 4, {vXW}')
            p(f's_lshl_b32 {sT}, {sIB}, 10'); p(f's_lshl_b32 {sT2}, {sX}, 7'); p(f's_add_u32 {sT}, {sT}, {sT2}'); p(f's_add_u32 {sT}, {sT}, {H(XAo)}')
            p(f'v_add_u32 {vXW}, {sT}, {vXW}')
            p(f'v_and_b32 v{t0}, 7, v0'); p(f'v_lshlrev_b32 {vOR}, 8, v{t0}')
            p(f'v_lshrrev_b32 v{t0}, 3, v{vR}'); p(f'v_lshl_add_u32 {vOR}, v{t0}, 6, {vOR}')
            p(f'v_lshl_add_u32 {vOR}, v{vG}, 4, {vOR}')
            p(f's_lshl_b32 {sT}, {sXW}, 11'); p(f's_add_u32 {sT}, {sT}, {H(OP)}'); p(f'v_add_u32 {vOR}, {sT}, {vOR}')
            p(f'v_lshl_add_u32 v{t0}, v{vG}, 2, v{vR}'); p(f'v_and_b32 v{t0}, 7, v{t0}'); p(f'v_lshlrev_b32 v{t0}, 3, v{t0}')
            p(f's_lshl_b32 {sT}, {sXW}, 6'); p(f's_add_u32 {sT}, {sT}, {H(OS)}'); p(f'v_add_u32 {vOSR}, {sT}, v{t0}')
            p(f's_mul_i32 {sT}, {sXW}, 0x1400'); p(f's_add_u32 {sT}, {sT}, {H(HP)}'); p(f'v_add_u32 {vHR}, {sT}, {a16}')
            p(f'v_lshrrev_b32 v{t0}, 3, v{vR}')
            p(f'v_lshlrev_b32 {lRW}, 7, v{t0}')
            p(f'v_and_b32 v{t2}, 7, v0'); p(f'v_lshl_add_u32 {lRW}, v{t2}, 4, {lRW}')
            p(f'v_add_u32 {lRR}, {L_R}, {lRW}')
            p(f'v_and_b32 v{t2}, 1, v{vG}'); p(f'v_lshl_add_u32 {lRW}, v{t2}, 3, {lRW}')
            p(f's_lshl_b32 {sT}, {sW}, 8'); p(f's_add_u32 {sT}, {sT}, {L_R}'); p(f'v_add_u32 {lRW}, {sT}, {lRW}')
            p(f'v_lshrrev_b32 v{t2}, 1, v{vG}'); p(f'v_cmp_eq_u32 vcc, v{t0}, v{t2}')
            p(f'v_lshlrev_b32 v{t2}, 3, v0'); p(f'v_add_u32 v{t2}, {L_J2}, v{t2}')
            p(f'v_cndmask_b32 {lRW}, v{t2}, {lRW}, vcc')
            p(f'v_lshl_add_u32 v{t0}, v{vR}, 2, v{vD}'); p(f's_lshl_b32 {sT}, {sW}, 6'); p(f'v_add_u32 v{t0}, {sT}, v{t0}')
            p(f'v_and_b32 v{t2}, 1, v0'); p(f'v_lshlrev_b32 v{t2}, 4, v{t2}'); p(f'v_mov_b32 v{t1}, 0xffff'); p(f'v_lshlrev_b32 v{t1}, v{t2}, v{t1}')
            p(f'v_cmp_gt_u32 vcc, 216, v{t0}'); p(f'v_cndmask_b32 v{t1}, 0, v{t1}, vcc')
            p(f'v_bfe_u32 v{t2}, v0, 1, 2')
            for k in range(4):
                p(f'v_cmp_eq_u32 vcc, {k}, v{t2}'); p(f'v_cndmask_b32 v{MK+k}, 0, v{t1}, vcc')
            p(f'v_lshlrev_b32 v{T+12}, 1, v{t0}')
            p(f'v_and_b32 v{t0}, 1, v{vG}'); p(f'v_lshlrev_b32 v{t0}, 6, v{t0}')
            p(f'v_lshrrev_b32 v{t2}, 3, v{vR}'); p(f'v_lshl_add_u32 v{t0}, v{t2}, 1, v{t0}')
            p(f'v_lshrrev_b32 v{t1}, 1, v{vG}'); p(f'v_add_u32 v{t0}, v{t0}, v{t1}')
            p(f'v_mul_u32_u24 v{t0}, 1280, v{t0}')
            p(f'v_and_b32 v{t1}, 7, v0'); p(f'v_lshl_add_u32 v{T+13}, v{t1}, 3, v{t0}')
            p(f'v_lshl_add_u32 v{t0}, v{t2}, 5, v{vD}'); p(f'v_mul_u32_u24 v{t0}, 1280, v{t0}')
            p(f'v_lshl_add_u32 v{T+14}, v{t1}, 3, v{t0}')
        if A:
            p(f's_lshl_b32 {sT}, {sXW}, 9'); p(f's_lshl_b32 {sT2}, {sIA}, 2'); p(f's_add_u32 {sT}, {sT}, {sT2}'); p(f's_add_u32 {sT}, {sT}, {H(ST)}')
            p(f'v_mov_b32 {vSW}, {sT}'); p(f's_add_u32 {sT}, {sT}, 80'); p(f'v_writelane_b32 {vSW}, {sT}, 0')
            p(f'v_and_b32 v{t0}, 7, v0'); p(f'v_lshlrev_b32 {vXR}, 7, v{t0}')
            p(f'v_lshrrev_b32 v{t0}, 3, v0'); p(f'v_lshl_add_u32 {vXR}, v{t0}, 4, {vXR}')
            p(f's_lshl_b32 {sT}, {sIA}, 10'); p(f's_add_u32 {sT}, {sT}, {H(XAo)}'); p(f'v_add_u32 {vXR}, {sT}, {vXR}')
            for k in range(4): p(f'v_mov_b32 v{XB+k}, 0x3f803f80')
        p(f'v_and_b32 v{t0}, 7, v0'); p(f'v_lshl_add_u32 v{t0}, v{t0}, 2, v{vD}'); p(f's_lshl_b32 {sT}, {sW}, 5'); p(f'v_add_u32 v{t0}, {sT}, v{t0}')
        p(f'v_lshlrev_b32 {lQW}, 1, v{t0}')
        p(f'v_lshrrev_b32 v{t0}, 2, v0'); p(f'v_lshlrev_b32 {lQR}, 4, v{t0}')
        p(f'v_lshlrev_b32 {lMW}, 3, v0'); p(f'v_add_u32 {lMW}, {L_J1}, {lMW}')
        p(f's_lshl_b32 {sT}, {sW}, 3'); p(f's_add_u32 {sT}, {sT}, {L_ML}'); p(f'v_writelane_b32 {lMW}, {sT}, 63')
        p(f'v_add_u32 v{t0}, {sW}, v0'); p(f'v_and_b32 v{t0}, 3, v{t0}'); p(f'v_lshlrev_b32 v{t0}, 3, v{t0}'); p(f'v_add_u32 {lMR}, {L_ML}, v{t0}')
        p(f's_lshl_b32 {sT}, {sW}, 9'); p(f's_add_u32 {sT}, {sT}, {L_O}'); p(f'v_lshlrev_b32 {lOW}, 2, v0'); p(f'v_add_u32 {lOW}, {sT}, {lOW}')
        p(f'v_lshlrev_b32 {lOR}, 3, v0'); p(f'v_add_u32 {lOR}, {L_O}, {lOR}')
        p(f'v_mov_b32 {vC}, {H(f2u(CSC))}')
        for k in range(24): p(f'v_mov_b32 v{BQ+k}, 0')
        p(f'v_lshlrev_b32 v{T+15}, 2, v0')
        p(f'v_mov_b32 v{t0}, {sFlag}'); p(f'v_mov_b32 v{t1}, s2')
        self.wait('CLR')
        self.lgkm(0)
        p('s_barrier')
        Lnf = p.label('Lnf')
        p(f's_cmp_lg_u32 {sW}, 0'); p(f's_cbranch_scc1 {Lnf}')
        p('s_mov_b64 exec, 1')
        self.vmem(f'buffer_store_byte v{t0}, v{t1}, {srd("DBG")}, 0 offen sc1', optional=True)
        p('s_mov_b64 exec, -1')
        p(f'{Lnf}:')
        self.stamp(1)
        stream(o.n2)
        def bloads():
            p(f's_mul_i32 {sT}, {sX}, 432')
            self.vmem(f'buffer_load_ushort a{aB1}, v{T+12}, {srd("B1")}, {sT} offen', tag='B1')
            p(f's_mul_i32 {sT}, {sXW}, {128*1280}'); p(f's_lshl_b32 {sT2}, {sIB}, 6'); p(f's_add_u32 {sT}, {sT}, {sT2}')
            for t in range(2):
                for jj in range(8):
                    p(f's_add_u32 {sT3}, {sT}, {(8*jj+4*t)*1280}')
                    self.vmem(f'buffer_load_dwordx2 {ar(aWO+16*t+2*jj,2)}, v{T+13}, {srd("WO")}, {sT3} offen', tag='WO')
            p(f's_mul_i32 {sT}, {sX}, {216*1280}'); p(f's_add_u32 {sT}, {sT}, {sT2}')
            p(f's_mul_i32 {sT2}, {sW}, {64*1280}'); p(f's_add_u32 {sT}, {sT}, {sT2}')
            for jj in range(8):
                p(f's_add_u32 {sT3}, {sT}, {4*jj*1280}')
                self.vmem(f'buffer_load_dwordx2 {ar(aW2+2*jj,2)}, v{T+14}, {srd("W2")}, {sT3} offen', tag='W2')
        if B and not A: bloads()
        if A:
            self.wait('WQ')
            p(f'v_accvgpr_read_b32 v{XA}, a{aX}'); p(f'v_accvgpr_read_b32 v{XA+1}, a{aX+1}')
            self.transpose(aWQ, 4, ACC, T + 2)
            self.build_xa()
            self.qp(XA, '0', 'sc1', False, True)
            ON = T + 4
            for k in range(4): p(f'v_mov_b32 v{ON+k}, 0x3f803f80')
            p(f's_mov_b32 {sT2}, {H(CSL)}')
            self.qp(ON, sT2, 'sc1', False, True)
            self.wait('W1')
            self.transpose(aW1, 2, ACC, T + 2)
            self.w1(ON, sT2, 'sc1', False, True)
            self.stamp(2)
            if B: bloads()
        self.wait('XF')
        p(f'v_mov_b32 v{t0}, 0'); p(f'v_mov_b32 v{t1}, 0'); p(f'v_mov_b32 v{t2}, 0x3f803f80')
        for k in range(8):
            p(f'v_dot2_f32_bf16 v{t0}, v{XF+k}, v{t2}, v{t0}')
            p(f'v_dot2_f32_bf16 v{t1}, v{XF+k}, v{XF+k}, v{t1}')
        p('s_nop 3')
        p(f'v_permlane32_swap_b32 v{t0}, v{t1}')
        p(f'v_add_f32 v{t0}, v{t0}, v{t1}')
        for n in (1, 2, 4, 8): p(f'v_add_f32_dpp v{t0}, v{t0}, v{t0} row_ror:{n} {DF}')
        p(f'v_add_f32_dpp v{t0}, v{t0}, v{t0} row_bcast:15 row_mask:0xa bank_mask:0xf')
        p(f'v_mul_f32 v{t0}, {H(f2u(1.0 / 640))}, v{t0}')
        p(f'v_readlane_b32 {sSX}, v{t0}, 31'); p(f'v_readlane_b32 {sSXX}, v{t0}, 63')
        nk = sum(1 for k, m in kv if k == 'K')
        stream(nk + o.n3)
        thr(o.w1)
        self.vmem(f'buffer_load_dword {vFL}, v{T+15}, {srd("DBG")}, 0 offen sc1', tag='FL')
        stream(o.n4)
        self.stamp(3)
        self.flush()
        Lret = f'L_dryret{name}'
        if o.dry:
            p(f's_mov_b32 {sState}, 0')
            self.set_layer(DUM)
            if o.stamps: p(f'v_accvgpr_write_b32 a255, {vSTAMP}')
            p(f's_branch L_loop{name}_fast')
            p(f'{Lret}:')
            if o.stamps: p(f'v_accvgpr_read_b32 {vSTAMP}, a255')
        p(f's_mov_b32 {sState}, 1')
        self.set_layer(0)
        self.stamp(4)
        self.wait('FL')
        Lfp, Lfok, Lfc = p.label('Lfp'), p.label('Lfok'), p.label('Lfc')
        p(f'{Lfc}:')
        p(f'v_and_b32 v{t0}, 0x80808080, {vFL}')
        p(f'v_cmp_ne_u32 vcc, 0x80808080, v{t0}')
        Lr = self.retry(Lfp, Lfok)
        self.ool.append([f'{Lfp}:', f'v_lshlrev_b32 v{t0}, 2, v0', f'buffer_load_dword {vFL}, v{t0}, {srd("DBG")}, 0 offen sc1',
                         's_waitcnt vmcnt(0)', f's_branch {Lfc}'])
        p(f's_cbranch_vccnz {Lr}')
        p(f'{Lfok}:')
        self.stamp(5)
        p(f's_mov_b32 {sT2}, {H(CSL)}'); p(f's_mov_b32 {sT3}, {H(CSL+4096)}')
        self.qa2a_loads(ACC, '0', True, 'Q0')
        self.qa2a_loads(ACC + 12, sT2, True, 'Q0')
        if B: self.ha2a_loads(aC1, True, sT2, sT3, True, 'C1')
        stream(len(kv))
        p(f's_and_b32 {sT}, {sX}, 3'); p(f's_lshl_b32 {sT}, {sT}, 3')
        p(f'v_bfe_u32 v{t0}, {vFL}, {sT}, 8')
        p(f'v_cmp_ne_u32 vcc, {sFlag}, v{t0}')
        p(f's_lshr_b32 {sT}, {sX}, 2'); p(f's_lshl_b32 {sT}, 0x55555555, {sT}')
        p(f's_or_b32 {sMode}, vcc_lo, vcc_hi'); p(f's_and_b32 {sMode}, {sMode}, {sT}')
        if o.forceslow: p(f's_mov_b32 {sMode}, 1')
        if A:
            p(f'v_accvgpr_read_b32 v{XA}, a{aX}'); p(f'v_accvgpr_read_b32 v{XA+1}, a{aX+1}')
            for s in self.unpack_xr(False): p(s)
            p(f'v_accvgpr_read_b32 v{t0}, a{aB2}'); p(f'v_accvgpr_read_b32 v{t1}, a{aB2+1}')
            p(f'v_lshlrev_b32 v{B2}, 16, v{t0}'); p(f'v_and_b32 v{B2+1}, 0xffff0000, v{t0}')
            p(f'v_lshlrev_b32 v{B2+2}, 16, v{t1}'); p(f'v_and_b32 v{B2+3}, 0xffff0000, v{t1}')
        if B:
            p(f'v_accvgpr_read_b32 {B1v}, a{aB1}'); p(f'v_lshlrev_b32 {B1v}, 16, {B1v}')
            self.transpose(aWO, 2, T, T + 16)
            self.transpose(aWO + 16, 2, T, T + 16)
            self.transpose(aW2, 2, T, T + 16)
        u, st, mean, sc = T, T + 1, T + 2, T + 3
        self.wait('Q0')
        Lq, Lqp = p.label('Lq'), p.label('Lqp')
        p(f'{Lq}:')
        so = [f'v_mov_b32 v{mean}, {sSX}', f'v_mov_b32 v{sc}, {sSXX}', f'v_mov_b32 v{st}, 0',
              f'v_fma_f32 v{sc}, -v{mean}, v{mean}, v{sc}', f'v_max_f32 v{sc}, 0, v{sc}',
              f'v_add_f32 v{sc}, {H(f2u(EPS))}, v{sc}', f'v_rsq_f32 v{sc}, v{sc}']
        self.merge(self.qa2a_sum(ACC, f'v{u}'), self.qa2a_sum(ACC + 12, CSQ), so)
        rl = [f'{Lqp}:', f's_mov_b32 {sT2}, {H(CSL)}']
        for base, so in ((ACC, '0'), (ACC + 12, sT2)):
            for t in range(3):
                rl.append(f'buffer_load_dwordx4 {vr(base+4*t,4)}, {vQR3 if t == 2 else vQR}, {srd("WS")}, {so} offen offset:{1024*t} sc1')
        rl += ['s_waitcnt vmcnt(0)', f's_branch {Lq}']
        self.ool.append(rl)
        self.q_finish(u, st, mean, sc, Lqp)
        self.stamp(6)
        self.flush()
        self.qk_softmax()
        self.stamp(7)
        if B:
            self.wait('C1')
            Lc, Lcp, Lcok = p.label('Lc'), p.label('Lcp'), p.label('Lcok')
            p(f'{Lc}:')
            cb = ACC + 8
            for k in range(20): p(f'v_accvgpr_read_b32 v{cb+k}, a{aC1+k}')
            for s in self.ha2a_sum(cb, CS1): p(s)
            p(f'v_cmp_u_f32 vcc, {CS1}, {CS1}')
            Lr = self.retry(Lcp, Lcok)
            rl = [f'{Lcp}:', f's_mov_b32 {sT2}, {H(CSL)}', f's_mov_b32 {sT3}, {H(CSL+4096)}']
            for t in range(5):
                rl.append(f'buffer_load_dwordx4 {ar(aC1+4*t,4)}, {vHR}, {srd("WS")}, {sT3 if t == 4 else sT2} offen offset:{1024*(t&3)} sc1')
            rl += ['s_waitcnt vmcnt(0)', f's_branch {Lc}']
            self.ool.append(rl)
            p(f's_cbranch_vccnz {Lr}')
            p(f'{Lcok}:')
        self.pv(self.ml_ops('mode'), True)
        self.flush()
        p(f's_cmp_eq_u32 {sMode}, 0'); p(f's_cbranch_scc1 L_loop{name}_fast')
        p(f's_branch L_loop{name}_slow')
        for code in self.ool:
            for s in code: p(s)
        self.ool = []
        self.loop(A, B, True, f'L_loop{name}_fast', Lret if o.dry else None)
        self.loop(A, B, False, f'L_loop{name}_slow', None)
        self.vm, self.tags = vm0, tags0


def main():
    ap = argparse.ArgumentParser()
    ap.add_argument('out')
    ap.add_argument('--stamps', type=int, default=0)
    ap.add_argument('--dry', type=int, default=1)
    ap.add_argument('--x8delay', type=int, default=0)
    ap.add_argument('--n1A', type=int, default=4)
    ap.add_argument('--n1B', type=int, default=8)
    ap.add_argument('--n2', type=int, default=8)
    ap.add_argument('--n3', type=int, default=0)
    ap.add_argument('--w1', type=int, default=8)
    ap.add_argument('--n4', type=int, default=12)
    ap.add_argument('--wnt', type=str, default='')
    ap.add_argument('--dbgst', type=int, default=0)
    ap.add_argument('--forceslow', type=int, default=0)
    o = ap.parse_args()
    g = G(o)
    g.head()
    g.prologue(True, False, 'A')
    g.prologue(True, True, 'AB')
    g.prologue(False, True, 'B')
    body = g.p.finalize()
    ref = open('cdna_kernels/' + NAME + '.s.ref').read()
    comment = ''.join(l + '\n' for l in ref.split('\n') if l.startswith(';') and '@launch' not in l)
    open(o.out, 'w').write(header(256, 256, LDS_SIZE, comment=comment) + body + footer())
    print('instrs', len(g.p.items), 'nops inserted', g.p.nnops)

main()
```

```python
import sys, struct, math, argparse
from asmlib2 import *

def f2u(x): return struct.unpack('<I', struct.pack('<f', x))[0]
def H(x): return f'0x{x & 0xffffffff:x}'

LSTR = 0xDD000
QP = 0x0
OP = 0x50000
HP = 0x60000
XAo = 0x88000
XMo = 0xB0000
ST = 0xD8000
OS = 0xDC000
CSL = 2 * LSTR
DUM = 3 * LSTR
CPS = 0x5000
CLR0 = OP
CLRN = (2 * LSTR - CLR0) // 1024
OOB = 0x80000000
L_Q, L_ML, L_J1, L_O, L_R, L_J2 = 0, 256, 512, 1024, 3072, 5120
LDS_SIZE = 8192
sX, sC, sJ, sS, sW = 's3', 's4', 's5', 's6', 's7'
SRD = dict(K=8, V=12, WS=16, X=20, WQ=24, WO=28, W1=32, B1=36, W2=40, B2=44, OUT=48, DBG=52)
KOFF = dict(X=0, K=8, V=16, WQ=24, WO=32, W1=48, B1=56, W2=64, B2=72, OUT=80, DBG=88, WS=96)
SIZE = dict(X=1280, K=1 << 25, V=1 << 25, WQ=640 * 8192, WO=4096 * 1280, W1=640 * 3456, B1=3456, W2=1728 * 1280,
            B2=1280, OUT=1280, DBG=256, WS=1 << 28)
def srd(n): return f's[{SRD[n]}:{SRD[n]+3}]'
sKV = 56
sL, sLH4, sLM, sT, sT2, sBud, sLo, sHi, sMc, sIA, sIB, sFlag, sState, sT3 = [f's{i}' for i in range(64, 78)]
sMode = 's78'
sMB = 80
sMF = 88
sSTAMP = 92
vLane, a16 = 'v0', 'v1'
vQW, vQR, vQR3, vSW, vSRQ, vSRH, vOW, vOR, vOSW, vOSR, vXW, vXR, vHW, vHR = [f'v{i}' for i in range(2, 16)]
lQW, lQR, lMW, lMR, lOW, lOR, lRW, lRR = [f'v{i}' for i in range(16, 24)]
CSQ, CS1, B1v, vC = 'v24', 'v25', 'v26', 'v27'
MK, XA, XB, XR, B2, BQ, PA, ACC, T = 28, 32, 36, 40, 44, 48, 64, 72, 104
VB = 126
VB2 = ACC + 8
vR, vG, t0, t1, t2, vD = 114, 115, 120, 121, 122, 123
XF, ONM, PX = 40, BQ + 8, BQ + 12
sXW, sXJ = 's79', 's78'
SN = PA
vFL = 'v124'
vSTAMP = 'v125'
aWQ, aWO, aW1, aW2, aX, aB2, aB1, aC1 = 128, 160, 192, 208, 224, 226, 228, 232
def v(i): return f'v{i}'
def vr(i, n): return f'v[{i}:{i+n-1}]'
def ar(i, n): return f'a[{i}:{i+n-1}]'
DF = 'row_mask:0xf bank_mask:0xf'
MFMA = 'v_mfma_f32_16x16x32_bf16'
CSC = (128 ** -0.5) * math.log2(math.e)
EPS = 1e-5


class G:
    def __init__(self, opt):
        self.p = Prog()
        self.o = opt
        self.vm = 0
        self.tags = {}
        self.pend = []
        self.ool = []
        self.nst = 0

    def __call__(self, s): self.p(s)

    def vmem(self, s, tag=None, optional=False):
        self.p(s)
        if not optional:
            self.vm += 1
        if tag: self.tags[tag] = self.vm
    def wait(self, tag):
        n = self.vm - self.tags[tag]
        assert 0 <= n
        self.p(f's_waitcnt vmcnt({min(n, 63)})')
    def stamp(self, k):
        if not self.o.stamps: return
        if len(self.pend) >= 5: self.lgkm(0)
        r = sSTAMP + 2 * (self.nst % 5); self.nst += 1
        self.p(f's_memrealtime s[{r}:{r+1}]')
        self.pend.append((k, r))
    def lgkm(self, n):
        if self.pend:
            self.p('s_waitcnt lgkmcnt(0)')
            for k, r in self.pend:
                if isinstance(k, tuple):
                    self.p(f's_mul_i32 {sT3}, {sState}, {k[1]}')
                    self.p(f's_add_u32 m0, {sT3}, {k[0]}')
                    self.p(f'v_writelane_b32 {vSTAMP}, s{r}, m0')
                else:
                    self.p(f'v_writelane_b32 {vSTAMP}, s{r}, {k}')
            self.pend = []
        else:
            self.p(f's_waitcnt lgkmcnt({n})')
    def flush(self):
        if self.pend: self.lgkm(0)

    def transpose(self, abase, W, tmp, tmp2):
        p = self.p
        n = 8 * W
        for k in range(n):
            p(f'v_accvgpr_read_b32 v{tmp+k}, a{abase+k}')
        cnt = 0
        for dp in range(W):
            for hi in range(2):
                for tau in range(4):
                    t = tmp2 + (cnt & 1); cnt += 1
                    p(f'v_perm_b32 v{t}, v{tmp+(2*tau+1)*W+dp}, v{tmp+(2*tau)*W+dp}, {sHi if hi else sLo}')
                    p(f'v_accvgpr_write_b32 a{abase+(2*dp+hi)*4+tau}, v{t}')

    def build_xa(self):
        p = self.p
        p(f'v_mov_b32_dpp v{XA+2}, v{XA} row_ror:8 {DF}')
        p(f'v_mov_b32_dpp v{XA+3}, v{XA+1} row_ror:8 {DF}')

    def xb_ops(self):
        return [f'v_mov_b32_dpp v{XB+k}, v{XA+k} quad_perm:[0,1,2,3] row_mask:0xf bank_mask:0x3' for k in range(4)]

    def unpack_xr(self, addb2):
        ops = [f'v_lshlrev_b32 v{XR}, 16, v{XA}', f'v_and_b32 v{XR+1}, 0xffff0000, v{XA}',
               f'v_lshlrev_b32 v{XR+2}, 16, v{XA+1}', f'v_and_b32 v{XR+3}, 0xffff0000, v{XA+1}']
        if addb2:
            ops += [f'v_pk_add_f32 {vr(XR,2)}, {vr(XR,2)}, {vr(B2,2)}', f'v_pk_add_f32 {vr(XR+2,2)}, {vr(XR+2,2)}, {vr(B2+2,2)}']
        return ops

    def qp(self, A, soff, fl, stats, track, post=()):
        p = self.p
        st = T + 16
        xb = self.xb_ops() if stats else []
        order = [0, 4, 1, 5, 2, 6, 3, 7]
        mov = {}
        for d in range(8):
            if d == 0: mov[d] = None
            elif d < 4: mov[d] = f'v_mov_b32_dpp v{ACC+d}, v{ACC+4*d} quad_perm:[0,1,2,3] row_mask:0x1 bank_mask:0xf'
            else: mov[d] = f'v_mov_b32_dpp v{ACC+d-4}, v{ACC+4*d} quad_perm:[0,1,2,3] row_mask:0x2 bank_mask:0xf'
        for n, d in enumerate(order):
            p(f'{MFMA} {vr(ACC+4*d,4)}, {vr(A,4)}, {ar(aWQ+4*d,4)}, 0')
            if n < 2 and xb:
                p(xb[2*n]); p(xb[2*n+1])
            if n == 3 and stats:
                p(f'{MFMA} {vr(st,4)}, {vr(XA,4)}, {vr(XB,4)}, 0')
        p('s_mov_b32 exec_hi, 0')
        for d in order[1:]:
            p(mov[d])
        self.vmem(f'buffer_store_dwordx4 {vr(ACC,4)}, {vQW}, {srd("WS")}, {soff} offen {fl}', optional=not track)
        if stats:
            p('s_mov_b64 exec, 0x101')
            self.vmem(f'buffer_store_dword v{st}, {vSW}, {srd("WS")}, {soff} offen {fl}', optional=not track)
        p('s_mov_b64 exec, -1')
        for s in post: p(s)

    def w1(self, A, soff, fl, stats, track, post=()):
        p = self.p
        st = T + 16
        xb = self.xb_ops() if stats else []
        for d in range(4):
            p(f'{MFMA} {vr(ACC+4*d,4)}, {vr(A,4)}, {ar(aW1+4*d,4)}, 0')
            if d < 2 and xb:
                p(xb[2*d]); p(xb[2*d+1])
        if stats:
            p(f'{MFMA} {vr(st,4)}, {vr(XA,4)}, {vr(XB,4)}, 0')
        p('s_mov_b64 exec, 0xffff')
        for d in range(1, 4):
            p(f'v_mov_b32 v{ACC+d}, v{ACC+4*d}')
        self.vmem(f'buffer_store_dwordx4 {vr(ACC,4)}, {vHW}, {srd("WS")}, {soff} offen {fl}', optional=not track)
        if stats:
            p('s_mov_b64 exec, 0x101')
            self.vmem(f'buffer_store_dword v{st}, {vSW}, {srd("WS")}, {soff} offen offset:256 {fl}', optional=not track)
        p('s_mov_b64 exec, -1')
        for s in post: p(s)

    def rs4(self, a, out):
        return [f'v_permlane32_swap_b32 v{a}, v{a+1}', f'v_permlane32_swap_b32 v{a+2}, v{a+3}',
                f'v_add_f32 v{a}, v{a}, v{a+1}', f'v_add_f32 v{a+2}, v{a+2}, v{a+3}',
                f'v_permlane16_swap_b32 v{a}, v{a+2}', f'v_add_f32 {out}, v{a}, v{a+2}']

    def stats_ops(self, s4, st, mean, sc, second):
        inv = H(f2u(1.0 / 640))
        ops = [f'v_pk_add_f32 {vr(s4,2)}, {vr(s4,2)}, {vr(s4+2,2)}',
               f'v_add_f32 v{st}, v{s4}, v{s4+1}',
               f'v_add_f32_dpp v{st}, v{st}, v{st} row_ror:2 {DF}',
               f'v_add_f32_dpp v{st}, v{st}, v{st} row_ror:4 {DF}',
               f'v_add_f32_dpp v{st}, v{st}, v{st} row_ror:8 {DF}',
               f'v_mul_f32 v{st}, {inv}, v{st}',
               f'v_mov_b32_dpp v{mean}, v{st} quad_perm:[0,0,2,2] {DF}',
               f'v_mov_b32_dpp v{sc}, v{st} quad_perm:[1,1,3,3] {DF}',
               f'v_fma_f32 v{sc}, -v{mean}, v{mean}, v{sc}',
               f'v_max_f32 v{sc}, 0, v{sc}']
        if second:
            ops += [f'v_mul_f32 v{sc}, {H(f2u(1.0 + EPS))}, v{sc}', f'v_add_f32 v{sc}, {H(f2u(EPS * EPS))}, v{sc}']
        else:
            ops += [f'v_add_f32 v{sc}, {H(f2u(EPS))}, v{sc}']
        ops += [f'v_rsq_f32 v{sc}, v{sc}']
        return ops

    def merge(self, *lists):
        lists = [list(l) for l in lists]
        while any(lists):
            for l in lists:
                if l: self.p(l.pop(0))

    def retry(self, Lp, Lok, extra=()):
        Lr = self.p.label('Lretry')
        code = [f'{Lr}:',
                f's_cmp_eq_u32 {sBud}, 0', f's_cbranch_scc1 {Lok}', f's_sub_u32 {sBud}, {sBud}, 1'] + list(extra) + [f's_branch {Lp}']
        self.ool.append(code)
        return Lr

    def qa2a_loads(self, base, soff, track, tag=None):
        for t in range(3):
            self.vmem(f'buffer_load_dwordx4 {vr(base+4*t,4)}, {vQR3 if t == 2 else vQR}, {srd("WS")}, {soff} offen offset:{1024*t} sc1',
                      optional=not track, tag=tag)
    def qa2a_sum(self, base, out):
        return [f'v_pk_add_f32 {vr(base,2)}, {vr(base,2)}, {vr(base+4,2)}', f'v_pk_add_f32 {vr(base+2,2)}, {vr(base+2,2)}, {vr(base+6,2)}',
                f'v_pk_add_f32 {vr(base,2)}, {vr(base,2)}, {vr(base+8,2)}', f'v_pk_add_f32 {vr(base+2,2)}, {vr(base+2,2)}, {vr(base+10,2)}'] \
            + self.rs4(base, out) + [f'v_add_f32_dpp {out}, {out}, {out} row_ror:8 {DF}']

    def q_finish(self, u, st, mean, sc, Lp):
        p = self.p
        Lok = p.label('Lok')
        Lr = self.retry(Lp, Lok)
        p(f'v_fma_f32 v{u}, -v{mean}, {CSQ}, v{u}')
        p(f'v_mul_f32 v{u}, v{u}, v{sc}')
        p(f'v_cvt_pk_bf16_f32 v{sc}, v{u}, v{u}')
        p(f'v_cmp_u_f32 vcc, v{u}, v{st}')
        p(f's_cbranch_vccnz {Lr}')
        p(f'{Lok}:')
        p(f'ds_write_b16 {lQW}, v{sc}')
        self.lgkm(0)
        p('s_barrier')

    def qk_softmax(self):
        p = self.p
        S = [T, T + 1]
        for b in range(4):
            p(f's_mov_b64 exec, s[{sMB+2*b}:{sMB+2*b+1}]')
            p(f'ds_read_b128 {vr(BQ+4*b,4)}, {lQR}')
        p('s_mov_b64 exec, -1')
        def adds(e):
            h, be = e >> 2, e & 3
            D = ACC + 4 * e
            first = True
            out = []
            for u in range(4):
                if u == be: continue
                src1 = f'v{D+be}' if first else f'v{S[h]}'
                out.append(f'v_add_f32_dpp v{S[h]}, v{D+u}, {src1} row_ror:{(4*(be-u)) % 16} row_mask:0xf bank_mask:{1<<be:#x}')
                first = False
            return out
        for b in range(4):
            self.lgkm(3 - b)
            for e in range(8):
                h, be = e >> 2, e & 3
                mb = 8 * be + 2 * b + h
                c = '0' if b == 0 else vr(ACC + 4 * e, 4)
                p(f'{MFMA} {vr(ACC+4*e,4)}, {ar(4*mb,4)}, {vr(BQ+4*b,4)}, {c}')
                if b == 3 and e >= 3:
                    for s in adds(e - 3): p(s)
        for e in (5, 6, 7):
            for s in adds(e): p(s)
        M = T + 2
        p(f'v_max_f32 v{M}, v{S[0]}, v{S[1]}')
        for n in (1, 2, 4, 8):
            p(f'v_max_f32_dpp v{M}, v{M}, v{M} row_ror:{n} {DF}')
        p(f'v_max_f32_dpp v{M}, v{M}, v{M} row_bcast:15 row_mask:0xa bank_mask:0xf')
        p(f'v_max_f32_dpp v{M}, v{M}, v{M} row_bcast:31 row_mask:0xc bank_mask:0xf')
        p(f'v_mul_f32 v{M}, v{M}, {vC}')
        p(f'v_readlane_b32 {sMc}, v{M}, 63')
        p(f'v_fma_f32 v{S[0]}, v{S[0]}, {vC}, -{sMc}')
        p(f'v_fma_f32 v{S[1]}, v{S[1]}, {vC}, -{sMc}')
        p(f'v_exp_f32 v{S[0]}, v{S[0]}')
        p(f'v_exp_f32 v{S[1]}, v{S[1]}')
        p(f'v_cvt_pk_bf16_f32 v{T+4}, v{S[0]}, v{S[1]}')

    def ml_ops(self, fl):
        P, M, Ls = T + 4, T + 2, T + 3
        m2, l2, mc, f = T + 6, T + 7, T + 8, T + 5
        lc = T + 9
        ops = [f'v_lshlrev_b32 v{Ls}, 16, v{P}', f'v_and_b32 v{T}, 0xffff0000, v{P}', f'v_add_f32 v{Ls}, v{Ls}, v{T}']
        for n in (1, 2, 4, 8):
            ops += [f'v_add_f32_dpp v{Ls}, v{Ls}, v{Ls} row_ror:{n} {DF}', None]
        ops += [f'v_add_f32_dpp v{Ls}, v{Ls}, v{Ls} row_bcast:15 row_mask:0xa bank_mask:0xf', None,
                f'v_add_f32_dpp v{Ls}, v{Ls}, v{Ls} row_bcast:31 row_mask:0xc bank_mask:0xf',
                f'ds_write_b64 {lMW}, {vr(M,2)}', None, None,
                lambda: (self.lgkm(0), self.p('s_barrier'), self.p(f'ds_read_b64 {vr(m2,2)}, {lMR}')), None, None, None,
                lambda: self.lgkm(0),
                f'v_max_f32_dpp v{mc}, v{m2}, v{m2} quad_perm:[1,0,3,2] {DF}', None,
                f'v_max_f32_dpp v{mc}, v{mc}, v{mc} quad_perm:[2,3,0,1] {DF}',
                f'v_sub_f32 v{f}, v{m2}, v{mc}', f'v_exp_f32 v{f}, v{f}', None,
                f'v_mul_f32 v{lc}, v{f}, v{l2}', None,
                f'v_add_f32_dpp v{lc}, v{lc}, v{lc} quad_perm:[1,0,3,2] {DF}', None,
                f'v_add_f32_dpp v{lc}, v{lc}, v{lc} quad_perm:[2,3,0,1] {DF}']
        def st():
            Ls_ = self.p.label('Lnos')
            self.p(f's_cmp_lg_u32 {sW}, 0'); self.p(f's_cbranch_scc1 {Ls_}')
            self.p('s_mov_b64 exec, 1')
            if fl == 'mode':
                L1, L2 = self.p.label('Lm'), self.p.label('Lm')
                self.p(f's_cmp_eq_u32 {sMode}, 0'); self.p(f's_cbranch_scc1 {L1}')
                self.vmem(f'buffer_store_dwordx2 {vr(mc,2)}, {vOSW}, {srd("WS")}, 0 offen sc1', optional=True)
                self.p(f's_branch {L2}')
                self.p(f'{L1}:')
                self.vmem(f'buffer_store_dwordx2 {vr(mc,2)}, {vOSW}, {srd("WS")}, 0 offen', optional=True)
                self.p(f'{L2}:')
            else:
                self.vmem(f'buffer_store_dwordx2 {vr(mc,2)}, {vOSW}, {srd("WS")}, {sL} offen {fl}', optional=True)
            self.p('s_mov_b64 exec, -1')
            self.p(f'{Ls_}:')
        ops.append(st)
        return ops

    def run_op(self, o):
        if o is None: return
        if callable(o): o()
        else: self.p(o)

    def pv(self, extras, layer0, hooks={}):
        p = self.p
        P = T + 4
        Da, Db = ACC, ACC + 4
        def build(pp):
            return [f'v_mov_b32_dpp v{PA+4*(pp&1)+t}, v{P} row_newbcast:{pp} row_mask:0xf bank_mask:{1<<t:#x}' for t in range(4)]
        def perms(pp):
            A, Bq, o = VB + 2 + 8 * pp, VB + 6 + 8 * pp, VB + 8 * pp
            seq = [(0, 0), (0, 1), (1, 0), (1, 1), (3, 0), (3, 1), (2, 1), (2, 0)]
            return [f'v_perm_b32 v{o+2*dp+hi}, v{Bq+dp}, v{A+dp}, {sHi if hi else sLo}' for dp, hi in seq]
        extras = list(extras)
        if layer0:
            for o in extras: self.run_op(o)
            extras = []
        for s in build(0): p(s)
        for pp in range(16):
            nb = build(pp + 1) if pp < 15 else []
            if pp in hooks: hooks[pp]()
            if layer0:
                self.wait(f'V{2*pp+1}')
                for s in perms(pp): p(s)
            c = '0' if pp == 0 else None
            p(f'{MFMA} {vr(Da,4)}, {vr(PA+4*(pp&1),4)}, {vr(VB+8*pp,4)}, {c or vr(Da,4)}')
            for s in nb[:3]: p(s)
            p(f'{MFMA} {vr(Db,4)}, {vr(PA+4*(pp&1),4)}, {vr(VB+8*pp+4,4)}, {c or vr(Db,4)}')
            for s in nb[3:]: p(s)
            for _ in range(2):
                if extras: self.run_op(extras.pop(0))
        for o in extras: self.run_op(o)
        if 16 in hooks: hooks[16]()

    def reduce_publish(self, y, soff, ldsoff):
        p = self.p
        p(f'v_permlane16_swap_b32 v{y}, v{y+2}')
        p(f'v_permlane16_swap_b32 v{y+1}, v{y+3}')
        p(f'v_pk_add_f32 {vr(y,2)}, {vr(y,2)}, {vr(y+2,2)}')
        p(f'ds_write_b64 {lRW}, {vr(y,2)} offset:{ldsoff}')
        p(f's_cmp_lg_u32 {sW}, 0')
        self.lgkm(0)
        if self.o.stamps: p(f's_cmp_lg_u32 {sW}, 0')
        p('s_barrier')
        Ls = p.label('Lsk')
        p(f's_cbranch_scc1 {Ls}')
        for k in range(4):
            p(f'ds_read_b128 {vr(ACC+4*k,4)}, {lRR} offset:{ldsoff+256*k}')
        self.lgkm(2)
        p(f'v_pk_add_f32 {vr(ACC,2)}, {vr(ACC,2)}, {vr(ACC+4,2)}')
        p(f'v_pk_add_f32 {vr(ACC+2,2)}, {vr(ACC+2,2)}, {vr(ACC+6,2)}')
        self.lgkm(0)
        p(f'v_pk_add_f32 {vr(ACC+8,2)}, {vr(ACC+8,2)}, {vr(ACC+12,2)}')
        p(f'v_pk_add_f32 {vr(ACC+10,2)}, {vr(ACC+10,2)}, {vr(ACC+14,2)}')
        p(f'v_pk_add_f32 {vr(ACC,2)}, {vr(ACC,2)}, {vr(ACC+8,2)}')
        p(f'v_pk_add_f32 {vr(ACC+2,2)}, {vr(ACC+2,2)}, {vr(ACC+10,2)}')
        for k in range(4):
            p(f'v_add_f32_dpp v{ACC+k}, v{ACC+k}, v{ACC+k} row_ror:8 {DF}')
        self.vmem(f'buffer_store_dwordx4 {vr(ACC,4)}, {vXW}, {srd("WS")}, {soff} offen sc1', optional=True)
        p(f'{Ls}:')

    def poll_head(self):
        p = self.p
        Lp, Lsk = p.label('Lp'), p.label('Lskip')
        p(f'{Lp}:')
        return Lp, Lsk

    def x8(self, soff):
        p = self.p
        Y = T
        p(f's_mov_b32 {sT}, {soff}')
        p(f's_add_u32 {sT2}, {soff}, {CPS*7}')
        for _ in range(self.o.x8delay): p('s_nop 15')
        Lp, Lsk = self.poll_head()
        self.vmem(f'buffer_load_dwordx4 {vr(Y,4)}, {vXR}, {srd("WS")}, {sT} offen sc1', optional=True)
        p('s_waitcnt vmcnt(0)')
        p(f'{Lsk}:')
        for c in ('quad_perm:[1,0,3,2]', 'quad_perm:[2,3,0,1]', 'row_half_mirror'):
            for k in range(4):
                p(f'v_add_f32_dpp v{Y+k}, v{Y+k}, v{Y+k} {c} {DF}')
        p(f'v_pk_add_f32 {vr(Y,2)}, {vr(Y,2)}, {vr(XR,2)}')
        p(f'v_pk_add_f32 {vr(Y+2,2)}, {vr(Y+2,2)}, {vr(XR+2,2)}')
        p(f'v_cvt_pk_bf16_f32 v{XA}, v{Y}, v{Y+1}')
        p(f'v_cvt_pk_bf16_f32 v{XA+1}, v{Y+2}, v{Y+3}')
        p(f'v_pk_add_f32 {vr(Y,2)}, {vr(Y,2)}, {vr(Y+2,2)}')
        p(f'v_cmp_u_f32 vcc, v{Y}, v{Y+1}')
        self.build_xa()
        Lok = p.label('Lok')
        Lr = self.retry(Lp, Lok, [f's_add_u32 {sT}, {sT}, {CPS}', f's_min_u32 {sT}, {sT}, {sT2}'])
        p(f's_cbranch_vccnz {Lr}')
        p(f'{Lok}:')

    def oa2a(self):
        p = self.p
        AO = T
        ml = T + 8
        M, f, Lq, ck = T + 10, T + 11, T + 12, T + 13
        y = T + 16
        Lp, Lsk = self.poll_head()
        self.vmem(f'buffer_load_dwordx2 {vr(ml,2)}, {vOSR}, {srd("WS")}, {sL} offen sc1', optional=True)
        for t in range(2):
            self.vmem(f'buffer_load_dwordx4 {vr(AO+4*t,4)}, {vOR}, {srd("WS")}, {sL} offen offset:{128*t} sc1', optional=True)
        p('s_waitcnt vmcnt(0)')
        p(f'{Lsk}:')
        Lok = p.label('Lok')
        Lr = self.retry(Lp, Lok)
        chk = [f'v_max3_u32 v{ck}, v{AO}, v{AO+1}, v{AO+2}', f'v_max3_u32 v{ck}, v{ck}, v{AO+3}, v{AO+4}',
               f'v_max3_u32 v{ck}, v{ck}, v{AO+5}, v{AO+6}', f'v_max3_u32 v{ck}, v{ck}, v{AO+7}, v{ml}',
               f'v_max_u32 v{ck}, v{ck}, v{ml+1}', f'v_cmp_eq_u32 vcc, -1, v{ck}']
        sc = [f'v_max_f32_dpp v{M}, v{ml}, v{ml} quad_perm:[1,0,3,2] {DF}',
              f'v_max_f32_dpp v{M}, v{M}, v{M} quad_perm:[2,3,0,1] {DF}',
              f'v_max_f32_dpp v{M}, v{M}, v{M} row_half_mirror {DF}',
              f'v_sub_f32 v{f}, v{ml}, v{M}', f'v_exp_f32 v{f}, v{f}',
              f'v_mul_f32 v{Lq}, v{f}, v{ml+1}',
              f'v_add_f32_dpp v{Lq}, v{Lq}, v{Lq} quad_perm:[1,0,3,2] {DF}',
              f'v_add_f32_dpp v{Lq}, v{Lq}, v{Lq} quad_perm:[2,3,0,1] {DF}',
              f'v_add_f32_dpp v{Lq}, v{Lq}, v{Lq} row_half_mirror {DF}',
              f'v_rcp_f32 v{Lq}, v{Lq}', f'v_mul_f32 v{f}, v{f}, v{Lq}']
        mf = []
        for t in range(2):
            for d in range(4):
                c = '0' if t == 0 else vr(ACC + 4 * d, 4)
                mf.append(f'{MFMA} {vr(ACC+4*d,4)}, {vr(AO+4*t,4)}, {ar(aWO+16*t+4*d,4)}, {c}')
        p(mf[0]); p(chk[0]); p(chk[1]); p(sc[0])
        p(mf[1]); p(chk[2]); p(chk[3]); p(sc[1])
        p(mf[2]); p(chk[4]); p(chk[5]); p(sc[2])
        p(f's_cbranch_vccnz {Lr}')
        p(f'{Lok}:')
        p(mf[3]); p(sc[3]); p(sc[4])
        p(mf[4]); p(sc[5])
        p(mf[5]); p(sc[6])
        p(mf[6]); p(sc[7])
        p(mf[7]); p(sc[8]); p(sc[9]); p(sc[10])
        for d in range(4):
            for r in range(4):
                op = 'v_mul_f32_dpp' if r == 0 else 'v_fmac_f32_dpp'
                p(f'{op} v{y+d}, v{f}, v{ACC+4*d+r} row_newbcast:{r} {DF}')
        self.reduce_publish(y, sL, 0)

    def ha2a_loads(self, base, acc, s0, s4, track, tag=None):
        for t in range(5):
            r = ar(base + 4 * t, 4) if acc else vr(base + 4 * t, 4)
            self.vmem(f'buffer_load_dwordx4 {r}, {vHR}, {srd("WS")}, {s4 if t == 4 else s0} offen offset:{1024*(t&3)} sc1',
                      optional=not track, tag=tag)
    def ha2a_sum(self, b, out):
        ops = []
        for (x, y) in ((0, 4), (8, 12), (0, 16), (0, 8)):
            ops += [f'v_pk_add_f32 {vr(b+x,2)}, {vr(b+x,2)}, {vr(b+y,2)}', f'v_pk_add_f32 {vr(b+x+2,2)}, {vr(b+x+2,2)}, {vr(b+y+2,2)}']
        return ops + self.rs4(b, out)

    def ha2a(self):
        p = self.p
        s4 = ACC + 20
        u, st, mean, sc, t1, e = T, T + 1, T + 2, T + 3, T + 4, T + 5
        A = T + 8
        y = T + 16
        Lp, Lsk = self.poll_head()
        self.vmem(f'buffer_load_dwordx4 {vr(s4,4)}, {vSRH}, {srd("WS")}, {sL} offen offset:256 sc1', optional=True)
        self.ha2a_loads(ACC, False, sL, sLH4, False)
        p('s_waitcnt vmcnt(5)')
        so = self.stats_ops(s4, st, mean, sc, True)
        for s in so[:2]: p(s)
        p('s_waitcnt vmcnt(0)')
        p(f'{Lsk}:')
        self.merge(self.ha2a_sum(ACC, f'v{u}'), so[2:])
        Lok = p.label('Lok')
        Lr = self.retry(Lp, Lok)
        c0 = -2.0 * math.sqrt(2.0 / math.pi) * math.log2(math.e)
        c1 = c0 * 0.044715
        p(f'v_fma_f32 v{u}, -v{mean}, {CS1}, v{u}')
        p(f'v_fma_f32 v{u}, v{u}, v{sc}, {B1v}')
        p(f'v_mul_f32 v{t1}, v{u}, v{u}')
        p(f'v_cmp_u_f32 vcc, v{u}, v{st}')
        p(f'v_mul_f32 v{t1}, {H(f2u(c1))}, v{t1}')
        p(f'v_add_f32 v{t1}, {H(f2u(c0))}, v{t1}')
        p(f's_cbranch_vccnz {Lr}')
        p(f'{Lok}:')
        p(f'v_mul_f32 v{t1}, v{t1}, v{u}')
        p(f'v_exp_f32 v{e}, v{t1}')
        p(f'v_add_f32 v{e}, 1.0, v{e}')
        p(f'v_rcp_f32 v{e}, v{e}')
        p(f'v_mul_f32 v{u}, v{u}, v{e}')
        p(f'v_cvt_pk_bf16_f32 v{u}, v{u}, v{u}')
        for k in range(4):
            p(f'v_and_b32 v{A+k}, v{u}, v{MK+k}')
        for d in range(4):
            p(f'{MFMA} {vr(ACC+4*d,4)}, {vr(A,4)}, {ar(aW2+4*d,4)}, 0')
        for d in range(4):
            p(f'v_pk_add_f32 {vr(ACC+4*d,2)}, {vr(ACC+4*d,2)}, {vr(ACC+4*d+2,2)}')
            p(f'v_add_f32 v{y+d}, v{ACC+4*d}, v{ACC+4*d+1}')
        self.reduce_publish(y, sLM, 1024)

    def combine(self, fl):
        p = self.p
        f = T + 5
        p(f'v_mul_f32_dpp v{T}, v{f}, v{ACC} quad_perm:[0,0,0,0] {DF}')
        p(f'v_mul_f32_dpp v{T+1}, v{f}, v{ACC+4} quad_perm:[0,0,0,0] {DF}')
        p(f'ds_write2_b32 {lOW}, v{T}, v{T+1} offset0:0 offset1:64')
        p(f's_cmp_lg_u32 {sW}, 0')
        self.lgkm(0)
        if self.o.stamps: p(f's_cmp_lg_u32 {sW}, 0')
        p('s_barrier')
        Ls = p.label('Lsk')
        p(f's_cbranch_scc1 {Ls}')
        p(f'ds_read2_b64 {vr(ACC,4)}, {lOR} offset0:0 offset1:64')
        p(f'ds_read2_b64 {vr(ACC+4,4)}, {lOR} offset0:128 offset1:192')
        self.lgkm(1)
        p(f'v_pk_add_f32 {vr(ACC,2)}, {vr(ACC,2)}, {vr(ACC+2,2)}')
        self.lgkm(0)
        p(f'v_pk_add_f32 {vr(ACC+4,2)}, {vr(ACC+4,2)}, {vr(ACC+6,2)}')
        p(f'v_pk_add_f32 {vr(ACC,2)}, {vr(ACC,2)}, {vr(ACC+4,2)}')
        p(f'v_cvt_pk_bf16_f32 v{ACC}, v{ACC}, v{ACC+1}')
        self.vmem(f'buffer_store_dword v{ACC}, {vOW}, {srd("WS")}, {sL} offen {fl}', optional=True)
        p(f'{Ls}:')

    def set_layer(self, off):
        p = self.p
        p(f's_mov_b32 {sL}, {H(off)}')
        p(f's_mov_b32 {sLH4}, {H(off + 4096)}')
        p(f's_mov_b32 {sLM}, {H(off + XMo - XAo)}')

    def finish(self):
        p = self.p
        if self.o.stamps:
            self.stamp(31)
            self.flush()
            p(f'v_writelane_b32 {vSTAMP}, {sBud}, 33')
            p(f's_memtime s[{sSTAMP}:{sSTAMP+1}]'); p('s_waitcnt lgkmcnt(0)')
            p(f'v_writelane_b32 {vSTAMP}, s{sSTAMP}, 35')
            Le = p.label('Lend')
            p(f's_cmp_lg_u32 {sW}, 0'); p(f's_cbranch_scc1 {Le}')
            p(f's_lshl_b32 {sT}, s2, 8'); p(f's_add_u32 {sT}, {sT}, 0x8000000')
            p(f'v_lshlrev_b32 v{T}, 2, {vLane}')
            p(f'buffer_store_dword {vSTAMP}, v{T}, {srd("WS")}, {sT} offen')
            if self.o.dbgst:
                p(f's_cmp_lg_u32 s2, 0'); p(f's_cbranch_scc1 {Le}')
                for src, dst in ((31, 7), (20, 8), (18, 9), (23, 15), (16, 12)):
                    p(f'v_readlane_b32 {sT}, {vSTAMP}, {src}'); p(f'v_writelane_b32 {vSTAMP}, {sT}, {dst}')
                p(f'v_readlane_b32 {sT}, {vSTAMP}, 0')
                p(f'v_subrev_u32 {vSTAMP}, {sT}, {vSTAMP}')
                p(f'buffer_store_dword {vSTAMP}, v{T}, {srd("DBG")}, 0 offen sc1')
            p(f'{Le}:')
        p('s_endpgm')

    def chain(self, A, B, fast, name):
        p = self.p
        o = self.o
        fl = '' if fast else 'sc1'
        vm0, tags0 = self.vm, dict(self.tags)
        p(f'{name}:')
        TB = ACC
        for layer in range(2):
            def stp(k): self.stamp(8 + 10 * layer + k)
            stp(2)
            self.combine(fl)
            stp(3)
            if layer == 0:
                for k, f in self.rest: f()
            if B:
                if layer == 0 and o.late:
                    self.wait('WO')
                    self.transpose(aWO, 2, TB, TB + 16)
                    self.transpose(aWO + 16, 2, TB, TB + 16)
                self.oa2a()
                stp(4)
            if A and layer == 0 and o.late:
                self.wait('W1')
                self.transpose(aW1, 2, TB, TB + 16)
                p(f's_mov_b32 {sT2}, {H(CSL)}')
                self.w1(XB, sT2, fl, False, False)
            c1l = [f's_mov_b32 {sT2}, {H(CSL)}', f's_mov_b32 {sT3}, {H(CSL+4096)}']
            for t in range(5):
                c1l.append(f'buffer_load_dwordx4 {ar(aC1+4*t,4)}, {vHR}, {srd("WS")}, {sT3 if t == 4 else sT2} offen offset:{1024*(t&3)} sc1')
            if B and layer == 0:
                if o.late:
                    self.wait('W2')
                    p(f'v_accvgpr_read_b32 {B1v}, a{aB1}'); p(f'v_lshlrev_b32 {B1v}, 16, {B1v}')
                    self.transpose(aW2, 2, TB, TB + 16)
                if not A:
                    for _ in range(o.c1delay): p('s_nop 15')
                    for s_ in c1l: p(s_)
            if A:
                self.x8(sL)
                stp(5)
                self.w1(XA, sL, fl, True, False, post=self.unpack_xr(True))
                stp(6)
            if B:
                if layer == 0:
                    if A:
                        for s_ in c1l: p(s_)
                    self.flush()
                    Lc1, Lcp, Lcok = p.label('Lc'), p.label('Lcp'), p.label('Lcok')
                    p(f'{Lc1}:')
                    p('s_waitcnt vmcnt(0)')
                    for k in range(20): p(f'v_accvgpr_read_b32 v{ACC+k}, a{aC1+k}')
                    for s_ in self.ha2a_sum(ACC, CS1): p(s_)
                    p(f'v_cmp_u_f32 vcc, {CS1}, {CS1}')
                    Lr = self.retry(Lcp, Lcok)
                    self.ool.append([f'{Lcp}:'] + c1l + [f's_branch {Lc1}'])
                    p(f's_cbranch_vccnz {Lr}')
                    p(f'{Lcok}:')
                self.ha2a()
                stp(7)
            if layer == 1:
                if A:
                    Lf = p.label('Lfin')
                    self.flush()
                    p(f's_or_b32 {sT}, {sX}, {sW}')
                    p(f's_cmp_lg_u32 {sT}, 0'); p(f's_cbranch_scc1 {Lf}')
                    self.x8(sLM)
                    p(f's_mov_b64 exec, s[{sMF}:{sMF+1}]')
                    p(f's_lshl_b32 {sT}, {sIA}, 6')
                    p(f'buffer_store_dwordx2 {vr(XA,2)}, {vLane}, {srd("OUT")}, {sT} offen')
                    p('s_mov_b64 exec, -1')
                    p(f'{Lf}:')
                self.finish()
                break
            if A:
                self.x8(sLM)
                stp(8)
            self.set_layer(LSTR)
            if A:
                self.qp(XA, sL, fl, True, False, post=self.unpack_xr(False))
                stp(9)
            s4 = ACC + 12
            u, st, mean, sc = T, T + 1, T + 2, T + 3
            Lp, Lsk = self.poll_head()
            self.vmem(f'buffer_load_dwordx4 {vr(s4,4)}, {vSRQ}, {srd("WS")}, {sL} offen sc1', optional=True)
            self.qa2a_loads(ACC, sL, False)
            p('s_waitcnt vmcnt(3)')
            so = self.stats_ops(s4, st, mean, sc, False)
            for s_ in so[:2]: p(s_)
            p('s_waitcnt vmcnt(0)')
            p(f'{Lsk}:')
            self.merge(self.qa2a_sum(ACC, f'v{u}'), so[2:])
            self.q_finish(u, st, mean, sc, Lp)
            stp(10)
            self.flush()
            self.qk_softmax()
            stp(11)
            self.pv(self.ml_ops(fl), False)
            self.flush()
        for code in self.ool:
            for s_ in code: p(s_)
        self.ool = []
        self.vm, self.tags = vm0, tags0

    def kload(self, mb):
        self.vmem(f'buffer_load_dwordx4 {ar(4*mb,4)}, {vFL}, {srd("K")}, s{sKV+(mb>>2)} offen offset:{1024*(mb&3)} nt', tag=f'K{mb}')
    def vload(self, mb):
        self.vmem(f'buffer_load_dwordx4 {vr(VB+2+4*mb,4)}, {a16}, {srd("V")}, s{sKV+(mb>>2)} offen offset:{1024*(mb&3)} nt', tag=f'V{mb}')
    def qbase(self, pp):
        return VB + 8 * pp if pp < 16 else VB2 + 8 * (pp - 16)

    def head(self):
        p = self.p
        o = self.o
        p('s_cmp_ge_u32 s2, 256'); p('s_cbranch_scc1 L_exit')
        for n in ('WS', 'X', 'WQ', 'K', 'V', 'B2'):
            p(f's_load_dwordx2 s[{SRD[n]}:{SRD[n]+1}], s[0:1], {KOFF[n]}')
        if o.stamps:
            p(f's_memrealtime s[{sSTAMP}:{sSTAMP+1}]')
            p(f's_memtime s[{sSTAMP+2}:{sSTAMP+3}]')
        p('v_lshrrev_b32 v1, 6, v0')
        p('v_and_b32 v0, 63, v0')
        p(f'v_readfirstlane_b32 {sW}, v1')
        p(f's_and_b32 {sX}, s2, 7'); p(f's_lshr_b32 {sC}, s2, 3'); p(f's_and_b32 {sJ}, {sC}, 3'); p(f's_lshr_b32 {sS}, {sC}, 2')
        for n in ('WS', 'X', 'WQ', 'K', 'V', 'B2'):
            p(f's_mov_b32 s{SRD[n]+2}, {H(SIZE[n])}'); p(f's_mov_b32 s{SRD[n]+3}, 0x00020000')
        for k in range(4): p(f'v_mov_b32 v{SN+k}, -1')
        p(f'v_lshlrev_b32 {a16}, 4, v0')
        p(f'v_and_b32 v{vR}, 15, v0'); p(f'v_lshrrev_b32 v{vG}, 4, v0')
        p(f's_lshl_b32 {sT}, s2, 2'); p(f's_add_u32 {sT}, {sT}, {sW}'); p(f's_lshl_b32 {sT}, {sT}, 10')
        p(f's_add_u32 {sT}, {sT}, {H(CLR0)}')
        p(f's_add_u32 {sT2}, {sT}, 0x100000')
        p(f's_lshl_b32 {sXW}, {sX}, 2'); p(f's_add_u32 {sXJ}, {sXW}, {sJ}'); p(f's_add_u32 {sXW}, {sXW}, {sW}')
        p(f's_lshl_b32 s{sKV}, {sXJ}, 20')
        p(f's_lshl_b32 {sLM}, {sS}, 17'); p(f's_add_u32 s{sKV}, s{sKV}, {sLM}')
        if o.wgil:
            p(f's_lshl_b32 {sLM}, {sW}, 12'); p(f's_add_u32 s{sKV}, s{sKV}, {sLM}')
            for k in range(1, 8): p(f's_add_u32 s{sKV+k}, s{sKV}, {16384*k}')
        else:
            p(f's_lshl_b32 {sLM}, {sW}, 15'); p(f's_add_u32 s{sKV}, s{sKV}, {sLM}')
            for k in range(1, 8): p(f's_add_u32 s{sKV+k}, s{sKV}, {4096*k}')
        aK = 124
        p(f'v_bfe_u32 v{t1}, v0, 2, 2'); p(f'v_lshlrev_b32 v{aK}, 8, v{t1}')
        p(f'v_lshl_add_u32 v{aK}, v{vG}, 6, v{aK}')
        p(f'v_and_b32 v{t1}, 3, v0'); p(f'v_lshl_add_u32 v{aK}, v{t1}, 4, v{aK}')
        p(f's_mov_b32 {sIA}, {sC}'); p(f's_sub_u32 {sIB}, {sC}, 12')
        p('s_waitcnt lgkmcnt(0)')
        for n in ('WO', 'W1', 'B1', 'W2', 'OUT', 'DBG'):
            p(f's_load_dwordx2 s[{SRD[n]}:{SRD[n]+1}], s[0:1], {KOFF[n]}')
        Lnc = p.label('Lnc')
        p(f's_cmp_ge_u32 {sT2}, {H(2*LSTR)}'); p(f's_cbranch_scc1 {Lnc}')
        self.vmem(f'buffer_store_dwordx4 {vr(SN,4)}, {a16}, {srd("WS")}, {sT2} offen sc1', optional=True)
        p(f'{Lnc}:')
        self.vmem(f'buffer_store_dwordx4 {vr(SN,4)}, {a16}, {srd("WS")}, {sT} offen sc1', tag='CLR')
        p(f's_cmp_lt_u32 {sC}, 12'); p('s_cbranch_scc1 L_roleA')
        p(f's_cmp_lt_u32 {sC}, 20'); p('s_cbranch_scc1 L_roleAB')
        p('s_branch L_roleB')
        p('L_exit:')
        p('s_endpgm')

    def common_addr(self):
        p = self.p
        o = self.o
        for n in ('WO', 'W1', 'B1', 'W2', 'OUT'):
            p(f's_mov_b32 s{SRD[n]+2}, {H(SIZE[n])}'); p(f's_mov_b32 s{SRD[n]+3}, 0x00020000')
        p(f's_mov_b32 {sLo}, 0x05040100'); p(f's_mov_b32 {sHi}, 0x07060302')
        p(f's_mov_b32 {sBud}, 100000')
        for b in range(4):
            p(f's_mov_b32 s{sMB+2*b}, {H(0x11111111 << b)}'); p(f's_mov_b32 s{sMB+2*b+1}, {H(0x11111111 << b)}')
        p(f's_mov_b32 s{sMF}, 0x01010101'); p(f's_mov_b32 s{sMF+1}, 0x01010101')
        p(f'v_and_b32 v{t0}, 1, v{vG}'); p(f'v_lshrrev_b32 v{vD}, 1, v{vG}'); p(f'v_lshl_add_u32 v{vD}, v{t0}, 1, v{vD}')
        p(f's_lshl_b32 {sT}, {sXJ}, 3'); p(f's_add_u32 {sT}, {sT}, {sS}')
        p(f's_lshl_b32 {sT2}, {sT}, 8'); p(f's_add_u32 {sT2}, {sT2}, {H(OP)}')
        p(f'v_lshlrev_b32 {vOW}, 2, v0'); p(f'v_add_u32 {vOW}, {sT2}, {vOW}')
        p(f's_lshl_b32 {sT2}, {sT}, 3'); p(f's_add_u32 {sT2}, {sT2}, {H(OS)}')
        p(f'v_mov_b32 {vOSW}, {sT2}')
        p(f's_mul_i32 {sT}, {sXJ}, 0x2800'); p(f's_mul_i32 {sT2}, {sW}, 2560'); p(f's_add_u32 {sT}, {sT}, {sT2}')
        p(f'v_add_u32 {vQR}, {sT}, {a16}')
        p(f'v_mov_b32 v{t1}, {H(OOB)}')
        p(f'v_cmp_gt_u32 vcc, 32, v0'); p(f'v_cndmask_b32 {vQR3}, v{t1}, {vQR}, vcc')
        p(f'v_and_b32 v{t0}, 1, v{vR}'); p(f'v_mul_u32_u24 v{t0}, 80, v{t0}')
        p(f'v_lshrrev_b32 v{t2}, 1, v{vR}'); p(f'v_lshl_add_u32 v{t0}, v{t2}, 4, v{t0}')
        p(f'v_cmp_gt_u32 vcc, 10, v{vR}'); p(f'v_cndmask_b32 v{t0}, v{t1}, v{t0}, vcc')
        p(f's_lshl_b32 {sT}, {sXJ}, 9'); p(f's_add_u32 {sT}, {sT}, {H(ST)}'); p(f'v_add_u32 {vSRQ}, {sT}, v{t0}')
        p(f's_lshl_b32 {sT}, {sXW}, 9'); p(f's_add_u32 {sT}, {sT}, {H(ST)}'); p(f'v_add_u32 {vSRH}, {sT}, v{t0}')
        p(f'v_and_b32 v{t0}, 7, v0'); p(f'v_lshl_add_u32 v{t0}, v{t0}, 2, v{vD}'); p(f's_lshl_b32 {sT}, {sW}, 5'); p(f'v_add_u32 v{t0}, {sT}, v{t0}')
        p(f'v_lshlrev_b32 {lQW}, 1, v{t0}')
        p(f'v_lshrrev_b32 v{t0}, 2, v0'); p(f'v_lshlrev_b32 {lQR}, 4, v{t0}')
        p(f'v_lshlrev_b32 {lMW}, 3, v0'); p(f'v_add_u32 {lMW}, {L_J1}, {lMW}')
        p(f's_lshl_b32 {sT}, {sW}, 3'); p(f's_add_u32 {sT}, {sT}, {L_ML}'); p(f'v_writelane_b32 {lMW}, {sT}, 63')
        p(f'v_add_u32 v{t0}, {sW}, v0'); p(f'v_and_b32 v{t0}, 3, v{t0}'); p(f'v_lshlrev_b32 v{t0}, 3, v{t0}'); p(f'v_add_u32 {lMR}, {L_ML}, v{t0}')
        p(f's_lshl_b32 {sT}, {sW}, 9'); p(f's_add_u32 {sT}, {sT}, {L_O}'); p(f'v_lshlrev_b32 {lOW}, 2, v0'); p(f'v_add_u32 {lOW}, {sT}, {lOW}')
        p(f'v_lshlrev_b32 {lOR}, 3, v0'); p(f'v_add_u32 {lOR}, {L_O}, {lOR}')
        p(f'v_mov_b32 {vC}, {H(f2u(CSC))}')
        for k in range(24): p(f'v_mov_b32 v{BQ+k}, 0')
        p(f'v_lshlrev_b32 v{T+15}, 2, v0')

    def prologue(self, A, B, name):
        p = self.p
        o = self.o
        vm0, tags0 = self.vm, dict(self.tags)
        p(f'L_role{name}:')
        sSX, sSXX = sL, sLH4
        sWA, sWB = 's90', 's91'
        D = {'A': o.dA, 'AB': o.dAB, 'B': o.dB}[name]
        W1V = vG + 0
        if A:
            p(f'v_lshrrev_b32 v{t0}, 2, v{vR}'); p(f'v_mul_u32_u24 {vQW}, 2560, v{t0}')
            p(f'v_and_b32 v{t0}, 3, v{vR}'); p(f'v_lshl_add_u32 {vQW}, v{t0}, 5, {vQW}')
            p(f'v_lshl_add_u32 {vQW}, v{vG}, 4, {vQW}')
            p(f's_mul_i32 {sT}, {sXW}, 0x2800'); p(f's_lshl_b32 {sT2}, {sIA}, 7'); p(f's_add_u32 {sT}, {sT}, {sT2}')
            p(f'v_add_u32 {vQW}, {sT}, {vQW}')
            p(f's_mul_i32 {sT}, {sXW}, 0x1400'); p(f's_lshl_b32 {sT2}, {sIA}, 8'); p(f's_add_u32 {sT}, {sT}, {sT2}'); p(f's_add_u32 {sT}, {sT}, {H(HP)}')
            p(f'v_add_u32 {vHW}, {sT}, {a16}')
            p(f's_mov_b32 {sT2}, {H(CSL)}')
            p('s_mov_b32 exec_hi, 0')
            for so in ('0', sT2):
                self.vmem(f'buffer_store_dwordx4 {vr(SN,4)}, {vQW}, {srd("WS")}, {so} offen sc1', tag='CLR')
            p('s_mov_b64 exec, 0xffff')
            self.vmem(f'buffer_store_dwordx4 {vr(SN,4)}, {vHW}, {srd("WS")}, {sT2} offen sc1', tag='CLR')
            p('s_mov_b64 exec, -1')
            p(f'v_lshlrev_b32 v{t0}, 16, v{vG}'); p(f'v_lshl_add_u32 v{t0}, v{vR}, 4, v{t0}')
            p(f's_lshl_b32 {sT}, {sIA}, 18'); p(f's_lshl_b32 {sT2}, {sXW}, 8'); p(f's_add_u32 {sT}, {sT}, {sT2}')
            for jj in range(8):
                self.vmem(f'buffer_load_dwordx4 {ar(aWQ+4*jj,4)}, v{t0}, {srd("WQ")}, {sT} offen {o.wnt}', tag='WQ')
                if jj < 7: p(f's_add_u32 {sT}, {sT}, 8192')
            p(f'v_and_b32 v{t1}, 0x38, v0')
            p(f's_lshl_b32 {sT}, {sIA}, 6')
            self.vmem(f'buffer_load_dwordx2 {ar(aX,2)}, v{t1}, {srd("X")}, {sT} offen', tag='WQ')
            self.vmem(f'buffer_load_dwordx2 {ar(aB2,2)}, v{t1}, {srd("B2")}, {sT} offen', tag='XL')
        def flag():
            p(f's_getreg_b32 {sFlag}, hwreg(HW_REG_XCC_ID)'); p(f's_and_b32 {sFlag}, {sFlag}, 15'); p(f's_or_b32 {sFlag}, {sFlag}, 0x80')
            p(f's_mov_b32 s{SRD["DBG"]+2}, {H(SIZE["DBG"])}'); p(f's_mov_b32 s{SRD["DBG"]+3}, 0x00020000')
            p(f'v_mov_b32 v{t0}, {sFlag}'); p(f'v_mov_b32 v{t1}, s2')
            self.wait('CLR')
            p('s_waitcnt lgkmcnt(0)')
            p('s_barrier')
            Lnf = p.label('Lnf')
            p(f's_cmp_lg_u32 {sW}, 0'); p(f's_cbranch_scc1 {Lnf}')
            p('s_mov_b64 exec, 1')
            self.vmem(f'buffer_store_byte v{t0}, v{t1}, {srd("DBG")}, 0 offen sc1', optional=True)
            p('s_mov_b64 exec, -1')
            p(f'{Lnf}:')
            if o.stamps:
                p(f'v_mov_b32 {vSTAMP}, 0')
                p(f'v_writelane_b32 {vSTAMP}, s{sSTAMP}, 0')
                p(f'v_writelane_b32 {vSTAMP}, s{sSTAMP+2}, 34')
                self.nst = 2
            self.stamp(1)
        early = A and o.early
        if early: flag()
        self.vmem(f'buffer_load_dwordx4 {vr(XF,4)}, {a16}, {srd("X")}, 0 offen', tag='XF')
        self.vmem(f'buffer_load_dwordx4 {vr(XF+4,4)}, {a16}, {srd("X")}, 0 offen offset:1024', tag='XF')
        for m in range(o.n1A if A else o.n1B): self.kload(m)
        self.kq = list(range(o.n1A if A else o.n1B, 32))
        self.common_addr()
        if B:
            p(f'v_lshrrev_b32 v{t0}, 3, v0'); p(f'v_mul_u32_u24 {vXW}, {H(CPS)}, v{t0}')
            p(f'v_and_b32 v{t0}, 7, v0'); p(f'v_lshl_add_u32 {vXW}, v{t0}, 4, {vXW}')
            p(f's_lshl_b32 {sT}, {sIB}, 10'); p(f's_lshl_b32 {sT2}, {sX}, 7'); p(f's_add_u32 {sT}, {sT}, {sT2}'); p(f's_add_u32 {sT}, {sT}, {H(XAo)}')
            p(f'v_add_u32 {vXW}, {sT}, {vXW}')
            p(f'v_and_b32 v{t0}, 7, v0'); p(f'v_lshlrev_b32 {vOR}, 8, v{t0}')
            p(f'v_lshrrev_b32 v{t0}, 3, v{vR}'); p(f'v_lshl_add_u32 {vOR}, v{t0}, 6, {vOR}')
            p(f'v_lshl_add_u32 {vOR}, v{vG}, 4, {vOR}')
            p(f's_lshl_b32 {sT}, {sXW}, 11'); p(f's_add_u32 {sT}, {sT}, {H(OP)}'); p(f'v_add_u32 {vOR}, {sT}, {vOR}')
            p(f'v_lshl_add_u32 v{t0}, v{vG}, 2, v{vR}'); p(f'v_and_b32 v{t0}, 7, v{t0}'); p(f'v_lshlrev_b32 v{t0}, 3, v{t0}')
            p(f's_lshl_b32 {sT}, {sXW}, 6'); p(f's_add_u32 {sT}, {sT}, {H(OS)}'); p(f'v_add_u32 {vOSR}, {sT}, v{t0}')
            p(f's_mul_i32 {sT}, {sXW}, 0x1400'); p(f's_add_u32 {sT}, {sT}, {H(HP)}'); p(f'v_add_u32 {vHR}, {sT}, {a16}')
            p(f'v_lshrrev_b32 v{t0}, 3, v{vR}')
            p(f'v_lshlrev_b32 {lRW}, 7, v{t0}')
            p(f'v_and_b32 v{t2}, 7, v0'); p(f'v_lshl_add_u32 {lRW}, v{t2}, 4, {lRW}')
            p(f'v_add_u32 {lRR}, {L_R}, {lRW}')
            p(f'v_and_b32 v{t2}, 1, v{vG}'); p(f'v_lshl_add_u32 {lRW}, v{t2}, 3, {lRW}')
            p(f's_lshl_b32 {sT}, {sW}, 8'); p(f's_add_u32 {sT}, {sT}, {L_R}'); p(f'v_add_u32 {lRW}, {sT}, {lRW}')
            p(f'v_lshrrev_b32 v{t2}, 1, v{vG}'); p(f'v_cmp_eq_u32 vcc, v{t0}, v{t2}')
            p(f'v_lshlrev_b32 v{t2}, 3, v0'); p(f'v_add_u32 v{t2}, {L_J2}, v{t2}')
            p(f'v_cndmask_b32 {lRW}, v{t2}, {lRW}, vcc')
            p(f'v_lshl_add_u32 v{t0}, v{vR}, 2, v{vD}'); p(f's_lshl_b32 {sT}, {sW}, 6'); p(f'v_add_u32 v{t0}, {sT}, v{t0}')
            p(f'v_and_b32 v{t2}, 1, v0'); p(f'v_lshlrev_b32 v{t2}, 4, v{t2}'); p(f'v_mov_b32 v{t1}, 0xffff'); p(f'v_lshlrev_b32 v{t1}, v{t2}, v{t1}')
            p(f'v_cmp_gt_u32 vcc, 216, v{t0}'); p(f'v_cndmask_b32 v{t1}, 0, v{t1}, vcc')
            p(f'v_bfe_u32 v{t2}, v0, 1, 2')
            for k in range(4):
                p(f'v_cmp_eq_u32 vcc, {k}, v{t2}'); p(f'v_cndmask_b32 v{MK+k}, 0, v{t1}, vcc')
            p(f'v_lshlrev_b32 v{T+12}, 1, v{t0}')
            p(f'v_and_b32 v{t0}, 1, v{vG}'); p(f'v_lshlrev_b32 v{t0}, 6, v{t0}')
            p(f'v_lshrrev_b32 v{t2}, 3, v{vR}'); p(f'v_lshl_add_u32 v{t0}, v{t2}, 1, v{t0}')
            p(f'v_lshrrev_b32 v{t1}, 1, v{vG}'); p(f'v_add_u32 v{t0}, v{t0}, v{t1}')
            p(f'v_mul_u32_u24 v{t0}, 1280, v{t0}')
            p(f'v_and_b32 v{t1}, 7, v0'); p(f'v_lshl_add_u32 v{T+13}, v{t1}, 3, v{t0}')
            p(f'v_lshl_add_u32 v{t0}, v{t2}, 5, v{vD}'); p(f'v_mul_u32_u24 v{t0}, 1280, v{t0}')
            p(f'v_lshl_add_u32 v{T+14}, v{t1}, 3, v{t0}')
        if A:
            p(f's_lshl_b32 {sT}, {sXW}, 9'); p(f's_lshl_b32 {sT2}, {sIA}, 2'); p(f's_add_u32 {sT}, {sT}, {sT2}'); p(f's_add_u32 {sT}, {sT}, {H(ST)}')
            p(f'v_mov_b32 {vSW}, {sT}'); p(f's_add_u32 {sT}, {sT}, 80'); p(f'v_writelane_b32 {vSW}, {sT}, 0')
            p(f'v_and_b32 v{t0}, 7, v0'); p(f'v_lshlrev_b32 {vXR}, 7, v{t0}')
            p(f'v_lshrrev_b32 v{t0}, 3, v0'); p(f'v_lshl_add_u32 {vXR}, v{t0}, 4, {vXR}')
            p(f's_lshl_b32 {sT}, {sIA}, 10'); p(f's_add_u32 {sT}, {sT}, {H(XAo)}'); p(f'v_add_u32 {vXR}, {sT}, {vXR}')
            for k in range(4): p(f'v_mov_b32 v{XB+k}, 0x3f803f80')
            p(f'v_mul_u32_u24 v{W1V}, {8*3456}, v{vG}'); p(f'v_lshl_add_u32 v{W1V}, v{vR}, 3, v{W1V}')
        def wl():
            L = []
            if A:
                for jj in range(8):
                    def f(jj=jj):
                        if jj == 0:
                            p(f's_mul_i32 {sWA}, {sIA}, {32*3456}'); p(f's_mul_i32 {sWB}, {sX}, 432'); p(f's_add_u32 {sWA}, {sWA}, {sWB}')
                            p(f's_lshl_b32 {sWB}, {sW}, 7'); p(f's_add_u32 {sWA}, {sWA}, {sWB}')
                        else: p(f's_add_u32 {sWA}, {sWA}, 3456')
                        self.vmem(f'buffer_load_dwordx2 {ar(aW1+2*jj,2)}, v{W1V}, {srd("W1")}, {sWA} offen {o.w2nt}', tag='W1')
                    L.append(f)
            if B:
                def f():
                    p(f's_mul_i32 {sWA}, {sX}, 432')
                    self.vmem(f'buffer_load_ushort a{aB1}, v{T+12}, {srd("B1")}, {sWA} offen', tag='B1')
                L.append(f)
                for t in range(2):
                    for jj in range(8):
                        def f(t=t, jj=jj):
                            if t == 0 and jj == 0:
                                p(f's_mul_i32 {sWA}, {sXW}, {128*1280}'); p(f's_lshl_b32 {sWB}, {sIB}, 6'); p(f's_add_u32 {sWA}, {sWA}, {sWB}')
                            p(f's_add_u32 {sWB}, {sWA}, {(8*jj+4*t)*1280}')
                            self.vmem(f'buffer_load_dwordx2 {ar(aWO+16*t+2*jj,2)}, v{T+13}, {srd("WO")}, {sWB} offen {o.w2nt}', tag='WO')
                        L.append(f)
                for jj in range(8):
                    def f(jj=jj):
                        if jj == 0:
                            p(f's_mul_i32 {sWA}, {sX}, {216*1280}'); p(f's_lshl_b32 {sWB}, {sIB}, 6'); p(f's_add_u32 {sWA}, {sWA}, {sWB}')
                            p(f's_mul_i32 {sWB}, {sW}, {64*1280}'); p(f's_add_u32 {sWA}, {sWA}, {sWB}')
                        else: p(f's_add_u32 {sWA}, {sWA}, {4*1280}')
                        self.vmem(f'buffer_load_dwordx2 {ar(aW2+2*jj,2)}, v{T+14}, {srd("W2")}, {sWA} offen {o.w2nt}', tag='W2')
                    L.append(f)
            return L
        KV = [(f'K{m}', (lambda m=m: self.kload(m))) for m in self.kq] + [(f'V{m}', (lambda m=m: self.vload(m))) for m in range(32)]
        Wl = [('W', f) for f in wl()]
        if A and B: Wl = Wl[8:25] + Wl[:8] + Wl[25:]
        wi = len(KV) if o.late else [k for k, f in KV].index(o.wpos)
        st = KV[:wi] + Wl + KV[wi:]
        def adv(n, thr=True):
            while n > 0 and st:
                k, f = st.pop(0); f(); n -= 1
                if thr and D + thr - 1 < 63: p(f's_waitcnt vmcnt({D + (thr - 1)})')
        def until(key, thr=True):
            keys = [k for k, f in st]
            if key in keys: adv(keys.index(key), thr)
        def wdone():
            assert not any(k == 'W' for k, f in st)
        FL = vR
        if not early: flag()
        if A:
            adv(o.n2, False)
            self.wait('WQ')
            p(f'v_accvgpr_read_b32 v{XA}, a{aX}'); p(f'v_accvgpr_read_b32 v{XA+1}, a{aX+1}')
            self.transpose(aWQ, 4, ACC, T + 2)
            self.build_xa()
            self.qp(XA, '0', 'sc1', False, True)
            p(f's_mov_b32 {sT2}, {H(CSL)}')
            self.qp(XB, sT2, 'sc1', False, True)
            self.stamp(2)
        adv(4, o.d1 - D + 1 if o.d1 else True)
        self.wait('XF')
        p(f'v_mov_b32 v{t0}, 0'); p(f'v_mov_b32 v{t1}, 0'); p(f'v_mov_b32 v{t2}, 0x3f803f80')
        for k in range(8):
            p(f'v_dot2_f32_bf16 v{t0}, v{XF+k}, v{t2}, v{t0}')
            p(f'v_dot2_f32_bf16 v{t1}, v{XF+k}, v{XF+k}, v{t1}')
        p('s_nop 3')
        p(f'v_permlane32_swap_b32 v{t0}, v{t1}')
        p(f'v_add_f32 v{t0}, v{t0}, v{t1}')
        for n in (1, 2, 4, 8): p(f'v_add_f32_dpp v{t0}, v{t0}, v{t0} row_ror:{n} {DF}')
        p(f'v_add_f32_dpp v{t0}, v{t0}, v{t0} row_bcast:15 row_mask:0xa bank_mask:0xf')
        p(f'v_mul_f32 v{t0}, {H(f2u(1.0 / 640))}, v{t0}')
        p(f'v_readlane_b32 {sSX}, v{t0}, 31'); p(f'v_readlane_b32 {sSXX}, v{t0}, 63')
        if A:
            for s in self.unpack_xr(False): p(s)
            p(f'v_accvgpr_read_b32 v{t0}, a{aB2}'); p(f'v_accvgpr_read_b32 v{t1}, a{aB2+1}')
            p(f'v_lshlrev_b32 v{B2}, 16, v{t0}'); p(f'v_and_b32 v{B2+1}, 0xffff0000, v{t0}')
            p(f'v_lshlrev_b32 v{B2+2}, 16, v{t1}'); p(f'v_and_b32 v{B2+3}, 0xffff0000, v{t1}')
        until(o.fposA if A else o.fposB, o.d1 - D + 1 if o.d1 else True)
        if o.d1: p(f's_waitcnt vmcnt({o.wF})')
        self.stamp(3)
        self.vmem(f'buffer_load_dword v{FL}, v{T+15}, {srd("DBG")}, 0 offen sc1', tag='FL')
        adv(o.dF, not o.d1)
        p(f's_mov_b32 {sState}, 1')
        self.wait('FL')
        Lfp, Lfok, Lfc = p.label('Lfp'), p.label('Lfok'), p.label('Lfc')
        self.flush()
        p(f'{Lfc}:')
        p(f'v_and_b32 v{t0}, 0x80808080, v{FL}')
        p(f'v_cmp_ne_u32 vcc, 0x80808080, v{t0}')
        Lr = self.retry(Lfp, Lfok)
        self.ool.append([f'{Lfp}:', f'buffer_load_dword v{FL}, v{T+15}, {srd("DBG")}, 0 offen sc1',
                         's_waitcnt vmcnt(0)', f's_branch {Lfc}'])
        p(f's_cbranch_vccnz {Lr}')
        p(f'{Lfok}:')
        p(f's_mov_b32 {sT2}, {H(CSL)}')
        self.qa2a_loads(ACC, '0', True, 'Q0')
        self.qa2a_loads(ACC + 12, sT2, True, 'Q0')
        self.stamp(4)
        p(f's_and_b32 {sT}, {sX}, 3'); p(f's_lshl_b32 {sT}, {sT}, 3')
        p(f'v_bfe_u32 v{t0}, v{FL}, {sT}, 8')
        p(f'v_cmp_ne_u32 vcc, {sFlag}, v{t0}')
        p(f's_lshr_b32 {sT}, {sX}, 2'); p(f's_lshl_b32 {sT}, 0x55555555, {sT}')
        p(f's_or_b32 {sMode}, vcc_lo, vcc_hi'); p(f's_and_b32 {sMode}, {sMode}, {sT}')
        if o.forceslow: p(f's_mov_b32 {sMode}, 1')
        adv(o.dQ, 0 if o.d1 else 5)
        u, st_, mean, sc = T, T + 1, T + 2, T + 3
        self.wait('Q0')
        self.flush()
        Lq, Lqp = p.label('Lq'), p.label('Lqp')
        p(f'{Lq}:')
        so = [f'v_mov_b32 v{mean}, {sSX}', f'v_mov_b32 v{sc}, {sSXX}', f'v_mov_b32 v{st_}, 0',
              f'v_fma_f32 v{sc}, -v{mean}, v{mean}, v{sc}', f'v_max_f32 v{sc}, 0, v{sc}',
              f'v_add_f32 v{sc}, {H(f2u(EPS))}, v{sc}', f'v_rsq_f32 v{sc}, v{sc}']
        self.merge(self.qa2a_sum(ACC, f'v{u}'), self.qa2a_sum(ACC + 12, CSQ), so)
        rl = [f'{Lqp}:', f's_mov_b32 {sT2}, {H(CSL)}']
        for base, so in ((ACC, '0'), (ACC + 12, sT2)):
            for t in range(3):
                rl.append(f'buffer_load_dwordx4 {vr(base+4*t,4)}, {vQR3 if t == 2 else vQR}, {srd("WS")}, {so} offen offset:{1024*t} sc1')
        rl += ['s_waitcnt vmcnt(0)', f's_branch {Lq}']
        self.ool.append(rl)
        adv(o.dX, False)
        self.q_finish(u, st_, mean, sc, Lqp)
        self.stamp(5)
        self.flush()
        until(o.qkpos)
        if not o.late: wdone()
        self.wait('K31')
        self.qk_softmax()
        self.stamp(6)
        adv(3, False)
        for op in self.ml_ops('mode'): self.run_op(op)
        TB = ACC
        if A and not o.late:
            adv(1, False)
            self.wait('W1')
            self.transpose(aW1, 2, TB, TB + 16)
            p(f's_mov_b32 {sT2}, {H(CSL)}')
            self.w1(XB, sT2, 'sc1', False, True)
        if B and not o.late:
            self.wait('W2')
            p(f'v_accvgpr_read_b32 {B1v}, a{aB1}'); p(f'v_lshlrev_b32 {B1v}, 16, {B1v}')
            for ab in (aWO, aWO + 16, aW2):
                adv(1, False)
                self.transpose(ab, 2, TB, TB + 16)
        self.stamp(7)
        self.flush()
        def hook(pp):
            keys = [k for k, f in st]
            need = f'V{2*pp+1}'
            if need in keys: adv(keys.index(need) + 1, False)
            behind = self.vm - self.tags[need]
            if behind < D: adv(D - behind, False)
        hooks = {pp: (lambda pp=pp: hook(pp)) for pp in range(16)}
        self.pv([], True, hooks=hooks)
        if not o.wafter: adv(999, False)
        self.rest = list(st)
        self.set_layer(0)
        self.flush()
        p(f's_cmp_eq_u32 {sMode}, 0'); p(f's_cbranch_scc1 L_loop{name}_fast')
        p(f's_branch L_loop{name}_slow')
        for code in self.ool:
            for s in code: p(s)
        self.ool = []
        self.chain(A, B, True, f'L_loop{name}_fast')
        self.chain(A, B, False, f'L_loop{name}_slow')
        self.vm, self.tags = vm0, tags0


def main():
    ap = argparse.ArgumentParser()
    ap.add_argument('out')
    ap.add_argument('--stamps', type=int, default=0)
    ap.add_argument('--x8delay', type=int, default=0)
    ap.add_argument('--n1A', type=int, default=2)
    ap.add_argument('--n1B', type=int, default=8)
    ap.add_argument('--n2', type=int, default=4)
    ap.add_argument('--dA', type=int, default=9)
    ap.add_argument('--dAB', type=int, default=12)
    ap.add_argument('--dB', type=int, default=10)
    ap.add_argument('--dF', type=int, default=6)
    ap.add_argument('--dQ', type=int, default=4)
    ap.add_argument('--dX', type=int, default=0)
    ap.add_argument('--late', type=int, default=1)
    ap.add_argument('--d1', type=int, default=0)
    ap.add_argument('--wF', type=int, default=12)
    ap.add_argument('--early', type=int, default=1)
    ap.add_argument('--wafter', type=int, default=1)
    ap.add_argument('--c1delay', type=int, default=0)
    ap.add_argument('--wpos', type=str, default='V0')
    ap.add_argument('--fposA', type=str, default='K20')
    ap.add_argument('--fposB', type=str, default='K24')
    ap.add_argument('--qkpos', type=str, default='V6')
    ap.add_argument('--wgil', type=int, default=0)
    ap.add_argument('--w2nt', type=str, default='')
    ap.add_argument('--wnt', type=str, default='')
    ap.add_argument('--dbgst', type=int, default=0)
    ap.add_argument('--forceslow', type=int, default=0)
    o = ap.parse_args()
    g = G(o)
    g.head()
    g.prologue(True, False, 'A')
    g.prologue(True, True, 'AB')
    g.prologue(False, True, 'B')
    body = g.p.finalize()
    ref = open('cdna_kernels/' + NAME + '.s.ref').read()
    comment = ''.join(l + '\n' for l in ref.split('\n') if l.startswith(';') and '@launch' not in l)
    open(o.out, 'w').write(header(256, 256, LDS_SIZE, comment=comment) + body + footer())
    print('instrs', len(g.p.items), 'nops inserted', g.p.nnops)

main()
```

```python
import sys, struct, math, argparse
from asmlib2 import *

def f2u(x): return struct.unpack('<I', struct.pack('<f', x))[0]
def H(x): return f'0x{x & 0xffffffff:x}'

GB = 0x11C00
QP = 0x0
OP = 0xA000
HP = 0xC000
ST = 0x11000
OS = 0x11800
XAo = 8 * GB
XMo = XAo + 0xA000
LSTR = XMo + 0xA000
CSL = 2 * LSTR
NDEF = (2 * LSTR - XMo) // 1024
OOB = 0x80000000
L_Q, L_ML, L_J1, L_O, L_R, L_J2 = 0, 256, 512, 1024, 3072, 7168
L_X = 10240
LDS_SIZE = 12800
sX, sC, sJ, sS, sW = 's3', 's4', 's5', 's6', 's7'
SRD = dict(K=8, V=12, WS=16, X=20, WQ=24, WO=28, W1=32, B1=36, W2=40, B2=44, OUT=48, DBG=52)
KOFF = dict(X=0, K=8, V=16, WQ=24, WO=32, W1=48, B1=56, W2=64, B2=72, OUT=80, DBG=88, WS=96)
SIZE = dict(X=1280, K=1 << 25, V=1 << 25, WQ=640 * 8192, WO=4096 * 1280, W1=640 * 3456, B1=3456, W2=1728 * 1280,
            B2=1280, OUT=1280, DBG=256, WS=1 << 28)
def srd(n): return f's[{SRD[n]}:{SRD[n]+3}]'
sKV = 56
sL, sOS, sLM, sT, sT2, sBud, sLo, sHi, sMc, sIA, sIB, sFlag, sBX, sT3 = [f's{i}' for i in range(64, 78)]
sMode = 's78'
sOS0 = 's79'
sMB = 80
sMF = 88
sWA, sWB = 's90', 's91'
sSTAMP = 92
KA = 80
vLane, a16 = 'v0', 'v1'
vQW, vQR, vQR3, vSW, vSR, vHR3, vOW, vOR, lRW2, vOSR, vXW, vXR, vHW, vHR = [f'v{i}' for i in range(2, 16)]
lQW, lQR, lMW, lMR, lOW, lOR, lRW, lRR = [f'v{i}' for i in range(16, 24)]
CSQ, CS1, B1v, vC = 'v24', 'v25', 'v26', 'v27'
MK, XA, XB, XR, B2, BQ, PA, ACC, T = 28, 32, 36, 40, 44, 48, 64, 72, 104
VB = 126
vR, vG, t0, t1, t2, vD = 114, 115, 120, 121, 122, 123
XF = 40
SN = ACC + 28
vK = 'v124'
vSTAMP = 'v125'
WR, WT, WOR = 128, 160, 192
aWQ, aWO, aW1, aW2, aX, aB2, aB1, aC1, aCQ = 128, 160, 192, 208, 224, 226, 228, 232, 244
aW2v, aB1v, aW1v = CSQ, B1v, CS1
def v(i): return f'v{i}'
def vr(i, n): return f'v[{i}:{i+n-1}]'
def ar(i, n): return f'a[{i}:{i+n-1}]'
DF = 'row_mask:0xf bank_mask:0xf'
MFMA = 'v_mfma_f32_16x16x32_bf16'
CSC = (128 ** -0.5) * math.log2(math.e)
EPS = 1e-5
KST = ['K0', 'K4', 'K8', 'K12', 'K16', 'K20', 'K24', 'K28', 'V0', 'V4', 'V8', 'V12', 'V16', 'V20', 'V24', 'V28', 'V31']


class G:
    def __init__(self, opt):
        self.p = Prog()
        self.o = opt
        self.vm = 0
        self.tags = {}
        self.pend = []
        self.ool = []
        self.nst = 0

    def __call__(self, s): self.p(s)

    def vmem(self, s, tag=None, optional=False):
        self.p(s)
        if not optional:
            self.vm += 1
        if tag: self.tags[tag] = self.vm
    def wait(self, tag):
        n = self.vm - self.tags[tag]
        assert 0 <= n
        self.p(f's_waitcnt vmcnt({min(n, 63)})')
    def stamp(self, k):
        if not self.o.stamps: return
        if len(self.pend) >= 5: self.lgkm(0)
        r = sSTAMP + 2 * (self.nst % 5); self.nst += 1
        self.p(f's_memrealtime s[{r}:{r+1}]')
        self.pend.append((k, r))
    def lgkm(self, n):
        if self.pend:
            self.p('s_waitcnt lgkmcnt(0)')
            for k, r in self.pend:
                self.p(f'v_writelane_b32 {vSTAMP}, s{r}, {k}')
            self.pend = []
        else:
            self.p(f's_waitcnt lgkmcnt({n})')
    def flush(self):
        if self.pend: self.lgkm(0)

    def transpose(self, abase, W, tmp, tmp2, rd=True):
        p = self.p
        n = 8 * W
        if rd:
            for k in range(n):
                p(f'v_accvgpr_read_b32 v{tmp+k}, a{abase+k}')
        cnt = 0
        prev = None
        for dp in range(W):
            for hi in range(2):
                for tau in range(4):
                    t = tmp2 + (cnt & 1); cnt += 1
                    p(f'v_perm_b32 v{t}, v{tmp+(2*tau+1)*W+dp}, v{tmp+(2*tau)*W+dp}, {sHi if hi else sLo}')
                    p(f'v_accvgpr_write_b32 a{abase+(2*dp+hi)*4+tau}, v{t}')

    def build_xa(self):
        p = self.p
        p(f'v_mov_b32_dpp v{XA+2}, v{XA} row_ror:8 {DF}')
        p(f'v_mov_b32_dpp v{XA+3}, v{XA+1} row_ror:8 {DF}')

    def xb_ops(self):
        return [f'v_mov_b32_dpp v{XB+k}, v{XA+k} quad_perm:[0,1,2,3] row_mask:0xf bank_mask:0x3' for k in range(4)]

    def unpack_xr(self, addb2):
        ops = [f'v_lshlrev_b32 v{XR}, 16, v{XA}', f'v_and_b32 v{XR+1}, 0xffff0000, v{XA}',
               f'v_lshlrev_b32 v{XR+2}, 16, v{XA+1}', f'v_and_b32 v{XR+3}, 0xffff0000, v{XA+1}']
        if addb2:
            ops += [f'v_pk_add_f32 {vr(XR,2)}, {vr(XR,2)}, {vr(B2,2)}', f'v_pk_add_f32 {vr(XR+2,2)}, {vr(XR+2,2)}, {vr(B2+2,2)}']
        return ops

    def qp(self, A, soff, fl, stats, track, post=(), wv=None, pre=None, tag=None):
        p = self.p
        st = T + 16
        xb = self.xb_ops() if stats else []
        order = [0, 4, 1, 5, 2, 6, 3, 7]
        mov = {}
        for d in range(8):
            if d == 0: mov[d] = None
            elif d < 4: mov[d] = f'v_mov_b32_dpp v{ACC+d}, v{ACC+4*d} quad_perm:[0,1,2,3] row_mask:0x1 bank_mask:0xf'
            else: mov[d] = f'v_mov_b32_dpp v{ACC+d-4}, v{ACC+4*d} quad_perm:[0,1,2,3] row_mask:0x2 bank_mask:0xf'
        for n, d in enumerate(order):
            if pre:
                for s_ in pre(d): p(s_)
            p(f'{MFMA} {vr(ACC+4*d,4)}, {vr(A,4)}, {vr(wv+4*d,4) if wv else ar(aWQ+4*d,4)}, 0')
            if n < 2 and xb:
                p(xb[2*n]); p(xb[2*n+1])
            if n == 3 and stats:
                p(f'{MFMA} {vr(st,4)}, {vr(XA,4)}, {vr(XB,4)}, 0')
        p('s_mov_b32 exec_hi, 0')
        for d in order[1:]:
            p(mov[d])
        self.vmem(f'buffer_store_dwordx4 {vr(ACC,4)}, {vQW}, {srd("WS")}, {soff} offen {fl}', optional=not track, tag=tag)
        if stats:
            p('s_mov_b64 exec, 0x101')
            self.vmem(f'buffer_store_dword v{st}, {vSW}, {srd("WS")}, {soff} offen {fl}', optional=not track)
        p('s_mov_b64 exec, -1')
        for s in post: p(s)

    def w1(self, A, soff, fl, stats, track, post=()):
        p = self.p
        st = T + 16
        xb = self.xb_ops() if stats else []
        for d in range(4):
            p(f'{MFMA} {vr(ACC+4*d,4)}, {vr(A,4)}, {ar(aW1+4*d,4)}, 0')
            if d < 2 and xb:
                p(xb[2*d]); p(xb[2*d+1])
        if stats:
            p(f'{MFMA} {vr(st,4)}, {vr(XA,4)}, {vr(XB,4)}, 0')
        p('s_mov_b64 exec, 0xffff')
        for d in range(1, 4):
            p(f'v_mov_b32 v{ACC+d}, v{ACC+4*d}')
        self.vmem(f'buffer_store_dwordx4 {vr(ACC,4)}, {vHW}, {srd("WS")}, {soff} offen {fl}', optional=not track)
        if stats:
            p('s_mov_b64 exec, 0x101')
            self.vmem(f'buffer_store_dword v{st}, {vSW}, {srd("WS")}, {soff} offen offset:256 {fl}', optional=not track)
        p('s_mov_b64 exec, -1')
        for s in post: p(s)

    def rs4(self, a, out):
        return [f'v_permlane32_swap_b32 v{a}, v{a+1}', f'v_permlane32_swap_b32 v{a+2}, v{a+3}',
                f'v_add_f32 v{a}, v{a}, v{a+1}', f'v_add_f32 v{a+2}, v{a+2}, v{a+3}',
                f'v_permlane16_swap_b32 v{a}, v{a+2}', f'v_add_f32 {out}, v{a}, v{a+2}']

    def stats_ops(self, s4, st, mean, sc, second):
        inv = H(f2u(1.0 / 640))
        ops = [f'v_pk_add_f32 {vr(s4,2)}, {vr(s4,2)}, {vr(s4+2,2)}',
               f'v_add_f32 v{st}, v{s4}, v{s4+1}',
               f'v_add_f32_dpp v{st}, v{st}, v{st} row_ror:2 {DF}',
               f'v_add_f32_dpp v{st}, v{st}, v{st} row_ror:4 {DF}',
               f'v_add_f32_dpp v{st}, v{st}, v{st} row_ror:8 {DF}',
               f'v_mul_f32 v{st}, {inv}, v{st}',
               f'v_mov_b32_dpp v{mean}, v{st} quad_perm:[0,0,2,2] {DF}',
               f'v_mov_b32_dpp v{sc}, v{st} quad_perm:[1,1,3,3] {DF}',
               f'v_fma_f32 v{sc}, -v{mean}, v{mean}, v{sc}',
               f'v_max_f32 v{sc}, 0, v{sc}']
        if second:
            ops += [f'v_mul_f32 v{sc}, {H(f2u(1.0 + EPS))}, v{sc}', f'v_add_f32 v{sc}, {H(f2u(EPS * EPS))}, v{sc}']
        else:
            ops += [f'v_add_f32 v{sc}, {H(f2u(EPS))}, v{sc}']
        ops += [f'v_rsq_f32 v{sc}, v{sc}']
        return ops

    def merge(self, *lists):
        lists = [list(l) for l in lists]
        while any(lists):
            for l in lists:
                if l: self.p(l.pop(0))

    def retry(self, Lp, Lok, extra=()):
        Lr = self.p.label('Lretry')
        code = [f'{Lr}:',
                f's_cmp_eq_u32 {sBud}, 0', f's_cbranch_scc1 {Lok}', f's_sub_u32 {sBud}, {sBud}, 1'] + list(extra) + [f's_branch {Lp}']
        self.ool.append(code)
        return Lr

    def g3_list(self, base, va, va3, soff, acc=False):
        return [f'buffer_load_dwordx4 {(ar if acc else vr)(base+4*t,4)}, {va3 if t == 2 else va}, {srd("WS")}, {soff} offen offset:{1024*t} sc1' for t in range(3)]
    def g3_sum(self, base, out):
        return [f'v_pk_add_f32 {vr(base,2)}, {vr(base,2)}, {vr(base+4,2)}', f'v_pk_add_f32 {vr(base+2,2)}, {vr(base+2,2)}, {vr(base+6,2)}',
                f'v_pk_add_f32 {vr(base,2)}, {vr(base,2)}, {vr(base+8,2)}', f'v_pk_add_f32 {vr(base+2,2)}, {vr(base+2,2)}, {vr(base+10,2)}'] \
            + self.rs4(base, out) + [f'v_add_f32_dpp {out}, {out}, {out} row_ror:8 {DF}']

    def q_finish(self, u, st, mean, sc, Lp, ln=True):
        p = self.p
        Lok = p.label('Lok')
        Lr = self.retry(Lp, Lok)
        if ln:
            p(f'v_fma_f32 v{u}, -v{mean}, {CSQ}, v{u}')
            p(f'v_mul_f32 v{u}, v{u}, v{sc}')
        p(f'v_cvt_pk_bf16_f32 v{sc}, v{u}, v{u}')
        p(f'v_cmp_u_f32 vcc, v{u}, v{st if ln else u}')
        p(f's_cbranch_vccnz {Lr}')
        p(f'{Lok}:')
        p(f'ds_write_b16 {lQW}, v{sc}')
        self.lgkm(0)
        p('s_barrier')

    def qk_softmax(self, iss=lambda n: None):
        p = self.p
        S = [T, T + 1]
        for b in range(4):
            p(f's_mov_b64 exec, s[{sMB+2*b}:{sMB+2*b+1}]')
            p(f'ds_read_b128 {vr(BQ+4*b,4)}, {lQR}')
        p('s_mov_b64 exec, -1')
        def adds(e):
            h, be = e >> 2, e & 3
            D = ACC + 4 * e
            first = True
            out = []
            for u in range(4):
                if u == be: continue
                src1 = f'v{D+be}' if first else f'v{S[h]}'
                out.append(f'v_add_f32_dpp v{S[h]}, v{D+u}, {src1} row_ror:{(4*(be-u)) % 16} row_mask:0xf bank_mask:{1<<be:#x}')
                first = False
            return out
        for b in range(4):
            self.lgkm(3 - b)
            for e in range(8):
                h, be = e >> 2, e & 3
                mb = 8 * be + 2 * b + h
                c = '0' if b == 0 else vr(ACC + 4 * e, 4)
                p(f'{MFMA} {vr(ACC+4*e,4)}, {ar(4*mb,4)}, {vr(BQ+4*b,4)}, {c}')
                if b == 3 and e >= 3:
                    for s in adds(e - 3): p(s)
            iss(b)
        for e in (5, 6, 7):
            for s in adds(e): p(s)
        M = T + 2
        p(f'v_max_f32 v{M}, v{S[0]}, v{S[1]}')
        for n in (1, 2, 4, 8):
            p(f'v_max_f32_dpp v{M}, v{M}, v{M} row_ror:{n} {DF}')
        p(f'v_max_f32_dpp v{M}, v{M}, v{M} row_bcast:15 row_mask:0xa bank_mask:0xf')
        p(f'v_max_f32_dpp v{M}, v{M}, v{M} row_bcast:31 row_mask:0xc bank_mask:0xf')
        iss(4)
        p(f'v_mul_f32 v{M}, v{M}, {vC}')
        p(f'v_readlane_b32 {sMc}, v{M}, 63')
        p(f'v_fma_f32 v{S[0]}, v{S[0]}, {vC}, -{sMc}')
        p(f'v_fma_f32 v{S[1]}, v{S[1]}, {vC}, -{sMc}')
        p(f'v_exp_f32 v{S[0]}, v{S[0]}')
        p(f'v_exp_f32 v{S[1]}, v{S[1]}')
        p(f'v_cvt_pk_bf16_f32 v{T+4}, v{S[0]}, v{S[1]}')

    def ml_ops(self, fl):
        P, M, Ls = T + 4, T + 2, T + 3
        m2, l2, mc, f = T + 6, T + 7, T + 8, T + 5
        lc = T + 9
        ops = [f'v_lshlrev_b32 v{Ls}, 16, v{P}', f'v_and_b32 v{T}, 0xffff0000, v{P}', f'v_add_f32 v{Ls}, v{Ls}, v{T}']
        for n in (1, 2, 4, 8):
            ops += [f'v_add_f32_dpp v{Ls}, v{Ls}, v{Ls} row_ror:{n} {DF}', None]
        ops += [f'v_add_f32_dpp v{Ls}, v{Ls}, v{Ls} row_bcast:15 row_mask:0xa bank_mask:0xf', None,
                f'v_add_f32_dpp v{Ls}, v{Ls}, v{Ls} row_bcast:31 row_mask:0xc bank_mask:0xf',
                f'ds_write_b64 {lMW}, {vr(M,2)}', None, None,
                lambda: (self.lgkm(0), self.p('s_barrier'), self.p(f'ds_read_b64 {vr(m2,2)}, {lMR}')), None, None, None,
                lambda: self.lgkm(0),
                f'v_max_f32_dpp v{mc}, v{m2}, v{m2} quad_perm:[1,0,3,2] {DF}', None,
                f'v_max_f32_dpp v{mc}, v{mc}, v{mc} quad_perm:[2,3,0,1] {DF}',
                f'v_sub_f32 v{f}, v{m2}, v{mc}', f'v_exp_f32 v{f}, v{f}', None,
                f'v_mul_f32 v{lc}, v{f}, v{l2}', None,
                f'v_add_f32_dpp v{lc}, v{lc}, v{lc} quad_perm:[1,0,3,2] {DF}', None,
                f'v_add_f32_dpp v{lc}, v{lc}, v{lc} quad_perm:[2,3,0,1] {DF}']
        def st():
            Ls_ = self.p.label('Lnos')
            self.p(f's_cmp_lg_u32 {sW}, 0'); self.p(f's_cbranch_scc1 {Ls_}')
            self.p('s_mov_b64 exec, 1')
            if fl == 'mode':
                L1, L2 = self.p.label('Lm'), self.p.label('Lm')
                self.p(f's_cmp_eq_u32 {sMode}, 0'); self.p(f's_cbranch_scc1 {L1}')
                self.vmem(f'buffer_store_dwordx2 {vr(mc,2)}, {vLane}, {srd("WS")}, {sOS0} offen sc1', optional=True)
                self.p(f's_branch {L2}')
                self.p(f'{L1}:')
                self.vmem(f'buffer_store_dwordx2 {vr(mc,2)}, {vLane}, {srd("WS")}, {sOS0} offen', optional=True)
                self.p(f'{L2}:')
            else:
                self.vmem(f'buffer_store_dwordx2 {vr(mc,2)}, {vLane}, {srd("WS")}, {sOS} offen {fl}', optional=True)
            self.p('s_mov_b64 exec, -1')
            self.p(f'{Ls_}:')
        ops.append(st)
        return ops

    def run_op(self, o):
        if o is None: return
        if callable(o): o()
        else: self.p(o)

    def pv(self, extras, layer0, hooks={}):
        p = self.p
        P = T + 4
        Da, Db = ACC, ACC + 4
        def build(pp):
            return [f'v_mov_b32_dpp v{PA+4*(pp&1)+t}, v{P} row_newbcast:{pp} row_mask:0xf bank_mask:{1<<t:#x}' for t in range(4)]
        def perms(pp):
            A, Bq, o = VB + 2 + 8 * pp, VB + 6 + 8 * pp, VB + 8 * pp
            seq = [(0, 0), (0, 1), (1, 0), (1, 1), (3, 0), (3, 1), (2, 1), (2, 0)]
            return [f'v_perm_b32 v{o+2*dp+hi}, v{Bq+dp}, v{A+dp}, {sHi if hi else sLo}' for dp, hi in seq]
        extras = list(extras)
        for s in build(0): p(s)
        for pp in range(16):
            nb = build(pp + 1) if pp < 15 else []
            if pp in hooks: hooks[pp]()
            if layer0:
                self.wait(f'V{2*pp+1}')
                for s in perms(pp): p(s)
            c = '0' if pp == 0 else None
            p(f'{MFMA} {vr(Da,4)}, {vr(PA+4*(pp&1),4)}, {vr(VB+8*pp,4)}, {c or vr(Da,4)}')
            for s in nb[:3]: p(s)
            p(f'{MFMA} {vr(Db,4)}, {vr(PA+4*(pp&1),4)}, {vr(VB+8*pp+4,4)}, {c or vr(Db,4)}')
            for s in nb[3:]: p(s)
            for _ in range(2):
                if extras: self.run_op(extras.pop(0))
        for o in extras: self.run_op(o)

    def reduce_publish(self, y, kind, soff, ldsoff):
        p = self.p
        if kind == 'o':
            for k in range(4): p(f'v_permlane16_swap_b32 v{y+k}, v{y+4+k}')
            p(f'v_pk_add_f32 {vr(y,2)}, {vr(y,2)}, {vr(y+4,2)}')
            p(f'v_pk_add_f32 {vr(y+2,2)}, {vr(y+2,2)}, {vr(y+6,2)}')
        p(f'ds_write_b128 {lRW if kind == "o" else lRW2}, {vr(y,4)} offset:{ldsoff}')
        p(f's_cmp_lg_u32 {sW}, 0')
        self.lgkm(0)
        if self.o.stamps: p(f's_cmp_lg_u32 {sW}, 0')
        p('s_barrier')
        Ls = p.label('Lsk')
        p(f's_cbranch_scc1 {Ls}')
        for k in range(4):
            p(f'ds_read_b128 {vr(ACC+4*k,4)}, {lRR} offset:{ldsoff+512*k}')
        p('s_mov_b32 exec_hi, 0')
        self.lgkm(2)
        p(f'v_pk_add_f32 {vr(ACC,2)}, {vr(ACC,2)}, {vr(ACC+4,2)}')
        p(f'v_pk_add_f32 {vr(ACC+2,2)}, {vr(ACC+2,2)}, {vr(ACC+6,2)}')
        self.lgkm(0)
        p(f'v_pk_add_f32 {vr(ACC+8,2)}, {vr(ACC+8,2)}, {vr(ACC+12,2)}')
        p(f'v_pk_add_f32 {vr(ACC+10,2)}, {vr(ACC+10,2)}, {vr(ACC+14,2)}')
        p(f'v_pk_add_f32 {vr(ACC,2)}, {vr(ACC,2)}, {vr(ACC+8,2)}')
        p(f'v_pk_add_f32 {vr(ACC+2,2)}, {vr(ACC+2,2)}, {vr(ACC+10,2)}')
        for k in range(4):
            p(f'v_add_f32_dpp v{ACC+k}, v{ACC+k}, v{ACC+k} row_ror:8 {DF}')
        p('s_mov_b32 exec_lo, 0x00ff00ff')
        self.vmem(f'buffer_store_dwordx4 {vr(ACC,4)}, {vXW}, {srd("WS")}, {soff} offen sc1', optional=True)
        p('s_mov_b64 exec, -1')
        p(f'{Ls}:')

    def x16(self, soff, pd=0):
        if self.o.xs: return self.x16s(soff)
        p = self.p
        Y = T
        for _ in range(self.o.x8delay): p('s_nop 15')
        Lp = p.label('Lp')
        p(f'{Lp}:')
        self.vmem(f'buffer_load_dwordx4 {vr(Y,4)}, {vXR}, {srd("WS")}, {soff} offen sc1', optional=True)
        self.vmem(f'buffer_load_dwordx4 {vr(Y+4,4)}, {vXR}, {srd("WS")}, {soff} offen offset:1024 sc1', optional=True)
        p('s_waitcnt vmcnt(0)')
        p(f'v_pk_add_f32 {vr(Y,2)}, {vr(Y,2)}, {vr(Y+4,2)}')
        p(f'v_pk_add_f32 {vr(Y+2,2)}, {vr(Y+2,2)}, {vr(Y+6,2)}')
        for c in ('quad_perm:[1,0,3,2]', 'quad_perm:[2,3,0,1]', 'row_half_mirror'):
            for k in range(4):
                p(f'v_add_f32_dpp v{Y+k}, v{Y+k}, v{Y+k} {c} {DF}')
        p(f'v_pk_add_f32 {vr(Y,2)}, {vr(Y,2)}, {vr(XR,2)}')
        p(f'v_pk_add_f32 {vr(Y+2,2)}, {vr(Y+2,2)}, {vr(XR+2,2)}')
        p(f'v_cvt_pk_bf16_f32 v{XA}, v{Y}, v{Y+1}')
        p(f'v_cvt_pk_bf16_f32 v{XA+1}, v{Y+2}, v{Y+3}')
        p(f'v_pk_add_f32 {vr(Y,2)}, {vr(Y,2)}, {vr(Y+2,2)}')
        p(f'v_cmp_u_f32 vcc, v{Y}, v{Y+1}')
        self.build_xa()
        Lok = p.label('Lok')
        Lr = self.retry(Lp, Lok, extra=['s_nop 15'] * pd)
        p(f's_cbranch_vccnz {Lr}')
        p(f'{Lok}:')

    def x16s(self, soff):
        p = self.p
        ND = self.o.xs
        Y = ACC
        lw, lr = T + 8, T + 9
        def ld(k): self.vmem(f'buffer_load_dwordx2 {vr(T+2*k,2)}, {vXR}, {srd("WS")}, {soff} offen sc1', optional=True)
        ld(0)
        p(f'v_lshrrev_b32 v{lw}, 4, v0'); p(f'v_mul_u32_u24 v{lw}, 16, v{lw}'); p(f'v_lshl_add_u32 v{lw}, v0, 3, v{lw}')
        p(f's_mul_i32 {sT}, {sW}, 576'); p(f's_add_u32 {sT}, {sT}, {L_X}'); p(f'v_add_u32 v{lw}, {sT}, v{lw}')
        p(f'v_and_b32 v{lr}, 7, v0'); p(f'v_mul_u32_u24 v{lr}, 142, v{lr}'); p(f'v_lshl_add_u32 v{lr}, v0, 1, v{lr}')
        for k in range(1, ND - 1):
            for _ in range(self.o.xgap): p('s_nop 15')
            ld(k)
        if ND > 1:
            for _ in range(self.o.xgap): p('s_nop 15')
        Lp, Lj = p.label('Lp'), p.label('Lj')
        Ld = [p.label('Ld') for _ in range(ND)]
        if ND == 1:
            p(f's_branch {Lp}w')
        p(f'{Lp}:')
        for k in range(ND):
            ld((k - 1) % ND)
            if ND == 1: p(f'{Lp}w:')
            p(f's_waitcnt vmcnt({ND - 1})')
            p(f'v_cmp_u_f32 vcc, v{T+2*k}, v{T+2*k+1}')
            p(f's_cbranch_vccz {Ld[k]}')
        p(f's_sub_u32 {sBud}, {sBud}, 1'); p(f's_cbranch_scc0 {Lp}')
        p(f's_mov_b32 {sBud}, 0')
        for k in range(1, ND):
            self.ool.append([f'{Ld[k]}:', f'ds_write_b64 v{lw}, {vr(T+2*k,2)}', f's_branch {Lj}'])
        p(f'{Ld[0]}:')
        p(f'ds_write_b64 v{lw}, {vr(T,2)}')
        p(f'{Lj}:')
        p('s_waitcnt lgkmcnt(0)')
        p('s_barrier')
        p(f'ds_read_b128 {vr(Y,4)}, v{lr} offset:{L_X}')
        p(f'ds_read_b128 {vr(Y+4,4)}, v{lr} offset:{L_X+1152}')
        p('s_waitcnt lgkmcnt(0)')
        p(f'v_pk_add_f32 {vr(Y,2)}, {vr(Y,2)}, {vr(Y+4,2)}')
        p(f'v_pk_add_f32 {vr(Y+2,2)}, {vr(Y+2,2)}, {vr(Y+6,2)}')
        for c in ('quad_perm:[1,0,3,2]', 'quad_perm:[2,3,0,1]', 'row_half_mirror'):
            for k in range(4):
                p(f'v_add_f32_dpp v{Y+k}, v{Y+k}, v{Y+k} {c} {DF}')
        p(f'v_pk_add_f32 {vr(Y,2)}, {vr(Y,2)}, {vr(XR,2)}')
        p(f'v_pk_add_f32 {vr(Y+2,2)}, {vr(Y+2,2)}, {vr(XR+2,2)}')
        p(f'v_cvt_pk_bf16_f32 v{XA}, v{Y}, v{Y+1}')
        p(f'v_cvt_pk_bf16_f32 v{XA+1}, v{Y+2}, v{Y+3}')
        self.build_xa()

    def oa2a(self, pd=0):
        p = self.p
        AO = T
        ml = T + 4
        M, f, Lq, ck = T + 6, T + 7, T + 8, T + 9
        y = T + 12
        Lp = p.label('Lp')
        p(f'{Lp}:')
        self.vmem(f'buffer_load_dwordx2 {vr(ml,2)}, {vOSR}, {srd("WS")}, {sL} offen sc1', optional=True)
        self.vmem(f'buffer_load_dwordx4 {vr(AO,4)}, {vOR}, {srd("WS")}, {sL} offen sc1', optional=True)
        p('s_waitcnt vmcnt(0)')
        Lok = p.label('Lok')
        Lr = self.retry(Lp, Lok, extra=['s_nop 15'] * pd)
        chk = [f'v_max3_u32 v{ck}, v{AO}, v{AO+1}, v{AO+2}', f'v_max3_u32 v{ck}, v{ck}, v{AO+3}, v{ml}',
               f'v_max_u32 v{ck}, v{ck}, v{ml+1}', f'v_cmp_eq_u32 vcc, -1, v{ck}']
        sc = [f'v_max_f32_dpp v{M}, v{ml}, v{ml} quad_perm:[1,0,3,2] {DF}',
              f'v_max_f32_dpp v{M}, v{M}, v{M} quad_perm:[2,3,0,1] {DF}',
              f'v_max_f32_dpp v{M}, v{M}, v{M} row_half_mirror {DF}',
              f'v_sub_f32 v{f}, v{ml}, v{M}', f'v_exp_f32 v{f}, v{f}',
              f'v_mul_f32 v{Lq}, v{f}, v{ml+1}',
              f'v_add_f32_dpp v{Lq}, v{Lq}, v{Lq} quad_perm:[1,0,3,2] {DF}',
              f'v_add_f32_dpp v{Lq}, v{Lq}, v{Lq} quad_perm:[2,3,0,1] {DF}',
              f'v_add_f32_dpp v{Lq}, v{Lq}, v{Lq} row_half_mirror {DF}',
              f'v_rcp_f32 v{Lq}, v{Lq}', f'v_mul_f32 v{f}, v{f}, v{Lq}']
        mf = [f'{MFMA} {vr(ACC+4*d,4)}, {vr(AO,4)}, {ar(aWO+4*d,4)}, 0' for d in range(8)]
        p(mf[0]); p(chk[0]); p(chk[1]); p(sc[0])
        p(mf[1]); p(chk[2]); p(chk[3]); p(sc[1])
        p(mf[2])
        p(f's_cbranch_vccnz {Lr}')
        p(f'{Lok}:')
        p(sc[2])
        p(mf[3]); p(sc[3]); p(sc[4])
        p(mf[4]); p(sc[5])
        p(mf[5]); p(sc[6])
        p(mf[6]); p(sc[7])
        p(mf[7]); p(sc[8]); p(sc[9]); p(sc[10])
        for r in range(4):
            for d in range(8):
                op = 'v_mul_f32_dpp' if r == 0 else 'v_fmac_f32_dpp'
                p(f'{op} v{y+d}, v{f}, v{ACC+4*d+r} row_newbcast:{r} {DF}')
        self.reduce_publish(y, 'o', sL, 0)

    def gather_stats(self, va, va3, off, second):
        p = self.p
        s4 = ACC + 12
        u, st, mean, sc = T, T + 1, T + 2, T + 3
        Lp = p.label('Lp')
        p(f'{Lp}:')
        self.vmem(f'buffer_load_dwordx4 {vr(s4,4)}, {vSR}, {srd("WS")}, {sL} offen offset:{off} sc1', optional=True)
        for s_ in self.g3_list(ACC, va, va3, sL): self.vmem(s_, optional=True)
        p('s_waitcnt vmcnt(3)')
        so = self.stats_ops(s4, st, mean, sc, second)
        for s_ in so[:2]: p(s_)
        p('s_waitcnt vmcnt(0)')
        self.merge(self.g3_sum(ACC, f'v{u}'), so[2:])
        return Lp, u, st, mean, sc

    def ha2a(self):
        p = self.p
        Lp, u, st, mean, sc = self.gather_stats(vHR, vHR3, 256, True)
        t1_, e = T + 4, T + 5
        A = T + 8
        y = T + 12
        Lok = p.label('Lok')
        Lr = self.retry(Lp, Lok)
        c0 = -2.0 * math.sqrt(2.0 / math.pi) * math.log2(math.e)
        c1 = c0 * 0.044715
        p(f'v_fma_f32 v{u}, -v{mean}, {CS1}, v{u}')
        p(f'v_fma_f32 v{u}, v{u}, v{sc}, {B1v}')
        p(f'v_mul_f32 v{t1_}, v{u}, v{u}')
        p(f'v_cmp_u_f32 vcc, v{u}, v{st}')
        p(f'v_mul_f32 v{t1_}, {H(f2u(c1))}, v{t1_}')
        p(f'v_add_f32 v{t1_}, {H(f2u(c0))}, v{t1_}')
        p(f's_cbranch_vccnz {Lr}')
        p(f'{Lok}:')
        p(f'v_mul_f32 v{t1_}, v{t1_}, v{u}')
        p(f'v_exp_f32 v{e}, v{t1_}')
        p(f'v_add_f32 v{e}, 1.0, v{e}')
        p(f'v_rcp_f32 v{e}, v{e}')
        p(f'v_mul_f32 v{u}, v{u}, v{e}')
        p(f'v_cvt_pk_bf16_f32 v{u}, v{u}, v{u}')
        for k in range(4):
            p(f'v_and_b32 v{A+k}, v{u}, v{MK+k}')
        for d in range(4):
            p(f'{MFMA} {vr(ACC+4*d,4)}, {vr(A,4)}, {ar(aW2+4*d,4)}, 0')
        for d in range(4):
            p(f'v_pk_add_f32 {vr(ACC+4*d,2)}, {vr(ACC+4*d,2)}, {vr(ACC+4*d+2,2)}')
            p(f'v_add_f32 v{y+d}, v{ACC+4*d}, v{ACC+4*d+1}')
        self.reduce_publish(y, 'h', sLM, 2048)

    def combine(self, fl):
        p = self.p
        f = T + 5
        p(f'v_mul_f32_dpp v{T}, v{f}, v{ACC} quad_perm:[0,0,0,0] {DF}')
        p(f'v_mul_f32_dpp v{T+1}, v{f}, v{ACC+4} quad_perm:[0,0,0,0] {DF}')
        p(f'ds_write2_b32 {lOW}, v{T}, v{T+1} offset0:0 offset1:64')
        p(f's_cmp_lg_u32 {sW}, 0')
        self.lgkm(0)
        if self.o.stamps: p(f's_cmp_lg_u32 {sW}, 0')
        p('s_barrier')
        Ls = p.label('Lsk')
        p(f's_cbranch_scc1 {Ls}')
        p(f'ds_read2_b64 {vr(ACC,4)}, {lOR} offset0:0 offset1:64')
        p(f'ds_read2_b64 {vr(ACC+4,4)}, {lOR} offset0:128 offset1:192')
        self.lgkm(1)
        p(f'v_pk_add_f32 {vr(ACC,2)}, {vr(ACC,2)}, {vr(ACC+2,2)}')
        self.lgkm(0)
        p(f'v_pk_add_f32 {vr(ACC+4,2)}, {vr(ACC+4,2)}, {vr(ACC+6,2)}')
        p(f'v_pk_add_f32 {vr(ACC,2)}, {vr(ACC,2)}, {vr(ACC+4,2)}')
        p(f'v_cvt_pk_bf16_f32 v{ACC}, v{ACC}, v{ACC+1}')
        self.vmem(f'buffer_store_dword v{ACC}, {vOW}, {srd("WS")}, {sL} offen {fl}', optional=True)
        p(f'{Ls}:')

    def set_layer(self, off):
        p = self.p
        p(f's_mov_b32 {sL}, {H(off)}')
        p(f's_add_u32 {sOS}, {sOS0}, {H(off)}')
        p(f's_mov_b32 {sLM}, {H(off + XMo - XAo)}')

    def finish(self):
        p = self.p
        if self.o.stamps:
            self.stamp(31)
            self.flush()
            p(f'v_writelane_b32 {vSTAMP}, {sBud}, 33')
            p(f's_memtime s[{sSTAMP}:{sSTAMP+1}]'); p('s_waitcnt lgkmcnt(0)')
            p(f'v_writelane_b32 {vSTAMP}, s{sSTAMP}, 35')
            Le = p.label('Lend')
            p(f's_cmp_lg_u32 {sW}, 0'); p(f's_cbranch_scc1 {Le}')
            p(f's_lshl_b32 {sT}, s2, 8'); p(f's_add_u32 {sT}, {sT}, 0x8000000')
            p(f'v_lshlrev_b32 v{T}, 2, {vLane}')
            p(f'buffer_store_dword {vSTAMP}, v{T}, {srd("WS")}, {sT} offen')
            p(f'{Le}:')
        p('s_endpgm')

    def chain(self, A, B, fast, name):
        p = self.p
        o = self.o
        fl = '' if fast else 'sc1'
        vm0, tags0 = self.vm, dict(self.tags)
        p(f'{name}:')
        TB = ACC
        FL = vR
        for layer in range(2):
            def stp(k): self.stamp(8 + 10 * layer + k)
            stp(2)
            self.combine(fl)
            stp(3)
            if layer == 0:
                for k, f in self.rest: f()
                self.wait('FL2')
                Lfp, Lfok, Lfc = p.label('Lfp'), p.label('Lfok'), p.label('Lfc')
                self.flush()
                p(f'{Lfc}:')
                p(f'v_and_b32 v{t0}, 0x80808080, v{FL}')
                p(f'v_cmp_ne_u32 vcc, 0x80808080, v{t0}')
                Lr = self.retry(Lfp, Lfok)
                self.ool.append([f'{Lfp}:', f'buffer_load_dword v{FL}, v{T+15}, {srd("DBG")}, 0 offen sc1',
                                 's_waitcnt vmcnt(0)', f's_branch {Lfc}'])
                p(f's_cbranch_vccnz {Lr}')
                p(f'{Lfok}:')
            if B:
                self.oa2a(o.pdo if layer == 0 else 0)
                stp(4)
                if layer == 0:
                    for k, f in self.rest2: f()
            if A and layer == 0:
                self.wait('W1')
                self.transpose(aW1, 2, TB, TB + 16)
                p(f's_mov_b32 {sT2}, {H(CSL)}')
                self.w1(XB, sT2, fl, False, False)
            c1l = [f's_mov_b32 {sT2}, {H(CSL)}'] + self.g3_list(aC1, vHR, vHR3, sT2, acc=True)
            cql = [f's_mov_b32 {sT2}, {H(CSL)}'] + self.g3_list(aCQ, vQR, vQR3, sT2, acc=True)
            def w2fix():
                self.wait('W2')
                p(f'v_accvgpr_read_b32 {B1v}, a{aB1}'); p(f'v_lshlrev_b32 {B1v}, 16, {B1v}')
                self.transpose(aW2, 2, TB, TB + 16)
            if B and layer == 0 and (not A or not o.w2late):
                w2fix()
                if not A:
                    for s_ in c1l: p(s_)
            if A and B and layer == 0 and o.abc1 == 1:
                for s_ in c1l: p(s_)
            if A:
                self.x16(sL, o.pdx if layer == 0 else 0)
                stp(5)
                if B and layer == 0 and o.abc1 == 2:
                    for s_ in c1l: p(s_)
                self.w1(XA, sL, fl, True, False, post=self.unpack_xr(True))
                stp(6)
                if layer == 0 and not B:
                    for s_ in cql: p(s_)
            if B:
                if layer == 0:
                    if A:
                        if not o.abc1:
                            for s_ in c1l: p(s_)
                        if o.w2late: w2fix()
                    self.flush()
                    Lc1, Lcp, Lcok = p.label('Lc'), p.label('Lcp'), p.label('Lcok')
                    p(f'{Lc1}:')
                    p('s_waitcnt vmcnt(0)')
                    for k in range(12): p(f'v_accvgpr_read_b32 v{ACC+k}, a{aC1+k}')
                    for s_ in self.g3_sum(ACC, CS1): p(s_)
                    p(f'v_cmp_u_f32 vcc, {CS1}, {CS1}')
                    Lr = self.retry(Lcp, Lcok)
                    self.ool.append([f'{Lcp}:'] + c1l + [f's_branch {Lc1}'])
                    p(f's_cbranch_vccnz {Lr}')
                    p(f'{Lcok}:')
                self.ha2a()
                stp(7)
                if layer == 0:
                    for s_ in cql: p(s_)
            if layer == 1:
                if A:
                    Lf = p.label('Lfin')
                    self.flush()
                    p(f's_or_b32 {sT}, {sX}, {sW}' if not o.xs else f's_mov_b32 {sT}, {sX}')
                    p(f's_cmp_lg_u32 {sT}, 0'); p(f's_cbranch_scc1 {Lf}')
                    self.x16(sLM)
                    if o.xs: p(f's_cmp_lg_u32 {sW}, 0'); p(f's_cbranch_scc1 {Lf}')
                    p(f's_mov_b64 exec, s[{sMF}:{sMF+1}]')
                    p(f's_lshl_b32 {sT}, {sIA}, 6')
                    p(f'buffer_store_dwordx2 {vr(XA,2)}, {vLane}, {srd("OUT")}, {sT} offen')
                    p('s_mov_b64 exec, -1')
                    p(f'{Lf}:')
                self.finish()
                break
            def cqfix():
                p('s_waitcnt vmcnt(0)')
                for k in range(12): p(f'v_accvgpr_read_b32 v{ACC+k}, a{aCQ+k}')
                for s_ in self.g3_sum(ACC, CSQ): p(s_)
            cqfix()
            if A:
                self.x16(sLM)
                stp(8)
            self.set_layer(LSTR)
            if A:
                self.qp(XA, sL, fl, True, False, post=self.unpack_xr(False))
                stp(9)
            Lp, u, st, mean, sc = self.gather_stats(vQR, vQR3, 0, False)
            self.q_finish(u, st, mean, sc, Lp)
            stp(10)
            self.flush()
            self.qk_softmax()
            stp(11)
            self.pv(self.ml_ops(fl), False)
            self.flush()
        for code in self.ool:
            for s_ in code: p(s_)
        self.ool = []
        self.vm, self.tags = vm0, tags0

    def kload(self, mb):
        self.vmem(f'buffer_load_dwordx4 {ar(4*mb,4)}, {vK}, {srd("K")}, s{sKV+(mb>>2)} offen offset:{1024*(mb&3)} nt', tag=f'K{mb}')
    def vload(self, mb):
        assert self.vfree, 'V area still in use'
        self.vmem(f'buffer_load_dwordx4 {vr(VB+2+4*mb,4)}, {a16}, {srd("V")}, s{sKV+(mb>>2)} offen offset:{1024*(mb&3)} nt', tag=f'V{mb}')

    def pfcode(self, lo, hi, track=True):
        p = self.p
        L = p.label('Lpc')
        n = SRD['X']
        Ls = p.label('Lpcs')
        if self.o.pfsel:
            track = False
            p(f's_and_b32 {sT}, {sC}, 7'); p(f's_cmp_lg_u32 {sT}, 5'); p(f's_cbranch_scc1 {Ls}')
        p(f's_getpc_b64 s[{n}:{n+1}]')
        p(f'{L}:')
        p(f's_add_u32 s{n}, s{n}, {lo}-{L}'); p(f's_addc_u32 s{n+1}, s{n+1}, {0 if self.fwd else -1}')
        p(f's_mov_b32 s{n+2}, {hi}-{lo}')
        p(f'v_lshlrev_b32 v{t2}, 7, v0'); p(f's_lshl_b32 {sT}, {sW}, 13')
        self.vmem(f'buffer_load_dword a{aCQ+11}, v{t2}, {srd("X")}, {sT} offen', optional=not track)
        p(f'{Ls}:')

    def head(self):
        p = self.p
        o = self.o
        p('s_cmp_ge_u32 s2, 256'); p('s_cbranch_scc1 L_exit')
        p(f's_load_dwordx16 s[{KA}:{KA+15}], s[0:1], 0')
        p(f's_load_dwordx2 s[{SRD["WS"]}:{SRD["WS"]+1}], s[0:1], {KOFF["WS"]}')
        if o.stamps:
            p('s_memrealtime s[96:97]')
            p('s_memtime s[98:99]')
        p('v_lshrrev_b32 v1, 6, v0')
        p('v_and_b32 v0, 63, v0')
        p(f'v_readfirstlane_b32 {sW}, v1')
        p(f's_and_b32 {sX}, s2, 7'); p(f's_lshr_b32 {sC}, s2, 3'); p(f's_and_b32 {sJ}, {sC}, 3'); p(f's_lshr_b32 {sS}, {sC}, 2')
        for n in SRD:
            p(f's_mov_b32 s{SRD[n]+2}, {H(SIZE[n])}'); p(f's_mov_b32 s{SRD[n]+3}, 0x00020000')
        for k in range(4): p(f'v_mov_b32 v{SN+k}, -1')
        p(f'v_lshlrev_b32 {a16}, 4, v0')
        p(f'v_and_b32 v{vR}, 15, v0'); p(f'v_lshrrev_b32 v{vG}, 4, v0')
        p(f's_mul_i32 {sBX}, {sX}, {H(GB)}')
        p(f's_lshl_b32 {sT}, {sX}, 2'); p(f's_add_u32 {sT}, {sT}, {sJ}')
        p(f's_lshl_b32 s{sKV}, {sT}, 20')
        p(f's_lshl_b32 {sT}, {sS}, 17'); p(f's_add_u32 s{sKV}, s{sKV}, {sT}')
        p(f's_lshl_b32 {sT}, {sW}, 12'); p(f's_add_u32 s{sKV}, s{sKV}, {sT}')
        for k in range(1, 8): p(f's_add_u32 s{sKV+k}, s{sKV}, {16384*k}')
        p(f'v_bfe_u32 v{t1}, v0, 2, 2'); p(f'v_lshlrev_b32 {vK}, 8, v{t1}')
        p(f'v_lshl_add_u32 {vK}, v{vG}, 6, {vK}')
        p(f'v_and_b32 v{t1}, 3, v0'); p(f'v_lshl_add_u32 {vK}, v{t1}, 4, {vK}')
        p(f's_mov_b32 {sIA}, {sC}'); p(f's_sub_u32 {sIB}, {sC}, 12')
        p(f'v_and_b32 v{t0}, 1, v{vG}'); p(f'v_lshrrev_b32 v{vD}, 1, v{vG}'); p(f'v_lshl_add_u32 v{vD}, v{t0}, 1, v{vD}')
        p(f's_mov_b32 {sLo}, 0x05040100'); p(f's_mov_b32 {sHi}, 0x07060302')
        p(f's_cmp_lt_u32 {sC}, 12'); p('s_cbranch_scc1 L_roleA')
        p(f's_cmp_lt_u32 {sC}, 20'); p('s_cbranch_scc1 L_roleAB')
        p('s_branch L_roleB')
        p('L_exit:')
        p('s_endpgm')

    def common_addr(self):
        p = self.p
        p(f's_mov_b32 {sBud}, 100000')
        for b in range(4):
            p(f's_mov_b32 s{sMB+2*b}, {H(0x11111111 << b)}'); p(f's_mov_b32 s{sMB+2*b+1}, {H(0x11111111 << b)}')
        p(f's_mov_b32 s{sMF}, 0x01010101'); p(f's_mov_b32 s{sMF+1}, 0x01010101')
        p(f's_lshl_b32 {sT}, {sJ}, 3'); p(f's_add_u32 {sT}, {sT}, {sS}')
        p(f's_lshl_b32 {sT2}, {sT}, 8'); p(f's_add_u32 {sT2}, {sT2}, {sBX}'); p(f's_add_u32 {sT2}, {sT2}, {H(OP)}')
        p(f'v_lshlrev_b32 {vOW}, 2, v0'); p(f'v_add_u32 {vOW}, {sT2}, {vOW}')
        p(f's_lshl_b32 {sOS0}, {sT}, 3'); p(f's_add_u32 {sOS0}, {sOS0}, {sBX}'); p(f's_add_u32 {sOS0}, {sOS0}, {H(OS)}')
        p(f's_mul_i32 {sT}, {sJ}, 0x2800'); p(f's_mul_i32 {sT2}, {sW}, 2560'); p(f's_add_u32 {sT}, {sT}, {sT2}'); p(f's_add_u32 {sT}, {sT}, {sBX}')
        p(f'v_add_u32 {vQR}, {sT}, {a16}')
        p(f'v_mov_b32 v{t1}, {H(OOB)}')
        p(f'v_cmp_gt_u32 vcc, 32, v0'); p(f'v_cndmask_b32 {vQR3}, v{t1}, {vQR}, vcc')
        p(f'v_and_b32 v{t0}, 1, v{vR}'); p(f'v_mul_u32_u24 v{t0}, 80, v{t0}')
        p(f'v_lshrrev_b32 v{t2}, 1, v{vR}'); p(f'v_lshl_add_u32 v{t0}, v{t2}, 4, v{t0}')
        p(f'v_cmp_gt_u32 vcc, 10, v{vR}'); p(f'v_cndmask_b32 v{t0}, v{t1}, v{t0}, vcc')
        p(f's_lshl_b32 {sT}, {sW}, 9'); p(f's_add_u32 {sT}, {sT}, {sBX}'); p(f's_add_u32 {sT}, {sT}, {H(ST)}'); p(f'v_add_u32 {vSR}, {sT}, v{t0}')
        p(f'v_and_b32 v{t0}, 7, v0'); p(f'v_lshl_add_u32 v{t0}, v{t0}, 2, v{vD}'); p(f's_lshl_b32 {sT}, {sW}, 5'); p(f'v_add_u32 v{t0}, {sT}, v{t0}')
        p(f'v_lshlrev_b32 {lQW}, 1, v{t0}')
        p(f'v_lshrrev_b32 v{t0}, 2, v0'); p(f'v_lshlrev_b32 {lQR}, 4, v{t0}')
        p(f'v_lshlrev_b32 {lMW}, 3, v0'); p(f'v_add_u32 {lMW}, {L_J1}, {lMW}')
        p(f's_lshl_b32 {sT}, {sW}, 3'); p(f's_add_u32 {sT}, {sT}, {L_ML}'); p(f'v_writelane_b32 {lMW}, {sT}, 63')
        p(f'v_add_u32 v{t0}, {sW}, v0'); p(f'v_and_b32 v{t0}, 3, v{t0}'); p(f'v_lshlrev_b32 v{t0}, 3, v{t0}'); p(f'v_add_u32 {lMR}, {L_ML}, v{t0}')
        p(f's_lshl_b32 {sT}, {sW}, 9'); p(f's_add_u32 {sT}, {sT}, {L_O}'); p(f'v_lshlrev_b32 {lOW}, 2, v0'); p(f'v_add_u32 {lOW}, {sT}, {lOW}')
        p(f'v_lshlrev_b32 {lOR}, 3, v0'); p(f'v_add_u32 {lOR}, {L_O}, {lOR}')
        p(f'v_mov_b32 {vC}, {H(f2u(CSC))}')
        for k in range(24): p(f'v_mov_b32 v{BQ+k}, 0')
        p(f'v_lshlrev_b32 v{T+15}, 2, v0'); p(f'v_and_b32 v{T+14}, 28, v{T+15}')

    def addrB(self):
        p = self.p
        sHF, sCB = sL, sLM
        p(f's_and_b32 {sHF}, {sIB}, 1'); p(f's_lshr_b32 {sCB}, {sIB}, 1')
        p(f'v_and_b32 v{t0}, 1, v{vG}'); p(f'v_lshlrev_b32 {vXW}, 11, v{t0}')
        p(f'v_and_b32 v{t0}, 7, v0'); p(f'v_lshl_add_u32 {vXW}, v{t0}, 4, {vXW}')
        p(f's_lshl_b32 {sT}, {sCB}, 12'); p(f's_lshl_b32 {sT2}, {sX}, 8'); p(f's_add_u32 {sT}, {sT}, {sT2}')
        p(f's_lshl_b32 {sT2}, {sHF}, 7'); p(f's_add_u32 {sT}, {sT}, {sT2}'); p(f's_add_u32 {sT}, {sT}, {H(XAo)}')
        p(f'v_add_u32 {vXW}, {sT}, {vXW}')
        p(f's_lshr_b32 {sT3}, {sW}, 1'); p(f's_lshl_b32 {sT}, {sHF}, 1'); p(f's_add_u32 {sT3}, {sT3}, {sT}')
        p(f'v_lshlrev_b32 {vOR}, 8, v{t0}')
        p(f'v_lshrrev_b32 v{t2}, 3, v{vR}'); p(f'v_lshl_add_u32 {vOR}, v{t2}, 6, {vOR}')
        p(f'v_lshl_add_u32 {vOR}, v{vG}, 4, {vOR}')
        p(f's_lshl_b32 {sT}, {sT3}, 11'); p(f's_and_b32 {sT2}, {sW}, 1'); p(f's_lshl_b32 {sT2}, {sT2}, 7'); p(f's_add_u32 {sT}, {sT}, {sT2}')
        p(f's_add_u32 {sT}, {sT}, {sBX}'); p(f's_add_u32 {sT}, {sT}, {H(OP)}'); p(f'v_add_u32 {vOR}, {sT}, {vOR}')
        p(f'v_lshl_add_u32 v{t1}, v{vG}, 2, v{vR}'); p(f'v_and_b32 v{t1}, 7, v{t1}'); p(f'v_lshlrev_b32 v{t1}, 3, v{t1}')
        p(f's_lshl_b32 {sT}, {sT3}, 6'); p(f's_add_u32 {sT}, {sT}, {sBX}'); p(f's_add_u32 {sT}, {sT}, {H(OS)}'); p(f'v_add_u32 {vOSR}, {sT}, v{t1}')
        p(f's_lshl_b32 {sT}, {sHF}, 2'); p(f's_add_u32 {sT}, {sT}, {sW}'); p(f's_mul_i32 {sT}, {sT}, 2560')
        p(f's_add_u32 {sT}, {sT}, {sBX}'); p(f's_add_u32 {sT}, {sT}, {H(HP)}'); p(f'v_add_u32 {vHR}, {sT}, {a16}')
        p(f's_cmp_eq_u32 {sW}, 3'); p(f's_cselect_b32 {sT3}, 6, 7')
        p(f'v_mov_b32 v{t1}, {H(OOB)}')
        p(f'v_cmp_gt_u32 vcc, {sT3}, v{t0}'); p(f'v_cndmask_b32 {vHR}, v{t1}, {vHR}, vcc')
        p(f'v_cmp_gt_u32 vcc, 32, v0'); p(f'v_cndmask_b32 {vHR3}, v{t1}, {vHR}, vcc')
        p(f'v_and_b32 v{T}, 1, v0'); p(f'v_lshlrev_b32 v{T}, 4, v{T}'); p(f'v_mov_b32 v{t1}, 0xffff'); p(f'v_lshlrev_b32 v{t1}, v{T}, v{t1}')
        p(f'v_cmp_gt_u32 vcc, {sT3}, v{vR}'); p(f'v_cndmask_b32 v{t1}, 0, v{t1}, vcc')
        p(f'v_bfe_u32 v{T}, v0, 1, 2')
        for k in range(4):
            p(f'v_cmp_eq_u32 vcc, {k}, v{T}'); p(f'v_cndmask_b32 v{MK+k}, 0, v{t1}, vcc')
        p(f's_lshl_b32 {sT}, {sW}, 9'); p(f's_add_u32 {sT}, {sT}, {L_R}')
        p(f'v_and_b32 v{T}, 1, v{vG}')
        p(f'v_lshlrev_b32 {lRR}, 8, v{t2}'); p(f'v_lshl_add_u32 {lRR}, v{t0}, 4, {lRR}'); p(f'v_lshl_add_u32 {lRR}, v{T}, 7, {lRR}')
        p(f'v_add_u32 {lRR}, {L_R}, {lRR}')
        p(f'v_lshlrev_b32 {lRW}, 8, v{t2}'); p(f'v_lshl_add_u32 {lRW}, v{t0}, 5, {lRW}'); p(f'v_lshl_add_u32 {lRW}, v{T}, 4, {lRW}')
        p(f'v_add_u32 {lRW}, {sT}, {lRW}')
        p(f'v_add_u32 v{t1}, {L_J2}, {a16}')
        p(f'v_lshrrev_b32 v{T}, 1, v{vG}'); p(f'v_cmp_eq_u32 vcc, v{t2}, v{T}')
        p(f'v_cndmask_b32 {lRW}, v{t1}, {lRW}, vcc')
        p(f'v_add_u32 {lRW2}, {sT}, {a16}')
        p(f'v_cmp_gt_u32 vcc, 32, v0'); p(f'v_cndmask_b32 {lRW2}, v{t1}, {lRW2}, vcc')
        p(f'v_lshl_add_u32 v{t0}, v{t0}, 2, v{vD}'); p(f'v_lshlrev_b32 {aB1v}, 1, v{t0}')
        p(f'v_mul_u32_u24 {aW2v}, 1280, v{vD}'); p(f'v_lshl_add_u32 {aW2v}, v{vR}, 3, {aW2v}')

    def addrA(self):
        p = self.p
        p(f's_lshl_b32 {sT}, {sW}, 9'); p(f's_lshl_b32 {sT2}, {sIA}, 2'); p(f's_add_u32 {sT}, {sT}, {sT2}'); p(f's_add_u32 {sT}, {sT}, {sBX}'); p(f's_add_u32 {sT}, {sT}, {H(ST)}')
        p(f'v_mov_b32 {vSW}, {sT}'); p(f's_add_u32 {sT}, {sT}, 80'); p(f'v_writelane_b32 {vSW}, {sT}, 0')
        if self.o.xs:
            p(f'v_lshlrev_b32 {vXR}, 3, v0'); p(f's_lshl_b32 {sT}, {sW}, 9'); p(f'v_add_u32 {vXR}, {sT}, {vXR}')
        else:
            p(f'v_and_b32 v{t0}, 7, v0'); p(f'v_lshlrev_b32 {vXR}, 7, v{t0}')
            p(f'v_lshrrev_b32 v{t0}, 3, v0'); p(f'v_lshl_add_u32 {vXR}, v{t0}, 4, {vXR}')
        p(f's_lshl_b32 {sT}, {sIA}, 11'); p(f's_add_u32 {sT}, {sT}, {H(XAo)}'); p(f'v_add_u32 {vXR}, {sT}, {vXR}')
        for k in range(4): p(f'v_mov_b32 v{XB+k}, 0x3f803f80')
        p(f'v_mul_u32_u24 {aW1v}, {8*3456}, v{vG}'); p(f'v_lshl_add_u32 {aW1v}, v{vR}, 3, {aW1v}')

    def prologue(self, A, B, name):
        p = self.p
        o = self.o
        vm0, tags0 = self.vm, dict(self.tags)
        self.vfree = False
        p(f'L_role{name}:')
        sSX, sSXX = sL, sLM
        D = {'A': o.dA, 'AB': o.dAB, 'B': o.dB}[name]
        vWQ, vWO, vXs = T + 12, T + 13, T + 14
        sQ, sO, sCL = sMc, sOS, sMode
        if A:
            p(f'v_lshrrev_b32 v{t0}, 2, v{vR}'); p(f'v_mul_u32_u24 {vQW}, 2560, v{t0}')
            p(f'v_and_b32 v{t0}, 3, v{vR}'); p(f'v_lshl_add_u32 {vQW}, v{t0}, 5, {vQW}')
            p(f'v_lshl_add_u32 {vQW}, v{vG}, 4, {vQW}')
            p(f's_mul_i32 {sT}, {sW}, 0x2800'); p(f's_lshl_b32 {sT2}, {sIA}, 7'); p(f's_add_u32 {sT2}, {sT2}, {sBX}'); p(f's_add_u32 {sT}, {sT}, {sT2}')
            p(f'v_add_u32 {vQW}, {sT}, {vQW}')
            p(f's_lshl_b32 {sT}, {sW}, 4'); p(f'v_add_u32 v{t0}, {sT}, v{vR}')
            p(f'v_subrev_u32 v{t1}, 27, v{t0}')
            p(f'v_cmp_le_u32 vcc, 27, v{t0}'); p(f'v_cndmask_b32 v{t1}, v{t0}, v{t1}, vcc')
            p(f'v_cndmask_b32 v{t2}, 0, 4, vcc')
            p(f'v_mul_u32_u24 {vHW}, 37, v{t1}'); p(f'v_lshrrev_b32 {vHW}, 8, {vHW}')
            p(f'v_add_u32 v{t2}, v{t2}, {vHW}')
            p(f'v_mul_u32_u24 {vHW}, 7, {vHW}'); p(f'v_sub_u32 v{t1}, v{t1}, {vHW}')
            p(f'v_mul_u32_u24 {vHW}, 2560, v{t2}'); p(f'v_lshl_add_u32 {vHW}, v{t1}, 4, {vHW}')
            p(f's_add_u32 {sT2}, {sT2}, {H(HP)}'); p(f'v_add_u32 {vHW}, {sT2}, {vHW}')
            p(f'v_mov_b32 v{t1}, {H(OOB)}')
            p(f'v_cmp_gt_u32 vcc, 54, v{t0}'); p(f'v_cndmask_b32 {vHW}, v{t1}, {vHW}, vcc')
            p(f'v_lshlrev_b32 v{vWQ}, 16, v{vG}'); p(f'v_lshl_add_u32 v{vWQ}, v{vR}, 4, v{vWQ}')
            p(f's_lshl_b32 {sQ}, {sIA}, 18'); p(f's_lshl_b32 {sT2}, {sX}, 10'); p(f's_add_u32 {sQ}, {sQ}, {sT2}')
            p(f's_lshl_b32 {sT2}, {sW}, 8'); p(f's_add_u32 {sQ}, {sQ}, {sT2}')
            p(f'v_and_b32 v{vXs}, 0x38, v0')
        if B:
            p(f'v_and_b32 v{t0}, 1, v{vG}'); p(f'v_lshlrev_b32 v{t0}, 6, v{t0}')
            p(f'v_lshrrev_b32 v{t2}, 3, v{vR}'); p(f'v_lshl_add_u32 v{t0}, v{t2}, 1, v{t0}')
            p(f'v_lshrrev_b32 v{t1}, 1, v{vG}'); p(f'v_add_u32 v{t0}, v{t0}, v{t1}')
            p(f'v_mul_u32_u24 v{t0}, 1280, v{t0}')
            p(f'v_and_b32 v{t1}, 7, v0'); p(f'v_lshl_add_u32 v{vWO}, v{t1}, 4, v{t0}')
            p(f's_and_b32 {sT}, {sIB}, 1'); p(f's_lshl_b32 {sT}, {sT}, 1'); p(f's_lshr_b32 {sT2}, {sW}, 1'); p(f's_add_u32 {sT}, {sT}, {sT2}')
            p(f's_lshl_b32 {sT2}, {sX}, 2'); p(f's_add_u32 {sT}, {sT}, {sT2}'); p(f's_lshl_b32 {sT}, {sT}, 7')
            p(f's_and_b32 {sT2}, {sW}, 1'); p(f's_lshl_b32 {sT2}, {sT2}, 2'); p(f's_add_u32 {sT}, {sT}, {sT2}')
            p(f's_mul_i32 {sO}, {sT}, 1280'); p(f's_lshr_b32 {sT2}, {sIB}, 1'); p(f's_lshl_b32 {sT2}, {sT2}, 7'); p(f's_add_u32 {sO}, {sO}, {sT2}')
        if not A:
            p(f's_sub_u32 {sT}, {sC}, 20'); p(f's_lshl_b32 {sT}, {sT}, 2'); p(f's_add_u32 {sT3}, {sT}, {sW}')
            p(f's_lshl_b32 {sT}, {sT3}, 10')
            p(f's_add_u32 {sCL}, {sT}, {sBX}'); p(f's_add_u32 {sCL}, {sCL}, {H(OP)}')
            p(f's_mul_i32 {sT2}, {sX}, 5120'); p(f's_add_u32 {sT}, {sT}, {sT2}'); p(f's_add_u32 {sT}, {sT}, {H(XAo - 31 * 1024)}')
            p(f's_cmp_lt_u32 {sT3}, 31'); p(f's_cselect_b32 {sCL}, {sCL}, {sT}')
        p(f's_getreg_b32 {sFlag}, hwreg(HW_REG_XCC_ID)'); p(f's_and_b32 {sFlag}, {sFlag}, 15'); p(f's_or_b32 {sFlag}, {sFlag}, 0x80')
        if o.pre >= 1 and A: self.addrA()
        p('s_waitcnt lgkmcnt(0)')
        def mv(n): p(f's_mov_b64 s[{SRD[n]}:{SRD[n]+1}], s[{KA+KOFF[n]//4}:{KA+KOFF[n]//4+1}]')
        if A:
            p(f's_mov_b32 {sT2}, {H(CSL)}')
            p('s_mov_b32 exec_hi, 0')
            if 'eclr' in o.skip: p('s_mov_b64 exec, 1')
            self.vmem(f'buffer_store_dwordx4 {vr(SN,4)}, {vQW}, {srd("WS")}, 0 offen sc1', tag='CLR')
            p('s_mov_b64 exec, 0xffff')
            if 'eclr' not in o.skip: self.vmem(f'buffer_store_dwordx4 {vr(SN,4)}, {vHW}, {srd("WS")}, {sT2} offen sc1', tag='CLR')
            p('s_mov_b64 exec, -1')
            mv('X'); mv('WQ')
            p(f's_lshl_b32 {sT}, {sIA}, 6')
            self.vmem(f'buffer_load_dwordx4 {vr(XF,4)}, {a16}, {srd("X")}, 0 offen', tag='XF')
            self.vmem(f'buffer_load_dwordx4 {vr(XF+4,4)}, {a16}, {srd("X")}, 0 offen offset:1024', tag='XF')
            self.vmem(f'buffer_load_dwordx2 {vr(XA,2)}, v{vXs}, {srd("X")}, {sT} offen', tag='XF')
            for jj in range(8):
                self.vmem(f'buffer_load_dwordx4 {vr(WR+4*jj,4)}, v{vWQ}, {srd("WQ")}, {sQ} offen nt', tag='WQ')
                if jj < 7: p(f's_add_u32 {sQ}, {sQ}, 8192')
            mv('WO')
        else:
            Lnc = p.label('Lnc')
            p(f's_cmp_ge_u32 {sT3}, {0 if "eclr" in o.skip else 36}'); p(f's_cbranch_scc1 {Lnc}')
            self.vmem(f'buffer_store_dwordx4 {vr(SN,4)}, {a16}, {srd("WS")}, {sCL} offen sc1', optional=True, tag='CLR')
            p(f'{Lnc}:')
            mv('WO')
        mv('K'); mv('V')
        WOl = []
        if B:
            for jj in range(8):
                def f(jj=jj):
                    self.vmem(f'buffer_load_dwordx4 {vr(WOR+4*jj,4)}, v{vWO}, {srd("WO")}, {sO} offen nt', tag='WO')
                    if jj < 7: p(f's_add_u32 {sO}, {sO}, {8*1280}')
                WOl.append(('WO', f))
        Wl = []
        if A:
            for jj in range(8):
                def f(jj=jj):
                    if jj == 0:
                        p(f's_mul_i32 {sWA}, {sIA}, {32*3456}'); p(f's_mul_i32 {sWB}, {sX}, 432'); p(f's_add_u32 {sWA}, {sWA}, {sWB}')
                        p(f's_lshl_b32 {sWB}, {sW}, 7'); p(f's_add_u32 {sWA}, {sWA}, {sWB}')
                    else: p(f's_add_u32 {sWA}, {sWA}, 3456')
                    self.vmem(f'buffer_load_dwordx2 {ar(aW1+2*jj,2)}, {aW1v}, {srd("W1")}, {sWA} offen {o.w1nt}', tag='W1')
                Wl.append(('W', f))
        if B:
            for jj in range(8):
                def f(jj=jj):
                    if jj == 0:
                        p(f's_mul_i32 {sWA}, {sX}, 216'); p(f's_and_b32 {sWB}, {sIB}, 1'); p(f's_mul_i32 {sWB}, {sWB}, 108'); p(f's_add_u32 {sWA}, {sWA}, {sWB}')
                        p(f's_mul_i32 {sWB}, {sW}, 28'); p(f's_add_u32 {sWA}, {sWA}, {sWB}')
                        p(f's_lshl_b32 {sWB}, {sWA}, 1')
                        self.vmem(f'buffer_load_ushort a{aB1}, {aB1v}, {srd("B1")}, {sWB} offen', tag='B1')
                        p(f's_mul_i32 {sWA}, {sWA}, 1280'); p(f's_lshr_b32 {sWB}, {sIB}, 1'); p(f's_lshl_b32 {sWB}, {sWB}, 7'); p(f's_add_u32 {sWA}, {sWA}, {sWB}')
                    else: p(f's_add_u32 {sWA}, {sWA}, {4*1280}')
                    self.vmem(f'buffer_load_dwordx2 {ar(aW2+2*jj,2)}, {aW2v}, {srd("W2")}, {sWA} offen {o.w2nt}', tag='W2')
                Wl.append(('W', f))
        KV = [(f'K{m}', (lambda m=m: self.kload(m))) for m in range(32)] + [(f'V{m}', (lambda m=m: self.vload(m))) for m in range(32)]
        wi = o.wposAB if A else o.wposB
        st = KV[:wi] + WOl + KV[wi:]
        FL = vR
        i2 = [k for k, f in st].index(o.fpos2)
        st.insert(i2, ('FL2', lambda: self.vmem(f'buffer_load_dword v{FL}, v{T+15}, {srd("DBG")}, 0 offen sc1', tag='FL2')))
        if A and (not B or o.abw1) and 'w1' not in o.skip: st += Wl[:8]; Wl = Wl[8:]
        def adv(n, thr=True):
            while n > 0 and st:
                k, f = st.pop(0); f(); n -= 1
                if o.exit10 and k in KST: self.stamp(12 + KST.index(k))
                if thr and D + thr - 1 < 63: p(f's_waitcnt vmcnt({D + (thr - 1)})')
        def until(key, thr=True):
            keys = [k for k, f in st]
            if key in keys: adv(keys.index(key), thr)
        def flag():
            p(f's_lshl_b32 {sT}, {sX}, 5'); p(f's_add_u32 {sT}, {sT}, {sC}'); p(f's_lshl_b32 {sT2}, {sW}, 8'); p(f's_add_u32 {sT}, {sT}, {sT2}')
            p(f'v_mov_b32 v{t0}, {sFlag}'); p(f'v_mov_b32 v{t1}, {sT}')
            self.wait('CLR')
            p('s_waitcnt lgkmcnt(0)')
            p('s_barrier')
            p('s_mov_b64 exec, 1')
            self.vmem(f'buffer_store_byte v{t0}, v{t1}, {srd("DBG")}, 0 offen sc1', tag='FLAG')
            p('s_mov_b64 exec, -1')
            self.stamp(1)
        adv(o.n0A if A else o.n0B, False)
        mv('W1'); mv('B1')
        if o.stamps:
            p(f'v_mov_b32 {vSTAMP}, 0')
            p(f'v_writelane_b32 {vSTAMP}, s96, 0')
            p(f'v_writelane_b32 {vSTAMP}, s98, 34')
        for n in ('DBG', 'B2', 'W2', 'OUT'):
            p(f's_load_dwordx2 s[{SRD[n]}:{SRD[n]+1}], s[0:1], {KOFF[n]}')
        if A:
            if o.pre < 1: self.addrA()
            flag()
            if o.pf0: self.fwd = False; self.pfcode(f'L_role{name}', f'L_loop{name}_slow')
            adv(o.n1A, False)
            p(f's_lshl_b32 {sT}, {sIA}, 6')
            self.vmem(f'buffer_load_dwordx2 {ar(aB2,2)}, v{vXs}, {srd("B2")}, {sT} offen', tag='B2')
            self.wait('XF')
            self.stamp(8)
            p(f'v_mov_b32 v{t0}, 0'); p(f'v_mov_b32 v{t1}, 0'); p(f'v_mov_b32 v{t2}, 0x3f803f80')
            for k in range(8):
                p(f'v_dot2_f32_bf16 v{t0}, v{XF+k}, v{t2}, v{t0}')
                p(f'v_dot2_f32_bf16 v{t1}, v{XF+k}, v{XF+k}, v{t1}')
            for s in self.unpack_xr(False): p(s)
            p(f'v_permlane32_swap_b32 v{t0}, v{t1}')
            p(f'v_add_f32 v{t0}, v{t0}, v{t1}')
            for n in (1, 2, 4, 8): p(f'v_add_f32_dpp v{t0}, v{t0}, v{t0} row_ror:{n} {DF}')
            p(f'v_add_f32_dpp v{t0}, v{t0}, v{t0} row_bcast:15 row_mask:0xa bank_mask:0xf')
            p(f'v_mul_f32 v{t0}, {H(f2u(1.0 / 640))}, v{t0}')
            p(f'v_readlane_b32 {sSX}, v{t0}, 31'); p(f'v_readlane_b32 {sSXX}, v{t0}, 63')
            p(f'v_mov_b32 v{t0}, {sSX}'); p(f'v_mov_b32 v{t1}, {sSXX}')
            p(f'v_fma_f32 v{t1}, -v{t0}, v{t0}, v{t1}'); p(f'v_max_f32 v{t1}, 0, v{t1}')
            p(f'v_add_f32 v{t1}, {H(f2u(EPS))}, v{t1}'); p(f'v_rsq_f32 v{t1}, v{t1}')
            p(f'v_mul_f32 v{t0}, v{t0}, v{t1}')
            for k in range(4): p(f'v_fma_f32 v{T+k}, v{XR+k}, v{t1}, -v{t0}')
            p(f'v_cvt_pk_bf16_f32 v{XA}, v{T}, v{T+1}'); p(f'v_cvt_pk_bf16_f32 v{XA+1}, v{T+2}, v{T+3}')
            self.build_xa()
            adv(o.n2, False)
            self.stamp(29)
            self.wait('WQ')
            self.stamp(9)
            def pre(d):
                dp, hi = d >> 1, d & 1
                return [f'v_perm_b32 v{WT+4*d+tau}, v{WR+(2*tau+1)*4+dp}, v{WR+(2*tau)*4+dp}, {sHi if hi else sLo}' for tau in range(4)]
            self.qp(XA, '0', 'sc1', False, True, wv=WT, pre=pre)
            self.stamp(2)
            adv(2, False)
            p(f's_mov_b32 {sT2}, {H(CSL)}')
            if 'cq' not in o.skip: self.qp(XB, sT2, 'sc1', False, True, wv=WT, tag='CQ')
            adv(1, True)
            for k in range(32): p(f'v_accvgpr_write_b32 a{aWQ+k}, v{WT+k}')
            adv(1, True)
            self.common_addr()
            self.wait('B2')
            p(f'v_accvgpr_read_b32 v{t0}, a{aB2}'); p(f'v_accvgpr_read_b32 v{t1}, a{aB2+1}')
            p(f'v_lshlrev_b32 v{B2}, 16, v{t0}'); p(f'v_and_b32 v{B2+1}, 0xffff0000, v{t0}')
            p(f'v_lshlrev_b32 v{B2+2}, 16, v{t1}'); p(f'v_and_b32 v{B2+3}, 0xffff0000, v{t1}')
            adv(2, True)
            if B:
                self.addrB()
        else:
            flag()
            if o.pf0: self.fwd = False; self.pfcode(f'L_role{name}', f'L_loop{name}_slow')
            adv(o.n1B, False)
            self.common_addr()
            self.addrB()
        until(o.fposAB if (A and B) else o.fposA if A else o.fposB)
        self.stamp(3)
        p(f's_lshl_b32 {sT3}, {sX}, 5')
        self.vmem(f'buffer_load_dword v{FL}, v{T+14}, {srd("DBG")}, {sT3} offen sc1', tag='FL')
        nF = D + o.dFo
        if B:
            assert not any(k == 'WO' for k, f in st)
            adv(2, True); nF -= 2
            self.wait('WO')
            self.transpose(aWO, 4, WOR, T, rd=False)
        self.vfree = True
        adv(min(nF, nF - o.dFo - 1), True)
        adv(max(0, o.dFo + 1), False)
        p(f's_mul_i32 {sFlag}, {sFlag}, 0x01010101')
        self.wait('FL')
        Lfp, Lfok, Lfc = p.label('Lfp'), p.label('Lfok'), p.label('Lfc')
        self.flush()
        p(f'{Lfc}:')
        p(f'v_and_b32 v{t0}, 0x80808080, v{FL}')
        p(f'v_cmp_ne_u32 vcc, 0x80808080, v{t0}')
        Lr = self.retry(Lfp, Lfok)
        self.ool.append([f'{Lfp}:', f'buffer_load_dword v{FL}, v{T+14}, {srd("DBG")}, {sT3} offen sc1',
                         's_waitcnt vmcnt(0)', f's_branch {Lfc}'])
        p(f's_cbranch_vccnz {Lr}')
        p(f'{Lfok}:')
        p(f'v_cmp_ne_u32 vcc, {sFlag}, v{FL}')
        p(f's_or_b32 {sMode}, vcc_lo, vcc_hi')
        if o.forceslow: p(f's_mov_b32 {sMode}, 1')
        adv(o.dG, True)
        for s_ in self.g3_list(ACC, vQR, vQR3, '0'):
            if 'q0' in o.skip: s_ = s_.replace(vQR3 + ',', 'v1,').replace(vQR + ',', 'v1,').replace(srd('WS'), srd('K')).replace(' sc1', '')
            self.vmem(s_, tag='Q0')
        self.stamp(4)
        adv(min(D + o.dQo, D - 1), 3)
        adv(max(0, o.dQo + 1), False)
        u, sc = T, T + 3
        self.wait('Q0')
        self.flush()
        Lq, Lqp = p.label('Lq'), p.label('Lqp')
        p(f'{Lq}:')
        for s_ in self.g3_sum(ACC, f'v{u}'): p(s_)
        self.ool.append([f'{Lqp}:'] + self.g3_list(ACC, vQR, vQR3, '0') + ['s_waitcnt vmcnt(0)', f's_branch {Lq}'])
        adv(o.dX, False)
        self.q_finish(u, None, None, sc, Lqp, ln=False)
        self.stamp(5)
        self.flush()
        until(o.qkpos)
        self.wait('K31')
        qi = [int(c) for c in o.qkiss]
        self.qk_softmax(lambda n: adv(qi[n], False))
        self.stamp(6)
        adv(qi[5], False)
        for op in self.ml_ops('mode'): self.run_op(op)
        if not (A and B) and 'clr2' not in o.skip:
            for k in range(4): p(f'v_mov_b32 v{SN+k}, -1')
            p(f's_lshl_b32 {sT}, {sC}, 2'); p(f's_add_u32 {sT}, {sT}, {sW}')
            if B: p(f's_sub_u32 {sT}, {sT}, 32')
            Lnc, Lg, Lsl = p.label('Lnc'), p.label('Lg'), p.label('Lsl')
            p(f's_lshl_b32 {sT2}, {sT}, 10')
            if B:
                p(f's_cmp_ge_u32 {sT}, 71'); p(f's_cbranch_scc1 {Lg}')
            p(f's_add_u32 {sT2}, {sT2}, {sBX}'); p(f's_add_u32 {sT2}, {sT2}, {H(LSTR)}')
            if o.clrfast:
                p(f's_cmp_lg_u32 {sMode}, 0'); p(f's_cbranch_scc1 {Lsl}')
                self.vmem(f'buffer_store_dwordx4 {vr(SN,4)}, {a16}, {srd("WS")}, {sT2} offen', optional=True)
                p(f's_branch {Lnc}')
            elif B: p(f's_branch {Lsl}')
            if B:
                p(f'{Lg}:')
                p(f's_cmp_ge_u32 {sT}, 86'); p(f's_cbranch_scc1 {Lnc}')
                p(f's_mul_i32 {sT3}, {sX}, {15*1024}'); p(f's_add_u32 {sT2}, {sT2}, {sT3}'); p(f's_add_u32 {sT2}, {sT2}, {H(XMo - 71*1024)}')
                p(f's_add_u32 {sT3}, {sT2}, {H(XAo)}')
                p(f's_cmp_ge_u32 {sT2}, {H(LSTR)}'); p(f's_cselect_b32 {sT2}, {sT3}, {sT2}')
            p(f'{Lsl}:')
            self.vmem(f'buffer_store_dwordx4 {vr(SN,4)}, {a16}, {srd("WS")}, {sT2} offen sc1', optional=True, tag='CLR2')
            p(f'{Lnc}:')
        if o.pf1: self.fwd = True; self.pfcode(f'L_loop{name}_fast', f'L_loop{name}_slow')
        self.stamp(7)
        self.flush()
        def hook(pp):
            keys = [k for k, f in st]
            need = f'V{2*pp+1}'
            if need in keys: adv(keys.index(need) + 1, False)
            behind = self.vm - self.tags[need]
            if behind < D: adv(D - behind, False)
        hooks = {pp: (lambda pp=pp: hook(pp)) for pp in range(16)}
        self.pv([], True, hooks=hooks)
        assert 'FL2' in self.tags
        if not (A and B) and 'clr2' not in o.skip: self.wait('CLR2')
        if o.exit10:
            self.stamp(10); self.finish()
            for code in self.ool:
                for s in code: p(s)
            self.ool = []
            self.vm, self.tags = vm0, tags0
            return
        self.rest = list(st); self.rest2 = Wl
        self.set_layer(0)
        self.flush()
        p(f's_cmp_eq_u32 {sMode}, 0'); p(f's_cbranch_scc1 L_loop{name}_fast')
        p(f's_branch L_loop{name}_slow')
        for code in self.ool:
            for s in code: p(s)
        self.ool = []
        self.chain(A, B, True, f'L_loop{name}_fast')
        self.chain(A, B, False, f'L_loop{name}_slow')
        self.vm, self.tags = vm0, tags0


def main():
    ap = argparse.ArgumentParser()
    ap.add_argument('out')
    ap.add_argument('--stamps', type=int, default=0)
    ap.add_argument('--x8delay', type=int, default=0)
    ap.add_argument('--pdx', type=int, default=0)
    ap.add_argument('--pdo', type=int, default=0)
    ap.add_argument('--skip', type=str, default='')
    ap.add_argument('--exit10', type=int, default=0)
    ap.add_argument('--qkiss', type=str, default='000003')
    ap.add_argument('--clrfast', type=int, default=1)
    ap.add_argument('--xs', type=int, default=0)
    ap.add_argument('--xgap', type=int, default=6)
    ap.add_argument('--abw1', type=int, default=1)
    ap.add_argument('--abc1', type=int, default=1)
    ap.add_argument('--pf0', type=int, default=0)
    ap.add_argument('--pf1', type=int, default=0)
    ap.add_argument('--pfsel', type=int, default=1)
    ap.add_argument('--n0A', type=int, default=0)
    ap.add_argument('--n0B', type=int, default=8)
    ap.add_argument('--n1A', type=int, default=6)
    ap.add_argument('--n1B', type=int, default=4)
    ap.add_argument('--n2', type=int, default=4)
    ap.add_argument('--dA', type=int, default=10)
    ap.add_argument('--dAB', type=int, default=16)
    ap.add_argument('--dB', type=int, default=10)
    ap.add_argument('--dFo', type=int, default=-1)
    ap.add_argument('--dG', type=int, default=0)
    ap.add_argument('--dQo', type=int, default=-2)
    ap.add_argument('--dX', type=int, default=2)
    ap.add_argument('--wposAB', type=int, default=0)
    ap.add_argument('--wposB', type=int, default=0)
    ap.add_argument('--fposA', type=str, default='K16')
    ap.add_argument('--fposAB', type=str, default='K8')
    ap.add_argument('--fposB', type=str, default='K12')
    ap.add_argument('--fpos2', type=str, default='V26')
    ap.add_argument('--qkpos', type=str, default='V8')
    ap.add_argument('--w1nt', type=str, default='')
    ap.add_argument('--w2nt', type=str, default='')
    ap.add_argument('--w2late', type=int, default=0)
    ap.add_argument('--pre', type=int, default=1)
    ap.add_argument('--forceslow', type=int, default=0)
    o = ap.parse_args()
    g = G(o)
    g.head()
    g.prologue(True, False, 'A')
    g.prologue(True, True, 'AB')
    g.prologue(False, True, 'B')
    body = g.p.finalize()
    ref = open('cdna_kernels/' + NAME + '.s.ref').read()
    comment = ''.join(l + '\n' for l in ref.split('\n') if l.startswith(';') and '@launch' not in l)
    open(o.out, 'w').write(header(256, 256, LDS_SIZE, comment=comment) + body + footer())
    print('instrs', len(g.p.items), 'nops inserted', g.p.nnops)

main()
```

```python
import sys, struct, math, argparse
from asmlib2 import *

def f2u(x): return struct.unpack('<I', struct.pack('<f', x))[0]
def H(x): return f'0x{x & 0xffffffff:x}'

GB = 0x11C00
QP = 0x0
OP = 0xA000
HP = 0xC000
ST = 0x11000
OS = 0x11800
XAo = 8 * GB
XMo = XAo + 0xA000
LSTR = XMo + 0xA000
CSL = 2 * LSTR
NDEF = (2 * LSTR - XMo) // 1024
OOB = 0x80000000
L_Q, L_ML, L_J1, L_O, L_R, L_J2 = 0, 256, 512, 1024, 3072, 7168
L_X = 10240
LDS_SIZE = 12800
sX, sC, sJ, sS, sW = 's3', 's4', 's5', 's6', 's7'
SRD = dict(K=8, V=12, WS=16, X=20, WQ=24, WO=28, W1=32, B1=36, W2=40, B2=44, OUT=48, DBG=52)
KOFF = dict(X=0, K=8, V=16, WQ=24, WO=32, W1=48, B1=56, W2=64, B2=72, OUT=80, DBG=88, WS=96)
SIZE = dict(X=1280, K=1 << 25, V=1 << 25, WQ=640 * 8192, WO=4096 * 1280, W1=640 * 3456, B1=3456, W2=1728 * 1280,
            B2=1280, OUT=1280, DBG=256, WS=1 << 28)
def srd(n): return f's[{SRD[n]}:{SRD[n]+3}]'
sKV = 56
sL, sOS, sLM, sT, sT2, sBud, sLo, sHi, sMc, sIA, sIB, sFlag, sBX, sT3 = [f's{i}' for i in range(64, 78)]
sMode = 's78'
sOS0 = 's79'
sMB = 80
sMF = 88
sWA, sWB = 's90', 's91'
sSTAMP = 92
KA = 80
vLane, a16 = 'v0', 'v1'
vQW, vQR, vQR3, vSW, vSR, vHR3, vOW, vOR, lRW2, vOSR, vXW, vXR, vHW, vHR = [f'v{i}' for i in range(2, 16)]
lQW, lQR, lMW, lMR, lOW, lOR, lRW, lRR = [f'v{i}' for i in range(16, 24)]
CSQ, CS1, B1v, vC = 'v24', 'v25', 'v26', 'v27'
MK, XA, XB, XR, B2, BQ, PA, ACC, T = 28, 32, 36, 40, 44, 48, 64, 72, 104
VB = 126
vR, vG, t0, t1, t2, vD = 114, 115, 120, 121, 122, 123
XF = 40
SN = ACC + 28
vK = 'v124'
vSTAMP = 'v125'
WR, WT, WOR = 128, 160, 192
aWQ, aWO, aW1, aW2, aX, aB2, aB1, aC1, aCQ = 128, 160, 192, 208, 224, 226, 228, 232, 244
aW2v, aB1v, aW1v = CSQ, B1v, CS1
def v(i): return f'v{i}'
def vr(i, n): return f'v[{i}:{i+n-1}]'
def ar(i, n): return f'a[{i}:{i+n-1}]'
DF = 'row_mask:0xf bank_mask:0xf'
MFMA = 'v_mfma_f32_16x16x32_bf16'
CSC = (128 ** -0.5) * math.log2(math.e)
EPS = 1e-5
KST = ['K0', 'K4', 'K8', 'K12', 'K16', 'K20', 'K24', 'K28', 'V0', 'V4', 'V8', 'V12', 'V16', 'V20', 'V24', 'V28', 'V31']


class G:
    def __init__(self, opt):
        self.p = Prog()
        self.o = opt
        self.vm = 0
        self.tags = {}
        self.pend = []
        self.ool = []
        self.nst = 0
        self.later = []

    def __call__(self, s): self.p(s)

    def vmem(self, s, tag=None, optional=False):
        self.p(s)
        if not optional:
            self.vm += 1
        if tag: self.tags[tag] = self.vm
    def wait(self, tag):
        n = self.vm - self.tags[tag]
        assert 0 <= n
        self.p(f's_waitcnt vmcnt({min(n, 63)})')
    def stamp(self, k):
        if not self.o.stamps: return
        if len(self.pend) >= 5: self.lgkm(0)
        r = sSTAMP + 2 * (self.nst % 5); self.nst += 1
        self.p(f's_memrealtime s[{r}:{r+1}]')
        self.pend.append((k, r))
    def lgkm(self, n):
        if self.pend:
            self.p('s_waitcnt lgkmcnt(0)')
            for k, r in self.pend:
                self.p(f'v_writelane_b32 {vSTAMP}, s{r}, {k}')
            self.pend = []
        else:
            self.p(f's_waitcnt lgkmcnt({n})')
    def flush(self):
        if self.pend: self.lgkm(0)

    def transpose(self, abase, W, tmp, tmp2, rd=True):
        p = self.p
        n = 8 * W
        if rd:
            for k in range(n):
                p(f'v_accvgpr_read_b32 v{tmp+k}, a{abase+k}')
        cnt = 0
        prev = None
        for dp in range(W):
            for hi in range(2):
                for tau in range(4):
                    t = tmp2 + (cnt & 1); cnt += 1
                    p(f'v_perm_b32 v{t}, v{tmp+(2*tau+1)*W+dp}, v{tmp+(2*tau)*W+dp}, {sHi if hi else sLo}')
                    p(f'v_accvgpr_write_b32 a{abase+(2*dp+hi)*4+tau}, v{t}')

    def build_xa(self):
        p = self.p
        p(f'v_mov_b32_dpp v{XA+2}, v{XA} row_ror:8 {DF}')
        p(f'v_mov_b32_dpp v{XA+3}, v{XA+1} row_ror:8 {DF}')

    def xb_ops(self):
        return [f'v_mov_b32_dpp v{XB+k}, v{XA+k} quad_perm:[0,1,2,3] row_mask:0xf bank_mask:0x3' for k in range(4)]

    def unpack_xr(self, addb2):
        ops = [f'v_lshlrev_b32 v{XR}, 16, v{XA}', f'v_and_b32 v{XR+1}, 0xffff0000, v{XA}',
               f'v_lshlrev_b32 v{XR+2}, 16, v{XA+1}', f'v_and_b32 v{XR+3}, 0xffff0000, v{XA+1}']
        if addb2:
            ops += [f'v_pk_add_f32 {vr(XR,2)}, {vr(XR,2)}, {vr(B2,2)}', f'v_pk_add_f32 {vr(XR+2,2)}, {vr(XR+2,2)}, {vr(B2+2,2)}']
        return ops

    def qp(self, A, soff, fl, stats, track, post=(), wv=None, pre=None, tag=None, prest=None):
        p = self.p
        st = T + 16
        xb = self.xb_ops() if stats else []
        order = [0, 4, 1, 5, 2, 6, 3, 7]
        mov = {}
        for d in range(8):
            if d == 0: mov[d] = None
            elif d < 4: mov[d] = f'v_mov_b32_dpp v{ACC+d}, v{ACC+4*d} quad_perm:[0,1,2,3] row_mask:0x1 bank_mask:0xf'
            else: mov[d] = f'v_mov_b32_dpp v{ACC+d-4}, v{ACC+4*d} quad_perm:[0,1,2,3] row_mask:0x2 bank_mask:0xf'
        for n, d in enumerate(order):
            if pre:
                for s_ in pre(d): p(s_)
            p(f'{MFMA} {vr(ACC+4*d,4)}, {vr(A,4)}, {vr(wv+4*d,4) if wv else ar(aWQ+4*d,4)}, 0')
            if n < 2 and xb:
                p(xb[2*n]); p(xb[2*n+1])
            if n == 3 and stats:
                p(f'{MFMA} {vr(st,4)}, {vr(XA,4)}, {vr(XB,4)}, 0')
        p('s_mov_b32 exec_hi, 0')
        for d in order[1:]:
            p(mov[d])
        if prest: prest()
        self.vmem(f'buffer_store_dwordx4 {vr(ACC,4)}, {vQW}, {srd("WS")}, {soff} offen {fl}', optional=not track, tag=tag)
        if stats:
            p('s_mov_b64 exec, 0x101')
            self.vmem(f'buffer_store_dword v{st}, {vSW}, {srd("WS")}, {soff} offen {fl}', optional=not track)
        p('s_mov_b64 exec, -1')
        for s in post: p(s)

    def w1(self, A, soff, fl, stats, track, post=()):
        p = self.p
        st = T + 16
        xb = self.xb_ops() if stats else []
        for d in range(4):
            p(f'{MFMA} {vr(ACC+4*d,4)}, {vr(A,4)}, {ar(aW1+4*d,4)}, 0')
            if d < 2 and xb:
                p(xb[2*d]); p(xb[2*d+1])
        if stats:
            p(f'{MFMA} {vr(st,4)}, {vr(XA,4)}, {vr(XB,4)}, 0')
        p('s_mov_b64 exec, 0xffff')
        for d in range(1, 4):
            p(f'v_mov_b32 v{ACC+d}, v{ACC+4*d}')
        self.vmem(f'buffer_store_dwordx4 {vr(ACC,4)}, {vHW}, {srd("WS")}, {soff} offen {fl}', optional=not track)
        if stats:
            p('s_mov_b64 exec, 0x101')
            self.vmem(f'buffer_store_dword v{st}, {vSW}, {srd("WS")}, {soff} offen offset:256 {fl}', optional=not track)
        p('s_mov_b64 exec, -1')
        for s in post: p(s)

    def rs4(self, a, out):
        return [f'v_permlane32_swap_b32 v{a}, v{a+1}', f'v_permlane32_swap_b32 v{a+2}, v{a+3}',
                f'v_add_f32 v{a}, v{a}, v{a+1}', f'v_add_f32 v{a+2}, v{a+2}, v{a+3}',
                f'v_permlane16_swap_b32 v{a}, v{a+2}', f'v_add_f32 {out}, v{a}, v{a+2}']

    def stats_ops(self, s4, st, mean, sc, second):
        inv = H(f2u(1.0 / 640))
        ops = [f'v_pk_add_f32 {vr(s4,2)}, {vr(s4,2)}, {vr(s4+2,2)}',
               f'v_add_f32 v{st}, v{s4}, v{s4+1}',
               f'v_add_f32_dpp v{st}, v{st}, v{st} row_ror:2 {DF}',
               f'v_add_f32_dpp v{st}, v{st}, v{st} row_ror:4 {DF}',
               f'v_add_f32_dpp v{st}, v{st}, v{st} row_ror:8 {DF}',
               f'v_mul_f32 v{st}, {inv}, v{st}',
               f'v_mov_b32_dpp v{mean}, v{st} quad_perm:[0,0,2,2] {DF}',
               f'v_mov_b32_dpp v{sc}, v{st} quad_perm:[1,1,3,3] {DF}',
               f'v_fma_f32 v{sc}, -v{mean}, v{mean}, v{sc}',
               f'v_max_f32 v{sc}, 0, v{sc}']
        if second:
            ops += [f'v_mul_f32 v{sc}, {H(f2u(1.0 + EPS))}, v{sc}', f'v_add_f32 v{sc}, {H(f2u(EPS * EPS))}, v{sc}']
        else:
            ops += [f'v_add_f32 v{sc}, {H(f2u(EPS))}, v{sc}']
        ops += [f'v_rsq_f32 v{sc}, v{sc}']
        return ops

    def merge(self, *lists):
        lists = [list(l) for l in lists]
        while any(lists):
            for l in lists:
                if l: self.p(l.pop(0))

    def retry(self, Lp, Lok, extra=()):
        Lr = self.p.label('Lretry')
        code = [f'{Lr}:',
                f's_cmp_eq_u32 {sBud}, 0', f's_cbranch_scc1 {Lok}', f's_sub_u32 {sBud}, {sBud}, 1'] + list(extra) + [f's_branch {Lp}']
        self.ool.append(code)
        return Lr

    def g3_list(self, base, va, va3, soff, acc=False):
        return [f'buffer_load_dwordx4 {(ar if acc else vr)(base+4*t,4)}, {va3 if t == 2 else va}, {srd("WS")}, {soff} offen offset:{1024*t} sc1' for t in range(3)]
    def g3_sum(self, base, out):
        return [f'v_pk_add_f32 {vr(base,2)}, {vr(base,2)}, {vr(base+4,2)}', f'v_pk_add_f32 {vr(base+2,2)}, {vr(base+2,2)}, {vr(base+6,2)}',
                f'v_pk_add_f32 {vr(base,2)}, {vr(base,2)}, {vr(base+8,2)}', f'v_pk_add_f32 {vr(base+2,2)}, {vr(base+2,2)}, {vr(base+10,2)}'] \
            + self.rs4(base, out) + [f'v_add_f32_dpp {out}, {out}, {out} row_ror:8 {DF}']

    def q_finish(self, u, st, mean, sc, Lp, ln=True):
        p = self.p
        Lok = p.label('Lok')
        Lr = self.retry(Lp, Lok)
        if ln:
            p(f'v_fma_f32 v{u}, -v{mean}, {CSQ}, v{u}')
            p(f'v_mul_f32 v{u}, v{u}, v{sc}')
        p(f'v_cvt_pk_bf16_f32 v{sc}, v{u}, v{u}')
        p(f'v_cmp_u_f32 vcc, v{u}, v{st if ln else u}')
        p(f's_cbranch_vccnz {Lr}')
        p(f'{Lok}:')
        p(f'ds_write_b16 {lQW}, v{sc}')
        self.lgkm(0)
        p('s_barrier')

    def qk_softmax(self, iss=lambda n: None):
        p = self.p
        S = [T, T + 1]
        for b in range(4):
            p(f's_mov_b64 exec, s[{sMB+2*b}:{sMB+2*b+1}]')
            p(f'ds_read_b128 {vr(BQ+4*b,4)}, {lQR}')
        p('s_mov_b64 exec, -1')
        def adds(e):
            h, be = e >> 2, e & 3
            D = ACC + 4 * e
            first = True
            out = []
            for u in range(4):
                if u == be: continue
                src1 = f'v{D+be}' if first else f'v{S[h]}'
                out.append(f'v_add_f32_dpp v{S[h]}, v{D+u}, {src1} row_ror:{(4*(be-u)) % 16} row_mask:0xf bank_mask:{1<<be:#x}')
                first = False
            return out
        for b in range(4):
            self.lgkm(3 - b)
            for e in range(8):
                h, be = e >> 2, e & 3
                mb = 8 * be + 2 * b + h
                c = '0' if b == 0 else vr(ACC + 4 * e, 4)
                p(f'{MFMA} {vr(ACC+4*e,4)}, {ar(4*mb,4)}, {vr(BQ+4*b,4)}, {c}')
                if b == 3 and e >= 3:
                    for s in adds(e - 3): p(s)
            iss(b)
        for e in (5, 6, 7):
            for s in adds(e): p(s)
        M = T + 2
        p(f'v_max_f32 v{M}, v{S[0]}, v{S[1]}')
        for n in (1, 2, 4, 8):
            p(f'v_max_f32_dpp v{M}, v{M}, v{M} row_ror:{n} {DF}')
        p(f'v_max_f32_dpp v{M}, v{M}, v{M} row_bcast:15 row_mask:0xa bank_mask:0xf')
        p(f'v_max_f32_dpp v{M}, v{M}, v{M} row_bcast:31 row_mask:0xc bank_mask:0xf')
        iss(4)
        p(f'v_mul_f32 v{M}, v{M}, {vC}')
        p(f'v_readlane_b32 {sMc}, v{M}, 63')
        p(f'v_fma_f32 v{S[0]}, v{S[0]}, {vC}, -{sMc}')
        p(f'v_fma_f32 v{S[1]}, v{S[1]}, {vC}, -{sMc}')
        p(f'v_exp_f32 v{S[0]}, v{S[0]}')
        p(f'v_exp_f32 v{S[1]}, v{S[1]}')
        p(f'v_cvt_pk_bf16_f32 v{T+4}, v{S[0]}, v{S[1]}')

    def ml_ops(self, fl):
        P, M, Ls = T + 4, T + 2, T + 3
        m2, l2, mc, f = T + 6, T + 7, T + 8, T + 5
        lc = T + 9
        ops = [f'v_lshlrev_b32 v{Ls}, 16, v{P}', f'v_and_b32 v{T}, 0xffff0000, v{P}', f'v_add_f32 v{Ls}, v{Ls}, v{T}']
        for n in (1, 2, 4, 8):
            ops += [f'v_add_f32_dpp v{Ls}, v{Ls}, v{Ls} row_ror:{n} {DF}', None]
        ops += [f'v_add_f32_dpp v{Ls}, v{Ls}, v{Ls} row_bcast:15 row_mask:0xa bank_mask:0xf', None,
                f'v_add_f32_dpp v{Ls}, v{Ls}, v{Ls} row_bcast:31 row_mask:0xc bank_mask:0xf',
                f'ds_write_b64 {lMW}, {vr(M,2)}', None, None,
                lambda: (self.lgkm(0), self.p('s_barrier'), self.p(f'ds_read_b64 {vr(m2,2)}, {lMR}')), None, None, None,
                lambda: self.lgkm(0),
                f'v_max_f32_dpp v{mc}, v{m2}, v{m2} quad_perm:[1,0,3,2] {DF}', None,
                f'v_max_f32_dpp v{mc}, v{mc}, v{mc} quad_perm:[2,3,0,1] {DF}',
                f'v_sub_f32 v{f}, v{m2}, v{mc}', f'v_exp_f32 v{f}, v{f}', None,
                f'v_mul_f32 v{lc}, v{f}, v{l2}', None,
                f'v_add_f32_dpp v{lc}, v{lc}, v{lc} quad_perm:[1,0,3,2] {DF}', None,
                f'v_add_f32_dpp v{lc}, v{lc}, v{lc} quad_perm:[2,3,0,1] {DF}']
        def st():
            Ls_ = self.p.label('Lnos')
            self.p(f's_cmp_lg_u32 {sW}, 0'); self.p(f's_cbranch_scc1 {Ls_}')
            self.p('s_mov_b64 exec, 1')
            if fl == 'mode':
                L1, L2 = self.p.label('Lm'), self.p.label('Lm')
                self.p(f's_cmp_eq_u32 {sMode}, 0'); self.p(f's_cbranch_scc1 {L1}')
                self.vmem(f'buffer_store_dwordx2 {vr(mc,2)}, {vLane}, {srd("WS")}, {sOS0} offen sc1', optional=True)
                self.p(f's_branch {L2}')
                self.p(f'{L1}:')
                self.vmem(f'buffer_store_dwordx2 {vr(mc,2)}, {vLane}, {srd("WS")}, {sOS0} offen', optional=True)
                self.p(f'{L2}:')
            else:
                self.vmem(f'buffer_store_dwordx2 {vr(mc,2)}, {vLane}, {srd("WS")}, {sOS} offen {fl}', optional=True)
            self.p('s_mov_b64 exec, -1')
            self.p(f'{Ls_}:')
        ops.append(st)
        return ops

    def run_op(self, o):
        if o is None: return
        if callable(o): o()
        else: self.p(o)

    def pv(self, extras, layer0, hooks={}):
        p = self.p
        P = T + 4
        Da, Db = ACC, ACC + 4
        def build(pp):
            return [f'v_mov_b32_dpp v{PA+4*(pp&1)+t}, v{P} row_newbcast:{pp} row_mask:0xf bank_mask:{1<<t:#x}' for t in range(4)]
        def perms(pp):
            A, Bq, o = VB + 2 + 8 * pp, VB + 6 + 8 * pp, VB + 8 * pp
            seq = [(0, 0), (0, 1), (1, 0), (1, 1), (3, 0), (3, 1), (2, 1), (2, 0)]
            return [f'v_perm_b32 v{o+2*dp+hi}, v{Bq+dp}, v{A+dp}, {sHi if hi else sLo}' for dp, hi in seq]
        extras = list(extras)
        for s in build(0): p(s)
        for pp in range(16):
            nb = build(pp + 1) if pp < 15 else []
            if pp in hooks: hooks[pp]()
            if layer0:
                self.wait(f'V{2*pp+1}')
                for s in perms(pp): p(s)
            c = '0' if pp == 0 else None
            p(f'{MFMA} {vr(Da,4)}, {vr(PA+4*(pp&1),4)}, {vr(VB+8*pp,4)}, {c or vr(Da,4)}')
            for s in nb[:3]: p(s)
            p(f'{MFMA} {vr(Db,4)}, {vr(PA+4*(pp&1),4)}, {vr(VB+8*pp+4,4)}, {c or vr(Db,4)}')
            for s in nb[3:]: p(s)
            for _ in range(2):
                if extras: self.run_op(extras.pop(0))
        for o in extras: self.run_op(o)

    def reduce_publish(self, y, kind, soff, ldsoff):
        p = self.p
        if kind == 'o':
            for k in range(4): p(f'v_permlane16_swap_b32 v{y+k}, v{y+4+k}')
            p(f'v_pk_add_f32 {vr(y,2)}, {vr(y,2)}, {vr(y+4,2)}')
            p(f'v_pk_add_f32 {vr(y+2,2)}, {vr(y+2,2)}, {vr(y+6,2)}')
        p(f'ds_write_b128 {lRW if kind == "o" else lRW2}, {vr(y,4)} offset:{ldsoff}')
        p(f's_cmp_lg_u32 {sW}, 0')
        self.lgkm(0)
        if self.o.stamps: p(f's_cmp_lg_u32 {sW}, 0')
        p('s_barrier')
        Ls = p.label('Lsk')
        p(f's_cbranch_scc1 {Ls}')
        for k in range(4):
            p(f'ds_read_b128 {vr(ACC+4*k,4)}, {lRR} offset:{ldsoff+512*k}')
        p('s_mov_b32 exec_hi, 0')
        self.lgkm(2)
        p(f'v_pk_add_f32 {vr(ACC,2)}, {vr(ACC,2)}, {vr(ACC+4,2)}')
        p(f'v_pk_add_f32 {vr(ACC+2,2)}, {vr(ACC+2,2)}, {vr(ACC+6,2)}')
        self.lgkm(0)
        p(f'v_pk_add_f32 {vr(ACC+8,2)}, {vr(ACC+8,2)}, {vr(ACC+12,2)}')
        p(f'v_pk_add_f32 {vr(ACC+10,2)}, {vr(ACC+10,2)}, {vr(ACC+14,2)}')
        p(f'v_pk_add_f32 {vr(ACC,2)}, {vr(ACC,2)}, {vr(ACC+8,2)}')
        p(f'v_pk_add_f32 {vr(ACC+2,2)}, {vr(ACC+2,2)}, {vr(ACC+10,2)}')
        for k in range(4):
            p(f'v_add_f32_dpp v{ACC+k}, v{ACC+k}, v{ACC+k} row_ror:8 {DF}')
        p('s_mov_b32 exec_lo, 0x00ff00ff')
        self.vmem(f'buffer_store_dwordx4 {vr(ACC,4)}, {vXW}, {srd("WS")}, {soff} offen sc1', optional=True)
        p('s_mov_b64 exec, -1')
        p(f'{Ls}:')

    def x16(self, soff, pd=0):
        if self.o.xs: return self.x16s(soff)
        p = self.p
        Y = T
        for _ in range(self.o.x8delay): p('s_nop 15')
        Lp = p.label('Lp')
        p(f'{Lp}:')
        self.vmem(f'buffer_load_dwordx4 {vr(Y,4)}, {vXR}, {srd("WS")}, {soff} offen sc1', optional=True)
        self.vmem(f'buffer_load_dwordx4 {vr(Y+4,4)}, {vXR}, {srd("WS")}, {soff} offen offset:1024 sc1', optional=True)
        p('s_waitcnt vmcnt(0)')
        p(f'v_pk_add_f32 {vr(Y,2)}, {vr(Y,2)}, {vr(Y+4,2)}')
        p(f'v_pk_add_f32 {vr(Y+2,2)}, {vr(Y+2,2)}, {vr(Y+6,2)}')
        for c in ('quad_perm:[1,0,3,2]', 'quad_perm:[2,3,0,1]', 'row_half_mirror'):
            for k in range(4):
                p(f'v_add_f32_dpp v{Y+k}, v{Y+k}, v{Y+k} {c} {DF}')
        p(f'v_pk_add_f32 {vr(Y,2)}, {vr(Y,2)}, {vr(XR,2)}')
        p(f'v_pk_add_f32 {vr(Y+2,2)}, {vr(Y+2,2)}, {vr(XR+2,2)}')
        p(f'v_cvt_pk_bf16_f32 v{XA}, v{Y}, v{Y+1}')
        p(f'v_cvt_pk_bf16_f32 v{XA+1}, v{Y+2}, v{Y+3}')
        p(f'v_pk_add_f32 {vr(Y,2)}, {vr(Y,2)}, {vr(Y+2,2)}')
        p(f'v_cmp_u_f32 vcc, v{Y}, v{Y+1}')
        self.build_xa()
        Lok = p.label('Lok')
        Lr = self.retry(Lp, Lok, extra=['s_nop 15'] * pd)
        p(f's_cbranch_vccnz {Lr}')
        p(f'{Lok}:')

    def x16s(self, soff):
        p = self.p
        ND = self.o.xs
        Y = ACC
        lw, lr = T + 8, T + 9
        def ld(k): self.vmem(f'buffer_load_dwordx2 {vr(T+2*k,2)}, {vXR}, {srd("WS")}, {soff} offen sc1', optional=True)
        ld(0)
        p(f'v_lshrrev_b32 v{lw}, 4, v0'); p(f'v_mul_u32_u24 v{lw}, 16, v{lw}'); p(f'v_lshl_add_u32 v{lw}, v0, 3, v{lw}')
        p(f's_mul_i32 {sT}, {sW}, 576'); p(f's_add_u32 {sT}, {sT}, {L_X}'); p(f'v_add_u32 v{lw}, {sT}, v{lw}')
        p(f'v_and_b32 v{lr}, 7, v0'); p(f'v_mul_u32_u24 v{lr}, 142, v{lr}'); p(f'v_lshl_add_u32 v{lr}, v0, 1, v{lr}')
        for k in range(1, ND - 1):
            for _ in range(self.o.xgap): p('s_nop 15')
            ld(k)
        if ND > 1:
            for _ in range(self.o.xgap): p('s_nop 15')
        Lp, Lj = p.label('Lp'), p.label('Lj')
        Ld = [p.label('Ld') for _ in range(ND)]
        if ND == 1:
            p(f's_branch {Lp}w')
        p(f'{Lp}:')
        for k in range(ND):
            ld((k - 1) % ND)
            if ND == 1: p(f'{Lp}w:')
            p(f's_waitcnt vmcnt({ND - 1})')
            p(f'v_cmp_u_f32 vcc, v{T+2*k}, v{T+2*k+1}')
            p(f's_cbranch_vccz {Ld[k]}')
        p(f's_sub_u32 {sBud}, {sBud}, 1'); p(f's_cbranch_scc0 {Lp}')
        p(f's_mov_b32 {sBud}, 0')
        for k in range(1, ND):
            self.ool.append([f'{Ld[k]}:', f'ds_write_b64 v{lw}, {vr(T+2*k,2)}', f's_branch {Lj}'])
        p(f'{Ld[0]}:')
        p(f'ds_write_b64 v{lw}, {vr(T,2)}')
        p(f'{Lj}:')
        p('s_waitcnt lgkmcnt(0)')
        p('s_barrier')
        p(f'ds_read_b128 {vr(Y,4)}, v{lr} offset:{L_X}')
        p(f'ds_read_b128 {vr(Y+4,4)}, v{lr} offset:{L_X+1152}')
        p('s_waitcnt lgkmcnt(0)')
        p(f'v_pk_add_f32 {vr(Y,2)}, {vr(Y,2)}, {vr(Y+4,2)}')
        p(f'v_pk_add_f32 {vr(Y+2,2)}, {vr(Y+2,2)}, {vr(Y+6,2)}')
        for c in ('quad_perm:[1,0,3,2]', 'quad_perm:[2,3,0,1]', 'row_half_mirror'):
            for k in range(4):
                p(f'v_add_f32_dpp v{Y+k}, v{Y+k}, v{Y+k} {c} {DF}')
        p(f'v_pk_add_f32 {vr(Y,2)}, {vr(Y,2)}, {vr(XR,2)}')
        p(f'v_pk_add_f32 {vr(Y+2,2)}, {vr(Y+2,2)}, {vr(XR+2,2)}')
        p(f'v_cvt_pk_bf16_f32 v{XA}, v{Y}, v{Y+1}')
        p(f'v_cvt_pk_bf16_f32 v{XA+1}, v{Y+2}, v{Y+3}')
        self.build_xa()

    def oa2a(self, pd=0):
        p = self.p
        AO = T
        ml = T + 4
        M, f, Lq, ck = T + 6, T + 7, T + 8, T + 9
        y = T + 12
        Lp = p.label('Lp')
        p(f'{Lp}:')
        self.vmem(f'buffer_load_dwordx2 {vr(ml,2)}, {vOSR}, {srd("WS")}, {sL} offen sc1', optional=True)
        self.vmem(f'buffer_load_dwordx4 {vr(AO,4)}, {vOR}, {srd("WS")}, {sL} offen sc1', optional=True)
        p('s_waitcnt vmcnt(0)')
        Lok = p.label('Lok')
        Lr = self.retry(Lp, Lok, extra=['s_nop 15'] * pd)
        chk = [f'v_max3_u32 v{ck}, v{AO}, v{AO+1}, v{AO+2}', f'v_max3_u32 v{ck}, v{ck}, v{AO+3}, v{ml}',
               f'v_max_u32 v{ck}, v{ck}, v{ml+1}', f'v_cmp_eq_u32 vcc, -1, v{ck}']
        sc = [f'v_max_f32_dpp v{M}, v{ml}, v{ml} quad_perm:[1,0,3,2] {DF}',
              f'v_max_f32_dpp v{M}, v{M}, v{M} quad_perm:[2,3,0,1] {DF}',
              f'v_max_f32_dpp v{M}, v{M}, v{M} row_half_mirror {DF}',
              f'v_sub_f32 v{f}, v{ml}, v{M}', f'v_exp_f32 v{f}, v{f}',
              f'v_mul_f32 v{Lq}, v{f}, v{ml+1}',
              f'v_add_f32_dpp v{Lq}, v{Lq}, v{Lq} quad_perm:[1,0,3,2] {DF}',
              f'v_add_f32_dpp v{Lq}, v{Lq}, v{Lq} quad_perm:[2,3,0,1] {DF}',
              f'v_add_f32_dpp v{Lq}, v{Lq}, v{Lq} row_half_mirror {DF}',
              f'v_rcp_f32 v{Lq}, v{Lq}', f'v_mul_f32 v{f}, v{f}, v{Lq}']
        mf = [f'{MFMA} {vr(ACC+4*d,4)}, {vr(AO,4)}, {ar(aWO+4*d,4)}, 0' for d in range(8)]
        p(mf[0]); p(chk[0]); p(chk[1]); p(sc[0])
        p(mf[1]); p(chk[2]); p(chk[3]); p(sc[1])
        p(mf[2])
        p(f's_cbranch_vccnz {Lr}')
        p(f'{Lok}:')
        p(sc[2])
        p(mf[3]); p(sc[3]); p(sc[4])
        p(mf[4]); p(sc[5])
        p(mf[5]); p(sc[6])
        p(mf[6]); p(sc[7])
        p(mf[7]); p(sc[8]); p(sc[9]); p(sc[10])
        for r in range(4):
            for d in range(8):
                op = 'v_mul_f32_dpp' if r == 0 else 'v_fmac_f32_dpp'
                p(f'{op} v{y+d}, v{f}, v{ACC+4*d+r} row_newbcast:{r} {DF}')
        self.reduce_publish(y, 'o', sL, 0)

    def gather_stats(self, va, va3, off, second):
        p = self.p
        s4 = ACC + 12
        u, st, mean, sc = T, T + 1, T + 2, T + 3
        Lp = p.label('Lp')
        p(f'{Lp}:')
        self.vmem(f'buffer_load_dwordx4 {vr(s4,4)}, {vSR}, {srd("WS")}, {sL} offen offset:{off} sc1', optional=True)
        for s_ in self.g3_list(ACC, va, va3, sL): self.vmem(s_, optional=True)
        p('s_waitcnt vmcnt(3)')
        so = self.stats_ops(s4, st, mean, sc, second)
        for s_ in so[:2]: p(s_)
        p('s_waitcnt vmcnt(0)')
        self.merge(self.g3_sum(ACC, f'v{u}'), so[2:])
        return Lp, u, st, mean, sc

    def ha2a(self):
        p = self.p
        Lp, u, st, mean, sc = self.gather_stats(vHR, vHR3, 256, True)
        t1_, e = T + 4, T + 5
        A = T + 8
        y = T + 12
        Lok = p.label('Lok')
        Lr = self.retry(Lp, Lok)
        c0 = -2.0 * math.sqrt(2.0 / math.pi) * math.log2(math.e)
        c1 = c0 * 0.044715
        p(f'v_fma_f32 v{u}, -v{mean}, {CS1}, v{u}')
        p(f'v_fma_f32 v{u}, v{u}, v{sc}, {B1v}')
        p(f'v_mul_f32 v{t1_}, v{u}, v{u}')
        p(f'v_cmp_u_f32 vcc, v{u}, v{st}')
        p(f'v_mul_f32 v{t1_}, {H(f2u(c1))}, v{t1_}')
        p(f'v_add_f32 v{t1_}, {H(f2u(c0))}, v{t1_}')
        p(f's_cbranch_vccnz {Lr}')
        p(f'{Lok}:')
        p(f'v_mul_f32 v{t1_}, v{t1_}, v{u}')
        p(f'v_exp_f32 v{e}, v{t1_}')
        p(f'v_add_f32 v{e}, 1.0, v{e}')
        p(f'v_rcp_f32 v{e}, v{e}')
        p(f'v_mul_f32 v{u}, v{u}, v{e}')
        p(f'v_cvt_pk_bf16_f32 v{u}, v{u}, v{u}')
        for k in range(4):
            p(f'v_and_b32 v{A+k}, v{u}, v{MK+k}')
        for d in range(4):
            p(f'{MFMA} {vr(ACC+4*d,4)}, {vr(A,4)}, {ar(aW2+4*d,4)}, 0')
        for d in range(4):
            p(f'v_pk_add_f32 {vr(ACC+4*d,2)}, {vr(ACC+4*d,2)}, {vr(ACC+4*d+2,2)}')
            p(f'v_add_f32 v{y+d}, v{ACC+4*d}, v{ACC+4*d+1}')
        self.reduce_publish(y, 'h', sLM, 2048)

    def combine(self, fl):
        p = self.p
        f = T + 5
        p(f'v_mul_f32_dpp v{T}, v{f}, v{ACC} quad_perm:[0,0,0,0] {DF}')
        p(f'v_mul_f32_dpp v{T+1}, v{f}, v{ACC+4} quad_perm:[0,0,0,0] {DF}')
        p(f'ds_write2_b32 {lOW}, v{T}, v{T+1} offset0:0 offset1:64')
        p(f's_cmp_lg_u32 {sW}, 0')
        self.lgkm(0)
        if self.o.stamps: p(f's_cmp_lg_u32 {sW}, 0')
        p('s_barrier')
        Ls = p.label('Lsk')
        p(f's_cbranch_scc1 {Ls}')
        p(f'ds_read2_b64 {vr(ACC,4)}, {lOR} offset0:0 offset1:64')
        p(f'ds_read2_b64 {vr(ACC+4,4)}, {lOR} offset0:128 offset1:192')
        self.lgkm(1)
        p(f'v_pk_add_f32 {vr(ACC,2)}, {vr(ACC,2)}, {vr(ACC+2,2)}')
        self.lgkm(0)
        p(f'v_pk_add_f32 {vr(ACC+4,2)}, {vr(ACC+4,2)}, {vr(ACC+6,2)}')
        p(f'v_pk_add_f32 {vr(ACC,2)}, {vr(ACC,2)}, {vr(ACC+4,2)}')
        p(f'v_cvt_pk_bf16_f32 v{ACC}, v{ACC}, v{ACC+1}')
        self.vmem(f'buffer_store_dword v{ACC}, {vOW}, {srd("WS")}, {sL} offen {fl}', optional=True)
        p(f'{Ls}:')

    def set_layer(self, off):
        p = self.p
        p(f's_mov_b32 {sL}, {H(off)}')
        p(f's_add_u32 {sOS}, {sOS0}, {H(off)}')
        p(f's_mov_b32 {sLM}, {H(off + XMo - XAo)}')

    def finish(self):
        p = self.p
        if self.o.stamps:
            self.stamp(31)
            self.flush()
            p(f'v_writelane_b32 {vSTAMP}, {sBud}, 33')
            p(f's_memtime s[{sSTAMP}:{sSTAMP+1}]'); p('s_waitcnt lgkmcnt(0)')
            p(f'v_writelane_b32 {vSTAMP}, s{sSTAMP}, 35')
            Le = p.label('Lend')
            p(f's_cmp_lg_u32 {sW}, 0'); p(f's_cbranch_scc1 {Le}')
            p(f's_lshl_b32 {sT}, s2, 8'); p(f's_add_u32 {sT}, {sT}, 0x8000000')
            p(f'v_lshlrev_b32 v{T}, 2, {vLane}')
            p(f'buffer_store_dword {vSTAMP}, v{T}, {srd("WS")}, {sT} offen')
            p(f'{Le}:')
        p('s_endpgm')

    def chain(self, A, B, fast, name):
        p = self.p
        o = self.o
        fl = '' if fast else 'sc1'
        vm0, tags0 = self.vm, dict(self.tags)
        p(f'{name}:')
        TB = ACC
        FL = vR
        for layer in range(2):
            def stp(k): self.stamp(8 + 10 * layer + k)
            stp(2)
            self.combine(fl)
            stp(3)
            if layer == 0:
                for k, f in self.rest: f()
                self.wait('FL2')
                Lfp, Lfok, Lfc = p.label('Lfp'), p.label('Lfok'), p.label('Lfc')
                self.flush()
                p(f'{Lfc}:')
                p(f'v_and_b32 v{t0}, 0x80808080, v{FL}')
                p(f'v_cmp_ne_u32 vcc, 0x80808080, v{t0}')
                Lr = self.retry(Lfp, Lfok)
                self.ool.append([f'{Lfp}:', f'buffer_load_dword v{FL}, v{T+15}, {srd("DBG")}, 0 offen sc1',
                                 's_waitcnt vmcnt(0)', f's_branch {Lfc}'])
                p(f's_cbranch_vccnz {Lr}')
                p(f'{Lfok}:')
            if B:
                self.oa2a(o.pdo if layer == 0 else 0)
                stp(4)
                if layer == 0:
                    for k, f in self.rest2: f()
            if A and layer == 0:
                self.wait('W1')
                self.transpose(aW1, 2, TB, TB + 16)
                p(f's_mov_b32 {sT2}, {H(CSL)}')
                self.w1(XB, sT2, fl, False, False)
            c1l = [f's_mov_b32 {sT2}, {H(CSL)}'] + self.g3_list(aC1, vHR, vHR3, sT2, acc=True)
            cql = [f's_mov_b32 {sT2}, {H(CSL)}'] + self.g3_list(aCQ, vQR, vQR3, sT2, acc=True)
            def w2fix():
                self.wait('W2')
                p(f'v_accvgpr_read_b32 {B1v}, a{aB1}'); p(f'v_lshlrev_b32 {B1v}, 16, {B1v}')
                self.transpose(aW2, 2, TB, TB + 16)
            if B and layer == 0 and (not A or not o.w2late):
                w2fix()
                if not A:
                    for s_ in c1l: p(s_)
            if A and B and layer == 0 and o.abc1 == 1:
                for s_ in c1l: p(s_)
            if A:
                self.x16(sL, o.pdx if layer == 0 else 0)
                stp(5)
                if B and layer == 0 and o.abc1 == 2:
                    for s_ in c1l: p(s_)
                self.w1(XA, sL, fl, True, False, post=self.unpack_xr(True))
                stp(6)
                if layer == 0 and not B:
                    for s_ in cql: p(s_)
            if B:
                if layer == 0:
                    if A:
                        if not o.abc1:
                            for s_ in c1l: p(s_)
                        if o.w2late: w2fix()
                    self.flush()
                    Lc1, Lcp, Lcok = p.label('Lc'), p.label('Lcp'), p.label('Lcok')
                    p(f'{Lc1}:')
                    p('s_waitcnt vmcnt(0)')
                    for k in range(12): p(f'v_accvgpr_read_b32 v{ACC+k}, a{aC1+k}')
                    for s_ in self.g3_sum(ACC, CS1): p(s_)
                    p(f'v_cmp_u_f32 vcc, {CS1}, {CS1}')
                    Lr = self.retry(Lcp, Lcok)
                    self.ool.append([f'{Lcp}:'] + c1l + [f's_branch {Lc1}'])
                    p(f's_cbranch_vccnz {Lr}')
                    p(f'{Lcok}:')
                self.ha2a()
                stp(7)
                if layer == 0:
                    for s_ in cql: p(s_)
            if layer == 1:
                if A:
                    Lf = p.label('Lfin')
                    self.flush()
                    p(f's_or_b32 {sT}, {sX}, {sW}' if not o.xs else f's_mov_b32 {sT}, {sX}')
                    p(f's_cmp_lg_u32 {sT}, 0'); p(f's_cbranch_scc1 {Lf}')
                    self.x16(sLM)
                    if o.xs: p(f's_cmp_lg_u32 {sW}, 0'); p(f's_cbranch_scc1 {Lf}')
                    p(f's_mov_b64 exec, s[{sMF}:{sMF+1}]')
                    p(f's_lshl_b32 {sT}, {sIA}, 6')
                    p(f'buffer_store_dwordx2 {vr(XA,2)}, {vLane}, {srd("OUT")}, {sT} offen')
                    p('s_mov_b64 exec, -1')
                    p(f'{Lf}:')
                self.finish()
                break
            def cqfix():
                p('s_waitcnt vmcnt(0)')
                for k in range(12): p(f'v_accvgpr_read_b32 v{ACC+k}, a{aCQ+k}')
                for s_ in self.g3_sum(ACC, CSQ): p(s_)
            cqfix()
            if A:
                self.x16(sLM)
                stp(8)
            self.set_layer(LSTR)
            if A:
                self.qp(XA, sL, fl, True, False, post=self.unpack_xr(False))
                stp(9)
            Lp, u, st, mean, sc = self.gather_stats(vQR, vQR3, 0, False)
            self.q_finish(u, st, mean, sc, Lp)
            stp(10)
            self.flush()
            self.qk_softmax()
            stp(11)
            self.pv(self.ml_ops(fl), False)
            self.flush()
        for code in self.ool:
            for s_ in code: p(s_)
        self.ool = []
        self.vm, self.tags = vm0, tags0

    def kload(self, mb):
        self.vmem(f'buffer_load_dwordx4 {ar(4*mb,4)}, {vK}, {srd("K")}, s{sKV+(mb>>2)} offen offset:{1024*(mb&3)} nt', tag=f'K{mb}')
    def vload(self, mb):
        assert self.vfree, 'V area still in use'
        self.vmem(f'buffer_load_dwordx4 {vr(VB+2+4*mb,4)}, {a16}, {srd("V")}, s{sKV+(mb>>2)} offen offset:{1024*(mb&3)} nt', tag=f'V{mb}')

    def pfcode(self, lo, hi, track=True):
        p = self.p
        L = p.label('Lpc')
        n = SRD['X']
        Ls = p.label('Lpcs')
        if self.o.pfsel:
            track = False
            p(f's_and_b32 {sT}, {sC}, 7'); p(f's_cmp_lg_u32 {sT}, 5'); p(f's_cbranch_scc1 {Ls}')
        p(f's_getpc_b64 s[{n}:{n+1}]')
        p(f'{L}:')
        p(f's_add_u32 s{n}, s{n}, {lo}-{L}'); p(f's_addc_u32 s{n+1}, s{n+1}, {0 if self.fwd else -1}')
        p(f's_mov_b32 s{n+2}, {hi}-{lo}')
        p(f'v_lshlrev_b32 v{t2}, 7, v0'); p(f's_lshl_b32 {sT}, {sW}, 13')
        self.vmem(f'buffer_load_dword a{aCQ+11}, v{t2}, {srd("X")}, {sT} offen', optional=not track)
        p(f'{Ls}:')

    def head(self):
        p = self.p
        o = self.o
        p('L_top:')
        p('s_cmp_lt_u32 s2, 256'); p('s_cbranch_scc1 L_go')
        p('s_endpgm')
        p('L_go:')
        p(f's_load_dwordx16 s[{KA}:{KA+15}], s[0:1], 0')
        p(f's_load_dwordx2 s[{SRD["WS"]}:{SRD["WS"]+1}], s[0:1], {KOFF["WS"]}')
        if o.stamps:
            p('s_memrealtime s[96:97]')
            p('s_memtime s[98:99]')
        p('v_lshrrev_b32 v1, 6, v0')
        p('v_and_b32 v0, 63, v0')
        p(f'v_readfirstlane_b32 {sW}, v1')
        p(f's_and_b32 {sX}, s2, 7'); p(f's_lshr_b32 {sC}, s2, 3'); p(f's_and_b32 {sJ}, {sC}, 3'); p(f's_lshr_b32 {sS}, {sC}, 2')
        if o.pfa:
            n = SRD['OUT']
            p(f's_cmp_ge_u32 {sC}, 2'); p('s_cbranch_scc1 L_nopf')
            p(f's_getpc_b64 s[{n}:{n+1}]')
            p('L_pc:')
            p(f's_mov_b32 s{n+2}, L_fastend-L_pc'); p(f's_mov_b32 s{n+3}, 0x00020000')
            p(f's_lshl_b32 {sT}, {sC}, 2'); p(f's_add_u32 {sT}, {sT}, {sW}'); p(f's_lshl_b32 {sT}, {sT}, 13')
            p(f'v_lshlrev_b32 v{t2}, 7, v0')
            self.vmem(f'buffer_load_dword a{aCQ+11}, v{t2}, {srd("OUT")}, {sT} offen', optional=True)
            p('L_nopf:')
        vWQ, vWO, vXs = T + 12, T + 13, T + 14
        sQ, sO = sMc, sOS
        p(f'v_lshlrev_b32 {a16}, 4, v0')
        p(f'v_and_b32 v{vR}, 15, v0'); p(f'v_lshrrev_b32 v{vG}, 4, v0')
        p(f's_mov_b32 {sIA}, {sC}'); p(f's_sub_u32 {sIB}, {sC}, 12')
        for n in ('X', 'WQ', 'WO'):
            p(f's_mov_b32 s{SRD[n]+2}, {H(SIZE[n])}'); p(f's_mov_b32 s{SRD[n]+3}, 0x00020000')
        p(f'v_lshlrev_b32 v{vWQ}, 16, v{vG}'); p(f'v_lshl_add_u32 v{vWQ}, v{vR}, 4, v{vWQ}')
        p(f's_lshl_b32 {sQ}, {sIA}, 18'); p(f's_lshl_b32 {sT2}, {sX}, 10'); p(f's_add_u32 {sQ}, {sQ}, {sT2}')
        p(f's_lshl_b32 {sT2}, {sW}, 8'); p(f's_add_u32 {sQ}, {sQ}, {sT2}')
        p(f'v_and_b32 v{vXs}, 0x38, v0')
        p(f'v_and_b32 v{t0}, 1, v{vG}'); p(f'v_lshlrev_b32 v{t0}, 6, v{t0}')
        p(f'v_lshrrev_b32 v{t2}, 3, v{vR}'); p(f'v_lshl_add_u32 v{t0}, v{t2}, 1, v{t0}')
        p(f'v_lshrrev_b32 v{t1}, 1, v{vG}'); p(f'v_add_u32 v{t0}, v{t0}, v{t1}')
        p(f'v_mul_u32_u24 v{t0}, 1280, v{t0}')
        p(f'v_and_b32 v{t1}, 7, v0'); p(f'v_lshl_add_u32 v{vWO}, v{t1}, 4, v{t0}')
        p(f's_and_b32 {sT}, {sIB}, 1'); p(f's_lshl_b32 {sT}, {sT}, 1'); p(f's_lshr_b32 {sT2}, {sW}, 1'); p(f's_add_u32 {sT}, {sT}, {sT2}')
        p(f's_lshl_b32 {sT2}, {sX}, 2'); p(f's_add_u32 {sT}, {sT}, {sT2}'); p(f's_lshl_b32 {sT}, {sT}, 7')
        p(f's_and_b32 {sT2}, {sW}, 1'); p(f's_lshl_b32 {sT2}, {sT2}, 2'); p(f's_add_u32 {sT}, {sT}, {sT2}')
        p(f's_mul_i32 {sO}, {sT}, 1280'); p(f's_lshr_b32 {sT2}, {sIB}, 1'); p(f's_lshl_b32 {sT2}, {sT2}, 7'); p(f's_add_u32 {sO}, {sO}, {sT2}')
        p(f's_lshl_b32 {sT}, {sIA}, 6')
        if o.hk: self.late_head()
        p(f's_cmp_ge_u32 {sC}, 20')
        p('s_waitcnt lgkmcnt(0)')
        self.mv('WO')
        p('s_cbranch_scc1 L_eB')
        self.mv('X'); self.mv('WQ')
        self.vmem(f'buffer_load_dwordx4 {vr(XF,4)}, {a16}, {srd("X")}, 0 offen', tag='XF')
        self.vmem(f'buffer_load_dwordx4 {vr(XF+4,4)}, {a16}, {srd("X")}, 0 offen offset:1024', tag='XF')
        self.vmem(f'buffer_load_dwordx2 {vr(XA,2)}, v{vXs}, {srd("X")}, {sT} offen', tag='XF')
        for jj in range(8):
            self.vmem(f'buffer_load_dwordx4 {vr(WR+4*jj,4)}, v{vWQ}, {srd("WQ")}, {sQ} offen nt', tag='WQ')
            if jj < 7: p(f's_add_u32 {sQ}, {sQ}, 8192')
        p(f's_cmp_lt_u32 {sC}, 12'); p('s_cbranch_scc1 L_roleA')
        p('s_branch L_roleAB')
        p('L_eB:')
        for jj in range(o.n0B):
            p(f'buffer_load_dwordx4 {vr(WOR+4*jj,4)}, v{vWO}, {srd("WO")}, {sO} offen nt')
            p(f's_add_u32 {sO}, {sO}, {8*1280}')
        if not o.order.startswith('B'): p('s_branch L_roleB')

    def mv(self, n): self.p(f's_mov_b64 s[{SRD[n]}:{SRD[n]+1}], s[{KA+KOFF[n]//4}:{KA+KOFF[n]//4+1}]')

    def late_head(self):
        p = self.p
        for n in SRD:
            if n in ('X', 'WQ', 'WO'): continue
            p(f's_mov_b32 s{SRD[n]+2}, {H(SIZE[n])}'); p(f's_mov_b32 s{SRD[n]+3}, 0x00020000')
        for k in range(4): p(f'v_mov_b32 v{SN+k}, -1')
        p(f's_mul_i32 {sBX}, {sX}, {H(GB)}')
        p(f's_lshl_b32 {sT2}, {sX}, 2'); p(f's_add_u32 {sT2}, {sT2}, {sJ}')
        p(f's_lshl_b32 s{sKV}, {sT2}, 20')
        p(f's_lshl_b32 {sT2}, {sS}, 17'); p(f's_add_u32 s{sKV}, s{sKV}, {sT2}')
        p(f's_lshl_b32 {sT2}, {sW}, 12'); p(f's_add_u32 s{sKV}, s{sKV}, {sT2}')
        for k in range(1, 8): p(f's_add_u32 s{sKV+k}, s{sKV}, {16384*k}')
        p(f'v_bfe_u32 v{t1}, v0, 2, 2'); p(f'v_lshlrev_b32 {vK}, 8, v{t1}')
        p(f'v_lshl_add_u32 {vK}, v{vG}, 6, {vK}')
        p(f'v_and_b32 v{t1}, 3, v0'); p(f'v_lshl_add_u32 {vK}, v{t1}, 4, {vK}')
        p(f'v_and_b32 v{t0}, 1, v{vG}'); p(f'v_lshrrev_b32 v{vD}, 1, v{vG}'); p(f'v_lshl_add_u32 v{vD}, v{t0}, 1, v{vD}')
        p(f's_mov_b32 {sLo}, 0x05040100'); p(f's_mov_b32 {sHi}, 0x07060302')

    def common_addr(self):
        p = self.p
        p(f's_mov_b32 {sBud}, 100000')
        for b in range(4):
            p(f's_mov_b32 s{sMB+2*b}, {H(0x11111111 << b)}'); p(f's_mov_b32 s{sMB+2*b+1}, {H(0x11111111 << b)}')
        p(f's_mov_b32 s{sMF}, 0x01010101'); p(f's_mov_b32 s{sMF+1}, 0x01010101')
        p(f's_lshl_b32 {sT}, {sJ}, 3'); p(f's_add_u32 {sT}, {sT}, {sS}')
        p(f's_lshl_b32 {sT2}, {sT}, 8'); p(f's_add_u32 {sT2}, {sT2}, {sBX}'); p(f's_add_u32 {sT2}, {sT2}, {H(OP)}')
        p(f'v_lshlrev_b32 {vOW}, 2, v0'); p(f'v_add_u32 {vOW}, {sT2}, {vOW}')
        p(f's_lshl_b32 {sOS0}, {sT}, 3'); p(f's_add_u32 {sOS0}, {sOS0}, {sBX}'); p(f's_add_u32 {sOS0}, {sOS0}, {H(OS)}')
        p(f's_mul_i32 {sT}, {sJ}, 0x2800'); p(f's_mul_i32 {sT2}, {sW}, 2560'); p(f's_add_u32 {sT}, {sT}, {sT2}'); p(f's_add_u32 {sT}, {sT}, {sBX}')
        p(f'v_add_u32 {vQR}, {sT}, {a16}')
        p(f'v_mov_b32 v{t1}, {H(OOB)}')
        p(f'v_cmp_gt_u32 vcc, 32, v0'); p(f'v_cndmask_b32 {vQR3}, v{t1}, {vQR}, vcc')
        p(f'v_and_b32 v{t0}, 1, v{vR}'); p(f'v_mul_u32_u24 v{t0}, 80, v{t0}')
        p(f'v_lshrrev_b32 v{t2}, 1, v{vR}'); p(f'v_lshl_add_u32 v{t0}, v{t2}, 4, v{t0}')
        p(f'v_cmp_gt_u32 vcc, 10, v{vR}'); p(f'v_cndmask_b32 v{t0}, v{t1}, v{t0}, vcc')
        p(f's_lshl_b32 {sT}, {sW}, 9'); p(f's_add_u32 {sT}, {sT}, {sBX}'); p(f's_add_u32 {sT}, {sT}, {H(ST)}'); p(f'v_add_u32 {vSR}, {sT}, v{t0}')
        p(f'v_and_b32 v{t0}, 7, v0'); p(f'v_lshl_add_u32 v{t0}, v{t0}, 2, v{vD}'); p(f's_lshl_b32 {sT}, {sW}, 5'); p(f'v_add_u32 v{t0}, {sT}, v{t0}')
        p(f'v_lshlrev_b32 {lQW}, 1, v{t0}')
        p(f'v_lshrrev_b32 v{t0}, 2, v0'); p(f'v_lshlrev_b32 {lQR}, 4, v{t0}')
        p(f'v_lshlrev_b32 {lMW}, 3, v0'); p(f'v_add_u32 {lMW}, {L_J1}, {lMW}')
        p(f's_lshl_b32 {sT}, {sW}, 3'); p(f's_add_u32 {sT}, {sT}, {L_ML}'); p(f'v_writelane_b32 {lMW}, {sT}, 63')
        p(f'v_add_u32 v{t0}, {sW}, v0'); p(f'v_and_b32 v{t0}, 3, v{t0}'); p(f'v_lshlrev_b32 v{t0}, 3, v{t0}'); p(f'v_add_u32 {lMR}, {L_ML}, v{t0}')
        p(f's_lshl_b32 {sT}, {sW}, 9'); p(f's_add_u32 {sT}, {sT}, {L_O}'); p(f'v_lshlrev_b32 {lOW}, 2, v0'); p(f'v_add_u32 {lOW}, {sT}, {lOW}')
        p(f'v_lshlrev_b32 {lOR}, 3, v0'); p(f'v_add_u32 {lOR}, {L_O}, {lOR}')
        p(f'v_mov_b32 {vC}, {H(f2u(CSC))}')
        for k in range(24): p(f'v_mov_b32 v{BQ+k}, 0')
        p(f'v_lshlrev_b32 v{T+15}, 2, v0'); p(f'v_and_b32 v{T+14}, 28, v{T+15}')

    def addrB(self):
        p = self.p
        sHF, sCB = sL, sLM
        p(f's_and_b32 {sHF}, {sIB}, 1'); p(f's_lshr_b32 {sCB}, {sIB}, 1')
        p(f'v_and_b32 v{t0}, 1, v{vG}'); p(f'v_lshlrev_b32 {vXW}, 11, v{t0}')
        p(f'v_and_b32 v{t0}, 7, v0'); p(f'v_lshl_add_u32 {vXW}, v{t0}, 4, {vXW}')
        p(f's_lshl_b32 {sT}, {sCB}, 12'); p(f's_lshl_b32 {sT2}, {sX}, 8'); p(f's_add_u32 {sT}, {sT}, {sT2}')
        p(f's_lshl_b32 {sT2}, {sHF}, 7'); p(f's_add_u32 {sT}, {sT}, {sT2}'); p(f's_add_u32 {sT}, {sT}, {H(XAo)}')
        p(f'v_add_u32 {vXW}, {sT}, {vXW}')
        p(f's_lshr_b32 {sT3}, {sW}, 1'); p(f's_lshl_b32 {sT}, {sHF}, 1'); p(f's_add_u32 {sT3}, {sT3}, {sT}')
        p(f'v_lshlrev_b32 {vOR}, 8, v{t0}')
        p(f'v_lshrrev_b32 v{t2}, 3, v{vR}'); p(f'v_lshl_add_u32 {vOR}, v{t2}, 6, {vOR}')
        p(f'v_lshl_add_u32 {vOR}, v{vG}, 4, {vOR}')
        p(f's_lshl_b32 {sT}, {sT3}, 11'); p(f's_and_b32 {sT2}, {sW}, 1'); p(f's_lshl_b32 {sT2}, {sT2}, 7'); p(f's_add_u32 {sT}, {sT}, {sT2}')
        p(f's_add_u32 {sT}, {sT}, {sBX}'); p(f's_add_u32 {sT}, {sT}, {H(OP)}'); p(f'v_add_u32 {vOR}, {sT}, {vOR}')
        p(f'v_lshl_add_u32 v{t1}, v{vG}, 2, v{vR}'); p(f'v_and_b32 v{t1}, 7, v{t1}'); p(f'v_lshlrev_b32 v{t1}, 3, v{t1}')
        p(f's_lshl_b32 {sT}, {sT3}, 6'); p(f's_add_u32 {sT}, {sT}, {sBX}'); p(f's_add_u32 {sT}, {sT}, {H(OS)}'); p(f'v_add_u32 {vOSR}, {sT}, v{t1}')
        p(f's_lshl_b32 {sT}, {sHF}, 2'); p(f's_add_u32 {sT}, {sT}, {sW}'); p(f's_mul_i32 {sT}, {sT}, 2560')
        p(f's_add_u32 {sT}, {sT}, {sBX}'); p(f's_add_u32 {sT}, {sT}, {H(HP)}'); p(f'v_add_u32 {vHR}, {sT}, {a16}')
        p(f's_cmp_eq_u32 {sW}, 3'); p(f's_cselect_b32 {sT3}, 6, 7')
        p(f'v_mov_b32 v{t1}, {H(OOB)}')
        p(f'v_cmp_gt_u32 vcc, {sT3}, v{t0}'); p(f'v_cndmask_b32 {vHR}, v{t1}, {vHR}, vcc')
        p(f'v_cmp_gt_u32 vcc, 32, v0'); p(f'v_cndmask_b32 {vHR3}, v{t1}, {vHR}, vcc')
        p(f'v_and_b32 v{T}, 1, v0'); p(f'v_lshlrev_b32 v{T}, 4, v{T}'); p(f'v_mov_b32 v{t1}, 0xffff'); p(f'v_lshlrev_b32 v{t1}, v{T}, v{t1}')
        p(f'v_cmp_gt_u32 vcc, {sT3}, v{vR}'); p(f'v_cndmask_b32 v{t1}, 0, v{t1}, vcc')
        p(f'v_bfe_u32 v{T}, v0, 1, 2')
        for k in range(4):
            p(f'v_cmp_eq_u32 vcc, {k}, v{T}'); p(f'v_cndmask_b32 v{MK+k}, 0, v{t1}, vcc')
        p(f's_lshl_b32 {sT}, {sW}, 9'); p(f's_add_u32 {sT}, {sT}, {L_R}')
        p(f'v_and_b32 v{T}, 1, v{vG}')
        p(f'v_lshlrev_b32 {lRR}, 8, v{t2}'); p(f'v_lshl_add_u32 {lRR}, v{t0}, 4, {lRR}'); p(f'v_lshl_add_u32 {lRR}, v{T}, 7, {lRR}')
        p(f'v_add_u32 {lRR}, {L_R}, {lRR}')
        p(f'v_lshlrev_b32 {lRW}, 8, v{t2}'); p(f'v_lshl_add_u32 {lRW}, v{t0}, 5, {lRW}'); p(f'v_lshl_add_u32 {lRW}, v{T}, 4, {lRW}')
        p(f'v_add_u32 {lRW}, {sT}, {lRW}')
        p(f'v_add_u32 v{t1}, {L_J2}, {a16}')
        p(f'v_lshrrev_b32 v{T}, 1, v{vG}'); p(f'v_cmp_eq_u32 vcc, v{t2}, v{T}')
        p(f'v_cndmask_b32 {lRW}, v{t1}, {lRW}, vcc')
        p(f'v_add_u32 {lRW2}, {sT}, {a16}')
        p(f'v_cmp_gt_u32 vcc, 32, v0'); p(f'v_cndmask_b32 {lRW2}, v{t1}, {lRW2}, vcc')
        p(f'v_lshl_add_u32 v{t0}, v{t0}, 2, v{vD}'); p(f'v_lshlrev_b32 {aB1v}, 1, v{t0}')
        p(f'v_mul_u32_u24 {aW2v}, 1280, v{vD}'); p(f'v_lshl_add_u32 {aW2v}, v{vR}, 3, {aW2v}')

    def addrA(self):
        p = self.p
        p(f's_lshl_b32 {sT}, {sW}, 9'); p(f's_lshl_b32 {sT2}, {sIA}, 2'); p(f's_add_u32 {sT}, {sT}, {sT2}'); p(f's_add_u32 {sT}, {sT}, {sBX}'); p(f's_add_u32 {sT}, {sT}, {H(ST)}')
        p(f'v_mov_b32 {vSW}, {sT}'); p(f's_add_u32 {sT}, {sT}, 80'); p(f'v_writelane_b32 {vSW}, {sT}, 0')
        if self.o.xs:
            p(f'v_lshlrev_b32 {vXR}, 3, v0'); p(f's_lshl_b32 {sT}, {sW}, 9'); p(f'v_add_u32 {vXR}, {sT}, {vXR}')
        else:
            p(f'v_and_b32 v{t0}, 7, v0'); p(f'v_lshlrev_b32 {vXR}, 7, v{t0}')
            p(f'v_lshrrev_b32 v{t0}, 3, v0'); p(f'v_lshl_add_u32 {vXR}, v{t0}, 4, {vXR}')
        p(f's_lshl_b32 {sT}, {sIA}, 11'); p(f's_add_u32 {sT}, {sT}, {H(XAo)}'); p(f'v_add_u32 {vXR}, {sT}, {vXR}')
        for k in range(4): p(f'v_mov_b32 v{XB+k}, 0x3f803f80')
        p(f'v_mul_u32_u24 {aW1v}, {8*3456}, v{vG}'); p(f'v_lshl_add_u32 {aW1v}, v{vR}, 3, {aW1v}')

    def prologue(self, A, B, name):
        p = self.p
        o = self.o
        vm0, tags0 = self.vm, dict(self.tags)
        self.vfree = False
        p(f'L_role{name}:')
        sSX, sSXX = sL, sLM
        D = {'A': o.dA, 'AB': o.dAB, 'B': o.dB}[name]
        vWQ, vWO, vXs = T + 12, T + 13, T + 14
        sQ, sO, sCL = sMc, sOS, sMode
        mv = self.mv
        if not A: self.vm, self.tags = 0, {}
        if not o.hk: self.late_head()
        if A:
            p(f'v_lshrrev_b32 v{t0}, 2, v{vR}'); p(f'v_mul_u32_u24 {vQW}, 2560, v{t0}')
            p(f'v_and_b32 v{t0}, 3, v{vR}'); p(f'v_lshl_add_u32 {vQW}, v{t0}, 5, {vQW}')
            p(f'v_lshl_add_u32 {vQW}, v{vG}, 4, {vQW}')
            p(f's_mul_i32 {sT}, {sW}, 0x2800'); p(f's_lshl_b32 {sT2}, {sIA}, 7'); p(f's_add_u32 {sT2}, {sT2}, {sBX}'); p(f's_add_u32 {sT}, {sT}, {sT2}')
            p(f'v_add_u32 {vQW}, {sT}, {vQW}')
            p('s_mov_b32 exec_hi, 0')
            self.vmem(f'buffer_store_dwordx4 {vr(SN,4)}, {vQW}, {srd("WS")}, 0 offen sc1', tag='CLR')
            p('s_mov_b64 exec, -1')
            p(f's_lshl_b32 {sT}, {sW}, 4'); p(f'v_add_u32 v{t0}, {sT}, v{vR}')
            p(f'v_subrev_u32 v{t1}, 27, v{t0}')
            p(f'v_cmp_le_u32 vcc, 27, v{t0}'); p(f'v_cndmask_b32 v{t1}, v{t0}, v{t1}, vcc')
            p(f'v_cndmask_b32 v{t2}, 0, 4, vcc')
            p(f'v_mul_u32_u24 {vHW}, 37, v{t1}'); p(f'v_lshrrev_b32 {vHW}, 8, {vHW}')
            p(f'v_add_u32 v{t2}, v{t2}, {vHW}')
            p(f'v_mul_u32_u24 {vHW}, 7, {vHW}'); p(f'v_sub_u32 v{t1}, v{t1}, {vHW}')
            p(f'v_mul_u32_u24 {vHW}, 2560, v{t2}'); p(f'v_lshl_add_u32 {vHW}, v{t1}, 4, {vHW}')
            p(f's_add_u32 {sT2}, {sT2}, {H(HP)}'); p(f'v_add_u32 {vHW}, {sT2}, {vHW}')
            p(f'v_mov_b32 v{t1}, {H(OOB)}')
            p(f'v_cmp_gt_u32 vcc, 54, v{t0}'); p(f'v_cndmask_b32 {vHW}, v{t1}, {vHW}, vcc')
            p(f's_mov_b32 {sT2}, {H(CSL)}')
            p('s_mov_b64 exec, 0xffff')
            self.vmem(f'buffer_store_dwordx4 {vr(SN,4)}, {vHW}, {srd("WS")}, {sT2} offen sc1', tag='CLR')
            p('s_mov_b64 exec, -1')
        else:
            p(f's_sub_u32 {sT}, {sC}, 20'); p(f's_lshl_b32 {sT}, {sT}, 2'); p(f's_add_u32 {sT3}, {sT}, {sW}')
            p(f's_lshl_b32 {sT}, {sT3}, 10')
            p(f's_add_u32 {sCL}, {sT}, {sBX}'); p(f's_add_u32 {sCL}, {sCL}, {H(OP)}')
            p(f's_mul_i32 {sT2}, {sX}, 5120'); p(f's_add_u32 {sT}, {sT}, {sT2}'); p(f's_add_u32 {sT}, {sT}, {H(XAo - 31 * 1024)}')
            p(f's_cmp_lt_u32 {sT3}, 31'); p(f's_cselect_b32 {sCL}, {sCL}, {sT}')
            p(f's_cmp_lt_u32 {sT3}, 36'); p(f's_cselect_b32 {sCL}, {sCL}, {H(OOB)}')
            p(f'v_add_u32 v{t0}, {sCL}, {a16}')
            self.vmem(f'buffer_store_dwordx4 {vr(SN,4)}, v{t0}, {srd("WS")}, 0 offen sc1', tag='CLR')
        mv('K'); mv('V')
        p(f's_getreg_b32 {sFlag}, hwreg(HW_REG_XCC_ID)'); p(f's_and_b32 {sFlag}, {sFlag}, 15'); p(f's_or_b32 {sFlag}, {sFlag}, 0x80')
        WOl = []
        if B:
            for jj in range(8):
                def f(jj=jj):
                    self.vmem(f'buffer_load_dwordx4 {vr(WOR+4*jj,4)}, v{vWO}, {srd("WO")}, {sO} offen nt', tag='WO')
                    if jj < 7: p(f's_add_u32 {sO}, {sO}, {8*1280}')
                WOl.append(('WO', f))
        Wl = []
        if A:
            for jj in range(8):
                def f(jj=jj):
                    if jj == 0:
                        p(f's_mul_i32 {sWA}, {sIA}, {32*3456}'); p(f's_mul_i32 {sWB}, {sX}, 432'); p(f's_add_u32 {sWA}, {sWA}, {sWB}')
                        p(f's_lshl_b32 {sWB}, {sW}, 7'); p(f's_add_u32 {sWA}, {sWA}, {sWB}')
                    else: p(f's_add_u32 {sWA}, {sWA}, 3456')
                    self.vmem(f'buffer_load_dwordx2 {ar(aW1+2*jj,2)}, {aW1v}, {srd("W1")}, {sWA} offen {o.w1nt}', tag='W1')
                Wl.append(('W', f))
        if B:
            for jj in range(8):
                def f(jj=jj):
                    if jj == 0:
                        p(f's_mul_i32 {sWA}, {sX}, 216'); p(f's_and_b32 {sWB}, {sIB}, 1'); p(f's_mul_i32 {sWB}, {sWB}, 108'); p(f's_add_u32 {sWA}, {sWA}, {sWB}')
                        p(f's_mul_i32 {sWB}, {sW}, 28'); p(f's_add_u32 {sWA}, {sWA}, {sWB}')
                        p(f's_lshl_b32 {sWB}, {sWA}, 1')
                        self.vmem(f'buffer_load_ushort a{aB1}, {aB1v}, {srd("B1")}, {sWB} offen', tag='B1')
                        p(f's_mul_i32 {sWA}, {sWA}, 1280'); p(f's_lshr_b32 {sWB}, {sIB}, 1'); p(f's_lshl_b32 {sWB}, {sWB}, 7'); p(f's_add_u32 {sWA}, {sWA}, {sWB}')
                    else: p(f's_add_u32 {sWA}, {sWA}, {4*1280}')
                    self.vmem(f'buffer_load_dwordx2 {ar(aW2+2*jj,2)}, {aW2v}, {srd("W2")}, {sWA} offen {o.w2nt}', tag='W2')
                Wl.append(('W', f))
        KV = [(f'K{m}', (lambda m=m: self.kload(m))) for m in range(32)] + [(f'V{m}', (lambda m=m: self.vload(m))) for m in range(32)]
        wi = o.wposAB if A else o.wposB
        if not A: WOl = WOl[o.n0B:]
        st = KV[:wi] + WOl + KV[wi:]
        FL = vR
        i2 = [k for k, f in st].index(o.fpos2)
        st.insert(i2, ('FL2', lambda: self.vmem(f'buffer_load_dword v{FL}, v{T+15}, {srd("DBG")}, 0 offen sc1', tag='FL2')))
        if A and (not B or o.abw1) and 'w1' not in o.skip: st += Wl[:8]; Wl = Wl[8:]
        def adv(n, thr=True):
            while n > 0 and st:
                k, f = st.pop(0); f(); n -= 1
                if o.exit10 and k in KST: self.stamp(12 + KST.index(k))
                if thr and D + thr - 1 < 63: p(f's_waitcnt vmcnt({D + (thr - 1)})')
        def until(key, thr=True):
            keys = [k for k, f in st]
            if key in keys: adv(keys.index(key), thr)
        def flag():
            p(f's_lshl_b32 {sT}, {sX}, 5'); p(f's_add_u32 {sT}, {sT}, {sC}'); p(f's_lshl_b32 {sT2}, {sW}, 8'); p(f's_add_u32 {sT}, {sT}, {sT2}')
            p(f'v_mov_b32 v{t0}, {sFlag}'); p(f'v_mov_b32 v{t1}, {sT}')
            self.wait('CLR')
            p('s_waitcnt lgkmcnt(0)')
            p('s_barrier')
            p('s_mov_b64 exec, 1')
            self.vmem(f'buffer_store_byte v{t0}, v{t1}, {srd("DBG")}, 0 offen sc1', tag='FLAG')
            p('s_mov_b64 exec, -1')
            self.stamp(1)
        adv(o.n1A if A else o.n1B, False)
        mv('W1'); mv('B1')
        if o.stamps:
            p(f'v_mov_b32 {vSTAMP}, 0')
            p(f'v_writelane_b32 {vSTAMP}, s96, 0')
            p(f'v_writelane_b32 {vSTAMP}, s98, 34')
        for n in ('DBG', 'B2', 'W2', 'OUT'):
            p(f's_load_dwordx2 s[{SRD[n]}:{SRD[n]+1}], s[0:1], {KOFF[n]}')
        if A:
            self.addrA()
            self.wait('XF')
            self.stamp(8)
            p(f'v_mov_b32 v{t0}, 0'); p(f'v_mov_b32 v{t1}, 0'); p(f'v_mov_b32 v{t2}, 0x3f803f80')
            for k in range(8):
                p(f'v_dot2_f32_bf16 v{t0}, v{XF+k}, v{t2}, v{t0}')
                p(f'v_dot2_f32_bf16 v{t1}, v{XF+k}, v{XF+k}, v{t1}')
            for s in self.unpack_xr(False): p(s)
            p(f'v_permlane32_swap_b32 v{t0}, v{t1}')
            p(f'v_add_f32 v{t0}, v{t0}, v{t1}')
            for n in (1, 2, 4, 8): p(f'v_add_f32_dpp v{t0}, v{t0}, v{t0} row_ror:{n} {DF}')
            p(f'v_add_f32_dpp v{t0}, v{t0}, v{t0} row_bcast:15 row_mask:0xa bank_mask:0xf')
            p(f'v_mul_f32 v{t0}, {H(f2u(1.0 / 640))}, v{t0}')
            p(f'v_readlane_b32 {sSX}, v{t0}, 31'); p(f'v_readlane_b32 {sSXX}, v{t0}, 63')
            p(f'v_mov_b32 v{t0}, {sSX}'); p(f'v_mov_b32 v{t1}, {sSXX}')
            p(f'v_fma_f32 v{t1}, -v{t0}, v{t0}, v{t1}'); p(f'v_max_f32 v{t1}, 0, v{t1}')
            p(f'v_add_f32 v{t1}, {H(f2u(EPS))}, v{t1}'); p(f'v_rsq_f32 v{t1}, v{t1}')
            p(f'v_mul_f32 v{t0}, v{t0}, v{t1}')
            for k in range(4): p(f'v_fma_f32 v{T+k}, v{XR+k}, v{t1}, -v{t0}')
            p(f'v_cvt_pk_bf16_f32 v{XA}, v{T}, v{T+1}'); p(f'v_cvt_pk_bf16_f32 v{XA+1}, v{T+2}, v{T+3}')
            self.build_xa()
            self.lgkm(0)
            p(f's_lshl_b32 {sT}, {sIA}, 6')
            self.vmem(f'buffer_load_dwordx2 {ar(aB2,2)}, v{vXs}, {srd("B2")}, {sT} offen', tag='B2')
            adv(o.n2, False)
            self.stamp(29)
            self.wait('WQ')
            self.stamp(9)
            def pre(d):
                dp, hi = d >> 1, d & 1
                return [f'v_perm_b32 v{WT+4*d+tau}, v{WR+(2*tau+1)*4+dp}, v{WR+(2*tau)*4+dp}, {sHi if hi else sLo}' for tau in range(4)]
            self.qp(XA, '0', 'sc1', False, True, wv=WT, pre=pre, prest=lambda: self.wait('CLR'))
            self.stamp(2)
            flag()
            adv(2, False)
            p(f's_mov_b32 {sT2}, {H(CSL)}')
            if 'cq' not in o.skip: self.qp(XB, sT2, 'sc1', False, True, wv=WT, tag='CQ')
            adv(1, True)
            for k in range(32): p(f'v_accvgpr_write_b32 a{aWQ+k}, v{WT+k}')
            adv(1, True)
            self.common_addr()
            self.wait('B2')
            p(f'v_accvgpr_read_b32 v{t0}, a{aB2}'); p(f'v_accvgpr_read_b32 v{t1}, a{aB2+1}')
            p(f'v_lshlrev_b32 v{B2}, 16, v{t0}'); p(f'v_and_b32 v{B2+1}, 0xffff0000, v{t0}')
            p(f'v_lshlrev_b32 v{B2+2}, 16, v{t1}'); p(f'v_and_b32 v{B2+3}, 0xffff0000, v{t1}')
            adv(2, True)
            if B:
                self.addrB()
        else:
            self.common_addr()
            adv(1, True)
            self.addrB()
            adv(o.n2B, True)
            flag()
        until(o.fposAB if (A and B) else o.fposA if A else o.fposB)
        self.stamp(3)
        p(f's_lshl_b32 {sT3}, {sX}, 5')
        self.vmem(f'buffer_load_dword v{FL}, v{T+14}, {srd("DBG")}, {sT3} offen sc1', tag='FL')
        nF = D + o.dFo
        if B:
            assert not any(k == 'WO' for k, f in st)
            adv(2, True); nF -= 2
            self.wait('WO')
            self.transpose(aWO, 4, WOR, T, rd=False)
        self.vfree = True
        adv(min(nF, nF - o.dFo - 1), True)
        adv(max(0, o.dFo + 1), False)
        p(f's_mul_i32 {sFlag}, {sFlag}, 0x01010101')
        self.wait('FL')
        Lfp, Lfok, Lfc = p.label('Lfp'), p.label('Lfok'), p.label('Lfc')
        self.flush()
        p(f'{Lfc}:')
        p(f'v_and_b32 v{t0}, 0x80808080, v{FL}')
        p(f'v_cmp_ne_u32 vcc, 0x80808080, v{t0}')
        Lr = self.retry(Lfp, Lfok)
        self.ool.append([f'{Lfp}:', f'buffer_load_dword v{FL}, v{T+14}, {srd("DBG")}, {sT3} offen sc1',
                         's_waitcnt vmcnt(0)', f's_branch {Lfc}'])
        p(f's_cbranch_vccnz {Lr}')
        p(f'{Lfok}:')
        p(f'v_cmp_ne_u32 vcc, {sFlag}, v{FL}')
        p(f's_or_b32 {sMode}, vcc_lo, vcc_hi')
        if o.forceslow: p(f's_mov_b32 {sMode}, 1')
        adv(o.dG, True)
        for s_ in self.g3_list(ACC, vQR, vQR3, '0'):
            if 'q0' in o.skip: s_ = s_.replace(vQR3 + ',', 'v1,').replace(vQR + ',', 'v1,').replace(srd('WS'), srd('K')).replace(' sc1', '')
            self.vmem(s_, tag='Q0')
        self.stamp(4)
        adv(min(D + o.dQo, D - 1), 3)
        adv(max(0, o.dQo + 1), False)
        u, sc = T, T + 3
        self.wait('Q0')
        self.flush()
        Lq, Lqp = p.label('Lq'), p.label('Lqp')
        p(f'{Lq}:')
        for s_ in self.g3_sum(ACC, f'v{u}'): p(s_)
        self.ool.append([f'{Lqp}:'] + self.g3_list(ACC, vQR, vQR3, '0') + ['s_waitcnt vmcnt(0)', f's_branch {Lq}'])
        adv(o.dX, False)
        self.q_finish(u, None, None, sc, Lqp, ln=False)
        self.stamp(5)
        self.flush()
        until(o.qkpos)
        self.wait('K31')
        qi = [int(c) for c in o.qkiss]
        self.qk_softmax(lambda n: adv(qi[n], False))
        self.stamp(6)
        adv(qi[5], False)
        for op in self.ml_ops('mode'): self.run_op(op)
        if not (A and B) and 'clr2' not in o.skip:
            for k in range(4): p(f'v_mov_b32 v{SN+k}, -1')
            p(f's_lshl_b32 {sT}, {sC}, 2'); p(f's_add_u32 {sT}, {sT}, {sW}')
            if B: p(f's_sub_u32 {sT}, {sT}, 32')
            Lnc, Lg, Lsl = p.label('Lnc'), p.label('Lg'), p.label('Lsl')
            p(f's_lshl_b32 {sT2}, {sT}, 10')
            if B:
                p(f's_cmp_ge_u32 {sT}, 71'); p(f's_cbranch_scc1 {Lg}')
            p(f's_add_u32 {sT2}, {sT2}, {sBX}'); p(f's_add_u32 {sT2}, {sT2}, {H(LSTR)}')
            if o.clrfast:
                p(f's_cmp_lg_u32 {sMode}, 0'); p(f's_cbranch_scc1 {Lsl}')
                self.vmem(f'buffer_store_dwordx4 {vr(SN,4)}, {a16}, {srd("WS")}, {sT2} offen', optional=True)
                p(f's_branch {Lnc}')
            elif B: p(f's_branch {Lsl}')
            if B:
                p(f'{Lg}:')
                p(f's_cmp_ge_u32 {sT}, 86'); p(f's_cbranch_scc1 {Lnc}')
                p(f's_mul_i32 {sT3}, {sX}, {15*1024}'); p(f's_add_u32 {sT2}, {sT2}, {sT3}'); p(f's_add_u32 {sT2}, {sT2}, {H(XMo - 71*1024)}')
                p(f's_add_u32 {sT3}, {sT2}, {H(XAo)}')
                p(f's_cmp_ge_u32 {sT2}, {H(LSTR)}'); p(f's_cselect_b32 {sT2}, {sT3}, {sT2}')
            p(f'{Lsl}:')
            self.vmem(f'buffer_store_dwordx4 {vr(SN,4)}, {a16}, {srd("WS")}, {sT2} offen sc1', optional=True, tag='CLR2')
            p(f'{Lnc}:')
        if o.pf1: self.fwd = True; self.pfcode(f'L_loop{name}_fast', f'L_loop{name}_slow')
        self.stamp(7)
        self.flush()
        def hook(pp):
            keys = [k for k, f in st]
            need = f'V{2*pp+1}'
            if need in keys: adv(keys.index(need) + 1, False)
            behind = self.vm - self.tags[need]
            if behind < D: adv(D - behind, False)
        hooks = {pp: (lambda pp=pp: hook(pp)) for pp in range(16)}
        self.pv([], True, hooks=hooks)
        assert 'FL2' in self.tags
        if not (A and B) and 'clr2' not in o.skip: self.wait('CLR2')
        if o.exit10:
            self.stamp(10); self.finish()
            for code in self.ool:
                for s in code: p(s)
            self.ool = []
            self.vm, self.tags = vm0, tags0
            return
        self.rest = list(st); self.rest2 = Wl
        self.set_layer(0)
        self.flush()
        p(f's_cmp_eq_u32 {sMode}, 0'); p(f's_cbranch_scc1 L_loop{name}_fast')
        p(f's_branch L_loop{name}_slow')
        for code in self.ool:
            for s in code: p(s)
        self.ool = []
        self.chain(A, B, True, f'L_loop{name}_fast')
        state = (self.vm, dict(self.tags), self.rest, self.rest2)
        def slow():
            self.vm, self.tags, self.rest, self.rest2 = state[0], dict(state[1]), state[2], state[3]
            self.vfree = True
            self.chain(A, B, False, f'L_loop{name}_slow')
        if o.pfa: self.later.append(slow)
        else: slow()
        self.vm, self.tags = vm0, tags0


def main():
    ap = argparse.ArgumentParser()
    ap.add_argument('out')
    ap.add_argument('--stamps', type=int, default=0)
    ap.add_argument('--x8delay', type=int, default=0)
    ap.add_argument('--pdx', type=int, default=0)
    ap.add_argument('--pdo', type=int, default=0)
    ap.add_argument('--skip', type=str, default='')
    ap.add_argument('--exit10', type=int, default=0)
    ap.add_argument('--qkiss', type=str, default='000003')
    ap.add_argument('--clrfast', type=int, default=1)
    ap.add_argument('--xs', type=int, default=0)
    ap.add_argument('--xgap', type=int, default=6)
    ap.add_argument('--abw1', type=int, default=1)
    ap.add_argument('--abc1', type=int, default=1)
    ap.add_argument('--pf0', type=int, default=0)
    ap.add_argument('--pf1', type=int, default=0)
    ap.add_argument('--pfsel', type=int, default=1)
    ap.add_argument('--pfa', type=int, default=0)
    ap.add_argument('--order', type=str, default='A,AB,B')
    ap.add_argument('--hk', type=int, default=0)
    ap.add_argument('--n2B', type=int, default=2)
    ap.add_argument('--n0A', type=int, default=0)
    ap.add_argument('--n0B', type=int, default=8)
    ap.add_argument('--n1A', type=int, default=6)
    ap.add_argument('--n1B', type=int, default=4)
    ap.add_argument('--n2', type=int, default=4)
    ap.add_argument('--dA', type=int, default=10)
    ap.add_argument('--dAB', type=int, default=16)
    ap.add_argument('--dB', type=int, default=10)
    ap.add_argument('--dFo', type=int, default=-1)
    ap.add_argument('--dG', type=int, default=0)
    ap.add_argument('--dQo', type=int, default=-2)
    ap.add_argument('--dX', type=int, default=2)
    ap.add_argument('--wposAB', type=int, default=0)
    ap.add_argument('--wposB', type=int, default=0)
    ap.add_argument('--fposA', type=str, default='K16')
    ap.add_argument('--fposAB', type=str, default='K8')
    ap.add_argument('--fposB', type=str, default='K12')
    ap.add_argument('--fpos2', type=str, default='V26')
    ap.add_argument('--qkpos', type=str, default='V8')
    ap.add_argument('--w1nt', type=str, default='')
    ap.add_argument('--w2nt', type=str, default='')
    ap.add_argument('--w2late', type=int, default=0)
    ap.add_argument('--pre', type=int, default=1)
    ap.add_argument('--forceslow', type=int, default=0)
    o = ap.parse_args()
    g = G(o)
    g.head()
    for r in o.order.split(','):
        g.prologue('A' in r, 'B' in r, r)
    g.p('L_fastend:')
    for f in g.later: f()
    body = g.p.finalize()
    ref = open('cdna_kernels/' + NAME + '.s.ref').read()
    comment = ''.join(l + '\n' for l in ref.split('\n') if l.startswith(';') and '@launch' not in l)
    open(o.out, 'w').write(header(256, 256, LDS_SIZE, comment=comment) + body + footer())
    print('instrs', len(g.p.items), 'nops inserted', g.p.nnops)

main()
```

```python
import sys, struct, math, argparse
from asmlib2 import *

def f2u(x): return struct.unpack('<I', struct.pack('<f', x))[0]
def H(x): return f'0x{x & 0xffffffff:x}'

GB = 0x11C00
QP = 0x0
OP = 0xA000
HP = 0xC000
ST = 0x11000
OS = 0x11800
XAo = 8 * GB
XMo = XAo + 0xA000
LSTR = XMo + 0xA000
CSL = 2 * LSTR
NDEF = (2 * LSTR - XMo) // 1024
OOB = 0x80000000
L_Q, L_ML, L_J1, L_O, L_R, L_J2 = 0, 256, 512, 1024, 3072, 7168
L_X = 10240
LDS_SIZE = 12800
sX, sC, sJ, sS, sW = 's3', 's4', 's5', 's6', 's7'
SRD = dict(K=8, V=12, WS=16, X=20, WQ=24, WO=28, W1=32, B1=36, W2=40, B2=44, OUT=48, DBG=52)
KOFF = dict(X=0, K=8, V=16, WQ=24, WO=32, W1=48, B1=56, W2=64, B2=72, OUT=80, DBG=88, WS=96)
SIZE = dict(X=1280, K=1 << 25, V=1 << 25, WQ=640 * 8192, WO=4096 * 1280, W1=640 * 3456, B1=3456, W2=1728 * 1280,
            B2=1280, OUT=1280, DBG=256, WS=1 << 28)
def srd(n): return f's[{SRD[n]}:{SRD[n]+3}]'
sKV = 56
sL, sOS, sLM, sT, sT2, sBud, sLo, sHi, sMc, sIA, sIB, sFlag, sBX, sT3 = [f's{i}' for i in range(64, 78)]
sMode = 's78'
sOS0 = 's79'
sMB = 80
sMF = 88
sWA, sWB = 's90', 's91'
sSTAMP = 92
KA = 80
vLane, a16 = 'v0', 'v1'
vQW, vQR, vQR3, vSW, vSR, vHR3, vOW, vOR, lRW2, vOSR, vXW, vXR, vHW, vHR = [f'v{i}' for i in range(2, 16)]
lQW, lQR, lMW, lMR, lOW, lOR, lRW, lRR = [f'v{i}' for i in range(16, 24)]
CSQ, CS1, B1v, vC = 'v24', 'v25', 'v26', 'v27'
MK, XA, XB, XR, B2, BQ, PA, ACC, T = 28, 32, 36, 40, 44, 48, 64, 72, 104
VB = 126
vR, vG, t0, t1, t2, vD = 114, 115, 120, 121, 122, 123
XF = 40
SN = ACC + 28
vK = 'v124'
vSTAMP = 'v125'
WR, WT, WOR = 128, 160, 192
aWQ, aWO, aW1, aW2, aX, aB2, aB1, aC1, aCQ = 128, 160, 192, 208, 224, 226, 228, 232, 244
aW2v, aB1v, aW1v = CSQ, B1v, CS1
def v(i): return f'v{i}'
def vr(i, n): return f'v[{i}:{i+n-1}]'
def ar(i, n): return f'a[{i}:{i+n-1}]'
DF = 'row_mask:0xf bank_mask:0xf'
MFMA = 'v_mfma_f32_16x16x32_bf16'
CSC = (128 ** -0.5) * math.log2(math.e)
EPS = 1e-5
KST = ['K0', 'K4', 'K8', 'K12', 'K16', 'K20', 'K24', 'K28', 'V0', 'V4', 'V8', 'V12', 'V16', 'V20', 'V24', 'V28', 'V31']


class G:
    def __init__(self, opt):
        self.p = Prog()
        self.o = opt
        self.vm = 0
        self.tags = {}
        self.pend = []
        self.ool = []
        self.nst = 0
        self.later = []

    def __call__(self, s): self.p(s)

    def vmem(self, s, tag=None, optional=False):
        self.p(s)
        if not optional:
            self.vm += 1
        if tag: self.tags[tag] = self.vm
    def wait(self, tag):
        n = self.vm - self.tags[tag]
        assert 0 <= n
        self.p(f's_waitcnt vmcnt({min(n, 63)})')
    def stamp(self, k):
        if not self.o.stamps: return
        if len(self.pend) >= 5: self.lgkm(0)
        r = sSTAMP + 2 * (self.nst % 5); self.nst += 1
        self.p(f's_memrealtime s[{r}:{r+1}]')
        self.pend.append((k, r))
    def lgkm(self, n):
        if self.pend:
            self.p('s_waitcnt lgkmcnt(0)')
            for k, r in self.pend:
                self.p(f'v_writelane_b32 {vSTAMP}, s{r}, {k}')
            self.pend = []
        else:
            self.p(f's_waitcnt lgkmcnt({n})')
    def flush(self):
        if self.pend: self.lgkm(0)

    def transpose(self, abase, W, tmp, tmp2, rd=True):
        p = self.p
        n = 8 * W
        if rd:
            for k in range(n):
                p(f'v_accvgpr_read_b32 v{tmp+k}, a{abase+k}')
        cnt = 0
        prev = None
        for dp in range(W):
            for hi in range(2):
                for tau in range(4):
                    t = tmp2 + (cnt & 1); cnt += 1
                    p(f'v_perm_b32 v{t}, v{tmp+(2*tau+1)*W+dp}, v{tmp+(2*tau)*W+dp}, {sHi if hi else sLo}')
                    p(f'v_accvgpr_write_b32 a{abase+(2*dp+hi)*4+tau}, v{t}')

    def build_xa(self):
        p = self.p
        p(f'v_mov_b32_dpp v{XA+2}, v{XA} row_ror:8 {DF}')
        p(f'v_mov_b32_dpp v{XA+3}, v{XA+1} row_ror:8 {DF}')

    def xb_ops(self):
        return [f'v_mov_b32_dpp v{XB+k}, v{XA+k} quad_perm:[0,1,2,3] row_mask:0xf bank_mask:0x3' for k in range(4)]

    def unpack_xr(self, addb2):
        ops = [f'v_lshlrev_b32 v{XR}, 16, v{XA}', f'v_and_b32 v{XR+1}, 0xffff0000, v{XA}',
               f'v_lshlrev_b32 v{XR+2}, 16, v{XA+1}', f'v_and_b32 v{XR+3}, 0xffff0000, v{XA+1}']
        if addb2:
            ops += [f'v_pk_add_f32 {vr(XR,2)}, {vr(XR,2)}, {vr(B2,2)}', f'v_pk_add_f32 {vr(XR+2,2)}, {vr(XR+2,2)}, {vr(B2+2,2)}']
        return ops

    def qp(self, A, soff, fl, stats, track, post=(), wv=None, pre=None, tag=None, prest=None):
        p = self.p
        st = T + 16
        xb = self.xb_ops() if stats else []
        order = [0, 4, 1, 5, 2, 6, 3, 7]
        mov = {}
        for d in range(8):
            if d == 0: mov[d] = None
            elif d < 4: mov[d] = f'v_mov_b32_dpp v{ACC+d}, v{ACC+4*d} quad_perm:[0,1,2,3] row_mask:0x1 bank_mask:0xf'
            else: mov[d] = f'v_mov_b32_dpp v{ACC+d-4}, v{ACC+4*d} quad_perm:[0,1,2,3] row_mask:0x2 bank_mask:0xf'
        for n, d in enumerate(order):
            if pre:
                for s_ in pre(d): p(s_)
            p(f'{MFMA} {vr(ACC+4*d,4)}, {vr(A,4)}, {vr(wv+4*d,4) if wv else ar(aWQ+4*d,4)}, 0')
            if n < 2 and xb:
                p(xb[2*n]); p(xb[2*n+1])
            if n == 3 and stats:
                p(f'{MFMA} {vr(st,4)}, {vr(XA,4)}, {vr(XB,4)}, 0')
        p('s_mov_b32 exec_hi, 0')
        for d in order[1:]:
            p(mov[d])
        if prest: prest()
        self.vmem(f'buffer_store_dwordx4 {vr(ACC,4)}, {vQW}, {srd("WS")}, {soff} offen {fl}', optional=not track, tag=tag)
        if stats:
            p('s_mov_b64 exec, 0x101')
            self.vmem(f'buffer_store_dword v{st}, {vSW}, {srd("WS")}, {soff} offen {fl}', optional=not track)
        p('s_mov_b64 exec, -1')
        for s in post: p(s)

    def w1(self, A, soff, fl, stats, track, post=()):
        p = self.p
        st = T + 16
        xb = self.xb_ops() if stats else []
        for d in range(4):
            p(f'{MFMA} {vr(ACC+4*d,4)}, {vr(A,4)}, {ar(aW1+4*d,4)}, 0')
            if d < 2 and xb:
                p(xb[2*d]); p(xb[2*d+1])
        if stats:
            p(f'{MFMA} {vr(st,4)}, {vr(XA,4)}, {vr(XB,4)}, 0')
        p('s_mov_b64 exec, 0xffff')
        for d in range(1, 4):
            p(f'v_mov_b32 v{ACC+d}, v{ACC+4*d}')
        self.vmem(f'buffer_store_dwordx4 {vr(ACC,4)}, {vHW}, {srd("WS")}, {soff} offen {fl}', optional=not track)
        if stats:
            p('s_mov_b64 exec, 0x101')
            self.vmem(f'buffer_store_dword v{st}, {vSW}, {srd("WS")}, {soff} offen offset:256 {fl}', optional=not track)
        p('s_mov_b64 exec, -1')
        for s in post: p(s)

    def rs4(self, a, out):
        return [f'v_permlane32_swap_b32 v{a}, v{a+1}', f'v_permlane32_swap_b32 v{a+2}, v{a+3}',
                f'v_add_f32 v{a}, v{a}, v{a+1}', f'v_add_f32 v{a+2}, v{a+2}, v{a+3}',
                f'v_permlane16_swap_b32 v{a}, v{a+2}', f'v_add_f32 {out}, v{a}, v{a+2}']

    def stats_ops(self, s4, st, mean, sc, second):
        inv = H(f2u(1.0 / 640))
        ops = [f'v_pk_add_f32 {vr(s4,2)}, {vr(s4,2)}, {vr(s4+2,2)}',
               f'v_add_f32 v{st}, v{s4}, v{s4+1}',
               f'v_add_f32_dpp v{st}, v{st}, v{st} row_ror:2 {DF}',
               f'v_add_f32_dpp v{st}, v{st}, v{st} row_ror:4 {DF}',
               f'v_add_f32_dpp v{st}, v{st}, v{st} row_ror:8 {DF}',
               f'v_mul_f32 v{st}, {inv}, v{st}',
               f'v_mov_b32_dpp v{mean}, v{st} quad_perm:[0,0,2,2] {DF}',
               f'v_mov_b32_dpp v{sc}, v{st} quad_perm:[1,1,3,3] {DF}',
               f'v_fma_f32 v{sc}, -v{mean}, v{mean}, v{sc}',
               f'v_max_f32 v{sc}, 0, v{sc}']
        if second:
            ops += [f'v_mul_f32 v{sc}, {H(f2u(1.0 + EPS))}, v{sc}', f'v_add_f32 v{sc}, {H(f2u(EPS * EPS))}, v{sc}']
        else:
            ops += [f'v_add_f32 v{sc}, {H(f2u(EPS))}, v{sc}']
        ops += [f'v_rsq_f32 v{sc}, v{sc}']
        return ops

    def merge(self, *lists):
        lists = [list(l) for l in lists]
        while any(lists):
            for l in lists:
                if l: self.p(l.pop(0))

    def retry(self, Lp, Lok, extra=()):
        Lr = self.p.label('Lretry')
        code = [f'{Lr}:',
                f's_cmp_eq_u32 {sBud}, 0', f's_cbranch_scc1 {Lok}', f's_sub_u32 {sBud}, {sBud}, 1'] + list(extra) + [f's_branch {Lp}']
        self.ool.append(code)
        return Lr

    def bud(self):
        Lok, Lg = self.p.label('Lok'), self.p.label('Lgive')
        self.p(f's_sub_u32 {sBud}, {sBud}, 1'); self.p(f's_cbranch_scc1 {Lg}')
        self.ool.append([f'{Lg}:', f's_mov_b32 {sBud}, 0', 's_waitcnt vmcnt(0)', f's_branch {Lok}'])
        return Lok

    def g3_list(self, base, va, va3, soff, acc=False):
        return [f'buffer_load_dwordx4 {(ar if acc else vr)(base+4*t,4)}, {va3 if t == 2 else va}, {srd("WS")}, {soff} offen offset:{1024*t} sc1' for t in range(3)]
    def g3_sum(self, base, out):
        return [f'v_pk_add_f32 {vr(base,2)}, {vr(base,2)}, {vr(base+4,2)}', f'v_pk_add_f32 {vr(base+2,2)}, {vr(base+2,2)}, {vr(base+6,2)}',
                f'v_pk_add_f32 {vr(base,2)}, {vr(base,2)}, {vr(base+8,2)}', f'v_pk_add_f32 {vr(base+2,2)}, {vr(base+2,2)}, {vr(base+10,2)}'] \
            + self.rs4(base, out) + [f'v_add_f32_dpp {out}, {out}, {out} row_ror:8 {DF}']

    def q_finish(self, u, st, mean, sc, Lp, ln=True):
        p = self.p
        if isinstance(Lp, tuple): Lr, Lok = Lp
        else:
            Lok = p.label('Lok')
            Lr = self.retry(Lp, Lok)
        if ln:
            p(f'v_fma_f32 v{u}, -v{mean}, {CSQ}, v{u}')
            p(f'v_mul_f32 v{u}, v{u}, v{sc}')
        p(f'v_cvt_pk_bf16_f32 v{sc}, v{u}, v{u}')
        p(f'v_cmp_u_f32 vcc, v{u}, v{st if ln else u}')
        p(f's_cbranch_vccnz {Lr}')
        p(f'{Lok}:')
        p(f'ds_write_b16 {lQW}, v{sc}')
        self.lgkm(0)
        p('s_barrier')

    def qk_softmax(self, iss=lambda n: None):
        p = self.p
        S = [T, T + 1]
        for b in range(4):
            p(f's_mov_b64 exec, s[{sMB+2*b}:{sMB+2*b+1}]')
            p(f'ds_read_b128 {vr(BQ+4*b,4)}, {lQR}')
        p('s_mov_b64 exec, -1')
        def adds(e):
            h, be = e >> 2, e & 3
            D = ACC + 4 * e
            first = True
            out = []
            for u in range(4):
                if u == be: continue
                src1 = f'v{D+be}' if first else f'v{S[h]}'
                out.append(f'v_add_f32_dpp v{S[h]}, v{D+u}, {src1} row_ror:{(4*(be-u)) % 16} row_mask:0xf bank_mask:{1<<be:#x}')
                first = False
            return out
        for b in range(4):
            self.lgkm(3 - b)
            for e in range(8):
                h, be = e >> 2, e & 3
                mb = 8 * be + 2 * b + h
                c = '0' if b == 0 else vr(ACC + 4 * e, 4)
                p(f'{MFMA} {vr(ACC+4*e,4)}, {ar(4*mb,4)}, {vr(BQ+4*b,4)}, {c}')
                if b == 3 and e >= 3:
                    for s in adds(e - 3): p(s)
            iss(b)
        for e in (5, 6, 7):
            for s in adds(e): p(s)
        M = T + 2
        p(f'v_max_f32 v{M}, v{S[0]}, v{S[1]}')
        for n in (1, 2, 4, 8):
            p(f'v_max_f32_dpp v{M}, v{M}, v{M} row_ror:{n} {DF}')
        p(f'v_max_f32_dpp v{M}, v{M}, v{M} row_bcast:15 row_mask:0xa bank_mask:0xf')
        p(f'v_max_f32_dpp v{M}, v{M}, v{M} row_bcast:31 row_mask:0xc bank_mask:0xf')
        iss(4)
        p(f'v_mul_f32 v{M}, v{M}, {vC}')
        p(f'v_readlane_b32 {sMc}, v{M}, 63')
        p(f'v_fma_f32 v{S[0]}, v{S[0]}, {vC}, -{sMc}')
        p(f'v_fma_f32 v{S[1]}, v{S[1]}, {vC}, -{sMc}')
        p(f'v_exp_f32 v{S[0]}, v{S[0]}')
        p(f'v_exp_f32 v{S[1]}, v{S[1]}')
        p(f'v_cvt_pk_bf16_f32 v{T+4}, v{S[0]}, v{S[1]}')

    def ml_ops(self, fl):
        P, M, Ls = T + 4, T + 2, T + 3
        m2, l2, mc, f = T + 6, T + 7, T + 8, T + 5
        lc = T + 9
        ops = [f'v_lshlrev_b32 v{Ls}, 16, v{P}', f'v_and_b32 v{T}, 0xffff0000, v{P}', f'v_add_f32 v{Ls}, v{Ls}, v{T}']
        for n in (1, 2, 4, 8):
            ops += [f'v_add_f32_dpp v{Ls}, v{Ls}, v{Ls} row_ror:{n} {DF}', None]
        ops += [f'v_add_f32_dpp v{Ls}, v{Ls}, v{Ls} row_bcast:15 row_mask:0xa bank_mask:0xf', None,
                f'v_add_f32_dpp v{Ls}, v{Ls}, v{Ls} row_bcast:31 row_mask:0xc bank_mask:0xf',
                f'ds_write_b64 {lMW}, {vr(M,2)}', None, None,
                lambda: (self.lgkm(0), self.p('s_barrier'), self.p(f'ds_read_b64 {vr(m2,2)}, {lMR}')), None, None, None,
                lambda: self.lgkm(0),
                f'v_max_f32_dpp v{mc}, v{m2}, v{m2} quad_perm:[1,0,3,2] {DF}', None,
                f'v_max_f32_dpp v{mc}, v{mc}, v{mc} quad_perm:[2,3,0,1] {DF}',
                f'v_sub_f32 v{f}, v{m2}, v{mc}', f'v_exp_f32 v{f}, v{f}', None,
                f'v_mul_f32 v{lc}, v{f}, v{l2}', None,
                f'v_add_f32_dpp v{lc}, v{lc}, v{lc} quad_perm:[1,0,3,2] {DF}', None,
                f'v_add_f32_dpp v{lc}, v{lc}, v{lc} quad_perm:[2,3,0,1] {DF}']
        def st():
            Ls_ = self.p.label('Lnos')
            self.p(f's_cmp_lg_u32 {sW}, 0'); self.p(f's_cbranch_scc1 {Ls_}')
            self.p('s_mov_b64 exec, 1')
            if fl == 'mode':
                L1, L2 = self.p.label('Lm'), self.p.label('Lm')
                self.p(f's_cmp_eq_u32 {sMode}, 0'); self.p(f's_cbranch_scc1 {L1}')
                self.vmem(f'buffer_store_dwordx2 {vr(mc,2)}, {vLane}, {srd("WS")}, {sOS0} offen sc1', optional=True)
                self.p(f's_branch {L2}')
                self.p(f'{L1}:')
                self.vmem(f'buffer_store_dwordx2 {vr(mc,2)}, {vLane}, {srd("WS")}, {sOS0} offen', optional=True)
                self.p(f'{L2}:')
            else:
                self.vmem(f'buffer_store_dwordx2 {vr(mc,2)}, {vLane}, {srd("WS")}, {sOS} offen {fl}', optional=True)
            self.p('s_mov_b64 exec, -1')
            self.p(f'{Ls_}:')
        ops.append(st)
        return ops

    def run_op(self, o):
        if o is None: return
        if callable(o): o()
        else: self.p(o)

    def pv(self, extras, layer0, hooks={}):
        p = self.p
        P = T + 4
        Da, Db = ACC, ACC + 4
        def build(pp):
            return [f'v_mov_b32_dpp v{PA+4*(pp&1)+t}, v{P} row_newbcast:{pp} row_mask:0xf bank_mask:{1<<t:#x}' for t in range(4)]
        def perms(pp):
            A, Bq, o = VB + 2 + 8 * pp, VB + 6 + 8 * pp, VB + 8 * pp
            seq = [(0, 0), (0, 1), (1, 0), (1, 1), (3, 0), (3, 1), (2, 1), (2, 0)]
            return [f'v_perm_b32 v{o+2*dp+hi}, v{Bq+dp}, v{A+dp}, {sHi if hi else sLo}' for dp, hi in seq]
        extras = list(extras)
        for s in build(0): p(s)
        for pp in range(16):
            nb = build(pp + 1) if pp < 15 else []
            if pp in hooks: hooks[pp]()
            if layer0:
                self.wait(f'V{2*pp+1}')
                for s in perms(pp): p(s)
            c = '0' if pp == 0 else None
            p(f'{MFMA} {vr(Da,4)}, {vr(PA+4*(pp&1),4)}, {vr(VB+8*pp,4)}, {c or vr(Da,4)}')
            for s in nb[:3]: p(s)
            p(f'{MFMA} {vr(Db,4)}, {vr(PA+4*(pp&1),4)}, {vr(VB+8*pp+4,4)}, {c or vr(Db,4)}')
            for s in nb[3:]: p(s)
            for _ in range(2):
                if extras: self.run_op(extras.pop(0))
        for o in extras: self.run_op(o)

    def reduce_publish(self, y, kind, soff, ldsoff):
        p = self.p
        if kind == 'o':
            for k in range(4): p(f'v_permlane16_swap_b32 v{y+k}, v{y+4+k}')
            p(f'v_pk_add_f32 {vr(y,2)}, {vr(y,2)}, {vr(y+4,2)}')
            p(f'v_pk_add_f32 {vr(y+2,2)}, {vr(y+2,2)}, {vr(y+6,2)}')
        p(f'ds_write_b128 {lRW if kind == "o" else lRW2}, {vr(y,4)} offset:{ldsoff}')
        p(f's_cmp_lg_u32 {sW}, 0')
        self.lgkm(0)
        if self.o.stamps: p(f's_cmp_lg_u32 {sW}, 0')
        p('s_barrier')
        Ls = p.label('Lsk')
        p(f's_cbranch_scc1 {Ls}')
        for k in range(4):
            p(f'ds_read_b128 {vr(ACC+4*k,4)}, {lRR} offset:{ldsoff+512*k}')
        p('s_mov_b32 exec_hi, 0')
        self.lgkm(2)
        p(f'v_pk_add_f32 {vr(ACC,2)}, {vr(ACC,2)}, {vr(ACC+4,2)}')
        p(f'v_pk_add_f32 {vr(ACC+2,2)}, {vr(ACC+2,2)}, {vr(ACC+6,2)}')
        self.lgkm(0)
        p(f'v_pk_add_f32 {vr(ACC+8,2)}, {vr(ACC+8,2)}, {vr(ACC+12,2)}')
        p(f'v_pk_add_f32 {vr(ACC+10,2)}, {vr(ACC+10,2)}, {vr(ACC+14,2)}')
        p(f'v_pk_add_f32 {vr(ACC,2)}, {vr(ACC,2)}, {vr(ACC+8,2)}')
        p(f'v_pk_add_f32 {vr(ACC+2,2)}, {vr(ACC+2,2)}, {vr(ACC+10,2)}')
        for k in range(4):
            p(f'v_add_f32_dpp v{ACC+k}, v{ACC+k}, v{ACC+k} row_ror:8 {DF}')
        p('s_mov_b32 exec_lo, 0x00ff00ff')
        self.vmem(f'buffer_store_dwordx4 {vr(ACC,4)}, {vXW}, {srd("WS")}, {soff} offen sc1', optional=True)
        p('s_mov_b64 exec, -1')
        p(f'{Ls}:')

    def x16(self, soff, pd=0):
        if self.o.xs: return self.x16s(soff)
        p = self.p
        Y = T
        for _ in range(self.o.x8delay): p('s_nop 15')
        Lp = p.label('Lp')
        p(f'{Lp}:')
        self.vmem(f'buffer_load_dwordx4 {vr(Y,4)}, {vXR}, {srd("WS")}, {soff} offen sc1', optional=True)
        self.vmem(f'buffer_load_dwordx4 {vr(Y+4,4)}, {vXR}, {srd("WS")}, {soff} offen offset:1024 sc1', optional=True)
        p('s_waitcnt vmcnt(0)')
        p(f'v_pk_add_f32 {vr(Y,2)}, {vr(Y,2)}, {vr(Y+4,2)}')
        p(f'v_pk_add_f32 {vr(Y+2,2)}, {vr(Y+2,2)}, {vr(Y+6,2)}')
        for c in ('quad_perm:[1,0,3,2]', 'quad_perm:[2,3,0,1]', 'row_half_mirror'):
            for k in range(4):
                p(f'v_add_f32_dpp v{Y+k}, v{Y+k}, v{Y+k} {c} {DF}')
        p(f'v_pk_add_f32 {vr(Y,2)}, {vr(Y,2)}, {vr(XR,2)}')
        p(f'v_pk_add_f32 {vr(Y+2,2)}, {vr(Y+2,2)}, {vr(XR+2,2)}')
        p(f'v_cvt_pk_bf16_f32 v{XA}, v{Y}, v{Y+1}')
        p(f'v_cvt_pk_bf16_f32 v{XA+1}, v{Y+2}, v{Y+3}')
        p(f'v_pk_add_f32 {vr(Y,2)}, {vr(Y,2)}, {vr(Y+2,2)}')
        p(f'v_cmp_u_f32 vcc, v{Y}, v{Y+1}')
        self.build_xa()
        Lok = p.label('Lok')
        Lr = self.retry(Lp, Lok, extra=['s_nop 15'] * pd)
        p(f's_cbranch_vccnz {Lr}')
        p(f'{Lok}:')

    def x16s(self, soff):
        p = self.p
        ND = self.o.xs
        Y = ACC
        lw, lr = T + 8, T + 9
        def ld(k):
            if self.o.xat == 2:
                p(f'v_mov_b32 v{T+2*k}, -1'); p(f'v_mov_b32 v{T+2*k+1}, -1')
                self.vmem(f'buffer_atomic_and_x2 {vr(T+2*k,2)}, {vXR}, {srd("WS")}, {soff} offen sc0 sc1', optional=True)
            elif self.o.xat:
                p(f'v_mov_b32 v{T+2*k}, 0'); p(f'v_mov_b32 v{T+2*k+1}, 0')
                self.vmem(f'buffer_atomic_or_x2 {vr(T+2*k,2)}, {vXR}, {srd("WS")}, {soff} offen sc0 sc1', optional=True)
            else:
                self.vmem(f'buffer_load_dwordx2 {vr(T+2*k,2)}, {vXR}, {srd("WS")}, {soff} offen sc1', optional=True)
        ld(0)
        p(f'v_lshrrev_b32 v{lw}, 4, v0'); p(f'v_mul_u32_u24 v{lw}, 16, v{lw}'); p(f'v_lshl_add_u32 v{lw}, v0, 3, v{lw}')
        p(f's_mul_i32 {sT}, {sW}, 576'); p(f's_add_u32 {sT}, {sT}, {L_X}'); p(f'v_add_u32 v{lw}, {sT}, v{lw}')
        p(f'v_and_b32 v{lr}, 7, v0'); p(f'v_mul_u32_u24 v{lr}, 142, v{lr}'); p(f'v_lshl_add_u32 v{lr}, v0, 1, v{lr}')
        if self.o.xat == 2:
            Lp, Lg, Lok = p.label('Lp'), p.label('Lgive'), p.label('Lok')
            p(f's_branch {Lp}w')
            p(f'{Lp}:')
            p(f's_sub_u32 {sBud}, {sBud}, 1'); p(f's_cbranch_scc1 {Lg}')
            p('s_nop 1')
            self.vmem(f'buffer_atomic_and_x2 {vr(T,2)}, {vXR}, {srd("WS")}, {soff} offen sc0 sc1', optional=True)
            self.ool.append([f'{Lg}:', f's_mov_b32 {sBud}, 0', 's_waitcnt vmcnt(0)', f's_branch {Lok}'])
            p(f'{Lp}w:')
            p('s_waitcnt vmcnt(0)')
            p(f'v_cmpx_u_f32 vcc, v{T}, v{T+1}')
            p(f's_cbranch_vccnz {Lp}')
            p(f'{Lok}:')
            p('s_mov_b64 exec, -1')
            p(f'ds_write_b64 v{lw}, {vr(T,2)}')
            ND = 0
        for k in range(1, ND - 1):
            for _ in range(self.o.xgap): p('s_nop 15')
            ld(k)
        if ND > 1:
            for _ in range(self.o.xgap): p('s_nop 15')
        Lp, Lj = p.label('Lp'), p.label('Lj')
        Ld = [p.label('Ld') for _ in range(ND)]
        if ND == 1:
            p(f's_branch {Lp}w')
        if ND: p(f'{Lp}:')
        for k in range(ND):
            ld((k - 1) % ND)
            if ND == 1: p(f'{Lp}w:')
            p(f's_waitcnt vmcnt({ND - 1})')
            p(f'v_cmp_u_f32 vcc, v{T+2*k}, v{T+2*k+1}')
            p(f's_cbranch_vccz {Ld[k]}')
        if ND:
            p(f's_sub_u32 {sBud}, {sBud}, 1'); p(f's_cbranch_scc0 {Lp}')
            p(f's_mov_b32 {sBud}, 0')
            for k in range(1, ND):
                self.ool.append([f'{Ld[k]}:', f'ds_write_b64 v{lw}, {vr(T+2*k,2)}', f's_branch {Lj}'])
            p(f'{Ld[0]}:')
            p(f'ds_write_b64 v{lw}, {vr(T,2)}')
            p(f'{Lj}:')
        p('s_waitcnt lgkmcnt(0)')
        p('s_barrier')
        p(f'ds_read_b128 {vr(Y,4)}, v{lr} offset:{L_X}')
        p(f'ds_read_b128 {vr(Y+4,4)}, v{lr} offset:{L_X+1152}')
        p('s_waitcnt lgkmcnt(0)')
        p(f'v_pk_add_f32 {vr(Y,2)}, {vr(Y,2)}, {vr(Y+4,2)}')
        p(f'v_pk_add_f32 {vr(Y+2,2)}, {vr(Y+2,2)}, {vr(Y+6,2)}')
        for c in ('quad_perm:[1,0,3,2]', 'quad_perm:[2,3,0,1]', 'row_half_mirror'):
            for k in range(4):
                p(f'v_add_f32_dpp v{Y+k}, v{Y+k}, v{Y+k} {c} {DF}')
        p(f'v_pk_add_f32 {vr(Y,2)}, {vr(Y,2)}, {vr(XR,2)}')
        p(f'v_pk_add_f32 {vr(Y+2,2)}, {vr(Y+2,2)}, {vr(XR+2,2)}')
        p(f'v_cvt_pk_bf16_f32 v{XA}, v{Y}, v{Y+1}')
        p(f'v_cvt_pk_bf16_f32 v{XA+1}, v{Y+2}, v{Y+3}')
        self.build_xa()

    def oa2a(self, pd=0, mid=None):
        p = self.p
        AO = T
        ml = T + 4
        M, f, Lq, ck = T + 6, T + 7, T + 8, T + 9
        y = T + 12
        Lp = p.label('Lp')
        if mid:
            self.vmem(f'buffer_load_dwordx2 {vr(ml,2)}, {vOSR}, {srd("WS")}, {sL} offen sc1')
            self.vmem(f'buffer_load_dwordx4 {vr(AO,4)}, {vOR}, {srd("WS")}, {sL} offen sc1')
            mid()
            self.ool.append([f'{Lp}:', f'buffer_load_dwordx2 {vr(ml,2)}, {vOSR}, {srd("WS")}, {sL} offen sc1',
                             f'buffer_load_dwordx4 {vr(AO,4)}, {vOR}, {srd("WS")}, {sL} offen sc1', f's_branch {Lp}w'])
            p(f'{Lp}w:')
        else:
            p(f'{Lp}:')
            self.vmem(f'buffer_load_dwordx2 {vr(ml,2)}, {vOSR}, {srd("WS")}, {sL} offen sc1', optional=True)
            self.vmem(f'buffer_load_dwordx4 {vr(AO,4)}, {vOR}, {srd("WS")}, {sL} offen sc1', optional=True)
        if self.o.inl and not mid:
            Lok = self.bud(); Lr = Lp
        else:
            Lok = p.label('Lok')
            Lr = self.retry(Lp, Lok, extra=['s_nop 15'] * pd)
        p('s_waitcnt vmcnt(0)')
        chk = [f'v_max3_u32 v{ck}, v{AO}, v{AO+1}, v{AO+2}', f'v_max3_u32 v{ck}, v{ck}, v{AO+3}, v{ml}',
               f'v_max_u32 v{ck}, v{ck}, v{ml+1}', f'v_cmp_eq_u32 vcc, -1, v{ck}']
        sc = [f'v_max_f32_dpp v{M}, v{ml}, v{ml} quad_perm:[1,0,3,2] {DF}',
              f'v_max_f32_dpp v{M}, v{M}, v{M} quad_perm:[2,3,0,1] {DF}',
              f'v_max_f32_dpp v{M}, v{M}, v{M} row_half_mirror {DF}',
              f'v_sub_f32 v{f}, v{ml}, v{M}', f'v_exp_f32 v{f}, v{f}',
              f'v_mul_f32 v{Lq}, v{f}, v{ml+1}',
              f'v_add_f32_dpp v{Lq}, v{Lq}, v{Lq} quad_perm:[1,0,3,2] {DF}',
              f'v_add_f32_dpp v{Lq}, v{Lq}, v{Lq} quad_perm:[2,3,0,1] {DF}',
              f'v_add_f32_dpp v{Lq}, v{Lq}, v{Lq} row_half_mirror {DF}',
              f'v_rcp_f32 v{Lq}, v{Lq}', f'v_mul_f32 v{f}, v{f}, v{Lq}']
        mf = [f'{MFMA} {vr(ACC+4*d,4)}, {vr(AO,4)}, {ar(aWO+4*d,4)}, 0' for d in range(8)]
        p(mf[0]); p(chk[0]); p(chk[1]); p(sc[0])
        p(mf[1]); p(chk[2]); p(chk[3]); p(sc[1])
        p(mf[2])
        p(f's_cbranch_vccnz {Lr}')
        p(f'{Lok}:')
        p(sc[2])
        p(mf[3]); p(sc[3]); p(sc[4])
        p(mf[4]); p(sc[5])
        p(mf[5]); p(sc[6])
        p(mf[6]); p(sc[7])
        p(mf[7]); p(sc[8]); p(sc[9]); p(sc[10])
        for r in range(4):
            for d in range(8):
                op = 'v_mul_f32_dpp' if r == 0 else 'v_fmac_f32_dpp'
                p(f'{op} v{y+d}, v{f}, v{ACC+4*d+r} row_newbcast:{r} {DF}')
        self.reduce_publish(y, 'o', sL, 0)

    def gather_stats(self, va, va3, off, second):
        p = self.p
        s4 = ACC + 12
        u, st, mean, sc = T, T + 1, T + 2, T + 3
        Lp = p.label('Lp')
        p(f'{Lp}:')
        self.vmem(f'buffer_load_dwordx4 {vr(s4,4)}, {vSR}, {srd("WS")}, {sL} offen offset:{off} sc1', optional=True)
        for s_ in self.g3_list(ACC, va, va3, sL): self.vmem(s_, optional=True)
        if self.o.inl: Lp = (Lp, self.bud())
        p('s_waitcnt vmcnt(3)')
        so = self.stats_ops(s4, st, mean, sc, second)
        for s_ in so[:2]: p(s_)
        p('s_waitcnt vmcnt(0)')
        self.merge(self.g3_sum(ACC, f'v{u}'), so[2:])
        return Lp, u, st, mean, sc

    def ha2a(self):
        p = self.p
        Lp, u, st, mean, sc = self.gather_stats(vHR, vHR3, 256, True)
        t1_, e = T + 4, T + 5
        A = T + 8
        y = T + 12
        if isinstance(Lp, tuple): Lr, Lok = Lp
        else:
            Lok = p.label('Lok')
            Lr = self.retry(Lp, Lok)
        c0 = -2.0 * math.sqrt(2.0 / math.pi) * math.log2(math.e)
        c1 = c0 * 0.044715
        p(f'v_fma_f32 v{u}, -v{mean}, {CS1}, v{u}')
        p(f'v_fma_f32 v{u}, v{u}, v{sc}, {B1v}')
        p(f'v_mul_f32 v{t1_}, v{u}, v{u}')
        p(f'v_cmp_u_f32 vcc, v{u}, v{st}')
        p(f'v_mul_f32 v{t1_}, {H(f2u(c1))}, v{t1_}')
        p(f'v_add_f32 v{t1_}, {H(f2u(c0))}, v{t1_}')
        p(f's_cbranch_vccnz {Lr}')
        p(f'{Lok}:')
        p(f'v_mul_f32 v{t1_}, v{t1_}, v{u}')
        p(f'v_exp_f32 v{e}, v{t1_}')
        p(f'v_add_f32 v{e}, 1.0, v{e}')
        p(f'v_rcp_f32 v{e}, v{e}')
        p(f'v_mul_f32 v{u}, v{u}, v{e}')
        p(f'v_cvt_pk_bf16_f32 v{u}, v{u}, v{u}')
        for k in range(4):
            p(f'v_and_b32 v{A+k}, v{u}, v{MK+k}')
        for d in range(4):
            p(f'{MFMA} {vr(ACC+4*d,4)}, {vr(A,4)}, {ar(aW2+4*d,4)}, 0')
        for d in range(4):
            p(f'v_pk_add_f32 {vr(ACC+4*d,2)}, {vr(ACC+4*d,2)}, {vr(ACC+4*d+2,2)}')
            p(f'v_add_f32 v{y+d}, v{ACC+4*d}, v{ACC+4*d+1}')
        self.reduce_publish(y, 'h', sLM, 2048)

    def combine(self, fl):
        p = self.p
        f = T + 5
        p(f'v_mul_f32_dpp v{T}, v{f}, v{ACC} quad_perm:[0,0,0,0] {DF}')
        p(f'v_mul_f32_dpp v{T+1}, v{f}, v{ACC+4} quad_perm:[0,0,0,0] {DF}')
        p(f'ds_write2_b32 {lOW}, v{T}, v{T+1} offset0:0 offset1:64')
        p(f's_cmp_lg_u32 {sW}, 0')
        self.lgkm(0)
        if self.o.stamps: p(f's_cmp_lg_u32 {sW}, 0')
        p('s_barrier')
        Ls = p.label('Lsk')
        p(f's_cbranch_scc1 {Ls}')
        p(f'ds_read2_b64 {vr(ACC,4)}, {lOR} offset0:0 offset1:64')
        p(f'ds_read2_b64 {vr(ACC+4,4)}, {lOR} offset0:128 offset1:192')
        self.lgkm(1)
        p(f'v_pk_add_f32 {vr(ACC,2)}, {vr(ACC,2)}, {vr(ACC+2,2)}')
        self.lgkm(0)
        p(f'v_pk_add_f32 {vr(ACC+4,2)}, {vr(ACC+4,2)}, {vr(ACC+6,2)}')
        p(f'v_pk_add_f32 {vr(ACC,2)}, {vr(ACC,2)}, {vr(ACC+4,2)}')
        p(f'v_cvt_pk_bf16_f32 v{ACC}, v{ACC}, v{ACC+1}')
        self.vmem(f'buffer_store_dword v{ACC}, {vOW}, {srd("WS")}, {sL} offen {fl}', optional=True)
        p(f'{Ls}:')

    def set_layer(self, off):
        p = self.p
        p(f's_mov_b32 {sL}, {H(off)}')
        p(f's_add_u32 {sOS}, {sOS0}, {H(off)}')
        p(f's_mov_b32 {sLM}, {H(off + XMo - XAo)}')

    def finish(self):
        p = self.p
        if self.o.stamps:
            self.stamp(31)
            self.flush()
            p(f'v_writelane_b32 {vSTAMP}, {sBud}, 33')
            p(f's_memtime s[{sSTAMP}:{sSTAMP+1}]'); p('s_waitcnt lgkmcnt(0)')
            p(f'v_writelane_b32 {vSTAMP}, s{sSTAMP}, 35')
            Le = p.label('Lend')
            p(f's_cmp_lg_u32 {sW}, 0'); p(f's_cbranch_scc1 {Le}')
            p(f's_lshl_b32 {sT}, s2, 8'); p(f's_add_u32 {sT}, {sT}, 0x8000000')
            p(f'v_lshlrev_b32 v{T}, 2, {vLane}')
            p(f'buffer_store_dword {vSTAMP}, v{T}, {srd("WS")}, {sT} offen')
            p(f'{Le}:')
        p('s_endpgm')

    def chain(self, A, B, fast, name):
        p = self.p
        o = self.o
        fl = '' if fast else 'sc1'
        vm0, tags0 = self.vm, dict(self.tags)
        p(f'{name}:')
        TB = ACC
        FL = vR
        for layer in range(2):
            def stp(k): self.stamp(8 + 10 * layer + k)
            stp(2)
            self.combine(fl)
            stp(3)
            if layer == 0:
                for k, f in self.rest: f()
                self.wait('FL2')
                Lfp, Lfok, Lfc = p.label('Lfp'), p.label('Lfok'), p.label('Lfc')
                self.flush()
                p(f'{Lfc}:')
                p(f'v_and_b32 v{t0}, 0x80808080, v{FL}')
                p(f'v_cmp_ne_u32 vcc, 0x80808080, v{t0}')
                Lr = self.retry(Lfp, Lfok)
                self.ool.append([f'{Lfp}:', f'buffer_load_dword v{FL}, v{T+15}, {srd("DBG")}, 0 offen sc1',
                                 's_waitcnt vmcnt(0)', f's_branch {Lfc}'])
                p(f's_cbranch_vccnz {Lr}')
                p(f'{Lfok}:')
            if B:
                def mid():
                    self.wait('WO')
                    self.stamp(28)
                    self.transpose(aWO, 4, TB, T + 12)
                if layer == 0 and o.wolate and not o.womid: mid()
                self.oa2a(o.pdo if layer == 0 else 0, mid if (layer == 0 and o.wolate and o.womid) else None)
                stp(4)
                if layer == 0:
                    for k, f in self.rest2: f()
            if A and layer == 0:
                self.wait('W1')
                self.transpose(aW1, 2, TB, TB + 16)
                p(f's_mov_b32 {sT2}, {H(CSL)}')
                self.w1(XB, sT2, fl, False, False)
            c1l = [f's_mov_b32 {sT2}, {H(CSL)}'] + self.g3_list(aC1, vHR, vHR3, sT2, acc=True)
            cql = [f's_mov_b32 {sT2}, {H(CSL)}'] + self.g3_list(aCQ, vQR, vQR3, sT2, acc=True)
            def w2fix():
                self.wait('W2')
                p(f'v_accvgpr_read_b32 {B1v}, a{aB1}'); p(f'v_lshlrev_b32 {B1v}, 16, {B1v}')
                self.transpose(aW2, 2, TB, TB + 16)
            if B and layer == 0 and (not A or not o.w2late):
                w2fix()
                if not A:
                    for s_ in c1l: p(s_)
            if A and B and layer == 0 and o.abc1 == 1:
                for s_ in c1l: p(s_)
            if A and not B and layer == 0 and o.xgate:
                Lp, Lg, Lok = p.label('Lp'), p.label('Lgive'), p.label('Lok')
                p(f'v_and_b32 v{T+1}, 31, v0'); p(f'v_lshlrev_b32 v{T+1}, 8, v{T+1}')
                p(f's_add_u32 {sT}, {sBX}, {H(OP)}')
                p(f'{Lp}:')
                p(f'buffer_load_dword v{T}, v{T+1}, {srd("WS")}, {sT} offen sc1')
                p(f's_sub_u32 {sBud}, {sBud}, 1'); p(f's_cbranch_scc1 {Lg}')
                self.ool.append([f'{Lg}:', f's_mov_b32 {sBud}, 0', 's_waitcnt vmcnt(0)', f's_branch {Lok}'])
                for _ in range(o.xgate - 1): p('s_nop 15')
                p('s_waitcnt vmcnt(0)')
                p(f'v_cmp_eq_u32 vcc, -1, v{T}')
                p(f's_cbranch_vccnz {Lp}')
                p(f'{Lok}:')
                for _ in range(o.xgd): p('s_nop 15')
            if A:
                self.x16(sL, o.pdx if layer == 0 else 0)
                stp(5)
                if B and layer == 0 and o.abc1 == 2:
                    for s_ in c1l: p(s_)
                self.w1(XA, sL, fl, True, False, post=self.unpack_xr(True))
                stp(6)
                if layer == 0 and not B:
                    for s_ in cql: p(s_)
            if B:
                if layer == 0:
                    if A:
                        if not o.abc1:
                            for s_ in c1l: p(s_)
                        if o.w2late: w2fix()
                    self.flush()
                    Lc1, Lcp, Lcok = p.label('Lc'), p.label('Lcp'), p.label('Lcok')
                    p(f'{Lc1}:')
                    p('s_waitcnt vmcnt(0)')
                    for k in range(12): p(f'v_accvgpr_read_b32 v{ACC+k}, a{aC1+k}')
                    for s_ in self.g3_sum(ACC, CS1): p(s_)
                    p(f'v_cmp_u_f32 vcc, {CS1}, {CS1}')
                    Lr = self.retry(Lcp, Lcok)
                    self.ool.append([f'{Lcp}:'] + c1l + [f's_branch {Lc1}'])
                    p(f's_cbranch_vccnz {Lr}')
                    p(f'{Lcok}:')
                self.ha2a()
                stp(7)
                if layer == 0:
                    for s_ in cql: p(s_)
            if layer == 1:
                if A:
                    Lf = p.label('Lfin')
                    self.flush()
                    p(f's_or_b32 {sT}, {sX}, {sW}' if not o.xs else f's_mov_b32 {sT}, {sX}')
                    p(f's_cmp_lg_u32 {sT}, 0'); p(f's_cbranch_scc1 {Lf}')
                    self.x16(sLM)
                    if o.xs: p(f's_cmp_lg_u32 {sW}, 0'); p(f's_cbranch_scc1 {Lf}')
                    p(f's_mov_b64 exec, s[{sMF}:{sMF+1}]')
                    p(f's_lshl_b32 {sT}, {sIA}, 6')
                    p(f'buffer_store_dwordx2 {vr(XA,2)}, {vLane}, {srd("OUT")}, {sT} offen')
                    p('s_mov_b64 exec, -1')
                    p(f'{Lf}:')
                self.finish()
                break
            def cqfix():
                p('s_waitcnt vmcnt(0)')
                for k in range(12): p(f'v_accvgpr_read_b32 v{ACC+k}, a{aCQ+k}')
                for s_ in self.g3_sum(ACC, CSQ): p(s_)
            cqfix()
            if A:
                self.x16(sLM)
                stp(8)
            self.set_layer(LSTR)
            if A:
                self.qp(XA, sL, fl, True, False, post=self.unpack_xr(False))
                stp(9)
            Lp, u, st, mean, sc = self.gather_stats(vQR, vQR3, 0, False)
            self.q_finish(u, st, mean, sc, Lp)
            stp(10)
            self.flush()
            self.qk_softmax()
            stp(11)
            self.pv(self.ml_ops(fl), False)
            self.flush()
        for code in self.ool:
            for s_ in code: p(s_)
        self.ool = []
        self.vm, self.tags = vm0, tags0

    def kvo(self, mb):
        a = self.o.alt
        if a == 0 or a == 4: k, off = mb >> 2, mb & 3
        elif a == 1: k, off = 2 * (mb >> 3) + (mb & 1), (mb >> 1) & 3
        elif a == 2: k, off = 2 * (mb >> 3) + ((mb >> 1) & 1), (mb & 1) + 2 * ((mb >> 2) & 1)
        return f's{sKV+k} offen offset:{1024*off} nt'
    def kload(self, mb):
        self.vmem(f'buffer_load_dwordx4 {ar(4*mb,4)}, {vK}, {srd("K")}, {self.kvo(mb)}', tag=f'K{mb}')
    def vload(self, mb):
        assert self.vfree, 'V area still in use'
        self.vmem(f'buffer_load_dwordx4 {vr(VB+2+4*mb,4)}, {a16}, {srd("V")}, {self.kvo(mb)}', tag=f'V{mb}')

    def pfcode(self, lo, hi, track=True):
        p = self.p
        L = p.label('Lpc')
        n = SRD['X']
        Ls = p.label('Lpcs')
        if self.o.pfsel:
            track = False
            p(f's_and_b32 {sT}, {sC}, 7'); p(f's_cmp_lg_u32 {sT}, 5'); p(f's_cbranch_scc1 {Ls}')
        p(f's_getpc_b64 s[{n}:{n+1}]')
        p(f'{L}:')
        p(f's_add_u32 s{n}, s{n}, {lo}-{L}'); p(f's_addc_u32 s{n+1}, s{n+1}, {0 if self.fwd else -1}')
        p(f's_mov_b32 s{n+2}, {hi}-{lo}')
        p(f'v_lshlrev_b32 v{t2}, 7, v0'); p(f's_lshl_b32 {sT}, {sW}, 13')
        self.vmem(f'buffer_load_dword a{aCQ+11}, v{t2}, {srd("X")}, {sT} offen', optional=not track)
        p(f'{Ls}:')

    def head(self):
        p = self.p
        o = self.o
        p('L_top:')
        p('s_cmp_lt_u32 s2, 256'); p('s_cbranch_scc1 L_go')
        p('s_endpgm')
        p('L_go:')
        p(f's_load_dwordx16 s[{KA}:{KA+15}], s[0:1], 0')
        p(f's_load_dwordx2 s[{SRD["WS"]}:{SRD["WS"]+1}], s[0:1], {KOFF["WS"]}')
        if o.stamps:
            p('s_memrealtime s[96:97]')
            p('s_memtime s[98:99]')
        p('v_lshrrev_b32 v1, 6, v0')
        p('v_and_b32 v0, 63, v0')
        p(f'v_readfirstlane_b32 {sW}, v1')
        p(f's_and_b32 {sX}, s2, 7'); p(f's_lshr_b32 {sC}, s2, 3'); p(f's_and_b32 {sJ}, {sC}, 3'); p(f's_lshr_b32 {sS}, {sC}, 2')
        if o.jx: p(f's_xor_b32 {sJ}, {sJ}, {o.jx}')
        if o.sx: p(f's_xor_b32 {sS}, {sS}, {o.sx}')
        if o.xx: p(f's_xor_b32 {sX}, {sX}, {o.xx}')
        if o.xperm:
            cst = sum(int(ch) << (4 * i) for i, ch in enumerate(o.xperm))
            p(f's_lshl_b32 {sX}, {sX}, 2'); p(f's_lshr_b32 {sX}, {H(cst)}, {sX}'); p(f's_and_b32 {sX}, {sX}, 7')
        if o.pfa:
            n = SRD['OUT']
            p(f's_cmp_ge_u32 {sC}, 2'); p('s_cbranch_scc1 L_nopf')
            p(f's_getpc_b64 s[{n}:{n+1}]')
            p('L_pc:')
            p(f's_mov_b32 s{n+2}, L_fastend-L_pc+{o.pfx}'); p(f's_mov_b32 s{n+3}, 0x00020000')
            p(f's_lshl_b32 {sT}, {sC}, 2'); p(f's_add_u32 {sT}, {sT}, {sW}'); p(f's_lshl_b32 {sT}, {sT}, 13')
            p(f'v_lshlrev_b32 v{t2}, 7, v0')
            self.vmem(f'buffer_load_dword a{aCQ+11}, v{t2}, {srd("OUT")}, {sT} offen', optional=True)
            p('L_nopf:')
        vWQ, vWO, vXs = T + 12, T + 13, T + 14
        sQ, sO = sMc, sOS
        p(f'v_lshlrev_b32 {a16}, 4, v0')
        p(f'v_and_b32 v{vR}, 15, v0'); p(f'v_lshrrev_b32 v{vG}, 4, v0')
        p(f's_mov_b32 {sIA}, {sC}'); p(f's_sub_u32 {sIB}, {sC}, 12')
        for n in ('X', 'WQ', 'WO'):
            p(f's_mov_b32 s{SRD[n]+2}, {H(SIZE[n])}'); p(f's_mov_b32 s{SRD[n]+3}, 0x00020000')
        p(f'v_lshlrev_b32 v{vWQ}, 16, v{vG}'); p(f'v_lshl_add_u32 v{vWQ}, v{vR}, 4, v{vWQ}')
        p(f's_lshl_b32 {sQ}, {sIA}, 18'); p(f's_lshl_b32 {sT2}, {sX}, 10'); p(f's_add_u32 {sQ}, {sQ}, {sT2}')
        p(f's_lshl_b32 {sT2}, {sW}, 8'); p(f's_add_u32 {sQ}, {sQ}, {sT2}')
        p(f'v_and_b32 v{vXs}, 0x38, v0')
        p(f'v_and_b32 v{t0}, 1, v{vG}'); p(f'v_lshlrev_b32 v{t0}, 6, v{t0}')
        p(f'v_lshrrev_b32 v{t2}, 3, v{vR}'); p(f'v_lshl_add_u32 v{t0}, v{t2}, 1, v{t0}')
        p(f'v_lshrrev_b32 v{t1}, 1, v{vG}'); p(f'v_add_u32 v{t0}, v{t0}, v{t1}')
        p(f'v_mul_u32_u24 v{t0}, 1280, v{t0}')
        p(f'v_and_b32 v{t1}, 7, v0'); p(f'v_lshl_add_u32 v{vWO}, v{t1}, 4, v{t0}')
        p(f's_and_b32 {sT}, {sIB}, 1'); p(f's_lshl_b32 {sT}, {sT}, 1'); p(f's_lshr_b32 {sT2}, {sW}, 1'); p(f's_add_u32 {sT}, {sT}, {sT2}')
        p(f's_lshl_b32 {sT2}, {sX}, 2'); p(f's_add_u32 {sT}, {sT}, {sT2}'); p(f's_lshl_b32 {sT}, {sT}, 7')
        p(f's_and_b32 {sT2}, {sW}, 1'); p(f's_lshl_b32 {sT2}, {sT2}, 2'); p(f's_add_u32 {sT}, {sT}, {sT2}')
        p(f's_mul_i32 {sO}, {sT}, 1280'); p(f's_lshr_b32 {sT2}, {sIB}, 1'); p(f's_lshl_b32 {sT2}, {sT2}, 7'); p(f's_add_u32 {sO}, {sO}, {sT2}')
        p(f's_lshl_b32 {sT}, {sIA}, 6')
        if o.hk: self.late_head()
        p(f's_cmp_ge_u32 {sC}, 20')
        p('s_waitcnt lgkmcnt(0)')
        self.mv('WO')
        p('s_cbranch_scc1 L_eB')
        self.mv('X'); self.mv('WQ')
        self.vmem(f'buffer_load_dwordx4 {vr(XF,4)}, {a16}, {srd("X")}, 0 offen', tag='XF')
        self.vmem(f'buffer_load_dwordx4 {vr(XF+4,4)}, {a16}, {srd("X")}, 0 offen offset:1024', tag='XF')
        self.vmem(f'buffer_load_dwordx2 {vr(XA,2)}, v{vXs}, {srd("X")}, {sT} offen', tag='XF')
        for jj in range(8):
            self.vmem(f'buffer_load_dwordx4 {vr(WR+4*jj,4)}, v{vWQ}, {srd("WQ")}, {sQ} offen nt', tag='WQ')
            if jj < 7: p(f's_add_u32 {sQ}, {sQ}, 8192')
        p(f's_cmp_lt_u32 {sC}, 12'); p('s_cbranch_scc1 L_roleA')
        p('s_branch L_roleAB')
        p('L_eB:')
        if o.wolate:
            if o.hk:
                self.mv('K')
                for mb in range(o.n0B):
                    p(f'buffer_load_dwordx4 {ar(4*mb,4)}, {vK}, {srd("K")}, {self.kvo(mb)}')
        else:
          for jj in range(o.n0B):
            p(f'buffer_load_dwordx4 {vr(WOR+4*jj,4)}, v{vWO}, {srd("WO")}, {sO} offen nt')
            p(f's_add_u32 {sO}, {sO}, {8*1280}')
        if not o.order.startswith('B'): p('s_branch L_roleB')

    def mv(self, n): self.p(f's_mov_b64 s[{SRD[n]}:{SRD[n]+1}], s[{KA+KOFF[n]//4}:{KA+KOFF[n]//4+1}]')

    def late_head(self):
        p = self.p
        for n in SRD:
            if n in ('X', 'WQ', 'WO'): continue
            p(f's_mov_b32 s{SRD[n]+2}, {H(SIZE[n])}'); p(f's_mov_b32 s{SRD[n]+3}, 0x00020000')
        for k in range(4): p(f'v_mov_b32 v{SN+k}, -1')
        p(f's_mul_i32 {sBX}, {sX}, {H(GB)}')
        p(f's_lshl_b32 {sT2}, {sX}, 2'); p(f's_add_u32 {sT2}, {sT2}, {sJ}')
        p(f's_lshl_b32 s{sKV}, {sT2}, 20')
        if self.o.il != 1:
            p(f's_lshl_b32 {sT2}, {sS}, 17'); p(f's_add_u32 s{sKV}, s{sKV}, {sT2}')
        if self.o.il:
            p(f's_lshl_b32 {sT2}, {sS}, 14'); p(f's_add_u32 s{sKV}, s{sKV}, {sT2}')
            p(f's_lshl_b32 {sT2}, {sW}, 12'); p(f's_add_u32 s{sKV}, s{sKV}, {sT2}')
            seq = [0, 1, 2, 3, 4, 5, 6, 7] if self.o.il < 3 else [0, 4, 2, 6, 1, 5, 3, 7]
            for k in range(1, 8): p(f's_xor_b32 s{sKV+k}, s{sKV}, {H(seq[k] << 17)}')
        elif self.o.alt:
            p(f's_and_b32 {sT2}, {sW}, 1'); p(f's_mul_i32 {sT2}, {sT2}, {H(0x3000 if self.o.altw else 0x1000)}'); p(f's_add_u32 s{sKV}, s{sKV}, {sT2}')
            p(f's_lshr_b32 {sT2}, {sW}, 1'); p(f's_lshl_b32 {sT2}, {sT2}, 14'); p(f's_add_u32 s{sKV}, s{sKV}, {sT2}')
            p(f's_xor_b32 s{sKV+1}, s{sKV}, 0x2000')
            for k in range(2, 8): p(f's_add_u32 s{sKV+k}, s{sKV+(k&1)}, {32768*(k>>1)}')
        else:
            p(f's_lshl_b32 {sT2}, {sW}, 12'); p(f's_add_u32 s{sKV}, s{sKV}, {sT2}')
            for k in range(1, 8): p(f's_add_u32 s{sKV+k}, s{sKV}, {16384*k}')
        p(f'v_bfe_u32 v{t1}, v0, 2, 2'); p(f'v_lshlrev_b32 {vK}, 8, v{t1}')
        p(f'v_lshl_add_u32 {vK}, v{vG}, 6, {vK}')
        p(f'v_and_b32 v{t1}, 3, v0'); p(f'v_lshl_add_u32 {vK}, v{t1}, 4, {vK}')
        p(f'v_and_b32 v{t0}, 1, v{vG}'); p(f'v_lshrrev_b32 v{vD}, 1, v{vG}'); p(f'v_lshl_add_u32 v{vD}, v{t0}, 1, v{vD}')
        p(f's_mov_b32 {sLo}, 0x05040100'); p(f's_mov_b32 {sHi}, 0x07060302')

    def common_addr(self):
        p = self.p
        p(f's_mov_b32 {sBud}, 100000')
        for b in range(4):
            p(f's_mov_b32 s{sMB+2*b}, {H(0x11111111 << b)}'); p(f's_mov_b32 s{sMB+2*b+1}, {H(0x11111111 << b)}')
        p(f's_mov_b32 s{sMF}, 0x01010101'); p(f's_mov_b32 s{sMF+1}, 0x01010101')
        p(f's_lshl_b32 {sT}, {sJ}, 3'); p(f's_add_u32 {sT}, {sT}, {sS}')
        p(f's_lshl_b32 {sT2}, {sT}, 8'); p(f's_add_u32 {sT2}, {sT2}, {sBX}'); p(f's_add_u32 {sT2}, {sT2}, {H(OP)}')
        p(f'v_lshlrev_b32 {vOW}, 2, v0'); p(f'v_add_u32 {vOW}, {sT2}, {vOW}')
        p(f's_lshl_b32 {sOS0}, {sT}, 3'); p(f's_add_u32 {sOS0}, {sOS0}, {sBX}'); p(f's_add_u32 {sOS0}, {sOS0}, {H(OS)}')
        p(f's_mul_i32 {sT}, {sJ}, 0x2800'); p(f's_mul_i32 {sT2}, {sW}, 2560'); p(f's_add_u32 {sT}, {sT}, {sT2}'); p(f's_add_u32 {sT}, {sT}, {sBX}')
        p(f'v_add_u32 {vQR}, {sT}, {a16}')
        p(f'v_mov_b32 v{t1}, {H(OOB)}')
        p(f'v_cmp_gt_u32 vcc, 32, v0'); p(f'v_cndmask_b32 {vQR3}, v{t1}, {vQR}, vcc')
        p(f'v_and_b32 v{t0}, 1, v{vR}'); p(f'v_mul_u32_u24 v{t0}, 80, v{t0}')
        p(f'v_lshrrev_b32 v{t2}, 1, v{vR}'); p(f'v_lshl_add_u32 v{t0}, v{t2}, 4, v{t0}')
        p(f'v_cmp_gt_u32 vcc, 10, v{vR}'); p(f'v_cndmask_b32 v{t0}, v{t1}, v{t0}, vcc')
        p(f's_lshl_b32 {sT}, {sW}, 9'); p(f's_add_u32 {sT}, {sT}, {sBX}'); p(f's_add_u32 {sT}, {sT}, {H(ST)}'); p(f'v_add_u32 {vSR}, {sT}, v{t0}')
        p(f'v_and_b32 v{t0}, 7, v0'); p(f'v_lshl_add_u32 v{t0}, v{t0}, 2, v{vD}'); p(f's_lshl_b32 {sT}, {sW}, 5'); p(f'v_add_u32 v{t0}, {sT}, v{t0}')
        p(f'v_lshlrev_b32 {lQW}, 1, v{t0}')
        p(f'v_lshrrev_b32 v{t0}, 2, v0'); p(f'v_lshlrev_b32 {lQR}, 4, v{t0}')
        p(f'v_lshlrev_b32 {lMW}, 3, v0'); p(f'v_add_u32 {lMW}, {L_J1}, {lMW}')
        p(f's_lshl_b32 {sT}, {sW}, 3'); p(f's_add_u32 {sT}, {sT}, {L_ML}'); p(f'v_writelane_b32 {lMW}, {sT}, 63')
        p(f'v_add_u32 v{t0}, {sW}, v0'); p(f'v_and_b32 v{t0}, 3, v{t0}'); p(f'v_lshlrev_b32 v{t0}, 3, v{t0}'); p(f'v_add_u32 {lMR}, {L_ML}, v{t0}')
        p(f's_lshl_b32 {sT}, {sW}, 9'); p(f's_add_u32 {sT}, {sT}, {L_O}'); p(f'v_lshlrev_b32 {lOW}, 2, v0'); p(f'v_add_u32 {lOW}, {sT}, {lOW}')
        p(f'v_lshlrev_b32 {lOR}, 3, v0'); p(f'v_add_u32 {lOR}, {L_O}, {lOR}')
        p(f'v_mov_b32 {vC}, {H(f2u(CSC))}')
        for k in range(24): p(f'v_mov_b32 v{BQ+k}, 0')
        p(f'v_lshlrev_b32 v{T+15}, 2, v0'); p(f'v_and_b32 v{T+14}, 28, v{T+15}')

    def addrB(self):
        p = self.p
        sHF, sCB = sL, sLM
        p(f's_and_b32 {sHF}, {sIB}, 1'); p(f's_lshr_b32 {sCB}, {sIB}, 1')
        p(f'v_and_b32 v{t0}, 1, v{vG}'); p(f'v_lshlrev_b32 {vXW}, 11, v{t0}')
        p(f'v_and_b32 v{t0}, 7, v0'); p(f'v_lshl_add_u32 {vXW}, v{t0}, 4, {vXW}')
        p(f's_lshl_b32 {sT}, {sCB}, 12'); p(f's_lshl_b32 {sT2}, {sX}, 8'); p(f's_add_u32 {sT}, {sT}, {sT2}')
        p(f's_lshl_b32 {sT2}, {sHF}, 7'); p(f's_add_u32 {sT}, {sT}, {sT2}'); p(f's_add_u32 {sT}, {sT}, {H(XAo)}')
        p(f'v_add_u32 {vXW}, {sT}, {vXW}')
        p(f's_lshr_b32 {sT3}, {sW}, 1'); p(f's_lshl_b32 {sT}, {sHF}, 1'); p(f's_add_u32 {sT3}, {sT3}, {sT}')
        p(f'v_lshlrev_b32 {vOR}, 8, v{t0}')
        p(f'v_lshrrev_b32 v{t2}, 3, v{vR}'); p(f'v_lshl_add_u32 {vOR}, v{t2}, 6, {vOR}')
        p(f'v_lshl_add_u32 {vOR}, v{vG}, 4, {vOR}')
        p(f's_lshl_b32 {sT}, {sT3}, 11'); p(f's_and_b32 {sT2}, {sW}, 1'); p(f's_lshl_b32 {sT2}, {sT2}, 7'); p(f's_add_u32 {sT}, {sT}, {sT2}')
        p(f's_add_u32 {sT}, {sT}, {sBX}'); p(f's_add_u32 {sT}, {sT}, {H(OP)}'); p(f'v_add_u32 {vOR}, {sT}, {vOR}')
        p(f'v_lshl_add_u32 v{t1}, v{vG}, 2, v{vR}'); p(f'v_and_b32 v{t1}, 7, v{t1}'); p(f'v_lshlrev_b32 v{t1}, 3, v{t1}')
        p(f's_lshl_b32 {sT}, {sT3}, 6'); p(f's_add_u32 {sT}, {sT}, {sBX}'); p(f's_add_u32 {sT}, {sT}, {H(OS)}'); p(f'v_add_u32 {vOSR}, {sT}, v{t1}')
        p(f's_lshl_b32 {sT}, {sHF}, 2'); p(f's_add_u32 {sT}, {sT}, {sW}'); p(f's_mul_i32 {sT}, {sT}, 2560')
        p(f's_add_u32 {sT}, {sT}, {sBX}'); p(f's_add_u32 {sT}, {sT}, {H(HP)}'); p(f'v_add_u32 {vHR}, {sT}, {a16}')
        p(f's_cmp_eq_u32 {sW}, 3'); p(f's_cselect_b32 {sT3}, 6, 7')
        p(f'v_mov_b32 v{t1}, {H(OOB)}')
        p(f'v_cmp_gt_u32 vcc, {sT3}, v{t0}'); p(f'v_cndmask_b32 {vHR}, v{t1}, {vHR}, vcc')
        p(f'v_cmp_gt_u32 vcc, 32, v0'); p(f'v_cndmask_b32 {vHR3}, v{t1}, {vHR}, vcc')
        p(f'v_and_b32 v{T}, 1, v0'); p(f'v_lshlrev_b32 v{T}, 4, v{T}'); p(f'v_mov_b32 v{t1}, 0xffff'); p(f'v_lshlrev_b32 v{t1}, v{T}, v{t1}')
        p(f'v_cmp_gt_u32 vcc, {sT3}, v{vR}'); p(f'v_cndmask_b32 v{t1}, 0, v{t1}, vcc')
        p(f'v_bfe_u32 v{T}, v0, 1, 2')
        for k in range(4):
            p(f'v_cmp_eq_u32 vcc, {k}, v{T}'); p(f'v_cndmask_b32 v{MK+k}, 0, v{t1}, vcc')
        p(f's_lshl_b32 {sT}, {sW}, 9'); p(f's_add_u32 {sT}, {sT}, {L_R}')
        p(f'v_and_b32 v{T}, 1, v{vG}')
        p(f'v_lshlrev_b32 {lRR}, 8, v{t2}'); p(f'v_lshl_add_u32 {lRR}, v{t0}, 4, {lRR}'); p(f'v_lshl_add_u32 {lRR}, v{T}, 7, {lRR}')
        p(f'v_add_u32 {lRR}, {L_R}, {lRR}')
        p(f'v_lshlrev_b32 {lRW}, 8, v{t2}'); p(f'v_lshl_add_u32 {lRW}, v{t0}, 5, {lRW}'); p(f'v_lshl_add_u32 {lRW}, v{T}, 4, {lRW}')
        p(f'v_add_u32 {lRW}, {sT}, {lRW}')
        p(f'v_add_u32 v{t1}, {L_J2}, {a16}')
        p(f'v_lshrrev_b32 v{T}, 1, v{vG}'); p(f'v_cmp_eq_u32 vcc, v{t2}, v{T}')
        p(f'v_cndmask_b32 {lRW}, v{t1}, {lRW}, vcc')
        p(f'v_add_u32 {lRW2}, {sT}, {a16}')
        p(f'v_cmp_gt_u32 vcc, 32, v0'); p(f'v_cndmask_b32 {lRW2}, v{t1}, {lRW2}, vcc')
        p(f'v_lshl_add_u32 v{t0}, v{t0}, 2, v{vD}'); p(f'v_lshlrev_b32 {aB1v}, 1, v{t0}')
        p(f'v_mul_u32_u24 {aW2v}, 1280, v{vD}'); p(f'v_lshl_add_u32 {aW2v}, v{vR}, 3, {aW2v}')

    def addrA(self):
        p = self.p
        p(f's_lshl_b32 {sT}, {sW}, 9'); p(f's_lshl_b32 {sT2}, {sIA}, 2'); p(f's_add_u32 {sT}, {sT}, {sT2}'); p(f's_add_u32 {sT}, {sT}, {sBX}'); p(f's_add_u32 {sT}, {sT}, {H(ST)}')
        p(f'v_mov_b32 {vSW}, {sT}'); p(f's_add_u32 {sT}, {sT}, 80'); p(f'v_writelane_b32 {vSW}, {sT}, 0')
        if self.o.xs:
            p(f'v_lshlrev_b32 {vXR}, 3, v0'); p(f's_lshl_b32 {sT}, {sW}, 9'); p(f'v_add_u32 {vXR}, {sT}, {vXR}')
        else:
            p(f'v_and_b32 v{t0}, 7, v0'); p(f'v_lshlrev_b32 {vXR}, 7, v{t0}')
            p(f'v_lshrrev_b32 v{t0}, 3, v0'); p(f'v_lshl_add_u32 {vXR}, v{t0}, 4, {vXR}')
        p(f's_lshl_b32 {sT}, {sIA}, 11'); p(f's_add_u32 {sT}, {sT}, {H(XAo)}'); p(f'v_add_u32 {vXR}, {sT}, {vXR}')
        for k in range(4): p(f'v_mov_b32 v{XB+k}, 0x3f803f80')
        p(f'v_mul_u32_u24 {aW1v}, {8*3456}, v{vG}'); p(f'v_lshl_add_u32 {aW1v}, v{vR}, 3, {aW1v}')

    def prologue(self, A, B, name):
        p = self.p
        o = self.o
        vm0, tags0 = self.vm, dict(self.tags)
        self.vfree = False
        p(f'L_role{name}:')
        sSX, sSXX = sL, sLM
        D = {'A': o.dA, 'AB': o.dAB, 'B': o.dB}[name]
        vWQ, vWO, vXs = T + 12, T + 13, T + 14
        sQ, sO, sCL = sMc, sOS, sMode
        mv = self.mv
        if not A: self.vm, self.tags = 0, {}
        if not o.hk: self.late_head()
        if A:
            p(f'v_lshrrev_b32 v{t0}, 2, v{vR}'); p(f'v_mul_u32_u24 {vQW}, 2560, v{t0}')
            p(f'v_and_b32 v{t0}, 3, v{vR}'); p(f'v_lshl_add_u32 {vQW}, v{t0}, 5, {vQW}')
            p(f'v_lshl_add_u32 {vQW}, v{vG}, 4, {vQW}')
            p(f's_mul_i32 {sT}, {sW}, 0x2800'); p(f's_lshl_b32 {sT2}, {sIA}, 7'); p(f's_add_u32 {sT2}, {sT2}, {sBX}'); p(f's_add_u32 {sT}, {sT}, {sT2}')
            p(f'v_add_u32 {vQW}, {sT}, {vQW}')
            p('s_mov_b32 exec_hi, 0')
            self.vmem(f'buffer_store_dwordx4 {vr(SN,4)}, {vQW}, {srd("WS")}, 0 offen sc1', tag='CLR')
            p('s_mov_b64 exec, -1')
            p(f's_lshl_b32 {sT}, {sW}, 4'); p(f'v_add_u32 v{t0}, {sT}, v{vR}')
            p(f'v_subrev_u32 v{t1}, 27, v{t0}')
            p(f'v_cmp_le_u32 vcc, 27, v{t0}'); p(f'v_cndmask_b32 v{t1}, v{t0}, v{t1}, vcc')
            p(f'v_cndmask_b32 v{t2}, 0, 4, vcc')
            p(f'v_mul_u32_u24 {vHW}, 37, v{t1}'); p(f'v_lshrrev_b32 {vHW}, 8, {vHW}')
            p(f'v_add_u32 v{t2}, v{t2}, {vHW}')
            p(f'v_mul_u32_u24 {vHW}, 7, {vHW}'); p(f'v_sub_u32 v{t1}, v{t1}, {vHW}')
            p(f'v_mul_u32_u24 {vHW}, 2560, v{t2}'); p(f'v_lshl_add_u32 {vHW}, v{t1}, 4, {vHW}')
            p(f's_add_u32 {sT2}, {sT2}, {H(HP)}'); p(f'v_add_u32 {vHW}, {sT2}, {vHW}')
            p(f'v_mov_b32 v{t1}, {H(OOB)}')
            p(f'v_cmp_gt_u32 vcc, 54, v{t0}'); p(f'v_cndmask_b32 {vHW}, v{t1}, {vHW}, vcc')
            p(f's_mov_b32 {sT2}, {H(CSL)}')
            p('s_mov_b64 exec, 0xffff')
            self.vmem(f'buffer_store_dwordx4 {vr(SN,4)}, {vHW}, {srd("WS")}, {sT2} offen sc1', tag='CLR')
            p('s_mov_b64 exec, -1')
        else:
            p(f's_sub_u32 {sT}, {sC}, 20'); p(f's_lshl_b32 {sT}, {sT}, 2'); p(f's_add_u32 {sT3}, {sT}, {sW}')
            p(f's_lshl_b32 {sT}, {sT3}, 10')
            p(f's_add_u32 {sCL}, {sT}, {sBX}'); p(f's_add_u32 {sCL}, {sCL}, {H(OP)}')
            p(f's_mul_i32 {sT2}, {sX}, 5120'); p(f's_add_u32 {sT}, {sT}, {sT2}'); p(f's_add_u32 {sT}, {sT}, {H(XAo - 31 * 1024)}')
            p(f's_cmp_lt_u32 {sT3}, 31'); p(f's_cselect_b32 {sCL}, {sCL}, {sT}')
            p(f's_cmp_lt_u32 {sT3}, 36'); p(f's_cselect_b32 {sCL}, {sCL}, {H(OOB)}')
            p(f'v_add_u32 v{t0}, {sCL}, {a16}')
            self.vmem(f'buffer_store_dwordx4 {vr(SN,4)}, v{t0}, {srd("WS")}, 0 offen sc1', tag='CLR')
        mv('K'); mv('V')
        p(f's_getreg_b32 {sFlag}, hwreg(HW_REG_XCC_ID)'); p(f's_and_b32 {sFlag}, {sFlag}, 15'); p(f's_or_b32 {sFlag}, {sFlag}, 0x80')
        WOl = []
        if B:
            if o.wolate: p(f'v_add_u32 v{vWO}, {sO}, v{vWO}')
            for jj in range(8):
                def f(jj=jj):
                    if o.wolate:
                        if jj: p(f's_mov_b32 {sWB}, {8*1280*jj}')
                        self.vmem(f'buffer_load_dwordx4 {ar(aWO+4*jj,4)}, v{vWO}, {srd("WO")}, {sWB if jj else 0} offen nt', tag='WO')
                        return
                    self.vmem(f'buffer_load_dwordx4 {vr(WOR+4*jj,4)}, v{vWO}, {srd("WO")}, {sO} offen nt', tag='WO')
                    if jj < 7: p(f's_add_u32 {sO}, {sO}, {8*1280}')
                WOl.append(('WO', f))
        Wl = []
        if A:
            for jj in range(8):
                def f(jj=jj):
                    if jj == 0:
                        p(f's_mul_i32 {sWA}, {sIA}, {32*3456}'); p(f's_mul_i32 {sWB}, {sX}, 432'); p(f's_add_u32 {sWA}, {sWA}, {sWB}')
                        p(f's_lshl_b32 {sWB}, {sW}, 7'); p(f's_add_u32 {sWA}, {sWA}, {sWB}')
                    else: p(f's_add_u32 {sWA}, {sWA}, 3456')
                    self.vmem(f'buffer_load_dwordx2 {ar(aW1+2*jj,2)}, {aW1v}, {srd("W1")}, {sWA} offen {o.w1nt}', tag='W1')
                Wl.append(('W', f))
        if B:
            for jj in range(8):
                def f(jj=jj):
                    if jj == 0:
                        p(f's_mul_i32 {sWA}, {sX}, 216'); p(f's_and_b32 {sWB}, {sIB}, 1'); p(f's_mul_i32 {sWB}, {sWB}, 108'); p(f's_add_u32 {sWA}, {sWA}, {sWB}')
                        p(f's_mul_i32 {sWB}, {sW}, 28'); p(f's_add_u32 {sWA}, {sWA}, {sWB}')
                        p(f's_lshl_b32 {sWB}, {sWA}, 1')
                        self.vmem(f'buffer_load_ushort a{aB1}, {aB1v}, {srd("B1")}, {sWB} offen', tag='B1')
                        p(f's_mul_i32 {sWA}, {sWA}, 1280'); p(f's_lshr_b32 {sWB}, {sIB}, 1'); p(f's_lshl_b32 {sWB}, {sWB}, 7'); p(f's_add_u32 {sWA}, {sWA}, {sWB}')
                    else: p(f's_add_u32 {sWA}, {sWA}, {4*1280}')
                    self.vmem(f'buffer_load_dwordx2 {ar(aW2+2*jj,2)}, {aW2v}, {srd("W2")}, {sWA} offen {o.w2nt}', tag='W2')
                Wl.append(('W', f))
        KV = [(f'K{m}', (lambda m=m: self.kload(m))) for m in range(32)] + [(f'V{m}', (lambda m=m: self.vload(m))) for m in range(32)]
        wi = o.wposAB if A else o.wposB
        if o.wolate:
            st = list(KV)
            for jj, it in enumerate(WOl):
                pos = min(len(st), wi + jj * (o.wolate))
                st.insert(pos, it)
            if not A and o.hk:
                st = st[o.n0B:]
                for mb in range(o.n0B): self.tags[f'K{mb}'] = 0
        else:
            if not A: WOl = WOl[o.n0B:]
            st = KV[:wi] + WOl + KV[wi:]
        FL = vR
        i2 = [k for k, f in st].index(o.fpos2)
        st.insert(i2, ('FL2', lambda: self.vmem(f'buffer_load_dword v{FL}, v{T+15}, {srd("DBG")}, 0 offen sc1', tag='FL2')))
        if A and (not B or o.abw1) and 'w1' not in o.skip: st += Wl[:8]; Wl = Wl[8:]
        def adv(n, thr=True):
            while n > 0 and st:
                k, f = st.pop(0); f(); n -= 1
                if o.exit10 and k in KST: self.stamp(12 + KST.index(k))
                if thr and D + thr - 1 < 63: p(f's_waitcnt vmcnt({D + (thr - 1)})')
        def until(key, thr=True):
            keys = [k for k, f in st]
            if key in keys: adv(keys.index(key), thr)
        def flag():
            p(f's_lshl_b32 {sT}, {sX}, 5'); p(f's_add_u32 {sT}, {sT}, {sC}'); p(f's_lshl_b32 {sT2}, {sW}, 8'); p(f's_add_u32 {sT}, {sT}, {sT2}')
            p(f'v_mov_b32 v{t0}, {sFlag}'); p(f'v_mov_b32 v{t1}, {sT}')
            self.wait('CLR')
            p('s_waitcnt lgkmcnt(0)')
            p('s_barrier')
            p('s_mov_b64 exec, 1')
            self.vmem(f'buffer_store_byte v{t0}, v{t1}, {srd("DBG")}, 0 offen sc1', tag='FLAG')
            p('s_mov_b64 exec, -1')
            self.stamp(1)
        adv(o.n1A if A else o.n1B, False)
        mv('W1'); mv('B1')
        if o.stamps:
            p(f'v_mov_b32 {vSTAMP}, 0')
            p(f'v_writelane_b32 {vSTAMP}, s96, 0')
            p(f'v_writelane_b32 {vSTAMP}, s98, 34')
        for n in ('DBG', 'B2', 'W2', 'OUT'):
            p(f's_load_dwordx2 s[{SRD[n]}:{SRD[n]+1}], s[0:1], {KOFF[n]}')
        if A:
            self.addrA()
            self.wait('XF')
            self.stamp(8)
            p(f'v_mov_b32 v{t0}, 0'); p(f'v_mov_b32 v{t1}, 0'); p(f'v_mov_b32 v{t2}, 0x3f803f80')
            for k in range(8):
                p(f'v_dot2_f32_bf16 v{t0}, v{XF+k}, v{t2}, v{t0}')
                p(f'v_dot2_f32_bf16 v{t1}, v{XF+k}, v{XF+k}, v{t1}')
            for s in self.unpack_xr(False): p(s)
            p(f'v_permlane32_swap_b32 v{t0}, v{t1}')
            p(f'v_add_f32 v{t0}, v{t0}, v{t1}')
            for n in (1, 2, 4, 8): p(f'v_add_f32_dpp v{t0}, v{t0}, v{t0} row_ror:{n} {DF}')
            p(f'v_add_f32_dpp v{t0}, v{t0}, v{t0} row_bcast:15 row_mask:0xa bank_mask:0xf')
            p(f'v_mul_f32 v{t0}, {H(f2u(1.0 / 640))}, v{t0}')
            p(f'v_readlane_b32 {sSX}, v{t0}, 31'); p(f'v_readlane_b32 {sSXX}, v{t0}, 63')
            p(f'v_mov_b32 v{t0}, {sSX}'); p(f'v_mov_b32 v{t1}, {sSXX}')
            p(f'v_fma_f32 v{t1}, -v{t0}, v{t0}, v{t1}'); p(f'v_max_f32 v{t1}, 0, v{t1}')
            p(f'v_add_f32 v{t1}, {H(f2u(EPS))}, v{t1}'); p(f'v_rsq_f32 v{t1}, v{t1}')
            p(f'v_mul_f32 v{t0}, v{t0}, v{t1}')
            for k in range(4): p(f'v_fma_f32 v{T+k}, v{XR+k}, v{t1}, -v{t0}')
            p(f'v_cvt_pk_bf16_f32 v{XA}, v{T}, v{T+1}'); p(f'v_cvt_pk_bf16_f32 v{XA+1}, v{T+2}, v{T+3}')
            self.build_xa()
            self.lgkm(0)
            p(f's_lshl_b32 {sT}, {sIA}, 6')
            self.vmem(f'buffer_load_dwordx2 {ar(aB2,2)}, v{vXs}, {srd("B2")}, {sT} offen', tag='B2')
            adv(o.n2, False)
            self.stamp(29)
            self.wait('WQ')
            self.stamp(9)
            def pre(d):
                dp, hi = d >> 1, d & 1
                return [f'v_perm_b32 v{WT+4*d+tau}, v{WR+(2*tau+1)*4+dp}, v{WR+(2*tau)*4+dp}, {sHi if hi else sLo}' for tau in range(4)]
            self.qp(XA, '0', 'sc1', False, True, wv=WT, pre=pre, prest=lambda: self.wait('CLR'))
            self.stamp(2)
            flag()
            adv(2, False)
            p(f's_mov_b32 {sT2}, {H(CSL)}')
            if 'cq' not in o.skip: self.qp(XB, sT2, 'sc1', False, True, wv=WT, tag='CQ')
            adv(1, True)
            for k in range(32): p(f'v_accvgpr_write_b32 a{aWQ+k}, v{WT+k}')
            adv(1, True)
            self.common_addr()
            self.wait('B2')
            p(f'v_accvgpr_read_b32 v{t0}, a{aB2}'); p(f'v_accvgpr_read_b32 v{t1}, a{aB2+1}')
            p(f'v_lshlrev_b32 v{B2}, 16, v{t0}'); p(f'v_and_b32 v{B2+1}, 0xffff0000, v{t0}')
            p(f'v_lshlrev_b32 v{B2+2}, 16, v{t1}'); p(f'v_and_b32 v{B2+3}, 0xffff0000, v{t1}')
            adv(2, True)
            if B:
                self.addrB()
        else:
            self.common_addr()
            adv(1, True)
            self.addrB()
            adv(o.n2B, True)
            flag()
        until(o.fposAB if (A and B) else o.fposA if A else o.fposB)
        self.stamp(3)
        p(f's_lshl_b32 {sT3}, {sX}, 5')
        self.vmem(f'buffer_load_dword v{FL}, v{T+14}, {srd("DBG")}, {sT3} offen sc1', tag='FL')
        nF = D + o.dFo
        if B and not o.wolate:
            assert not any(k == 'WO' for k, f in st)
            adv(2, True); nF -= 2
            self.wait('WO')
            self.transpose(aWO, 4, WOR, T, rd=False)
        self.vfree = True
        adv(min(nF, nF - o.dFo - 1), True)
        adv(max(0, o.dFo + 1), False)
        p(f's_mul_i32 {sFlag}, {sFlag}, 0x01010101')
        self.wait('FL')
        Lfp, Lfok, Lfc = p.label('Lfp'), p.label('Lfok'), p.label('Lfc')
        self.flush()
        p(f'{Lfc}:')
        p(f'v_and_b32 v{t0}, 0x80808080, v{FL}')
        p(f'v_cmp_ne_u32 vcc, 0x80808080, v{t0}')
        Lr = self.retry(Lfp, Lfok)
        self.ool.append([f'{Lfp}:', f'buffer_load_dword v{FL}, v{T+14}, {srd("DBG")}, {sT3} offen sc1',
                         's_waitcnt vmcnt(0)', f's_branch {Lfc}'])
        p(f's_cbranch_vccnz {Lr}')
        p(f'{Lfok}:')
        p(f'v_cmp_ne_u32 vcc, {sFlag}, v{FL}')
        p(f's_or_b32 {sMode}, vcc_lo, vcc_hi')
        if o.forceslow: p(f's_mov_b32 {sMode}, 1')
        adv(o.dG, True)
        for s_ in self.g3_list(ACC, vQR, vQR3, '0'):
            if 'q0' in o.skip: s_ = s_.replace(vQR3 + ',', 'v1,').replace(vQR + ',', 'v1,').replace(srd('WS'), srd('K')).replace(' sc1', '')
            self.vmem(s_, tag='Q0')
        self.stamp(4)
        adv(min(D + o.dQo, D - 1), 3)
        adv(max(0, o.dQo + 1), False)
        u, sc = T, T + 3
        self.wait('Q0')
        self.flush()
        Lq, Lqp = p.label('Lq'), p.label('Lqp')
        p(f'{Lq}:')
        for s_ in self.g3_sum(ACC, f'v{u}'): p(s_)
        self.ool.append([f'{Lqp}:'] + self.g3_list(ACC, vQR, vQR3, '0') + ['s_waitcnt vmcnt(0)', f's_branch {Lq}'])
        adv(o.dX, False)
        self.q_finish(u, None, None, sc, Lqp, ln=False)
        self.stamp(5)
        self.flush()
        until(o.qkpos)
        self.wait('K31')
        qi = [int(c) for c in o.qkiss]
        self.qk_softmax(lambda n: adv(qi[n], False))
        self.stamp(6)
        adv(qi[5], False)
        for op in self.ml_ops('mode'): self.run_op(op)
        if not (A and B) and 'clr2' not in o.skip:
            for k in range(4): p(f'v_mov_b32 v{SN+k}, -1')
            p(f's_lshl_b32 {sT}, {sC}, 2'); p(f's_add_u32 {sT}, {sT}, {sW}')
            if B: p(f's_sub_u32 {sT}, {sT}, 32')
            Lnc, Lg, Lsl = p.label('Lnc'), p.label('Lg'), p.label('Lsl')
            p(f's_lshl_b32 {sT2}, {sT}, 10')
            if B:
                p(f's_cmp_ge_u32 {sT}, 71'); p(f's_cbranch_scc1 {Lg}')
            p(f's_add_u32 {sT2}, {sT2}, {sBX}'); p(f's_add_u32 {sT2}, {sT2}, {H(LSTR)}')
            if o.clrfast:
                p(f's_cmp_lg_u32 {sMode}, 0'); p(f's_cbranch_scc1 {Lsl}')
                self.vmem(f'buffer_store_dwordx4 {vr(SN,4)}, {a16}, {srd("WS")}, {sT2} offen', optional=True)
                p(f's_branch {Lnc}')
            elif B: p(f's_branch {Lsl}')
            if B:
                p(f'{Lg}:')
                p(f's_cmp_ge_u32 {sT}, 86'); p(f's_cbranch_scc1 {Lnc}')
                p(f's_mul_i32 {sT3}, {sX}, {15*1024}'); p(f's_add_u32 {sT2}, {sT2}, {sT3}'); p(f's_add_u32 {sT2}, {sT2}, {H(XMo - 71*1024)}')
                p(f's_add_u32 {sT3}, {sT2}, {H(XAo)}')
                p(f's_cmp_ge_u32 {sT2}, {H(LSTR)}'); p(f's_cselect_b32 {sT2}, {sT3}, {sT2}')
            p(f'{Lsl}:')
            self.vmem(f'buffer_store_dwordx4 {vr(SN,4)}, {a16}, {srd("WS")}, {sT2} offen sc1', optional=True, tag='CLR2')
            p(f'{Lnc}:')
        if o.pf1: self.fwd = True; self.pfcode(f'L_loop{name}_fast', f'L_loop{name}_slow')
        self.stamp(7)
        self.flush()
        def hook(pp):
            keys = [k for k, f in st]
            need = f'V{2*pp+1}'
            if need in keys: adv(keys.index(need) + 1, False)
            behind = self.vm - self.tags[need]
            Dp = D + (o.dPV if pp >= o.pPV else 0)
            if o.dPV and o.kvonly:
                keys = [k for k, f in st]
                nkv = max([i + 1 for i, k in enumerate(keys) if k[0] == 'V'] + [0])
                n = max(min(Dp - behind, nkv), D - behind)
                if n > 0: adv(n, False)
            elif behind < Dp: adv(Dp - behind, False)
        hooks = {pp: (lambda pp=pp: hook(pp)) for pp in range(16)}
        self.pv([], True, hooks=hooks)
        assert 'FL2' in self.tags
        if not (A and B) and 'clr2' not in o.skip: self.wait('CLR2')
        if o.exit10:
            self.stamp(10); self.finish()
            for code in self.ool:
                for s in code: p(s)
            self.ool = []
            self.vm, self.tags = vm0, tags0
            return
        self.rest = list(st); self.rest2 = Wl
        self.set_layer(0)
        self.flush()
        p(f's_cmp_eq_u32 {sMode}, 0'); p(f's_cbranch_scc1 L_loop{name}_fast')
        p(f's_branch L_loop{name}_slow')
        for code in self.ool:
            for s in code: p(s)
        self.ool = []
        self.chain(A, B, True, f'L_loop{name}_fast')
        state = (self.vm, dict(self.tags), self.rest, self.rest2)
        def slow():
            self.vm, self.tags, self.rest, self.rest2 = state[0], dict(state[1]), state[2], state[3]
            self.vfree = True
            self.chain(A, B, False, f'L_loop{name}_slow')
        if o.pfa: self.later.append(slow)
        else: slow()
        self.vm, self.tags = vm0, tags0


def main():
    ap = argparse.ArgumentParser()
    ap.add_argument('out')
    ap.add_argument('--stamps', type=int, default=0)
    ap.add_argument('--x8delay', type=int, default=0)
    ap.add_argument('--pdx', type=int, default=0)
    ap.add_argument('--pdo', type=int, default=0)
    ap.add_argument('--skip', type=str, default='')
    ap.add_argument('--exit10', type=int, default=0)
    ap.add_argument('--qkiss', type=str, default='000003')
    ap.add_argument('--clrfast', type=int, default=1)
    ap.add_argument('--xs', type=int, default=0)
    ap.add_argument('--xgap', type=int, default=6)
    ap.add_argument('--abw1', type=int, default=1)
    ap.add_argument('--abc1', type=int, default=1)
    ap.add_argument('--pf0', type=int, default=0)
    ap.add_argument('--pf1', type=int, default=0)
    ap.add_argument('--pfsel', type=int, default=1)
    ap.add_argument('--pfa', type=int, default=0)
    ap.add_argument('--order', type=str, default='A,AB,B')
    ap.add_argument('--hk', type=int, default=0)
    ap.add_argument('--xgate', type=int, default=0)
    ap.add_argument('--xgd', type=int, default=0)
    ap.add_argument('--pfx', type=int, default=0)
    ap.add_argument('--inl', type=int, default=0)
    ap.add_argument('--xat', type=int, default=0)
    ap.add_argument('--il', type=int, default=0)
    ap.add_argument('--xperm', type=str, default='')
    ap.add_argument('--alt', type=int, default=0)
    ap.add_argument('--altw', type=int, default=1)
    ap.add_argument('--jx', type=int, default=0)
    ap.add_argument('--sx', type=int, default=0)
    ap.add_argument('--xx', type=int, default=0)
    ap.add_argument('--dPV', type=int, default=0)
    ap.add_argument('--pPV', type=int, default=0)
    ap.add_argument('--kvonly', type=int, default=1)
    ap.add_argument('--wolate', type=int, default=0)
    ap.add_argument('--womid', type=int, default=1)
    ap.add_argument('--n2B', type=int, default=2)
    ap.add_argument('--n0A', type=int, default=0)
    ap.add_argument('--n0B', type=int, default=8)
    ap.add_argument('--n1A', type=int, default=6)
    ap.add_argument('--n1B', type=int, default=4)
    ap.add_argument('--n2', type=int, default=4)
    ap.add_argument('--dA', type=int, default=10)
    ap.add_argument('--dAB', type=int, default=16)
    ap.add_argument('--dB', type=int, default=10)
    ap.add_argument('--dFo', type=int, default=-1)
    ap.add_argument('--dG', type=int, default=0)
    ap.add_argument('--dQo', type=int, default=-2)
    ap.add_argument('--dX', type=int, default=2)
    ap.add_argument('--wposAB', type=int, default=0)
    ap.add_argument('--wposB', type=int, default=0)
    ap.add_argument('--fposA', type=str, default='K16')
    ap.add_argument('--fposAB', type=str, default='K8')
    ap.add_argument('--fposB', type=str, default='K12')
    ap.add_argument('--fpos2', type=str, default='V26')
    ap.add_argument('--qkpos', type=str, default='V8')
    ap.add_argument('--w1nt', type=str, default='')
    ap.add_argument('--w2nt', type=str, default='')
    ap.add_argument('--w2late', type=int, default=0)
    ap.add_argument('--pre', type=int, default=1)
    ap.add_argument('--forceslow', type=int, default=0)
    o = ap.parse_args()
    g = G(o)
    g.head()
    for r in o.order.split(','):
        g.prologue('A' in r, 'B' in r, r)
    g.p('L_fastend:')
    for f in g.later: f()
    body = g.p.finalize()
    ref = open('cdna_kernels/' + NAME + '.s.ref').read()
    comment = ''.join(l + '\n' for l in ref.split('\n') if l.startswith(';') and '@launch' not in l)
    open(o.out, 'w').write(header(256, 256, LDS_SIZE, comment=comment) + body + footer())
    print('instrs', len(g.p.items), 'nops inserted', g.p.nnops)

main()
```

```python
import sys, struct, math, argparse
from asmlib2 import *

def f2u(x): return struct.unpack('<I', struct.pack('<f', x))[0]
def H(x): return f'0x{x & 0xffffffff:x}'

BIG = '--stc' in sys.argv or '--osc' in sys.argv
GB = 0x13800 if BIG else 0x11C00
QP = 0x0
OP = 0xA000
HP = 0xC000
ST = 0x11000
OS = 0x13000 if BIG else 0x11800
NE, NG = (GB - OP) // 1024, GB // 1024
XAo = 8 * GB
XMo = XAo + 0xA000
LSTR = XMo + 0xA000
CSL = 2 * LSTR
NDEF = (2 * LSTR - XMo) // 1024
OOB = 0x80000000
L_Q, L_ML, L_J1, L_O, L_R, L_J2 = 0, 256, 512, 1024, 3072, 7168
L_X = 10240
LDS_SIZE = 12800
sX, sC, sJ, sS, sW = 's3', 's4', 's5', 's6', 's7'
SRD = dict(K=8, V=12, WS=16, X=20, WQ=24, WO=28, W1=32, B1=36, W2=40, B2=44, OUT=48, DBG=52)
KOFF = dict(X=0, K=8, V=16, WQ=24, WO=32, W1=48, B1=56, W2=64, B2=72, OUT=80, DBG=88, WS=96)
SIZE = dict(X=1280, K=1 << 25, V=1 << 25, WQ=640 * 8192, WO=4096 * 1280, W1=640 * 3456, B1=3456, W2=1728 * 1280,
            B2=1280, OUT=1280, DBG=256, WS=1 << 28)
def srd(n): return f's[{SRD[n]}:{SRD[n]+3}]'
sKV = 56
sL, sOS, sLM, sT, sT2, sBud, sLo, sHi, sMc, sIA, sIB, sFlag, sBX, sT3 = [f's{i}' for i in range(64, 78)]
sMode = 's78'
sOS0 = 's79'
sMB = 80
sMF = 88
sWA, sWB = 's90', 's91'
sSTAMP = 92
KA = 80
vLane, a16 = 'v0', 'v1'
vQW, vQR, vQR3, vSW, vSR, vHR3, vOW, vOR, lRW2, vOSR, vXW, vXR, vHW, vHR = [f'v{i}' for i in range(2, 16)]
lQW, lQR, lMW, lMR, lOW, lOR, lRW, lRR = [f'v{i}' for i in range(16, 24)]
CSQ, CS1, B1v, vC = 'v24', 'v25', 'v26', 'v27'
MK, XA, XB, XR, B2, BQ, PA, ACC, T = 28, 32, 36, 40, 44, 48, 64, 72, 104
VB = 126
vR, vG, t0, t1, t2, vD = 114, 115, 120, 121, 122, 123
XF = 40
SN = ACC + 28
vK = 'v124'
vSTAMP = 'v125'
WR, WT, WOR = 128, 160, 192
aWQ, aWO, aW1, aW2, aX, aB2, aB1, aC1, aCQ = 128, 160, 192, 208, 224, 226, 228, 232, 244
aW2v, aB1v, aW1v = CSQ, B1v, CS1
def v(i): return f'v{i}'
def vr(i, n): return f'v[{i}:{i+n-1}]'
def ar(i, n): return f'a[{i}:{i+n-1}]'
DF = 'row_mask:0xf bank_mask:0xf'
MFMA = 'v_mfma_f32_16x16x32_bf16'
CSC = (128 ** -0.5) * math.log2(math.e)
EPS = 1e-5
MHI = 0x41B80000
RM = 40
PP = [42, 44, 46, 118]
KST = ['K0', 'K4', 'K8', 'K12', 'K16', 'K20', 'K24', 'K28', 'V0', 'V4', 'V8', 'V12', 'V16', 'V20', 'V24', 'V28', 'V31']


class G:
    def __init__(self, opt):
        self.p = Prog()
        self.o = opt
        self.vm = 0
        self.tags = {}
        self.pend = []
        self.ool = []
        self.nst = 0
        self.later = []

    def __call__(self, s): self.p(s)

    def vmem(self, s, tag=None, optional=False):
        self.p(s)
        if not optional:
            self.vm += 1
        if tag: self.tags[tag] = self.vm
    def wait(self, tag):
        n = self.vm - self.tags[tag]
        assert 0 <= n
        self.p(f's_waitcnt vmcnt({min(n, 63)})')
    def stamp(self, k):
        if not self.o.stamps: return
        if len(self.pend) >= 5: self.lgkm(0)
        r = sSTAMP + 2 * (self.nst % 5); self.nst += 1
        self.p(f's_memrealtime s[{r}:{r+1}]')
        self.pend.append((k, r))
    def lgkm(self, n):
        if self.pend:
            self.p('s_waitcnt lgkmcnt(0)')
            for k, r in self.pend:
                self.p(f'v_writelane_b32 {vSTAMP}, s{r}, {k}')
            self.pend = []
        else:
            self.p(f's_waitcnt lgkmcnt({n})')
    def flush(self):
        if self.pend: self.lgkm(0)

    def transpose(self, abase, W, tmp, tmp2, rd=True):
        p = self.p
        n = 8 * W
        if rd:
            for k in range(n):
                p(f'v_accvgpr_read_b32 v{tmp+k}, a{abase+k}')
        cnt = 0
        prev = None
        for dp in range(W):
            for hi in range(2):
                for tau in range(4):
                    t = tmp2 + (cnt & 1); cnt += 1
                    p(f'v_perm_b32 v{t}, v{tmp+(2*tau+1)*W+dp}, v{tmp+(2*tau)*W+dp}, {sHi if hi else sLo}')
                    p(f'v_accvgpr_write_b32 a{abase+(2*dp+hi)*4+tau}, v{t}')

    def build_xa(self):
        p = self.p
        p(f'v_mov_b32_dpp v{XA+2}, v{XA} row_ror:8 {DF}')
        p(f'v_mov_b32_dpp v{XA+3}, v{XA+1} row_ror:8 {DF}')

    def xb_ops(self):
        return [f'v_mov_b32_dpp v{XB+k}, v{XA+k} quad_perm:[0,1,2,3] row_mask:0xf bank_mask:0x3' for k in range(4)]

    def unpack_xr(self, addb2):
        ops = [f'v_lshlrev_b32 v{XR}, 16, v{XA}', f'v_and_b32 v{XR+1}, 0xffff0000, v{XA}',
               f'v_lshlrev_b32 v{XR+2}, 16, v{XA+1}', f'v_and_b32 v{XR+3}, 0xffff0000, v{XA+1}']
        if addb2:
            ops += [f'v_pk_add_f32 {vr(XR,2)}, {vr(XR,2)}, {vr(B2,2)}', f'v_pk_add_f32 {vr(XR+2,2)}, {vr(XR+2,2)}, {vr(B2+2,2)}']
        return ops

    def qp(self, A, soff, fl, stats, track, post=(), wv=None, pre=None, tag=None, prest=None):
        p = self.p
        st = T + 16
        xb = self.xb_ops() if stats else []
        order = [0, 4, 1, 5, 2, 6, 3, 7]
        mov = {}
        for d in range(8):
            if d == 0: mov[d] = None
            elif d < 4: mov[d] = f'v_mov_b32_dpp v{ACC+d}, v{ACC+4*d} quad_perm:[0,1,2,3] row_mask:0x1 bank_mask:0xf'
            else: mov[d] = f'v_mov_b32_dpp v{ACC+d-4}, v{ACC+4*d} quad_perm:[0,1,2,3] row_mask:0x2 bank_mask:0xf'
        for n, d in enumerate(order):
            if pre:
                for s_ in pre(d): p(s_)
            p(f'{MFMA} {vr(ACC+4*d,4)}, {vr(A,4)}, {vr(wv+4*d,4) if wv else ar(aWQ+4*d,4)}, 0')
            if n < 2 and xb:
                p(xb[2*n]); p(xb[2*n+1])
            if n == 3 and stats:
                p(f'{MFMA} {vr(st,4)}, {vr(XA,4)}, {vr(XB,4)}, 0')
        p('s_mov_b32 exec_hi, 0')
        for d in order[1:]:
            p(mov[d])
        if prest: prest()
        self.vmem(f'buffer_store_dwordx4 {vr(ACC,4)}, {vQW}, {srd("WS")}, {soff} offen {fl}', optional=not track, tag=tag)
        if stats:
            p(f's_mov_b64 exec, s[{sMF}:{sMF+1}]' if self.o.stc else 's_mov_b64 exec, 0x101')
            self.vmem(f'buffer_store_dword v{st}, {vSW}, {srd("WS")}, {soff} offen {fl}', optional=not track)
        p('s_mov_b64 exec, -1')
        for s in post: p(s)

    def w1(self, A, soff, fl, stats, track, post=()):
        p = self.p
        st = T + 16
        xb = self.xb_ops() if stats else []
        for d in range(4):
            p(f'{MFMA} {vr(ACC+4*d,4)}, {vr(A,4)}, {ar(aW1+4*d,4)}, 0')
            if d < 2 and xb:
                p(xb[2*d]); p(xb[2*d+1])
        if stats:
            p(f'{MFMA} {vr(st,4)}, {vr(XA,4)}, {vr(XB,4)}, 0')
        p('s_mov_b64 exec, 0xffff')
        for d in range(1, 4):
            p(f'v_mov_b32 v{ACC+d}, v{ACC+4*d}')
        self.vmem(f'buffer_store_dwordx4 {vr(ACC,4)}, {vHW}, {srd("WS")}, {soff} offen {fl}', optional=not track)
        if stats:
            p(f's_mov_b64 exec, s[{sMF}:{sMF+1}]' if self.o.stc else 's_mov_b64 exec, 0x101')
            self.vmem(f'buffer_store_dword v{st}, {vSW}, {srd("WS")}, {soff} offen offset:256 {fl}', optional=not track)
        p('s_mov_b64 exec, -1')
        for s in post: p(s)

    def rs4(self, a, out):
        return [f'v_permlane32_swap_b32 v{a}, v{a+1}', f'v_permlane32_swap_b32 v{a+2}, v{a+3}',
                f'v_add_f32 v{a}, v{a}, v{a+1}', f'v_add_f32 v{a+2}, v{a+2}, v{a+3}',
                f'v_permlane16_swap_b32 v{a}, v{a+2}', f'v_add_f32 {out}, v{a}, v{a+2}']

    def stats_ops(self, s4, st, mean, sc, second, d2=None):
        inv = H(f2u(1.0 / 640))
        if d2 is None: d2 = s4
        ops = [f'v_pk_add_f32 {vr(d2,2)}, {vr(s4,2)}, {vr(s4+2,2)}',
               f'v_add_f32 v{st}, v{d2}, v{d2+1}',
               f'v_add_f32_dpp v{st}, v{st}, v{st} row_ror:2 {DF}',
               f'v_add_f32_dpp v{st}, v{st}, v{st} row_ror:4 {DF}',
               f'v_add_f32_dpp v{st}, v{st}, v{st} row_ror:8 {DF}',
               f'v_mul_f32 v{st}, {inv}, v{st}',
               f'v_mov_b32_dpp v{mean}, v{st} quad_perm:[0,0,2,2] {DF}',
               f'v_mov_b32_dpp v{sc}, v{st} quad_perm:[1,1,3,3] {DF}',
               f'v_fma_f32 v{sc}, -v{mean}, v{mean}, v{sc}',
               f'v_max_f32 v{sc}, 0, v{sc}']
        if second:
            ops += [f'v_mul_f32 v{sc}, {H(f2u(1.0 + EPS))}, v{sc}', f'v_add_f32 v{sc}, {H(f2u(EPS * EPS))}, v{sc}']
        else:
            ops += [f'v_add_f32 v{sc}, {H(f2u(EPS))}, v{sc}']
        ops += [f'v_rsq_f32 v{sc}, v{sc}']
        return ops

    def merge(self, *lists):
        lists = [list(l) for l in lists]
        while any(lists):
            for l in lists:
                if l: self.p(l.pop(0))

    def retry(self, Lp, Lok, extra=()):
        Lr = self.p.label('Lretry')
        code = [f'{Lr}:',
                f's_cmp_eq_u32 {sBud}, 0', f's_cbranch_scc1 {Lok}', f's_sub_u32 {sBud}, {sBud}, 1'] + list(extra) + [f's_branch {Lp}']
        self.ool.append(code)
        return Lr

    def bud(self):
        Lok, Lg = self.p.label('Lok'), self.p.label('Lgive')
        self.p(f's_sub_u32 {sBud}, {sBud}, 1'); self.p(f's_cbranch_scc1 {Lg}')
        self.ool.append([f'{Lg}:', f's_mov_b32 {sBud}, 0', 's_waitcnt vmcnt(0)', f's_branch {Lok}'])
        return Lok

    def g3_list(self, base, va, va3, soff, acc=False):
        return [f'buffer_load_dwordx4 {(ar if acc else vr)(base+4*t,4)}, {va3 if t == 2 else va}, {srd("WS")}, {soff} offen offset:{1024*t} sc1' for t in range(3)]
    def g3_sum(self, base, out, d=None):
        if d is None: d = base
        return [f'v_pk_add_f32 {vr(d,2)}, {vr(base,2)}, {vr(base+4,2)}', f'v_pk_add_f32 {vr(d+2,2)}, {vr(base+2,2)}, {vr(base+6,2)}',
                f'v_pk_add_f32 {vr(d,2)}, {vr(d,2)}, {vr(base+8,2)}', f'v_pk_add_f32 {vr(d+2,2)}, {vr(d+2,2)}, {vr(base+10,2)}'] \
            + self.rs4(d, out) + [f'v_add_f32_dpp {out}, {out}, {out} row_ror:8 {DF}']

    def q_finish(self, u, st, mean, sc, Lp, ln=True):
        p = self.p
        if isinstance(Lp, tuple): Lr, Lok = Lp
        else:
            Lok = p.label('Lok')
            Lr = self.retry(Lp, Lok)
        if ln:
            p(f'v_fma_f32 v{u}, -v{mean}, {CSQ}, v{u}')
            p(f'v_mul_f32 v{u}, v{u}, v{sc}')
        p(f'v_cvt_pk_bf16_f32 v{sc}, v{u}, v{u}')
        p(f'v_cmp_u_f32 vcc, v{u}, v{st if ln else u}')
        p(f's_cbranch_vccnz {Lr}')
        p(f'{Lok}:')
        p(f'ds_write_b16 {lQW}, v{sc}')
        self.lgkm(0)
        p('s_barrier')

    def qk_softmax(self, iss=lambda n: None, vw=False):
        p = self.p
        S = [T, T + 1]
        for b in range(4):
            p(f's_mov_b64 exec, s[{sMB+2*b}:{sMB+2*b+1}]')
            p(f'ds_read_b128 {vr(BQ+4*b,4)}, {lQR}')
        p('s_mov_b64 exec, -1')
        def adds(e):
            h, be = e >> 2, e & 3
            D = ACC + 4 * e
            first = True
            out = []
            for u in range(4):
                if u == be: continue
                src1 = f'v{D+be}' if first else f'v{S[h]}'
                out.append(f'v_add_f32_dpp v{S[h]}, v{D+u}, {src1} row_ror:{(4*(be-u)) % 16} row_mask:0xf bank_mask:{1<<be:#x}')
                first = False
            return out
        if vw: p('s_waitcnt vmcnt(0)')
        for b in range(4):
            self.lgkm(3 - b)
            for e in range(8):
                h, be = e >> 2, e & 3
                mb = 8 * be + 2 * b + h
                c = '0' if b == 0 else vr(ACC + 4 * e, 4)
                p(f'{MFMA} {vr(ACC+4*e,4)}, {ar(4*mb,4)}, {vr(BQ+4*b,4)}, {c}')
                if b == 3 and e >= 3:
                    for s in adds(e - 3): p(s)
            iss(b)
        for e in (5, 6, 7):
            for s in adds(e): p(s)
        M = T + 2
        p(f'v_max_f32 v{M}, v{S[0]}, v{S[1]}')
        for n in (1, 2, 4, 8):
            p(f'v_max_f32_dpp v{M}, v{M}, v{M} row_ror:{n} {DF}')
        p(f'v_max_f32_dpp v{M}, v{M}, v{M} row_bcast:15 row_mask:0xa bank_mask:0xf')
        p(f'v_max_f32_dpp v{M}, v{M}, v{M} row_bcast:31 row_mask:0xc bank_mask:0xf')
        iss(4)
        p(f'v_mul_f32 v{M}, v{M}, {vC}')
        p(f'v_readlane_b32 {sMc}, v{M}, 63')
        p(f'v_fma_f32 v{S[0]}, v{S[0]}, {vC}, -{sMc}')
        p(f'v_fma_f32 v{S[1]}, v{S[1]}, {vC}, -{sMc}')
        p(f'v_exp_f32 v{S[0]}, v{S[0]}')
        p(f'v_exp_f32 v{S[1]}, v{S[1]}')
        p(f'v_cvt_pk_bf16_f32 v{T+4}, v{S[0]}, v{S[1]}')

    def ml_ops(self, fl):
        P, M, Ls = T + 4, T + 2, T + 3
        m2, l2, mc, f = T + 6, T + 7, T + 8, T + 5
        lc = T + 9
        ops = [f'v_lshlrev_b32 v{Ls}, 16, v{P}', f'v_and_b32 v{T}, 0xffff0000, v{P}', f'v_add_f32 v{Ls}, v{Ls}, v{T}']
        for n in (1, 2, 4, 8):
            ops += [f'v_add_f32_dpp v{Ls}, v{Ls}, v{Ls} row_ror:{n} {DF}', None]
        ops += [f'v_add_f32_dpp v{Ls}, v{Ls}, v{Ls} row_bcast:15 row_mask:0xa bank_mask:0xf', None,
                f'v_add_f32_dpp v{Ls}, v{Ls}, v{Ls} row_bcast:31 row_mask:0xc bank_mask:0xf',
                f'ds_write_b64 {lMW}, {vr(M,2)}', None, None,
                lambda: (self.lgkm(0), self.p('s_barrier'), self.p(f'ds_read_b64 {vr(m2,2)}, {lMR}')), None, None, None,
                lambda: self.lgkm(0),
                f'v_max_f32_dpp v{mc}, v{m2}, v{m2} quad_perm:[1,0,3,2] {DF}', None,
                f'v_max_f32_dpp v{mc}, v{mc}, v{mc} quad_perm:[2,3,0,1] {DF}',
                f'v_sub_f32 v{f}, v{m2}, v{mc}', f'v_exp_f32 v{f}, v{f}', None,
                f'v_mul_f32 v{lc}, v{f}, v{l2}', None,
                f'v_add_f32_dpp v{lc}, v{lc}, v{lc} quad_perm:[1,0,3,2] {DF}', None,
                f'v_add_f32_dpp v{lc}, v{lc}, v{lc} quad_perm:[2,3,0,1] {DF}']
        def st():
            Ls_ = self.p.label('Lnos')
            self.p(f's_cmp_lg_u32 {sW}, 0'); self.p(f's_cbranch_scc1 {Ls_}')
            self.p('s_mov_b64 exec, 0x10001' if self.o.osc else 's_mov_b64 exec, 1')
            if fl == 'mode':
                L1, L2 = self.p.label('Lm'), self.p.label('Lm')
                self.p(f's_cmp_eq_u32 {sMode}, 0'); self.p(f's_cbranch_scc1 {L1}')
                self.vmem(f'buffer_store_dwordx2 {vr(mc,2)}, {a16}, {srd("WS")}, {sOS0} offen sc1', optional=True)
                self.p(f's_branch {L2}')
                self.p(f'{L1}:')
                self.vmem(f'buffer_store_dwordx2 {vr(mc,2)}, {a16}, {srd("WS")}, {sOS0} offen', optional=True)
                self.p(f'{L2}:')
            else:
                self.vmem(f'buffer_store_dwordx2 {vr(mc,2)}, {a16}, {srd("WS")}, {sOS} offen {fl}', optional=True)
            self.p('s_mov_b64 exec, -1')
            self.p(f'{Ls_}:')
        ops.append(st)
        return ops

    def run_op(self, o):
        if o is None: return
        if callable(o): o()
        else: self.p(o)

    def pv(self, extras, layer0, hooks={}):
        p = self.p
        P = T + 4
        Da, Db = ACC, ACC + 4
        def build(pp):
            return [f'v_mov_b32_dpp v{PA+4*(pp&1)+t}, v{P} row_newbcast:{pp} row_mask:0xf bank_mask:{1<<t:#x}' for t in range(4)]
        def perms(pp):
            A, Bq, o = VB + 2 + 8 * pp, VB + 6 + 8 * pp, VB + 8 * pp
            seq = [(0, 0), (0, 1), (1, 0), (1, 1), (3, 0), (3, 1), (2, 1), (2, 0)]
            return [f'v_perm_b32 v{o+2*dp+hi}, v{Bq+dp}, v{A+dp}, {sHi if hi else sLo}' for dp, hi in seq]
        extras = list(extras)
        for s in build(0): p(s)
        for pp in range(16):
            nb = build(pp + 1) if pp < 15 else []
            if pp in hooks: hooks[pp]()
            if layer0:
                self.wait(f'V{2*pp+1}')
                for s in perms(pp): p(s)
            c = '0' if pp == 0 else None
            p(f'{MFMA} {vr(Da,4)}, {vr(PA+4*(pp&1),4)}, {vr(VB+8*pp,4)}, {c or vr(Da,4)}')
            for s in nb[:3]: p(s)
            p(f'{MFMA} {vr(Db,4)}, {vr(PA+4*(pp&1),4)}, {vr(VB+8*pp+4,4)}, {c or vr(Db,4)}')
            for s in nb[3:]: p(s)
            for _ in range(2):
                if extras: self.run_op(extras.pop(0))
        for o in extras: self.run_op(o)

    def reduce_publish(self, y, kind, soff, ldsoff):
        p = self.p
        if kind == 'o':
            for k in range(4): p(f'v_permlane16_swap_b32 v{y+k}, v{y+4+k}')
            p(f'v_pk_add_f32 {vr(y,2)}, {vr(y,2)}, {vr(y+4,2)}')
            p(f'v_pk_add_f32 {vr(y+2,2)}, {vr(y+2,2)}, {vr(y+6,2)}')
        p(f'ds_write_b128 {lRW if kind == "o" else lRW2}, {vr(y,4)} offset:{ldsoff}')
        if self.o.pl > 1 and kind == 'h': p('s_waitcnt vmcnt(0)')
        p(f's_cmp_lg_u32 {sW}, 0')
        self.lgkm(0)
        if self.o.stamps: p(f's_cmp_lg_u32 {sW}, 0')
        p('s_barrier')
        Ls = p.label('Lsk')
        p(f's_cbranch_scc1 {Ls}')
        if self.o.acc:
            for k in range(4):
                p(f'ds_read2st64_b32 {vr(ACC+2*k,2)}, {lRR} offset0:{ldsoff//256+2*k} offset1:{ldsoff//256+2*k+1}')
            self.lgkm(2)
            p(f'v_pk_add_f32 {vr(ACC,2)}, {vr(ACC,2)}, {vr(ACC+2,2)}')
            self.lgkm(0)
            p(f'v_pk_add_f32 {vr(ACC+4,2)}, {vr(ACC+4,2)}, {vr(ACC+6,2)}')
            p(f'v_pk_add_f32 {vr(ACC,2)}, {vr(ACC,2)}, {vr(ACC+4,2)}')
            p(f'v_add_f32 v{ACC}, v{ACC}, v{ACC+1}')
            p(f'v_cvt_f64_f32 {vr(ACC+2,2)}, v{ACC}')
            p(f'v_add_f64 {vr(ACC+2,2)}, {vr(ACC+2,2)}, s[0:1]')
            p(f'v_add_u32 v{ACC+3}, {H(0x01000000 - MHI)}, v{ACC+3}')
            self.vmem(f'buffer_atomic_add_x2 {vr(ACC+2,2)}, {vXW}, {srd("WS")}, {soff} offen sc1', optional=True)
            p(f'{Ls}:')
            return
        for k in range(4):
            p(f'ds_read_b128 {vr(ACC+4*k,4)}, {lRR} offset:{ldsoff+512*k}')
        p('s_mov_b32 exec_hi, 0')
        self.lgkm(2)
        p(f'v_pk_add_f32 {vr(ACC,2)}, {vr(ACC,2)}, {vr(ACC+4,2)}')
        p(f'v_pk_add_f32 {vr(ACC+2,2)}, {vr(ACC+2,2)}, {vr(ACC+6,2)}')
        self.lgkm(0)
        p(f'v_pk_add_f32 {vr(ACC+8,2)}, {vr(ACC+8,2)}, {vr(ACC+12,2)}')
        p(f'v_pk_add_f32 {vr(ACC+10,2)}, {vr(ACC+10,2)}, {vr(ACC+14,2)}')
        p(f'v_pk_add_f32 {vr(ACC,2)}, {vr(ACC,2)}, {vr(ACC+8,2)}')
        p(f'v_pk_add_f32 {vr(ACC+2,2)}, {vr(ACC+2,2)}, {vr(ACC+10,2)}')
        for k in range(4):
            p(f'v_add_f32_dpp v{ACC+k}, v{ACC+k}, v{ACC+k} row_ror:8 {DF}')
        p('s_mov_b32 exec_lo, 0x00ff00ff')
        self.vmem(f'buffer_store_dwordx4 {vr(ACC,4)}, {vXW}, {srd("WS")}, {soff} offen sc1', optional=True)
        p('s_mov_b64 exec, -1')
        p(f'{Ls}:')

    def rm_ops(self, src, addb2):
        t, u = T + 8, T + 9
        ops = ['s_mov_b32 exec_lo, 0x00ff00ff', 's_mov_b32 exec_hi, 0x00ff00ff', f'v_lshlrev_b32 v{t}, 16, v{src}']
        if addb2:
            ops += [f'v_accvgpr_read_b32 v{u}, a{aB2}', f'v_lshlrev_b32 v{u}, 16, v{u}', f'v_add_f32 v{t}, v{t}, v{u}']
        ops += [f'v_cvt_f64_f32 {vr(RM,2)}, v{t}', f'v_add_f64 {vr(RM,2)}, {vr(RM,2)}, -s[0:1]', 's_mov_b64 exec, -1']
        return ops

    def x16a(self, soff, final=False, fills=(), pre=0):
        p = self.p
        o = self.o
        ND = o.nd if not final else o.ndf
        gap = o.agap if not final else o.agapf
        D, x, lw, lr = T + 6, T + 5, T + 8, T + 9
        Lb, Lp, Lok = p.label('Lb'), p.label('Lp'), p.label('Lok')
        self.flush()
        def ld(k):
            a = PP[k % ND]
            p(f'v_mov_b32 v{a}, 0'); p(f'v_mov_b32 v{a+1}, 0')
            self.vmem(f'buffer_atomic_or_x2 {vr(a,2)}, {vXR}, {srd("WS")}, {soff} offen sc0 sc1', optional=True)
        assert len(fills) <= max(ND - 1, 0)
        for k, (fn, wn) in enumerate(fills):
            La, Lc = p.label('La'), p.label('Lc')
            p(f's_cmp_lg_u32 {sW}, {o.pw}'); p(f's_cbranch_scc1 {La}')
            ld(k)
            if wn is not None:
                p(f's_waitcnt vmcnt({wn + k + 1})'); p(f's_branch {Lc}')
            p(f'{La}:')
            if wn is not None:
                p(f's_waitcnt vmcnt({wn})')
                p(f'{Lc}:')
            fn()
            self.flush()
        p(f'v_and_b32 v{lr}, 0x30, v0')
        p(f's_cmp_lg_u32 {sW}, {o.pw}'); p(f's_cbranch_scc1 {Lb}')
        if final: p('s_waitcnt vmcnt(0)')
        for _ in range(pre): p('s_nop 15')
        first = True
        for k in range(len(fills), max(ND - 1, len(fills) + 1)):
            if k < ND - 1: ld(k)
            if first:
                p(f'v_and_b32 v{lw}, 7, v0'); p(f'v_lshl_add_u32 v{lw}, v{lw}, 1, v{lr}')
                if final: p(f's_lshl_b32 {sT}, {sIA}, 6')
                first = False
            if k < ND - 1:
                for _ in range(gap): p('s_nop 15')
        p(f'{Lp}:')
        for k in range(ND):
            ld(k + ND - 1)
            p(f's_waitcnt vmcnt({ND-1})')
            p(f'v_cmp_gt_u32 vcc, 0x41000000, v{PP[k]+1}')
            p(f'v_add_f64 {vr(D,2)}, {vr(PP[k],2)}, {vr(RM,2)}')
            p(f's_cbranch_vccz {Lok}')
        p(f's_sub_u32 {sBud}, {sBud}, 1'); p(f's_cbranch_scc0 {Lp}')
        p(f's_mov_b32 {sBud}, 0')
        p(f'{Lok}:')
        p(f'v_cvt_f32_f64 v{x}, {vr(D,2)}')
        p(f'v_add_f32_dpp v{x}, v{x}, v{x} row_ror:8 {DF}')
        p(f'v_cvt_pk_bf16_f32 v{x}, v{x}, v{x}')
        if final:
            p('s_mov_b32 exec_lo, 0x00ff00ff'); p('s_mov_b32 exec_hi, 0x00ff00ff')
            p(f'buffer_store_short v{x}, v{lw}, {srd("OUT")}, {sT} offen')
            p('s_mov_b64 exec, -1')
            p(f'{Lb}:')
            return
        p(f'ds_write_b16 v{lw}, v{x} offset:{L_X}')
        p('s_waitcnt lgkmcnt(0)')
        p(f'{Lb}:')
        p('s_barrier')
        p(f'ds_read_b128 {vr(XA,4)}, v{lr} offset:{L_X}')
        p('s_waitcnt lgkmcnt(0)')

    def x16(self, soff, pd=0, pre=0):
        if self.o.acc: return self.x16a(soff, pre=pre)
        if self.o.xs: return self.x16s(soff)
        p = self.p
        Y = T
        for _ in range(self.o.x8delay): p('s_nop 15')
        Lp = p.label('Lp')
        p(f'{Lp}:')
        self.vmem(f'buffer_load_dwordx4 {vr(Y,4)}, {vXR}, {srd("WS")}, {soff} offen sc1', optional=True)
        self.vmem(f'buffer_load_dwordx4 {vr(Y+4,4)}, {vXR}, {srd("WS")}, {soff} offen offset:1024 sc1', optional=True)
        p('s_waitcnt vmcnt(0)')
        p(f'v_pk_add_f32 {vr(Y,2)}, {vr(Y,2)}, {vr(Y+4,2)}')
        p(f'v_pk_add_f32 {vr(Y+2,2)}, {vr(Y+2,2)}, {vr(Y+6,2)}')
        for c in ('quad_perm:[1,0,3,2]', 'quad_perm:[2,3,0,1]', 'row_half_mirror'):
            for k in range(4):
                p(f'v_add_f32_dpp v{Y+k}, v{Y+k}, v{Y+k} {c} {DF}')
        p(f'v_pk_add_f32 {vr(Y,2)}, {vr(Y,2)}, {vr(XR,2)}')
        p(f'v_pk_add_f32 {vr(Y+2,2)}, {vr(Y+2,2)}, {vr(XR+2,2)}')
        p(f'v_cvt_pk_bf16_f32 v{XA}, v{Y}, v{Y+1}')
        p(f'v_cvt_pk_bf16_f32 v{XA+1}, v{Y+2}, v{Y+3}')
        p(f'v_pk_add_f32 {vr(Y,2)}, {vr(Y,2)}, {vr(Y+2,2)}')
        p(f'v_cmp_u_f32 vcc, v{Y}, v{Y+1}')
        self.build_xa()
        Lok = p.label('Lok')
        Lr = self.retry(Lp, Lok, extra=['s_nop 15'] * pd)
        p(f's_cbranch_vccnz {Lr}')
        p(f'{Lok}:')

    def x16s(self, soff):
        p = self.p
        ND = self.o.xs
        Y = ACC
        lw, lr = T + 8, T + 9
        def ld(k):
            if self.o.xat == 2:
                p(f'v_mov_b32 v{T+2*k}, -1'); p(f'v_mov_b32 v{T+2*k+1}, -1')
                self.vmem(f'buffer_atomic_and_x2 {vr(T+2*k,2)}, {vXR}, {srd("WS")}, {soff} offen sc0 sc1', optional=True)
            elif self.o.xat:
                p(f'v_mov_b32 v{T+2*k}, 0'); p(f'v_mov_b32 v{T+2*k+1}, 0')
                self.vmem(f'buffer_atomic_or_x2 {vr(T+2*k,2)}, {vXR}, {srd("WS")}, {soff} offen sc0 sc1', optional=True)
            else:
                self.vmem(f'buffer_load_dwordx2 {vr(T+2*k,2)}, {vXR}, {srd("WS")}, {soff} offen sc1', optional=True)
        ld(0)
        p(f'v_lshrrev_b32 v{lw}, 4, v0'); p(f'v_mul_u32_u24 v{lw}, 16, v{lw}'); p(f'v_lshl_add_u32 v{lw}, v0, 3, v{lw}')
        p(f's_mul_i32 {sT}, {sW}, 576'); p(f's_add_u32 {sT}, {sT}, {L_X}'); p(f'v_add_u32 v{lw}, {sT}, v{lw}')
        p(f'v_and_b32 v{lr}, 7, v0'); p(f'v_mul_u32_u24 v{lr}, 142, v{lr}'); p(f'v_lshl_add_u32 v{lr}, v0, 1, v{lr}')
        if self.o.xat == 2:
            Lp, Lg, Lok = p.label('Lp'), p.label('Lgive'), p.label('Lok')
            p(f's_branch {Lp}w')
            p(f'{Lp}:')
            p(f's_sub_u32 {sBud}, {sBud}, 1'); p(f's_cbranch_scc1 {Lg}')
            p('s_nop 1')
            self.vmem(f'buffer_atomic_and_x2 {vr(T,2)}, {vXR}, {srd("WS")}, {soff} offen sc0 sc1', optional=True)
            self.ool.append([f'{Lg}:', f's_mov_b32 {sBud}, 0', 's_waitcnt vmcnt(0)', f's_branch {Lok}'])
            p(f'{Lp}w:')
            p('s_waitcnt vmcnt(0)')
            p(f'v_cmpx_u_f32 vcc, v{T}, v{T+1}')
            p(f's_cbranch_vccnz {Lp}')
            p(f'{Lok}:')
            p('s_mov_b64 exec, -1')
            p(f'ds_write_b64 v{lw}, {vr(T,2)}')
            ND = 0
        for k in range(1, ND - 1):
            for _ in range(self.o.xgap): p('s_nop 15')
            ld(k)
        if ND > 1:
            for _ in range(self.o.xgap): p('s_nop 15')
        Lp, Lj = p.label('Lp'), p.label('Lj')
        Ld = [p.label('Ld') for _ in range(ND)]
        if ND == 1:
            p(f's_branch {Lp}w')
        if ND: p(f'{Lp}:')
        for k in range(ND):
            ld((k - 1) % ND)
            if ND == 1: p(f'{Lp}w:')
            p(f's_waitcnt vmcnt({ND - 1})')
            p(f'v_cmp_u_f32 vcc, v{T+2*k}, v{T+2*k+1}')
            p(f's_cbranch_vccz {Ld[k]}')
        if ND:
            p(f's_sub_u32 {sBud}, {sBud}, 1'); p(f's_cbranch_scc0 {Lp}')
            p(f's_mov_b32 {sBud}, 0')
            for k in range(1, ND):
                self.ool.append([f'{Ld[k]}:', f'ds_write_b64 v{lw}, {vr(T+2*k,2)}', f's_branch {Lj}'])
            p(f'{Ld[0]}:')
            p(f'ds_write_b64 v{lw}, {vr(T,2)}')
            p(f'{Lj}:')
        p('s_waitcnt lgkmcnt(0)')
        p('s_barrier')
        p(f'ds_read_b128 {vr(Y,4)}, v{lr} offset:{L_X}')
        p(f'ds_read_b128 {vr(Y+4,4)}, v{lr} offset:{L_X+1152}')
        p('s_waitcnt lgkmcnt(0)')
        p(f'v_pk_add_f32 {vr(Y,2)}, {vr(Y,2)}, {vr(Y+4,2)}')
        p(f'v_pk_add_f32 {vr(Y+2,2)}, {vr(Y+2,2)}, {vr(Y+6,2)}')
        for c in ('quad_perm:[1,0,3,2]', 'quad_perm:[2,3,0,1]', 'row_half_mirror'):
            for k in range(4):
                p(f'v_add_f32_dpp v{Y+k}, v{Y+k}, v{Y+k} {c} {DF}')
        p(f'v_pk_add_f32 {vr(Y,2)}, {vr(Y,2)}, {vr(XR,2)}')
        p(f'v_pk_add_f32 {vr(Y+2,2)}, {vr(Y+2,2)}, {vr(XR+2,2)}')
        p(f'v_cvt_pk_bf16_f32 v{XA}, v{Y}, v{Y+1}')
        p(f'v_cvt_pk_bf16_f32 v{XA+1}, v{Y+2}, v{Y+3}')
        self.build_xa()

    def oa2a(self, pd=0, mid=None, stk=None, pre=0):
        p = self.p
        AO = T
        ml = T + 4
        M, f, Lq, ck = T + 6, T + 7, T + 8, T + 9
        y = T + 12
        DL = self.o.plo
        assert not (mid and DL > 1)
        if stk and self.o.stamps >= 2: p(f'v_writelane_b32 {vSTAMP}, {sBud}, {stk+12}')
        if pre:
            Lq_ = p.label('Lpre')
            p(f's_cmp_eq_u32 {sW}, 0'); p(f's_cbranch_scc1 {Lq_}')
            for _ in range(pre): p('s_nop 15')
            p(f'{Lq_}:')
        Lp = p.label('Lp')
        if mid:
            self.vmem(f'buffer_load_dwordx2 {vr(ml,2)}, {vOSR}, {srd("WS")}, {sL} offen sc1')
            self.vmem(f'buffer_load_dwordx4 {vr(AO,4)}, {vOR}, {srd("WS")}, {sL} offen sc1')
            mid()
            self.ool.append([f'{Lp}:', f'buffer_load_dwordx2 {vr(ml,2)}, {vOSR}, {srd("WS")}, {sL} offen sc1',
                             f'buffer_load_dwordx4 {vr(AO,4)}, {vOR}, {srd("WS")}, {sL} offen sc1', f's_branch {Lp}w'])
            p(f'{Lp}w:')
        else:
            for k in range(DL):
                if k == DL - 1: p(f'{Lp}:')
                self.vmem(f'buffer_load_dwordx2 {vr(ml,2)}, {vOSR}, {srd("WS")}, {sL} offen sc1', optional=True)
                self.vmem(f'buffer_load_dwordx4 {vr(AO,4)}, {vOR}, {srd("WS")}, {sL} offen sc1', optional=True)
                if k < DL - 1:
                    for _ in range(self.o.pgapo): p('s_nop 15')
        if self.o.inl and not mid:
            Lok = self.bud(); Lr = Lp
        else:
            Lok = p.label('Lok')
            Lr = self.retry(Lp, Lok, extra=['s_nop 15'] * pd)
        p(f's_waitcnt vmcnt({2*(DL-1)})')
        chk = [f'v_max3_u32 v{ck}, v{AO}, v{AO+1}, v{AO+2}', f'v_max3_u32 v{ck}, v{ck}, v{AO+3}, v{ml}',
               f'v_max_u32 v{ck}, v{ck}, v{ml+1}', f'v_cmp_eq_u32 vcc, -1, v{ck}']
        sc = [f'v_max_f32_dpp v{M}, v{ml}, v{ml} quad_perm:[1,0,3,2] {DF}',
              f'v_max_f32_dpp v{M}, v{M}, v{M} quad_perm:[2,3,0,1] {DF}',
              f'v_max_f32_dpp v{M}, v{M}, v{M} row_half_mirror {DF}',
              f'v_sub_f32 v{f}, v{ml}, v{M}', f'v_exp_f32 v{f}, v{f}',
              f'v_mul_f32 v{Lq}, v{f}, v{ml+1}',
              f'v_add_f32_dpp v{Lq}, v{Lq}, v{Lq} quad_perm:[1,0,3,2] {DF}',
              f'v_add_f32_dpp v{Lq}, v{Lq}, v{Lq} quad_perm:[2,3,0,1] {DF}',
              f'v_add_f32_dpp v{Lq}, v{Lq}, v{Lq} row_half_mirror {DF}',
              f'v_rcp_f32 v{Lq}, v{Lq}', f'v_mul_f32 v{f}, v{f}, v{Lq}']
        mf = [f'{MFMA} {vr(ACC+4*d,4)}, {vr(AO,4)}, {ar(aWO+4*d,4)}, 0' for d in range(8)]
        if DL > 1 or self.o.ec:
            p(chk[0]); p(chk[1]); p(mf[0]); p(chk[2]); p(chk[3]); p(sc[0])
            p(f's_cbranch_vccnz {Lr}')
            p(f'{Lok}:')
            p(mf[1]); p(sc[1]); p(mf[2])
        else:
            p(mf[0]); p(chk[0]); p(chk[1]); p(sc[0])
            p(mf[1]); p(chk[2]); p(chk[3]); p(sc[1])
            p(mf[2])
            p(f's_cbranch_vccnz {Lr}')
            p(f'{Lok}:')
        if stk and self.o.stamps >= 2:
            self.stamp(stk); p(f'v_writelane_b32 {vSTAMP}, {sBud}, {stk+10}')
        p(sc[2])
        p(mf[3]); p(sc[3]); p(sc[4])
        p(mf[4]); p(sc[5])
        p(mf[5]); p(sc[6])
        p(mf[6]); p(sc[7])
        p(mf[7]); p(sc[8]); p(sc[9]); p(sc[10])
        for r in range(4):
            for d in range(8):
                op = 'v_mul_f32_dpp' if r == 0 else 'v_fmac_f32_dpp'
                p(f'{op} v{y+d}, v{f}, v{ACC+4*d+r} row_newbcast:{r} {DF}')
        self.reduce_publish(y, 'o', sL, 0)

    def gather_stats(self, va, va3, off, second, shadow=None):
        p = self.p
        DL = self.o.pl
        LB = ACC + 16 if DL > 1 else ACC
        s4 = LB + 12
        u, st, mean, sc = T, T + 1, T + 2, T + 3
        Lp = p.label('Lp')
        def lds():
            self.vmem(f'buffer_load_dwordx4 {vr(s4,4)}, {vSR}, {srd("WS")}, {sL} offen offset:{off} sc1', optional=True)
            for s_ in self.g3_list(LB, va, va3, sL): self.vmem(s_, optional=True)
        if DL > 1:
            for k in range(DL - 1):
                lds()
                if k == 0 and shadow: shadow()
                else:
                    for _ in range(self.o.pgap): p('s_nop 15')
        elif shadow:
            lds()
            shadow()
            p(f's_branch {Lp}w')
        p(f'{Lp}:')
        lds()
        Lw = Lp + 'w'
        if self.o.inl: Lp = (Lp, self.bud())
        if shadow: p(f'{Lw}:')
        p(f's_waitcnt vmcnt({4*(DL-1)+3})')
        so = self.stats_ops(s4, st, mean, sc, second, ACC + 4 if DL > 1 else None)
        for s_ in so[:2]: p(s_)
        p(f's_waitcnt vmcnt({4*(DL-1)})')
        gs = self.g3_sum(LB, f'v{u}', ACC)
        if self.o.ec:
            assert self.o.inl
            p(gs[0]); p(gs[2]); p(gs[1]); p(so[2])
            p(f'v_cmp_u_f32 vcc, v{ACC}, v{st}')
            p(gs[3])
            p(f's_cbranch_vccnz {Lp[0]}')
            self.merge(so[3:], gs[4:])
        else: self.merge(gs, so[2:])
        return Lp, u, st, mean, sc

    def ha2a(self, shadow=None, stk=None):
        p = self.p
        if stk and self.o.stamps >= 2:
            p(f'v_writelane_b32 {vSTAMP}, {sBud}, {stk+14}')
            if stk == 28: self.stamp(30); self.flush()
        Lp, u, st, mean, sc = self.gather_stats(vHR, vHR3, 256, True, shadow)
        t1_, e = T + 4, T + 5
        A = T + 8
        y = T + 12
        if isinstance(Lp, tuple): Lr, Lok = Lp
        else:
            Lok = p.label('Lok')
            Lr = self.retry(Lp, Lok)
        c0 = -2.0 * math.sqrt(2.0 / math.pi) * math.log2(math.e)
        c1 = c0 * 0.044715
        p(f'v_fma_f32 v{u}, -v{mean}, {CS1}, v{u}')
        p(f'v_fma_f32 v{u}, v{u}, v{sc}, {B1v}')
        p(f'v_mul_f32 v{t1_}, v{u}, v{u}')
        p(f'v_cmp_u_f32 vcc, v{u}, v{st}')
        p(f'v_mul_f32 v{t1_}, {H(f2u(c1))}, v{t1_}')
        p(f'v_add_f32 v{t1_}, {H(f2u(c0))}, v{t1_}')
        p(f's_cbranch_vccnz {Lr}')
        p(f'{Lok}:')
        if stk and self.o.stamps >= 2:
            self.stamp(stk); p(f'v_writelane_b32 {vSTAMP}, {sBud}, {stk+12}')
        p(f'v_mul_f32 v{t1_}, v{t1_}, v{u}')
        p(f'v_exp_f32 v{e}, v{t1_}')
        p(f'v_add_f32 v{e}, 1.0, v{e}')
        p(f'v_rcp_f32 v{e}, v{e}')
        p(f'v_mul_f32 v{u}, v{u}, v{e}')
        p(f'v_cvt_pk_bf16_f32 v{u}, v{u}, v{u}')
        for k in range(4):
            p(f'v_and_b32 v{A+k}, v{u}, v{MK+k}')
        for d in range(4):
            p(f'{MFMA} {vr(ACC+4*d,4)}, {vr(A,4)}, {ar(aW2+4*d,4)}, 0')
        for d in range(4):
            p(f'v_pk_add_f32 {vr(ACC+4*d,2)}, {vr(ACC+4*d,2)}, {vr(ACC+4*d+2,2)}')
            p(f'v_add_f32 v{y+d}, v{ACC+4*d}, v{ACC+4*d+1}')
        self.reduce_publish(y, 'h', sLM, 2048)

    def combine(self, fl):
        p = self.p
        f = T + 5
        p(f'v_mul_f32_dpp v{T}, v{f}, v{ACC} quad_perm:[0,0,0,0] {DF}')
        p(f'v_mul_f32_dpp v{T+1}, v{f}, v{ACC+4} quad_perm:[0,0,0,0] {DF}')
        p(f'ds_write2_b32 {lOW}, v{T}, v{T+1} offset0:0 offset1:64')
        p(f's_cmp_lg_u32 {sW}, 0')
        self.lgkm(0)
        if self.o.stamps: p(f's_cmp_lg_u32 {sW}, 0')
        p('s_barrier')
        Ls = p.label('Lsk')
        p(f's_cbranch_scc1 {Ls}')
        p(f'ds_read2_b64 {vr(ACC,4)}, {lOR} offset0:0 offset1:64')
        p(f'ds_read2_b64 {vr(ACC+4,4)}, {lOR} offset0:128 offset1:192')
        self.lgkm(1)
        p(f'v_pk_add_f32 {vr(ACC,2)}, {vr(ACC,2)}, {vr(ACC+2,2)}')
        self.lgkm(0)
        p(f'v_pk_add_f32 {vr(ACC+4,2)}, {vr(ACC+4,2)}, {vr(ACC+6,2)}')
        p(f'v_pk_add_f32 {vr(ACC,2)}, {vr(ACC,2)}, {vr(ACC+4,2)}')
        p(f'v_cvt_pk_bf16_f32 v{ACC}, v{ACC}, v{ACC+1}')
        self.vmem(f'buffer_store_dword v{ACC}, {vOW}, {srd("WS")}, {sL} offen {fl}', optional=True)
        p(f'{Ls}:')

    def set_layer(self, off):
        p = self.p
        p(f's_mov_b32 {sL}, {H(off)}')
        p(f's_add_u32 {sOS}, {sOS0}, {H(off)}')
        p(f's_mov_b32 {sLM}, {H(off + XMo - XAo)}')

    def finish(self):
        p = self.p
        if self.o.stamps:
            self.stamp(31)
            self.flush()
            p(f'v_writelane_b32 {vSTAMP}, {sBud}, 33')
            p(f's_memtime s[{sSTAMP}:{sSTAMP+1}]'); p('s_waitcnt lgkmcnt(0)')
            p(f'v_writelane_b32 {vSTAMP}, s{sSTAMP}, 35')
            Le = p.label('Lend')
            p(f's_cmp_lg_u32 {sW}, 0'); p(f's_cbranch_scc1 {Le}')
            p(f's_lshl_b32 {sT}, s2, 8'); p(f's_add_u32 {sT}, {sT}, 0x8000000')
            p(f'v_lshlrev_b32 v{T}, 2, {vLane}')
            p(f'buffer_store_dword {vSTAMP}, v{T}, {srd("WS")}, {sT} offen')
            p(f'{Le}:')
        p('s_endpgm')

    def chain(self, A, B, fast, name):
        p = self.p
        o = self.o
        fl = '' if fast else 'sc1'
        vm0, tags0 = self.vm, dict(self.tags)
        p(f'{name}:')
        TB = ACC
        FL = vR
        for layer in range(2):
            def stp(k): self.stamp(8 + 10 * layer + k)
            stp(2)
            self.combine(fl)
            stp(3)
            if layer == 0:
                for k, f in self.rest: f()
                self.wait('FL2')
                Lfp, Lfok, Lfc = p.label('Lfp'), p.label('Lfok'), p.label('Lfc')
                self.flush()
                p(f'{Lfc}:')
                p(f'v_and_b32 v{t0}, 0x80808080, v{FL}')
                p(f'v_cmp_ne_u32 vcc, 0x80808080, v{t0}')
                Lr = self.retry(Lfp, Lfok)
                self.ool.append([f'{Lfp}:', f'buffer_load_dword v{FL}, v{T+15}, {srd("DBG")}, 0 offen sc1',
                                 's_waitcnt vmcnt(0)', f's_branch {Lfc}'])
                p(f's_cbranch_vccnz {Lr}')
                p(f'{Lfok}:')
            if B:
                def mid():
                    self.wait('WO')
                    self.stamp(28)
                    self.transpose(aWO, 4, TB, T + 12)
                if layer == 0 and o.wolate and not o.womid: mid()
                self.oa2a(o.pdo if layer == 0 else 0, mid if (layer == 0 and o.wolate and o.womid) else None, stk=26 + layer, pre=o.opre if layer else 0)
                stp(4)
                if layer == 0:
                    for k, f in self.rest2: f()
            fill = A and B and layer == 0 and o.fill
            def w1fix():
                self.transpose(aW1, 2, TB, TB + 16)
                p(f's_mov_b32 {sT2}, {H(CSL)}')
                self.w1(XB, sT2, fl, False, False)
            if A and layer == 0:
                self.wait('W1')
                if not fill: w1fix()
            c1l = [f's_mov_b32 {sT2}, {H(CSL)}'] + self.g3_list(aC1, vHR, vHR3, sT2, acc=True)
            cql = [f's_mov_b32 {sT2}, {H(CSL)}'] + self.g3_list(aCQ, vQR, vQR3, sT2, acc=True)
            def w2fix(w=True):
                if w: self.wait('W2')
                p(f'v_accvgpr_read_b32 {B1v}, a{aB1}'); p(f'v_lshlrev_b32 {B1v}, 16, {B1v}')
                self.transpose(aW2, 2, TB, TB + 16)
            if B and layer == 0 and (not A or not o.w2late):
                w2fix()
                if not A:
                    for s_ in c1l: p(s_)
            if A and B and layer == 0 and o.abc1 == 1:
                for s_ in c1l: p(s_)
            if A and not B and layer == 0 and o.xgate:
                Lp, Lg, Lok = p.label('Lp'), p.label('Lgive'), p.label('Lok')
                if o.opc:
                    p(f'v_bfe_u32 v{T+1}, v0, 3, 2'); p(f'v_lshlrev_b32 v{T+1}, 11, v{T+1}'); p(f'v_and_b32 v{T}, 7, v0'); p(f'v_lshl_add_u32 v{T+1}, v{T}, 4, v{T+1}')
                else:
                    p(f'v_and_b32 v{T+1}, 31, v0'); p(f'v_lshlrev_b32 v{T+1}, 8, v{T+1}')
                p(f's_add_u32 {sT}, {sBX}, {H(OP)}')
                p(f'{Lp}:')
                p(f'buffer_load_dword v{T}, v{T+1}, {srd("WS")}, {sT} offen sc1')
                p(f's_sub_u32 {sBud}, {sBud}, 1'); p(f's_cbranch_scc1 {Lg}')
                self.ool.append([f'{Lg}:', f's_mov_b32 {sBud}, 0', 's_waitcnt vmcnt(0)', f's_branch {Lok}'])
                for _ in range(o.xgate - 1): p('s_nop 15')
                p('s_waitcnt vmcnt(0)')
                p(f'v_cmp_eq_u32 vcc, -1, v{T}')
                p(f's_cbranch_vccnz {Lp}')
                p(f'{Lok}:')
                for _ in range(o.xgd): p('s_nop 15')
            if fill and o.pl <= 1:
                c1l = [f's_mov_b32 {sT2}, {H(CSL)}'] + self.g3_list(ACC + 20, vHR, vHR3, sT2)
            if A:
                if fill:
                    assert self.vm == self.tags['W2'] or o.w2pos
                    self.x16a(sL, fills=[(w1fix, None)] + ([(lambda: w2fix(False), 1)] if o.fill >= 2 else []))
                else: self.x16(sL, o.pdx if layer == 0 else 0, pre=0 if B else (o.pd1 if layer else o.pd0))
                stp(5)
                if B and layer == 0 and o.abc1 == 2:
                    for s_ in c1l: p(s_)
                self.w1(XA, sL, fl, True, False, post=self.rm_ops(T + 5, True) if o.acc else self.unpack_xr(True))
                stp(6)
                if layer == 0 and not B:
                    for s_ in cql: p(s_)
            if fill:
                for s_ in cql: p(s_)
                if o.fill < 2: w2fix()
                def c1sh():
                    self.flush()
                    Lc1, Lcp, Lcok = p.label('Lc'), p.label('Lcp'), p.label('Lcok')
                    p('s_waitcnt vmcnt(4)')
                    p(f'{Lc1}:')
                    if o.pl > 1:
                        for k in range(12): p(f'v_accvgpr_read_b32 v{ACC+k}, a{aC1+k}')
                    for s_ in self.g3_sum(ACC + 20 if o.pl <= 1 else ACC, CS1): p(s_)
                    p(f'v_cmp_u_f32 vcc, {CS1}, {CS1}')
                    Lr = self.retry(Lcp, Lcok)
                    self.ool.append([f'{Lcp}:'] + c1l + ['s_waitcnt vmcnt(0)', f's_branch {Lc1}'])
                    p(f's_cbranch_vccnz {Lr}')
                    p(f'{Lcok}:')
                self.ha2a(c1sh, stk=28 + layer)
                stp(7)
            elif B:
                if layer == 0:
                    if A:
                        if not o.abc1:
                            for s_ in c1l: p(s_)
                        if o.w2late: w2fix()
                    self.flush()
                    Lc1, Lcp, Lcok = p.label('Lc'), p.label('Lcp'), p.label('Lcok')
                    p(f'{Lc1}:')
                    p('s_waitcnt vmcnt(0)')
                    for k in range(12): p(f'v_accvgpr_read_b32 v{ACC+k}, a{aC1+k}')
                    for s_ in self.g3_sum(ACC, CS1): p(s_)
                    p(f'v_cmp_u_f32 vcc, {CS1}, {CS1}')
                    Lr = self.retry(Lcp, Lcok)
                    self.ool.append([f'{Lcp}:'] + c1l + [f's_branch {Lc1}'])
                    p(f's_cbranch_vccnz {Lr}')
                    p(f'{Lcok}:')
                self.ha2a(stk=28 + layer)
                stp(7)
                if layer == 0:
                    for s_ in cql: p(s_)
            if layer == 1:
                if A:
                    Lf = p.label('Lfin')
                    self.flush()
                    p(f's_or_b32 {sT}, {sX}, {sW}' if not o.xs else f's_mov_b32 {sT}, {sX}')
                    p(f's_cmp_lg_u32 {sT}, 0'); p(f's_cbranch_scc1 {Lf}')
                    if o.acc:
                        self.x16a(sLM, final=True, pre=0 if B else o.pd3)
                        if o.stamps: p('s_barrier')
                    else:
                        self.x16(sLM)
                        if o.xs: p(f's_cmp_lg_u32 {sW}, 0'); p(f's_cbranch_scc1 {Lf}')
                        p(f's_mov_b64 exec, s[{sMF}:{sMF+1}]')
                        p(f's_lshl_b32 {sT}, {sIA}, 6')
                        p(f'buffer_store_dwordx2 {vr(XA,2)}, {vLane}, {srd("OUT")}, {sT} offen')
                        p('s_mov_b64 exec, -1')
                    p(f'{Lf}:')
                self.finish()
                break
            def cqfix(w=True):
                if w: p('s_waitcnt vmcnt(0)')
                for k in range(12): p(f'v_accvgpr_read_b32 v{ACC+k}, a{aCQ+k}')
                for s_ in self.g3_sum(ACC, CSQ): p(s_)
            if fill:
                self.x16a(sLM, fills=[(lambda: cqfix(False), None)])
                stp(8)
            else: cqfix()
            if A and not fill:
                self.x16(sLM, pre=0 if B else o.pd2)
                stp(8)
            self.set_layer(LSTR)
            if B and not A and o.opwarm:
                p(f'buffer_load_dwordx2 {ar(aC1,2)}, {vOSR}, {srd("WS")}, {sL} offen sc1')
                p(f'buffer_load_dwordx4 {ar(aC1+4,4)}, {vOR}, {srd("WS")}, {sL} offen sc1')
            if A:
                self.qp(XA, sL, fl, True, False, post=self.rm_ops(T + 5, False) if o.acc else self.unpack_xr(False))
                stp(9)
            Lp, u, st, mean, sc = self.gather_stats(vQR, vQR3, 0, False)
            self.q_finish(u, st, mean, sc, Lp)
            stp(10)
            self.flush()
            self.qk_softmax(vw=o.pl > 1)
            stp(11)
            self.pv(self.ml_ops(fl), False)
            self.flush()
        for code in self.ool:
            for s_ in code: p(s_)
        self.ool = []
        self.vm, self.tags = vm0, tags0

    def kvo(self, mb):
        a = self.o.alt
        if a == 0 or a == 4: k, off = mb >> 2, mb & 3
        elif a == 1: k, off = 2 * (mb >> 3) + (mb & 1), (mb >> 1) & 3
        elif a == 2: k, off = 2 * (mb >> 3) + ((mb >> 1) & 1), (mb & 1) + 2 * ((mb >> 2) & 1)
        return f's{sKV+k} offen offset:{1024*off} nt'
    def kload(self, mb):
        self.vmem(f'buffer_load_dwordx4 {ar(4*mb,4)}, {vK}, {srd("K")}, {self.kvo(mb)}', tag=f'K{mb}')
    def vload(self, mb):
        assert self.vfree, 'V area still in use'
        self.vmem(f'buffer_load_dwordx4 {vr(VB+2+4*mb,4)}, {a16}, {srd("V")}, {self.kvo(mb)}', tag=f'V{mb}')

    def pfcode(self, lo, hi, track=True):
        p = self.p
        L = p.label('Lpc')
        n = SRD['X']
        Ls = p.label('Lpcs')
        if self.o.pfsel:
            track = False
            p(f's_and_b32 {sT}, {sC}, 7'); p(f's_cmp_lg_u32 {sT}, 5'); p(f's_cbranch_scc1 {Ls}')
        p(f's_getpc_b64 s[{n}:{n+1}]')
        p(f'{L}:')
        p(f's_add_u32 s{n}, s{n}, {lo}-{L}'); p(f's_addc_u32 s{n+1}, s{n+1}, {0 if self.fwd else -1}')
        p(f's_mov_b32 s{n+2}, {hi}-{lo}')
        p(f'v_lshlrev_b32 v{t2}, 7, v0'); p(f's_lshl_b32 {sT}, {sW}, 13')
        self.vmem(f'buffer_load_dword a{aCQ+11}, v{t2}, {srd("X")}, {sT} offen', optional=not track)
        p(f'{Ls}:')

    def head(self):
        p = self.p
        o = self.o
        p('L_top:')
        p('s_cmp_lt_u32 s2, 256'); p('s_cbranch_scc1 L_go')
        p('s_endpgm')
        p('L_go:')
        p(f's_load_dwordx16 s[{KA}:{KA+15}], s[0:1], 0')
        p(f's_load_dwordx2 s[{SRD["WS"]}:{SRD["WS"]+1}], s[0:1], {KOFF["WS"]}')
        if o.stamps:
            p('s_memrealtime s[96:97]')
            p('s_memtime s[98:99]')
        p('v_lshrrev_b32 v1, 6, v0')
        p('v_and_b32 v0, 63, v0')
        p(f'v_readfirstlane_b32 {sW}, v1')
        p(f's_and_b32 {sX}, s2, 7'); p(f's_lshr_b32 {sC}, s2, 3'); p(f's_and_b32 {sJ}, {sC}, 3'); p(f's_lshr_b32 {sS}, {sC}, 2')
        if o.jx: p(f's_xor_b32 {sJ}, {sJ}, {o.jx}')
        if o.sx: p(f's_xor_b32 {sS}, {sS}, {o.sx}')
        if o.xx: p(f's_xor_b32 {sX}, {sX}, {o.xx}')
        if o.xperm:
            cst = sum(int(ch) << (4 * i) for i, ch in enumerate(o.xperm))
            p(f's_lshl_b32 {sX}, {sX}, 2'); p(f's_lshr_b32 {sX}, {H(cst)}, {sX}'); p(f's_and_b32 {sX}, {sX}, 7')
        if o.pfa:
            n = SRD['OUT']
            p(f's_cmp_ge_u32 {sC}, 2'); p('s_cbranch_scc1 L_nopf')
            p(f's_getpc_b64 s[{n}:{n+1}]')
            p('L_pc:')
            p(f's_mov_b32 s{n+2}, L_fastend-L_pc+{o.pfx}'); p(f's_mov_b32 s{n+3}, 0x00020000')
            p(f's_lshl_b32 {sT}, {sC}, 2'); p(f's_add_u32 {sT}, {sT}, {sW}'); p(f's_lshl_b32 {sT}, {sT}, 13')
            p(f'v_lshlrev_b32 v{t2}, 7, v0')
            self.vmem(f'buffer_load_dword a{aCQ+11}, v{t2}, {srd("OUT")}, {sT} offen', optional=True)
            p('L_nopf:')
        vWQ, vWO, vXs = T + 12, T + 13, T + 14
        sQ, sO = sMc, sOS
        p(f'v_lshlrev_b32 {a16}, 4, v0')
        p(f'v_and_b32 v{vR}, 15, v0'); p(f'v_lshrrev_b32 v{vG}, 4, v0')
        p(f's_mov_b32 {sIA}, {sC}'); p(f's_sub_u32 {sIB}, {sC}, 12')
        for n in ('X', 'WQ', 'WO'):
            p(f's_mov_b32 s{SRD[n]+2}, {H(SIZE[n])}'); p(f's_mov_b32 s{SRD[n]+3}, 0x00020000')
        p(f'v_lshlrev_b32 v{vWQ}, 16, v{vG}'); p(f'v_lshl_add_u32 v{vWQ}, v{vR}, 4, v{vWQ}')
        p(f's_lshl_b32 {sQ}, {sIA}, 18'); p(f's_lshl_b32 {sT2}, {sX}, 10'); p(f's_add_u32 {sQ}, {sQ}, {sT2}')
        p(f's_lshl_b32 {sT2}, {sW}, 8'); p(f's_add_u32 {sQ}, {sQ}, {sT2}')
        p(f'v_and_b32 v{vXs}, 0x38, v0')
        p(f'v_and_b32 v{t0}, 1, v{vG}'); p(f'v_lshlrev_b32 v{t0}, 6, v{t0}')
        p(f'v_lshrrev_b32 v{t2}, 3, v{vR}'); p(f'v_lshl_add_u32 v{t0}, v{t2}, 1, v{t0}')
        p(f'v_lshrrev_b32 v{t1}, 1, v{vG}'); p(f'v_add_u32 v{t0}, v{t0}, v{t1}')
        p(f'v_mul_u32_u24 v{t0}, 1280, v{t0}')
        p(f'v_and_b32 v{t1}, 7, v0'); p(f'v_lshl_add_u32 v{vWO}, v{t1}, 4, v{t0}')
        p(f's_and_b32 {sT}, {sIB}, 1'); p(f's_lshl_b32 {sT}, {sT}, 1'); p(f's_lshr_b32 {sT2}, {sW}, 1'); p(f's_add_u32 {sT}, {sT}, {sT2}')
        p(f's_lshl_b32 {sT2}, {sX}, 2'); p(f's_add_u32 {sT}, {sT}, {sT2}'); p(f's_lshl_b32 {sT}, {sT}, 7')
        p(f's_and_b32 {sT2}, {sW}, 1'); p(f's_lshl_b32 {sT2}, {sT2}, 2'); p(f's_add_u32 {sT}, {sT}, {sT2}')
        p(f's_mul_i32 {sO}, {sT}, 1280'); p(f's_lshr_b32 {sT2}, {sIB}, 1'); p(f's_lshl_b32 {sT2}, {sT2}, 7'); p(f's_add_u32 {sO}, {sO}, {sT2}')
        p(f's_lshl_b32 {sT}, {sIA}, 6')
        if o.hk: self.late_head()
        p(f's_cmp_ge_u32 {sC}, 20')
        p('s_waitcnt lgkmcnt(0)')
        self.mv('WO')
        p('s_cbranch_scc1 L_eB')
        self.mv('X'); self.mv('WQ')
        self.vmem(f'buffer_load_dwordx4 {vr(XF,4)}, {a16}, {srd("X")}, 0 offen', tag='XF')
        self.vmem(f'buffer_load_dwordx4 {vr(XF+4,4)}, {a16}, {srd("X")}, 0 offen offset:1024', tag='XF')
        self.vmem(f'buffer_load_dwordx2 {vr(XA,2)}, v{vXs}, {srd("X")}, {sT} offen', tag='XF')
        for jj in range(8):
            self.vmem(f'buffer_load_dwordx4 {vr(WR+4*jj,4)}, v{vWQ}, {srd("WQ")}, {sQ} offen nt', tag='WQ')
            if jj < 7: p(f's_add_u32 {sQ}, {sQ}, 8192')
        p(f's_cmp_lt_u32 {sC}, 12'); p('s_cbranch_scc1 L_roleA')
        p('s_branch L_roleAB')
        p('L_eB:')
        if o.wolate:
            if o.hk:
                self.mv('K')
                for mb in range(o.n0B):
                    p(f'buffer_load_dwordx4 {ar(4*mb,4)}, {vK}, {srd("K")}, {self.kvo(mb)}')
        else:
          for jj in range(o.n0B):
            p(f'buffer_load_dwordx4 {vr(WOR+4*jj,4)}, v{vWO}, {srd("WO")}, {sO} offen nt')
            p(f's_add_u32 {sO}, {sO}, {8*1280}')
        if not o.order.startswith('B'): p('s_branch L_roleB')

    def mv(self, n): self.p(f's_mov_b64 s[{SRD[n]}:{SRD[n]+1}], s[{KA+KOFF[n]//4}:{KA+KOFF[n]//4+1}]')

    def late_head(self):
        p = self.p
        for n in SRD:
            if n in ('X', 'WQ', 'WO'): continue
            p(f's_mov_b32 s{SRD[n]+2}, {H(SIZE[n])}'); p(f's_mov_b32 s{SRD[n]+3}, 0x00020000')
        for k in range(4): p(f'v_mov_b32 v{SN+k}, -1')
        p(f's_mul_i32 {sBX}, {sX}, {H(GB)}')
        p(f's_lshl_b32 {sT2}, {sX}, 2'); p(f's_add_u32 {sT2}, {sT2}, {sJ}')
        p(f's_lshl_b32 s{sKV}, {sT2}, 20')
        if self.o.il != 1:
            p(f's_lshl_b32 {sT2}, {sS}, 17'); p(f's_add_u32 s{sKV}, s{sKV}, {sT2}')
        if self.o.il:
            p(f's_lshl_b32 {sT2}, {sS}, 14'); p(f's_add_u32 s{sKV}, s{sKV}, {sT2}')
            p(f's_lshl_b32 {sT2}, {sW}, 12'); p(f's_add_u32 s{sKV}, s{sKV}, {sT2}')
            seq = [0, 1, 2, 3, 4, 5, 6, 7] if self.o.il < 3 else [0, 4, 2, 6, 1, 5, 3, 7]
            for k in range(1, 8): p(f's_xor_b32 s{sKV+k}, s{sKV}, {H(seq[k] << 17)}')
        elif self.o.alt:
            p(f's_and_b32 {sT2}, {sW}, 1'); p(f's_mul_i32 {sT2}, {sT2}, {H(0x3000 if self.o.altw else 0x1000)}'); p(f's_add_u32 s{sKV}, s{sKV}, {sT2}')
            p(f's_lshr_b32 {sT2}, {sW}, 1'); p(f's_lshl_b32 {sT2}, {sT2}, 14'); p(f's_add_u32 s{sKV}, s{sKV}, {sT2}')
            p(f's_xor_b32 s{sKV+1}, s{sKV}, 0x2000')
            for k in range(2, 8): p(f's_add_u32 s{sKV+k}, s{sKV+(k&1)}, {32768*(k>>1)}')
        else:
            p(f's_lshl_b32 {sT2}, {sW}, 12'); p(f's_add_u32 s{sKV}, s{sKV}, {sT2}')
            for k in range(1, 8): p(f's_add_u32 s{sKV+k}, s{sKV}, {16384*k}')
        p(f'v_bfe_u32 v{t1}, v0, 2, 2'); p(f'v_lshlrev_b32 {vK}, 8, v{t1}')
        p(f'v_lshl_add_u32 {vK}, v{vG}, 6, {vK}')
        p(f'v_and_b32 v{t1}, 3, v0'); p(f'v_lshl_add_u32 {vK}, v{t1}, 4, {vK}')
        p(f'v_and_b32 v{t0}, 1, v{vG}'); p(f'v_lshrrev_b32 v{vD}, 1, v{vG}'); p(f'v_lshl_add_u32 v{vD}, v{t0}, 1, v{vD}')
        p(f's_mov_b32 {sLo}, 0x05040100'); p(f's_mov_b32 {sHi}, 0x07060302')

    def common_addr(self):
        p = self.p
        p(f's_mov_b32 {sBud}, 100000')
        for b in range(4):
            p(f's_mov_b32 s{sMB+2*b}, {H(0x11111111 << b)}'); p(f's_mov_b32 s{sMB+2*b+1}, {H(0x11111111 << b)}')
        p(f's_mov_b32 s{sMF}, 0x01010101'); p(f's_mov_b32 s{sMF+1}, 0x01010101')
        p(f's_lshl_b32 {sT}, {sJ}, 3'); p(f's_add_u32 {sT}, {sT}, {sS}')
        p(f's_lshl_b32 {sT2}, {sT}, 8'); p(f's_add_u32 {sT2}, {sT2}, {sBX}'); p(f's_add_u32 {sT2}, {sT2}, {H(OP)}')
        if self.o.opc:
            p(f's_lshl_b32 {sT2}, {sJ}, 11'); p(f's_lshl_b32 {sT3}, {sS}, 4'); p(f's_add_u32 {sT2}, {sT2}, {sT3}')
            p(f's_add_u32 {sT2}, {sT2}, {sBX}'); p(f's_add_u32 {sT2}, {sT2}, {H(OP)}')
            p(f'v_lshrrev_b32 v{t0}, 2, v0'); p(f'v_lshlrev_b32 {vOW}, 7, v{t0}'); p(f'v_and_b32 v{t0}, 3, v0')
            p(f'v_lshl_add_u32 {vOW}, v{t0}, 2, {vOW}'); p(f'v_add_u32 {vOW}, {sT2}, {vOW}')
        else:
            p(f'v_lshlrev_b32 {vOW}, 2, v0'); p(f'v_add_u32 {vOW}, {sT2}, {vOW}')
        if self.o.osc:
            p(f's_lshl_b32 {sOS0}, {sJ}, 9'); p(f's_lshl_b32 {sT2}, {sS}, 3'); p(f's_add_u32 {sOS0}, {sOS0}, {sT2}')
        else: p(f's_lshl_b32 {sOS0}, {sT}, 3')
        p(f's_add_u32 {sOS0}, {sOS0}, {sBX}'); p(f's_add_u32 {sOS0}, {sOS0}, {H(OS)}')
        p(f's_mul_i32 {sT}, {sJ}, 0x2800'); p(f's_mul_i32 {sT2}, {sW}, 2560'); p(f's_add_u32 {sT}, {sT}, {sT2}'); p(f's_add_u32 {sT}, {sT}, {sBX}')
        p(f'v_add_u32 {vQR}, {sT}, {a16}')
        p(f'v_mov_b32 v{t1}, {H(OOB)}')
        p(f'v_cmp_gt_u32 vcc, 32, v0'); p(f'v_cndmask_b32 {vQR3}, v{t1}, {vQR}, vcc')
        p(f'v_and_b32 v{t0}, 1, v{vR}'); p(f'v_mul_u32_u24 v{t0}, 80, v{t0}')
        p(f'v_lshrrev_b32 v{t2}, 1, v{vR}'); p(f'v_lshl_add_u32 v{t0}, v{t2}, 4, v{t0}')
        if self.o.stc: p(f'v_lshlrev_b32 v{t0}, 4, v{vR}')
        p(f'v_cmp_gt_u32 vcc, 10, v{vR}'); p(f'v_cndmask_b32 v{t0}, v{t1}, v{t0}, vcc')
        if self.o.stc: p(f's_lshl_b32 {sT}, {sW}, 2'); p(f's_and_b32 {sT2}, {sC}, 3'); p(f's_add_u32 {sT}, {sT}, {sT2}'); p(f's_lshl_b32 {sT}, {sT}, 9')
        else: p(f's_lshl_b32 {sT}, {sW}, 9')
        p(f's_add_u32 {sT}, {sT}, {sBX}'); p(f's_add_u32 {sT}, {sT}, {H(ST)}'); p(f'v_add_u32 {vSR}, {sT}, v{t0}')
        p(f'v_and_b32 v{t0}, 7, v0'); p(f'v_lshl_add_u32 v{t0}, v{t0}, 2, v{vD}'); p(f's_lshl_b32 {sT}, {sW}, 5'); p(f'v_add_u32 v{t0}, {sT}, v{t0}')
        p(f'v_lshlrev_b32 {lQW}, 1, v{t0}')
        p(f'v_lshrrev_b32 v{t0}, 2, v0'); p(f'v_lshlrev_b32 {lQR}, 4, v{t0}')
        p(f'v_lshlrev_b32 {lMW}, 3, v0'); p(f'v_add_u32 {lMW}, {L_J1}, {lMW}')
        p(f's_lshl_b32 {sT}, {sW}, 3'); p(f's_add_u32 {sT}, {sT}, {L_ML}'); p(f'v_writelane_b32 {lMW}, {sT}, 63')
        p(f'v_add_u32 v{t0}, {sW}, v0'); p(f'v_and_b32 v{t0}, 3, v{t0}'); p(f'v_lshlrev_b32 v{t0}, 3, v{t0}'); p(f'v_add_u32 {lMR}, {L_ML}, v{t0}')
        p(f's_lshl_b32 {sT}, {sW}, 9'); p(f's_add_u32 {sT}, {sT}, {L_O}'); p(f'v_lshlrev_b32 {lOW}, 2, v0'); p(f'v_add_u32 {lOW}, {sT}, {lOW}')
        p(f'v_lshlrev_b32 {lOR}, 3, v0'); p(f'v_add_u32 {lOR}, {L_O}, {lOR}')
        p(f'v_mov_b32 {vC}, {H(f2u(CSC))}')
        for k in range(24): p(f'v_mov_b32 v{BQ+k}, 0')
        p(f'v_lshlrev_b32 v{T+15}, 2, v0'); p(f'v_and_b32 v{T+14}, 28, v{T+15}')

    def addrB(self):
        p = self.p
        sHF, sCB = sL, sLM
        p(f's_and_b32 {sHF}, {sIB}, 1'); p(f's_lshr_b32 {sCB}, {sIB}, 1')
        p(f'v_and_b32 v{t0}, 1, v{vG}'); p(f'v_lshlrev_b32 {vXW}, 11, v{t0}')
        p(f'v_and_b32 v{t0}, 7, v0'); p(f'v_lshl_add_u32 {vXW}, v{t0}, 4, {vXW}')
        p(f's_lshl_b32 {sT}, {sCB}, 12'); p(f's_lshl_b32 {sT2}, {sX}, 8'); p(f's_add_u32 {sT}, {sT}, {sT2}')
        p(f's_lshl_b32 {sT2}, {sHF}, 7'); p(f's_add_u32 {sT}, {sT}, {sT2}'); p(f's_add_u32 {sT}, {sT}, {H(XAo)}')
        p(f'v_add_u32 {vXW}, {sT}, {vXW}')
        if self.o.acc:
            p(f'v_lshrrev_b32 {vXW}, 5, v0'); p(f'v_lshlrev_b32 {vXW}, 11, {vXW}')
            p(f'v_bfe_u32 v{t1}, v0, 3, 2'); p(f'v_lshl_add_u32 {vXW}, v{t1}, 8, {vXW}')
            p(f'v_lshl_add_u32 {vXW}, v{t0}, 3, {vXW}')
            p(f's_lshl_b32 {sT}, {sCB}, 12'); p(f's_lshl_b32 {sT2}, {sHF}, 10'); p(f's_add_u32 {sT}, {sT}, {sT2}'); p(f's_add_u32 {sT}, {sT}, {H(XAo)}')
            p(f'v_add_u32 {vXW}, {sT}, {vXW}')
        p(f's_lshr_b32 {sT3}, {sW}, 1'); p(f's_lshl_b32 {sT}, {sHF}, 1'); p(f's_add_u32 {sT3}, {sT3}, {sT}')
        oc = 3 if self.o.opc else 0
        p(f'v_lshlrev_b32 {vOR}, {4 if oc else 8}, v{t0}')
        p(f'v_lshrrev_b32 v{t2}, 3, v{vR}'); p(f'v_lshl_add_u32 {vOR}, v{t2}, {6+oc}, {vOR}')
        p(f'v_lshl_add_u32 {vOR}, v{vG}, {4+oc}, {vOR}')
        p(f's_lshl_b32 {sT}, {sT3}, 11'); p(f's_and_b32 {sT2}, {sW}, 1'); p(f's_lshl_b32 {sT2}, {sT2}, {7+oc}'); p(f's_add_u32 {sT}, {sT}, {sT2}')
        p(f's_add_u32 {sT}, {sT}, {sBX}'); p(f's_add_u32 {sT}, {sT}, {H(OP)}'); p(f'v_add_u32 {vOR}, {sT}, {vOR}')
        p(f'v_lshl_add_u32 v{t1}, v{vG}, 2, v{vR}'); p(f'v_and_b32 v{t1}, 7, v{t1}'); p(f'v_lshlrev_b32 v{t1}, 3, v{t1}')
        if self.o.osc:
            p(f's_lshl_b32 {sT}, {sT3}, 9'); p(f's_and_b32 {sT2}, {sW}, 1'); p(f's_lshl_b32 {sT2}, {sT2}, 8'); p(f's_add_u32 {sT}, {sT}, {sT2}')
            p(f'v_lshl_add_u32 v{t1}, v{t2}, 31, v{t1}')
        else: p(f's_lshl_b32 {sT}, {sT3}, 6')
        p(f's_add_u32 {sT}, {sT}, {sBX}'); p(f's_add_u32 {sT}, {sT}, {H(OS)}'); p(f'v_add_u32 {vOSR}, {sT}, v{t1}')
        p(f's_lshl_b32 {sT}, {sHF}, 2'); p(f's_add_u32 {sT}, {sT}, {sW}'); p(f's_mul_i32 {sT}, {sT}, 2560')
        p(f's_add_u32 {sT}, {sT}, {sBX}'); p(f's_add_u32 {sT}, {sT}, {H(HP)}'); p(f'v_add_u32 {vHR}, {sT}, {a16}')
        p(f's_cmp_eq_u32 {sW}, 3'); p(f's_cselect_b32 {sT3}, 6, 7')
        p(f'v_mov_b32 v{t1}, {H(OOB)}')
        p(f'v_cmp_gt_u32 vcc, {sT3}, v{t0}'); p(f'v_cndmask_b32 {vHR}, v{t1}, {vHR}, vcc')
        p(f'v_cmp_gt_u32 vcc, 32, v0'); p(f'v_cndmask_b32 {vHR3}, v{t1}, {vHR}, vcc')
        p(f'v_and_b32 v{T}, 1, v0'); p(f'v_lshlrev_b32 v{T}, 4, v{T}'); p(f'v_mov_b32 v{t1}, 0xffff'); p(f'v_lshlrev_b32 v{t1}, v{T}, v{t1}')
        p(f'v_cmp_gt_u32 vcc, {sT3}, v{vR}'); p(f'v_cndmask_b32 v{t1}, 0, v{t1}, vcc')
        p(f'v_bfe_u32 v{T}, v0, 1, 2')
        for k in range(4):
            p(f'v_cmp_eq_u32 vcc, {k}, v{T}'); p(f'v_cndmask_b32 v{MK+k}, 0, v{t1}, vcc')
        p(f's_lshl_b32 {sT}, {sW}, 9'); p(f's_add_u32 {sT}, {sT}, {L_R}')
        p(f'v_and_b32 v{T}, 1, v{vG}')
        p(f'v_lshlrev_b32 {lRR}, 8, v{t2}'); p(f'v_lshl_add_u32 {lRR}, v{t0}, 4, {lRR}'); p(f'v_lshl_add_u32 {lRR}, v{T}, 7, {lRR}')
        p(f'v_add_u32 {lRR}, {L_R}, {lRR}')
        if self.o.acc: p(f'v_lshlrev_b32 {lRR}, 2, v0'); p(f'v_add_u32 {lRR}, {L_R}, {lRR}')
        p(f'v_lshlrev_b32 {lRW}, 8, v{t2}'); p(f'v_lshl_add_u32 {lRW}, v{t0}, 5, {lRW}'); p(f'v_lshl_add_u32 {lRW}, v{T}, 4, {lRW}')
        p(f'v_add_u32 {lRW}, {sT}, {lRW}')
        p(f'v_add_u32 v{t1}, {L_J2}, {a16}')
        p(f'v_lshrrev_b32 v{T}, 1, v{vG}'); p(f'v_cmp_eq_u32 vcc, v{t2}, v{T}')
        p(f'v_cndmask_b32 {lRW}, v{t1}, {lRW}, vcc')
        p(f'v_add_u32 {lRW2}, {sT}, {a16}')
        p(f'v_cmp_gt_u32 vcc, 32, v0'); p(f'v_cndmask_b32 {lRW2}, v{t1}, {lRW2}, vcc')
        p(f'v_lshl_add_u32 v{t0}, v{t0}, 2, v{vD}'); p(f'v_lshlrev_b32 {aB1v}, 1, v{t0}')
        p(f'v_mul_u32_u24 {aW2v}, 1280, v{vD}'); p(f'v_lshl_add_u32 {aW2v}, v{vR}, 3, {aW2v}')

    def addrA(self):
        p = self.p
        p(f's_lshl_b32 {sT}, {sW}, 9'); p(f's_lshl_b32 {sT2}, {sIA}, 2'); p(f's_add_u32 {sT}, {sT}, {sT2}'); p(f's_add_u32 {sT}, {sT}, {sBX}'); p(f's_add_u32 {sT}, {sT}, {H(ST)}')
        p(f'v_mov_b32 {vSW}, {sT}'); p(f's_add_u32 {sT}, {sT}, 80'); p(f'v_writelane_b32 {vSW}, {sT}, 0')
        if self.o.stc:
            assert self.o.acc
            p(f's_lshl_b32 {sT}, {sW}, 11'); p(f's_lshr_b32 {sT2}, {sIA}, 2'); p(f's_lshl_b32 {sT2}, {sT2}, 5'); p(f's_add_u32 {sT}, {sT}, {sT2}')
            p(f's_and_b32 {sT2}, {sIA}, 3'); p(f's_lshl_b32 {sT2}, {sT2}, 2'); p(f's_add_u32 {sT}, {sT}, {sT2}')
            p(f's_add_u32 {sT}, {sT}, {sBX}'); p(f's_add_u32 {sT}, {sT}, {H(ST + 16)}')
            p(f'v_and_b32 v{t0}, 8, v0'); p(f'v_lshlrev_b32 v{t0}, 1, v{t0}'); p(f'v_lshlrev_b32 {vSW}, 9, v{vG}')
            p(f'v_sub_u32 {vSW}, {vSW}, v{t0}'); p(f'v_add_u32 {vSW}, {sT}, {vSW}')
        if self.o.acc:
            p(f'v_bfe_u32 v{t0}, v0, 3, 1'); p(f'v_lshlrev_b32 {vXR}, 10, v{t0}')
            p(f'v_lshl_add_u32 {vXR}, v{vG}, 8, {vXR}')
            p(f'v_and_b32 v{t0}, 7, v0'); p(f'v_lshl_add_u32 {vXR}, v{t0}, 3, {vXR}')
        elif self.o.xs:
            p(f'v_lshlrev_b32 {vXR}, 3, v0'); p(f's_lshl_b32 {sT}, {sW}, 9'); p(f'v_add_u32 {vXR}, {sT}, {vXR}')
        else:
            p(f'v_and_b32 v{t0}, 7, v0'); p(f'v_lshlrev_b32 {vXR}, 7, v{t0}')
            p(f'v_lshrrev_b32 v{t0}, 3, v0'); p(f'v_lshl_add_u32 {vXR}, v{t0}, 4, {vXR}')
        p(f's_lshl_b32 {sT}, {sIA}, 11'); p(f's_add_u32 {sT}, {sT}, {H(XAo)}'); p(f'v_add_u32 {vXR}, {sT}, {vXR}')
        for k in range(4): p(f'v_mov_b32 v{XB+k}, 0x3f803f80')
        p(f'v_mul_u32_u24 {aW1v}, {8*3456}, v{vG}'); p(f'v_lshl_add_u32 {aW1v}, v{vR}, 3, {aW1v}')

    def prologue(self, A, B, name):
        p = self.p
        o = self.o
        vm0, tags0 = self.vm, dict(self.tags)
        self.vfree = False
        p(f'L_role{name}:')
        sSX, sSXX = sL, sLM
        D = {'A': o.dA, 'AB': o.dAB, 'B': o.dB}[name]
        vWQ, vWO, vXs = T + 12, T + 13, T + 14
        sQ, sO, sCL = sMc, sOS, sMode
        mv = self.mv
        if not A: self.vm, self.tags = 0, {}
        if not o.hk: self.late_head()
        if A:
            p(f'v_lshrrev_b32 v{t0}, 2, v{vR}'); p(f'v_mul_u32_u24 {vQW}, 2560, v{t0}')
            p(f'v_and_b32 v{t0}, 3, v{vR}'); p(f'v_lshl_add_u32 {vQW}, v{t0}, 5, {vQW}')
            p(f'v_lshl_add_u32 {vQW}, v{vG}, 4, {vQW}')
            p(f's_mul_i32 {sT}, {sW}, 0x2800'); p(f's_lshl_b32 {sT2}, {sIA}, 7'); p(f's_add_u32 {sT2}, {sT2}, {sBX}'); p(f's_add_u32 {sT}, {sT}, {sT2}')
            p(f'v_add_u32 {vQW}, {sT}, {vQW}')
            p('s_mov_b32 exec_hi, 0')
            self.vmem(f'buffer_store_dwordx4 {vr(SN,4)}, {vQW}, {srd("WS")}, 0 offen sc1', tag='CLR')
            p('s_mov_b64 exec, -1')
            p(f's_lshl_b32 {sT}, {sW}, 4'); p(f'v_add_u32 v{t0}, {sT}, v{vR}')
            p(f'v_subrev_u32 v{t1}, 27, v{t0}')
            p(f'v_cmp_le_u32 vcc, 27, v{t0}'); p(f'v_cndmask_b32 v{t1}, v{t0}, v{t1}, vcc')
            p(f'v_cndmask_b32 v{t2}, 0, 4, vcc')
            p(f'v_mul_u32_u24 {vHW}, 37, v{t1}'); p(f'v_lshrrev_b32 {vHW}, 8, {vHW}')
            p(f'v_add_u32 v{t2}, v{t2}, {vHW}')
            p(f'v_mul_u32_u24 {vHW}, 7, {vHW}'); p(f'v_sub_u32 v{t1}, v{t1}, {vHW}')
            p(f'v_mul_u32_u24 {vHW}, 2560, v{t2}'); p(f'v_lshl_add_u32 {vHW}, v{t1}, 4, {vHW}')
            p(f's_add_u32 {sT2}, {sT2}, {H(HP)}'); p(f'v_add_u32 {vHW}, {sT2}, {vHW}')
            p(f'v_mov_b32 v{t1}, {H(OOB)}')
            p(f'v_cmp_gt_u32 vcc, 54, v{t0}'); p(f'v_cndmask_b32 {vHW}, v{t1}, {vHW}, vcc')
            p(f's_mov_b32 {sT2}, {H(CSL)}')
            p('s_mov_b64 exec, 0xffff')
            self.vmem(f'buffer_store_dwordx4 {vr(SN,4)}, {vHW}, {srd("WS")}, {sT2} offen sc1', tag='CLR')
            p('s_mov_b64 exec, -1')
        else:
            p(f's_sub_u32 {sT}, {sC}, 20'); p(f's_lshl_b32 {sT}, {sT}, 2'); p(f's_add_u32 {sT3}, {sT}, {sW}')
            p(f's_lshl_b32 {sT}, {sT3}, 10')
            p(f's_add_u32 {sCL}, {sT}, {sBX}'); p(f's_add_u32 {sCL}, {sCL}, {H(OP)}')
            p(f's_mul_i32 {sT2}, {sX}, 5120'); p(f's_add_u32 {sT}, {sT}, {sT2}'); p(f's_add_u32 {sT}, {sT}, {H(XAo - NE * 1024)}')
            p(f's_cmp_lt_u32 {sT3}, {NE}'); p(f's_cselect_b32 {sCL}, {sCL}, {sT}')
            if o.acc:
                p(f's_cselect_b32 {sT}, -1, 0'); p(f's_cselect_b32 {sT2}, -1, {H(MHI - 0x08000000)}')
                for k in range(4): p(f'v_mov_b32 v{SN+k}, {sT2 if k & 1 else sT}')
            p(f's_cmp_lt_u32 {sT3}, {NE+5}'); p(f's_cselect_b32 {sCL}, {sCL}, {H(OOB)}')
            p(f'v_add_u32 v{t0}, {sCL}, {a16}')
            self.vmem(f'buffer_store_dwordx4 {vr(SN,4)}, v{t0}, {srd("WS")}, 0 offen sc1', tag='CLR')
        mv('K'); mv('V')
        p(f's_getreg_b32 {sFlag}, hwreg(HW_REG_XCC_ID)'); p(f's_and_b32 {sFlag}, {sFlag}, 15'); p(f's_or_b32 {sFlag}, {sFlag}, 0x80')
        WOl = []
        if B:
            if o.wolate: p(f'v_add_u32 v{vWO}, {sO}, v{vWO}')
            for jj in range(8):
                def f(jj=jj):
                    if o.wolate:
                        if jj: p(f's_mov_b32 {sWB}, {8*1280*jj}')
                        self.vmem(f'buffer_load_dwordx4 {ar(aWO+4*jj,4)}, v{vWO}, {srd("WO")}, {sWB if jj else 0} offen nt', tag='WO')
                        return
                    self.vmem(f'buffer_load_dwordx4 {vr(WOR+4*jj,4)}, v{vWO}, {srd("WO")}, {sO} offen nt', tag='WO')
                    if jj < 7: p(f's_add_u32 {sO}, {sO}, {8*1280}')
                WOl.append(('WO', f))
        Wl = []
        if A:
            for jj in range(8):
                def f(jj=jj):
                    if jj == 0:
                        p(f's_mul_i32 {sWA}, {sIA}, {32*3456}'); p(f's_mul_i32 {sWB}, {sX}, 432'); p(f's_add_u32 {sWA}, {sWA}, {sWB}')
                        p(f's_lshl_b32 {sWB}, {sW}, 7'); p(f's_add_u32 {sWA}, {sWA}, {sWB}')
                    else: p(f's_add_u32 {sWA}, {sWA}, 3456')
                    self.vmem(f'buffer_load_dwordx2 {ar(aW1+2*jj,2)}, {aW1v}, {srd("W1")}, {sWA} offen {o.w1nt}', tag='W1')
                Wl.append(('W', f))
        if B:
            for jj in range(8):
                def f(jj=jj):
                    if jj == 0:
                        p(f's_mul_i32 {sWA}, {sX}, 216'); p(f's_and_b32 {sWB}, {sIB}, 1'); p(f's_mul_i32 {sWB}, {sWB}, 108'); p(f's_add_u32 {sWA}, {sWA}, {sWB}')
                        p(f's_mul_i32 {sWB}, {sW}, 28'); p(f's_add_u32 {sWA}, {sWA}, {sWB}')
                        p(f's_lshl_b32 {sWB}, {sWA}, 1')
                        self.vmem(f'buffer_load_ushort a{aB1}, {aB1v}, {srd("B1")}, {sWB} offen', tag='B1')
                        p(f's_mul_i32 {sWA}, {sWA}, 1280'); p(f's_lshr_b32 {sWB}, {sIB}, 1'); p(f's_lshl_b32 {sWB}, {sWB}, 7'); p(f's_add_u32 {sWA}, {sWA}, {sWB}')
                    else: p(f's_add_u32 {sWA}, {sWA}, {4*1280}')
                    self.vmem(f'buffer_load_dwordx2 {ar(aW2+2*jj,2)}, {aW2v}, {srd("W2")}, {sWA} offen {o.w2nt}', tag='W2')
                Wl.append(('W', f))
        KV = [(f'K{m}', (lambda m=m: self.kload(m))) for m in range(32)] + [(f'V{m}', (lambda m=m: self.vload(m))) for m in range(32)]
        wi = o.wposAB if A else o.wposB
        if o.wolate:
            st = list(KV)
            for jj, it in enumerate(WOl):
                pos = min(len(st), wi + jj * (o.wolate))
                st.insert(pos, it)
            if not A and o.hk:
                st = st[o.n0B:]
                for mb in range(o.n0B): self.tags[f'K{mb}'] = 0
        else:
            if not A: WOl = WOl[o.n0B:]
            st = KV[:wi] + WOl + KV[wi:]
        FL = vR
        i2 = [k for k, f in st].index(o.fpos2)
        st.insert(i2, ('FL2', lambda: self.vmem(f'buffer_load_dword v{FL}, v{T+15}, {srd("DBG")}, 0 offen sc1', tag='FL2')))
        if A and not B and o.w2pf:
            def pf():
                Ls = p.label('Lw2pf')
                p(f's_cmp_ge_u32 {sC}, 9'); p(f's_cbranch_scc1 {Ls}')
                p(f's_lshl_b32 {sWA}, {sC}, 2'); p(f's_add_u32 {sWA}, {sWA}, {sW}'); p(f's_lshl_b32 {sWA}, {sWA}, 13')
                p(f's_mul_i32 {sWB}, {sX}, {216*1280}'); p(f's_add_u32 {sWA}, {sWA}, {sWB}')
                p(f'v_lshlrev_b32 {vXW}, 7, v0')
                self.vmem(f'buffer_load_dword a{aCQ+11}, {vXW}, {srd("W2")}, {sWA} offen', optional=True)
                p(f'{Ls}:')
            keys = [k for k, f in st]
            st.insert(keys.index(o.w2pf) + 1, ('PF', pf))
        if A and B and o.wabpos:
            assert o.w2pos & 1
            i3 = [k for k, f in st].index(o.wabpos)
            ins = Wl if not o.wab2 else Wl[8:]
            for n_, it in enumerate(ins): st.insert(i3 + n_ * (1 + o.wabsp), it)
            Wl = [] if not o.wab2 else Wl[:8]
        if A and (not B or o.abw1) and 'w1' not in o.skip: st += Wl[:8]; Wl = Wl[8:]
        if B and ((o.w2pos & 1) if A else (o.w2pos & 2)): st += Wl; Wl = []
        def adv(n, thr=True):
            while n > 0 and st:
                k, f = st.pop(0); f(); n -= 1
                if o.exit10 and k in KST: self.stamp(12 + KST.index(k))
                if thr and D + thr - 1 < 63: p(f's_waitcnt vmcnt({D + (thr - 1)})')
        def until(key, thr=True):
            keys = [k for k, f in st]
            if key in keys: adv(keys.index(key), thr)
        def flag():
            p(f's_lshl_b32 {sT}, {sX}, 5'); p(f's_add_u32 {sT}, {sT}, {sC}'); p(f's_lshl_b32 {sT2}, {sW}, 8'); p(f's_add_u32 {sT}, {sT}, {sT2}')
            p(f'v_mov_b32 v{t0}, {sFlag}'); p(f'v_mov_b32 v{t1}, {sT}')
            self.wait('CLR')
            p('s_waitcnt lgkmcnt(0)')
            if o.acc: p('s_mov_b32 s0, 0'); p(f's_mov_b32 s1, {H(MHI)}')
            p('s_barrier')
            p('s_mov_b64 exec, 1')
            self.vmem(f'buffer_store_byte v{t0}, v{t1}, {srd("DBG")}, 0 offen sc1', tag='FLAG')
            p('s_mov_b64 exec, -1')
            self.stamp(1)
        adv(o.n1A if A else o.n1B, False)
        mv('W1'); mv('B1')
        if o.stamps:
            p(f'v_mov_b32 {vSTAMP}, 0')
            p(f'v_writelane_b32 {vSTAMP}, s96, 0')
            p(f'v_writelane_b32 {vSTAMP}, s98, 34')
        for n in ('DBG', 'B2', 'W2', 'OUT'):
            p(f's_load_dwordx2 s[{SRD[n]}:{SRD[n]+1}], s[0:1], {KOFF[n]}')
        if A:
            self.addrA()
            self.wait('XF')
            self.stamp(8)
            p(f'v_mov_b32 v{t0}, 0'); p(f'v_mov_b32 v{t1}, 0'); p(f'v_mov_b32 v{t2}, 0x3f803f80')
            for k in range(8):
                p(f'v_dot2_f32_bf16 v{t0}, v{XF+k}, v{t2}, v{t0}')
                p(f'v_dot2_f32_bf16 v{t1}, v{XF+k}, v{XF+k}, v{t1}')
            for s in self.unpack_xr(False): p(s)
            p(f'v_permlane32_swap_b32 v{t0}, v{t1}')
            p(f'v_add_f32 v{t0}, v{t0}, v{t1}')
            for n in (1, 2, 4, 8): p(f'v_add_f32_dpp v{t0}, v{t0}, v{t0} row_ror:{n} {DF}')
            p(f'v_add_f32_dpp v{t0}, v{t0}, v{t0} row_bcast:15 row_mask:0xa bank_mask:0xf')
            p(f'v_mul_f32 v{t0}, {H(f2u(1.0 / 640))}, v{t0}')
            p(f'v_readlane_b32 {sSX}, v{t0}, 31'); p(f'v_readlane_b32 {sSXX}, v{t0}, 63')
            p(f'v_mov_b32 v{t0}, {sSX}'); p(f'v_mov_b32 v{t1}, {sSXX}')
            p(f'v_fma_f32 v{t1}, -v{t0}, v{t0}, v{t1}'); p(f'v_max_f32 v{t1}, 0, v{t1}')
            p(f'v_add_f32 v{t1}, {H(f2u(EPS))}, v{t1}'); p(f'v_rsq_f32 v{t1}, v{t1}')
            p(f'v_mul_f32 v{t0}, v{t0}, v{t1}')
            for k in range(4): p(f'v_fma_f32 v{T+k}, v{XR+k}, v{t1}, -v{t0}')
            p(f'v_cvt_pk_bf16_f32 v{XA}, v{T}, v{T+1}'); p(f'v_cvt_pk_bf16_f32 v{XA+1}, v{T+2}, v{T+3}')
            self.build_xa()
            self.lgkm(0)
            p(f's_lshl_b32 {sT}, {sIA}, 6')
            if o.acc:
                p(f'v_and_b32 v{t0}, 7, v0'); p(f'v_and_b32 v{t1}, 0x30, v0'); p(f'v_lshl_add_u32 v{t0}, v{t0}, 1, v{t1}')
                self.vmem(f'buffer_load_ushort a{aB2}, v{t0}, {srd("B2")}, {sT} offen', tag='B2')
                self.vmem(f'buffer_load_ushort a{aB2+1}, v{t0}, {srd("X")}, {sT} offen', tag='B2')
            else: self.vmem(f'buffer_load_dwordx2 {ar(aB2,2)}, v{vXs}, {srd("B2")}, {sT} offen', tag='B2')
            adv(o.n2, False)
            if o.stamps < 2: self.stamp(29)
            self.wait('WQ')
            self.stamp(9)
            def pre(d):
                dp, hi = d >> 1, d & 1
                return [f'v_perm_b32 v{WT+4*d+tau}, v{WR+(2*tau+1)*4+dp}, v{WR+(2*tau)*4+dp}, {sHi if hi else sLo}' for tau in range(4)]
            self.qp(XA, '0', 'sc1', False, True, wv=WT, pre=pre, prest=lambda: self.wait('CLR'))
            self.stamp(2)
            flag()
            adv(2, False)
            p(f's_mov_b32 {sT2}, {H(CSL)}')
            if 'cq' not in o.skip: self.qp(XB, sT2, 'sc1', False, True, wv=WT, tag='CQ')
            adv(1, True)
            for k in range(32): p(f'v_accvgpr_write_b32 a{aWQ+k}, v{WT+k}')
            adv(1, True)
            self.common_addr()
            self.wait('B2')
            if o.acc:
                p(f'v_mov_b32 v{RM}, 0'); p(f'v_mov_b32 v{RM+1}, {H(MHI | 0x80000000)}')
                p(f'v_accvgpr_read_b32 v{t1}, a{aB2+1}')
                for s_ in self.rm_ops(t1, False): p(s_)
            else:
                p(f'v_accvgpr_read_b32 v{t0}, a{aB2}'); p(f'v_accvgpr_read_b32 v{t1}, a{aB2+1}')
                p(f'v_lshlrev_b32 v{B2}, 16, v{t0}'); p(f'v_and_b32 v{B2+1}, 0xffff0000, v{t0}')
                p(f'v_lshlrev_b32 v{B2+2}, 16, v{t1}'); p(f'v_and_b32 v{B2+3}, 0xffff0000, v{t1}')
            adv(2, True)
            if B:
                self.addrB()
        else:
            self.common_addr()
            adv(1, True)
            self.addrB()
            adv(o.n2B, True)
            flag()
        until(o.fposAB if (A and B) else o.fposA if A else o.fposB)
        self.stamp(3)
        p(f's_lshl_b32 {sT3}, {sX}, 5')
        self.vmem(f'buffer_load_dword v{FL}, v{T+14}, {srd("DBG")}, {sT3} offen sc1', tag='FL')
        nF = D + o.dFo
        if B and not o.wolate:
            assert not any(k == 'WO' for k, f in st)
            adv(2, True); nF -= 2
            self.wait('WO')
            self.transpose(aWO, 4, WOR, T, rd=False)
        self.vfree = True
        adv(min(nF, nF - o.dFo - 1), True)
        adv(max(0, o.dFo + 1), False)
        p(f's_mul_i32 {sFlag}, {sFlag}, 0x01010101')
        self.wait('FL')
        Lfp, Lfok, Lfc = p.label('Lfp'), p.label('Lfok'), p.label('Lfc')
        self.flush()
        p(f'{Lfc}:')
        p(f'v_and_b32 v{t0}, 0x80808080, v{FL}')
        p(f'v_cmp_ne_u32 vcc, 0x80808080, v{t0}')
        Lr = self.retry(Lfp, Lfok)
        self.ool.append([f'{Lfp}:', f'buffer_load_dword v{FL}, v{T+14}, {srd("DBG")}, {sT3} offen sc1',
                         's_waitcnt vmcnt(0)', f's_branch {Lfc}'])
        p(f's_cbranch_vccnz {Lr}')
        p(f'{Lfok}:')
        p(f'v_cmp_ne_u32 vcc, {sFlag}, v{FL}')
        p(f's_or_b32 {sMode}, vcc_lo, vcc_hi')
        if o.forceslow: p(f's_mov_b32 {sMode}, 1')
        adv(o.dG, True)
        for s_ in self.g3_list(ACC, vQR, vQR3, '0'):
            if 'q0' in o.skip: s_ = s_.replace(vQR3 + ',', 'v1,').replace(vQR + ',', 'v1,').replace(srd('WS'), srd('K')).replace(' sc1', '')
            self.vmem(s_, tag='Q0')
        self.stamp(4)
        adv(min(D + o.dQo, D - 1), 3)
        adv(max(0, o.dQo + 1), False)
        u, sc = T, T + 3
        self.wait('Q0')
        self.flush()
        Lq, Lqp = p.label('Lq'), p.label('Lqp')
        p(f'{Lq}:')
        for s_ in self.g3_sum(ACC, f'v{u}'): p(s_)
        self.ool.append([f'{Lqp}:'] + self.g3_list(ACC, vQR, vQR3, '0') + ['s_waitcnt vmcnt(0)', f's_branch {Lq}'])
        adv(o.dX, False)
        self.q_finish(u, None, None, sc, Lqp, ln=False)
        self.stamp(5)
        self.flush()
        until(o.qkpos)
        self.wait('K31')
        qi = [int(c) for c in o.qkiss]
        self.qk_softmax(lambda n: adv(qi[n], False))
        self.stamp(6)
        adv(qi[5], False)
        for op in self.ml_ops('mode'): self.run_op(op)
        if not (A and B) and 'clr2' not in o.skip:
            for k in range(4): p(f'v_mov_b32 v{SN+k}, -1')
            p(f's_lshl_b32 {sT}, {sC}, 2'); p(f's_add_u32 {sT}, {sT}, {sW}')
            if B: p(f's_sub_u32 {sT}, {sT}, 32')
            Lnc, Lg, Lsl = p.label('Lnc'), p.label('Lg'), p.label('Lsl')
            p(f's_lshl_b32 {sT2}, {sT}, 10')
            if B:
                p(f's_cmp_ge_u32 {sT}, {NG}'); p(f's_cbranch_scc1 {Lg}')
            p(f's_add_u32 {sT2}, {sT2}, {sBX}'); p(f's_add_u32 {sT2}, {sT2}, {H(LSTR)}')
            if o.clrfast:
                p(f's_cmp_lg_u32 {sMode}, 0'); p(f's_cbranch_scc1 {Lsl}')
                self.vmem(f'buffer_store_dwordx4 {vr(SN,4)}, {a16}, {srd("WS")}, {sT2} offen', optional=True)
                p(f's_branch {Lnc}')
            elif B: p(f's_branch {Lsl}')
            if B:
                p(f'{Lg}:')
                p(f's_cmp_ge_u32 {sT}, {NG+15}'); p(f's_cbranch_scc1 {Lnc}')
                if o.acc:
                    for k in range(4): p(f'v_mov_b32 v{SN+k}, {H(MHI - 0x08000000) if k & 1 else 0}')
                p(f's_mul_i32 {sT3}, {sX}, {15*1024}'); p(f's_add_u32 {sT2}, {sT2}, {sT3}'); p(f's_add_u32 {sT2}, {sT2}, {H(XMo - NG*1024)}')
                p(f's_add_u32 {sT3}, {sT2}, {H(XAo)}')
                p(f's_cmp_ge_u32 {sT2}, {H(LSTR)}'); p(f's_cselect_b32 {sT2}, {sT3}, {sT2}')
            p(f'{Lsl}:')
            self.vmem(f'buffer_store_dwordx4 {vr(SN,4)}, {a16}, {srd("WS")}, {sT2} offen sc1', optional=True, tag='CLR2')
            p(f'{Lnc}:')
        if o.pf1: self.fwd = True; self.pfcode(f'L_loop{name}_fast', f'L_loop{name}_slow')
        self.stamp(7)
        self.flush()
        def hook(pp):
            keys = [k for k, f in st]
            need = f'V{2*pp+1}'
            if need in keys: adv(keys.index(need) + 1, False)
            behind = self.vm - self.tags[need]
            Dp = D + (o.dPV if pp >= o.pPV else 0)
            if o.dPV and o.kvonly:
                keys = [k for k, f in st]
                nkv = max([i + 1 for i, k in enumerate(keys) if k[0] == 'V'] + [0])
                n = max(min(Dp - behind, nkv), D - behind)
                if n > 0: adv(n, False)
            elif behind < Dp: adv(Dp - behind, False)
        hooks = {pp: (lambda pp=pp: hook(pp)) for pp in range(16)}
        self.pv([], True, hooks=hooks)
        assert 'FL2' in self.tags
        if not (A and B) and 'clr2' not in o.skip: self.wait('CLR2')
        if o.exit10:
            self.stamp(10); self.finish()
            for code in self.ool:
                for s in code: p(s)
            self.ool = []
            self.vm, self.tags = vm0, tags0
            return
        self.rest = list(st); self.rest2 = Wl
        self.set_layer(0)
        self.flush()
        p(f's_cmp_eq_u32 {sMode}, 0'); p(f's_cbranch_scc1 L_loop{name}_fast')
        p(f's_branch L_loop{name}_slow')
        for code in self.ool:
            for s in code: p(s)
        self.ool = []
        self.chain(A, B, True, f'L_loop{name}_fast')
        state = (self.vm, dict(self.tags), self.rest, self.rest2)
        def slow():
            self.vm, self.tags, self.rest, self.rest2 = state[0], dict(state[1]), state[2], state[3]
            self.vfree = True
            self.chain(A, B, False, f'L_loop{name}_slow')
        if o.pfa: self.later.append(slow)
        else: slow()
        self.vm, self.tags = vm0, tags0


def main():
    ap = argparse.ArgumentParser()
    ap.add_argument('out')
    ap.add_argument('--stamps', type=int, default=0)
    ap.add_argument('--x8delay', type=int, default=0)
    ap.add_argument('--pdx', type=int, default=0)
    ap.add_argument('--pdo', type=int, default=0)
    ap.add_argument('--skip', type=str, default='')
    ap.add_argument('--exit10', type=int, default=0)
    ap.add_argument('--qkiss', type=str, default='000003')
    ap.add_argument('--clrfast', type=int, default=1)
    ap.add_argument('--xs', type=int, default=0)
    ap.add_argument('--xgap', type=int, default=6)
    ap.add_argument('--abw1', type=int, default=1)
    ap.add_argument('--abc1', type=int, default=1)
    ap.add_argument('--pf0', type=int, default=0)
    ap.add_argument('--pf1', type=int, default=0)
    ap.add_argument('--pfsel', type=int, default=1)
    ap.add_argument('--pfa', type=int, default=0)
    ap.add_argument('--order', type=str, default='A,AB,B')
    ap.add_argument('--hk', type=int, default=0)
    ap.add_argument('--xgate', type=int, default=0)
    ap.add_argument('--xgd', type=int, default=0)
    ap.add_argument('--pfx', type=int, default=0)
    ap.add_argument('--inl', type=int, default=0)
    ap.add_argument('--xat', type=int, default=0)
    ap.add_argument('--il', type=int, default=0)
    ap.add_argument('--xperm', type=str, default='')
    ap.add_argument('--alt', type=int, default=0)
    ap.add_argument('--altw', type=int, default=1)
    ap.add_argument('--jx', type=int, default=0)
    ap.add_argument('--sx', type=int, default=0)
    ap.add_argument('--xx', type=int, default=0)
    ap.add_argument('--dPV', type=int, default=0)
    ap.add_argument('--pPV', type=int, default=0)
    ap.add_argument('--kvonly', type=int, default=1)
    ap.add_argument('--wolate', type=int, default=0)
    ap.add_argument('--womid', type=int, default=1)
    ap.add_argument('--n2B', type=int, default=2)
    ap.add_argument('--n0A', type=int, default=0)
    ap.add_argument('--n0B', type=int, default=8)
    ap.add_argument('--n1A', type=int, default=6)
    ap.add_argument('--n1B', type=int, default=4)
    ap.add_argument('--n2', type=int, default=4)
    ap.add_argument('--dA', type=int, default=10)
    ap.add_argument('--dAB', type=int, default=16)
    ap.add_argument('--dB', type=int, default=10)
    ap.add_argument('--dFo', type=int, default=-1)
    ap.add_argument('--dG', type=int, default=0)
    ap.add_argument('--dQo', type=int, default=-2)
    ap.add_argument('--dX', type=int, default=2)
    ap.add_argument('--wposAB', type=int, default=0)
    ap.add_argument('--wposB', type=int, default=0)
    ap.add_argument('--fposA', type=str, default='K16')
    ap.add_argument('--fposAB', type=str, default='K8')
    ap.add_argument('--fposB', type=str, default='K12')
    ap.add_argument('--fpos2', type=str, default='V26')
    ap.add_argument('--qkpos', type=str, default='V8')
    ap.add_argument('--w1nt', type=str, default='')
    ap.add_argument('--w2nt', type=str, default='')
    ap.add_argument('--w2late', type=int, default=0)
    ap.add_argument('--pre', type=int, default=1)
    ap.add_argument('--forceslow', type=int, default=0)
    ap.add_argument('--acc', type=int, default=0)
    ap.add_argument('--ec', type=int, default=0)
    ap.add_argument('--opc', type=int, default=0)
    ap.add_argument('--osc', type=int, default=0)
    ap.add_argument('--stc', type=int, default=0)
    ap.add_argument('--opre', type=int, default=0)
    ap.add_argument('--pl', type=int, default=1)
    ap.add_argument('--plo', type=int, default=1)
    ap.add_argument('--pgap', type=int, default=3)
    ap.add_argument('--pgapo', type=int, default=2)
    ap.add_argument('--pd0', type=int, default=0)
    ap.add_argument('--pd1', type=int, default=0)
    ap.add_argument('--pd2', type=int, default=0)
    ap.add_argument('--pd3', type=int, default=0)
    ap.add_argument('--opwarm', type=int, default=0)
    ap.add_argument('--wabpos', type=str, default='')
    ap.add_argument('--wab2', type=int, default=0)
    ap.add_argument('--wabsp', type=int, default=0)
    ap.add_argument('--fill', type=int, default=0)
    ap.add_argument('--w2pos', type=int, default=0)
    ap.add_argument('--w2pf', type=str, default='')
    ap.add_argument('--nd', type=int, default=3)
    ap.add_argument('--ndf', type=int, default=3)
    ap.add_argument('--agap', type=int, default=5)
    ap.add_argument('--agapf', type=int, default=5)
    ap.add_argument('--pw', type=int, default=1)
    o = ap.parse_args()
    g = G(o)
    g.head()
    for r in o.order.split(','):
        g.prologue('A' in r, 'B' in r, r)
    g.p('L_fastend:')
    for f in g.later: f()
    body = g.p.finalize()
    ref = open('cdna_kernels/' + NAME + '.s.ref').read()
    comment = ''.join(l + '\n' for l in ref.split('\n') if l.startswith(';') and '@launch' not in l)
    open(o.out, 'w').write(header(256, 256, LDS_SIZE, comment=comment) + body + footer())
    print('instrs', len(g.p.items), 'nops inserted', g.p.nnops)

main()
```

```python
import sys, struct, math, argparse
from asmlib2 import *

def f2u(x): return struct.unpack('<I', struct.pack('<f', x))[0]
def H(x): return f'0x{x & 0xffffffff:x}'

QS = int(sys.argv[sys.argv.index('--qs') + 1]) if '--qs' in sys.argv else 1536
QP = 0x0
OP = 16 * QS
HP = OP + 0x2000
ST = HP + 8 * QS
OS = ST + 0x800
GB = OS + 0x800
assert GB % 1024 == 0 and OP % 1024 == 0
NE, NG = (GB - OP) // 1024, GB // 1024
XAo = 8 * GB
XMo = XAo + 0xA000
LSTR = XMo + 0xA000
CSL = 2 * LSTR
NDEF = (2 * LSTR - XMo) // 1024
OOB = 0x80000000
L_Q, L_ML, L_J1, L_O, L_R, L_J2 = 0, 256, 512, 1024, 3072, 7168
L_X = 10240
LDS_SIZE = 12800
sX, sC, sJ, sS, sW = 's3', 's4', 's5', 's6', 's7'
SRD = dict(K=8, V=12, WS=16, X=20, WQ=24, WO=28, W1=32, B1=36, W2=40, B2=44, OUT=48, DBG=52)
KOFF = dict(X=0, K=8, V=16, WQ=24, WO=32, W1=48, B1=56, W2=64, B2=72, OUT=80, DBG=88, WS=96)
SIZE = dict(X=1280, K=1 << 25, V=1 << 25, WQ=640 * 8192, WO=4096 * 1280, W1=640 * 3456, B1=3456, W2=1728 * 1280,
            B2=1280, OUT=1280, DBG=256, WS=1 << 28)
def srd(n): return f's[{SRD[n]}:{SRD[n]+3}]'
sKV = 56
sL, sOS, sLM, sT, sT2, sBud, sLo, sHi, sMc, sIA, sIB, sFlag, sBX, sT3 = [f's{i}' for i in range(64, 78)]
sMode = 's78'
sOS0 = 's79'
sMB = 80
sMF = 88
sWA, sWB = 's90', 's91'
sSTAMP = 92
KA = 80
vLane, a16 = 'v0', 'v1'
vQW, vQR, vQR3, vSW, vSR, vHR3, vOW, vOR, lRW2, vOSR, vXW, vXR, vHW, vHR = [f'v{i}' for i in range(2, 16)]
lQW, lQR, lMW, lMR, lOW, lOR, lRW, lRR = [f'v{i}' for i in range(16, 24)]
CSQ, CS1, B1v, vC = 'v24', 'v25', 'v26', 'v27'
MK, XA, XB, XR, B2, BQ, PA, ACC, T = 28, 32, 36, 40, 44, 48, 64, 72, 104
XA2 = MK
vZ = vSR
WT2 = 224
sH = sIB
VB = 126
vR, vG, t0, t1, t2, vD = 114, 115, 120, 121, 122, 123
XF = 40
SN = ACC + 28
vK = 'v124'
vSTAMP = 'v125'
WR, WT, WOR = 128, 160, 192
aWQ, aWO, aW1, aW2, aX, aB2, aB1, aC1, aCQ = 128, 160, 192, 208, 224, 226, 228, 232, 244
aW2v, aB1v, aW1v = CSQ, B1v, CS1
def v(i): return f'v{i}'
def vr(i, n): return f'v[{i}:{i+n-1}]'
def ar(i, n): return f'a[{i}:{i+n-1}]'
DF = 'row_mask:0xf bank_mask:0xf'
MFMA = 'v_mfma_f32_16x16x32_bf16'
CSC = (128 ** -0.5) * math.log2(math.e)
EPS = 1e-5
MHI = 0x41B80000
RM = 40
PP = [42, 44, 46, 118]
KST = ['K0', 'K4', 'K8', 'K12', 'K16', 'K20', 'K24', 'K28', 'V0', 'V4', 'V8', 'V12', 'V16', 'V20', 'V24', 'V28', 'V31']


class G:
    def __init__(self, opt):
        self.p = Prog()
        self.o = opt
        self.vm = 0
        self.tags = {}
        self.pend = []
        self.ool = []
        self.nst = 0
        self.later = []

    def __call__(self, s): self.p(s)

    def vmem(self, s, tag=None, optional=False):
        self.p(s)
        if not optional:
            self.vm += 1
        if tag: self.tags[tag] = self.vm
    def wait(self, tag):
        n = self.vm - self.tags[tag]
        assert 0 <= n
        self.p(f's_waitcnt vmcnt({min(n, 63)})')
    def stamp(self, k):
        if not self.o.stamps: return
        if len(self.pend) >= 5: self.lgkm(0)
        r = sSTAMP + 2 * (self.nst % 5); self.nst += 1
        self.p(f's_memrealtime s[{r}:{r+1}]')
        self.pend.append((k, r))
    def lgkm(self, n):
        if self.pend:
            self.p('s_waitcnt lgkmcnt(0)')
            for k, r in self.pend:
                self.p(f'v_writelane_b32 {vSTAMP}, s{r}, {k}')
            self.pend = []
        else:
            self.p(f's_waitcnt lgkmcnt({n})')
    def flush(self):
        if self.pend: self.lgkm(0)

    def transpose(self, abase, W, tmp, tmp2, rd=True):
        p = self.p
        n = 8 * W
        if rd:
            for k in range(n):
                p(f'v_accvgpr_read_b32 v{tmp+k}, a{abase+k}')
        cnt = 0
        prev = None
        for dp in range(W):
            for hi in range(2):
                for tau in range(4):
                    t = tmp2 + (cnt & 1); cnt += 1
                    p(f'v_perm_b32 v{t}, v{tmp+(2*tau+1)*W+dp}, v{tmp+(2*tau)*W+dp}, {sHi if hi else sLo}')
                    p(f'v_accvgpr_write_b32 a{abase+(2*dp+hi)*4+tau}, v{t}')

    def build_xa(self, X=XA):
        p = self.p
        p(f'v_mov_b32_dpp v{X+2}, v{X} row_ror:8 {DF}')
        p(f'v_mov_b32_dpp v{X+3}, v{X+1} row_ror:8 {DF}')

    def xb_ops(self, X=XA):
        return [f'v_mov_b32_dpp v{XB+k}, v{X+k} quad_perm:[0,1,2,3] row_mask:0xf bank_mask:0x3' for k in range(4)]

    def unpack_xr(self, addb2):
        ops = [f'v_lshlrev_b32 v{XR}, 16, v{XA}', f'v_and_b32 v{XR+1}, 0xffff0000, v{XA}',
               f'v_lshlrev_b32 v{XR+2}, 16, v{XA+1}', f'v_and_b32 v{XR+3}, 0xffff0000, v{XA+1}']
        if addb2:
            ops += [f'v_pk_add_f32 {vr(XR,2)}, {vr(XR,2)}, {vr(B2,2)}', f'v_pk_add_f32 {vr(XR+2,2)}, {vr(XR+2,2)}, {vr(B2+2,2)}']
        return ops

    def mv2(self, A, tiles, wsrc, stats, pre=None, mid=None, w2=None):
        p = self.p
        st = T + 16
        n = len(tiles)
        for h in range(self.NH):
            xb = self.xb_ops(A[h]) if stats else []
            if h and mid: mid()
            if h and w2: p(w2)
            for k, d in enumerate(tiles):
                if pre:
                    for s_ in pre(h, d): p(s_)
                p(f'{MFMA} {vr(ACC+4*d,4)}, {vr(A[h],4)}, {wsrc(h, d)}, {vr(ACC+4*d,4) if h else 0}')
                if k < 2 and xb:
                    p(xb[2*k]); p(xb[2*k+1])
                if stats and k == (min(3, n - 1) if (h == 0 or n > 4) else n - 1):
                    p(f'{MFMA} {vr(st,4)}, {vr(A[h],4)}, {vr(XB,4)}, {vr(st,4) if h else 0}')

    def qp(self, A, soff, fl, stats, track, post=(), wv=None, pre=None, tag=None, prest=None, mid=None, w2=None):
        p = self.p
        st = T + 16
        order = [0, 4, 1, 5, 2, 6, 3, 7]
        mov = {}
        for d in range(8):
            if d == 0: mov[d] = None
            elif d < 4: mov[d] = f'v_mov_b32_dpp v{ACC+d}, v{ACC+4*d} quad_perm:[0,1,2,3] row_mask:0x1 bank_mask:0xf'
            else: mov[d] = f'v_mov_b32_dpp v{ACC+d-4}, v{ACC+4*d} quad_perm:[0,1,2,3] row_mask:0x2 bank_mask:0xf'
        self.mv2(A, order, (lambda h, d: vr(wv[h]+4*d,4)) if wv else (lambda h, d: ar(aWQ+32*h+4*d,4)), stats, pre, mid, w2)
        if stats:
            p('s_mov_b64 exec, 0x101')
            self.vmem(f'buffer_store_dword v{st}, {vSW}, {srd("WS")}, {soff} offen {fl}', optional=not track)
            p('s_mov_b32 exec_lo, -1')
        else: p('s_mov_b32 exec_hi, 0')
        for d in order[1:]:
            p(mov[d])
        if prest: prest()
        self.vmem(f'buffer_store_dwordx4 {vr(ACC,4)}, {vQW}, {srd("WS")}, {soff} offen {fl}', optional=not track, tag=tag)
        p('s_mov_b64 exec, -1')
        for s in post: p(s)

    def w1(self, A, soff, fl, stats, track, post=(), w2=None):
        p = self.p
        st = T + 16
        self.mv2(A, [0, 1, 2, 3], lambda h, d: ar(aW1+16*h+4*d,4), stats, w2=w2)
        p('s_mov_b64 exec, 0xffff')
        for d in range(1, 4):
            p(f'v_mov_b32 v{ACC+d}, v{ACC+4*d}')
        self.vmem(f'buffer_store_dwordx4 {vr(ACC,4)}, {vHW}, {srd("WS")}, {soff} offen {fl}', optional=not track)
        if stats:
            p('s_mov_b64 exec, 0x101')
            self.vmem(f'buffer_store_dword v{st}, {vSW}, {srd("WS")}, {soff} offen offset:256 {fl}', optional=not track)
        p('s_mov_b64 exec, -1')
        for s in post: p(s)

    def rs4(self, a, out):
        return [f'v_permlane32_swap_b32 v{a}, v{a+1}', f'v_permlane32_swap_b32 v{a+2}, v{a+3}',
                f'v_add_f32 v{a}, v{a}, v{a+1}', f'v_add_f32 v{a+2}, v{a+2}, v{a+3}',
                f'v_permlane16_swap_b32 v{a}, v{a+2}', f'v_add_f32 {out}, v{a}, v{a+2}']

    def stats_ops(self, s4, st, mean, sc, second, d2=None):
        inv = H(f2u(1.0 / 640))
        ops = [f'v_pk_add_f32 {vr(d2,2)}, {vr(s4,2)}, {vr(s4+2,2)}',
               f'v_add_f32_dpp {vZ}, v{d2}, v{d2+1} quad_perm:[0,1,2,3] row_mask:0xf bank_mask:0x3',
               f'v_add_f32_dpp v{st}, {vZ}, {vZ} row_ror:2 {DF}',
               f'v_add_f32_dpp v{st}, v{st}, v{st} row_ror:4 {DF}',
               f'v_add_f32_dpp v{st}, v{st}, v{st} row_ror:8 {DF}',
               f'v_mul_f32 v{st}, {inv}, v{st}',
               f'v_mov_b32_dpp v{mean}, v{st} quad_perm:[0,0,2,2] {DF}',
               f'v_mov_b32_dpp v{sc}, v{st} quad_perm:[1,1,3,3] {DF}',
               f'v_fma_f32 v{sc}, -v{mean}, v{mean}, v{sc}',
               f'v_max_f32 v{sc}, 0, v{sc}']
        if second:
            ops += [f'v_mul_f32 v{sc}, {H(f2u(1.0 + EPS))}, v{sc}', f'v_add_f32 v{sc}, {H(f2u(EPS * EPS))}, v{sc}']
        else:
            ops += [f'v_add_f32 v{sc}, {H(f2u(EPS))}, v{sc}']
        ops += [f'v_rsq_f32 v{sc}, v{sc}']
        return ops

    def merge(self, *lists):
        lists = [list(l) for l in lists]
        while any(lists):
            for l in lists:
                if l: self.p(l.pop(0))

    def retry(self, Lp, Lok, extra=()):
        Lr = self.p.label('Lretry')
        code = [f'{Lr}:',
                f's_cmp_eq_u32 {sBud}, 0', f's_cbranch_scc1 {Lok}', f's_sub_u32 {sBud}, {sBud}, 1'] + list(extra) + [f's_branch {Lp}']
        self.ool.append(code)
        return Lr

    def bud(self):
        Lok, Lg = self.p.label('Lok'), self.p.label('Lgive')
        self.p(f's_sub_u32 {sBud}, {sBud}, 1'); self.p(f's_cbranch_scc1 {Lg}')
        self.ool.append([f'{Lg}:', f's_mov_b32 {sBud}, 0', 's_waitcnt vmcnt(0)', f's_branch {Lok}'])
        return Lok

    def g3_list(self, base, va, va3, soff, acc=False):
        return [f'buffer_load_dwordx4 {(ar if acc else vr)(base+4*t,4)}, {va3 if t == 1 else va}, {srd("WS")}, {soff} offen sc1' for t in (1, 0)]
    def g3_sum(self, base, out):
        return [f'v_add_f32_dpp v{base+k}, v{base+4+k}, v{base+k} quad_perm:[0,1,2,3] row_mask:0xf bank_mask:0xc' for k in range(4)] \
            + self.rs4(base, out) + [f'v_add_f32_dpp {out}, {out}, {out} row_ror:8 {DF}']

    def q_finish(self, u, st, mean, sc, Lp, ln=True):
        p = self.p
        if isinstance(Lp, tuple): Lr, Lok = Lp
        else:
            Lok = p.label('Lok')
            Lr = self.retry(Lp, Lok)
        if ln:
            p(f'v_fma_f32 v{u}, -v{mean}, {CSQ}, v{u}')
            p(f'v_mul_f32 v{u}, v{u}, v{sc}')
        p(f'v_cvt_pk_bf16_f32 v{sc}, v{u}, v{u}')
        p(f'v_cmp_u_f32 vcc, v{u}, v{st if ln else u}')
        p(f's_cbranch_vccnz {Lr}')
        p(f'{Lok}:')
        p(f'ds_write_b16 {lQW}, v{sc}')
        self.lgkm(0)
        p('s_barrier')

    def qk_softmax(self, iss=lambda n: None, vw=False):
        p = self.p
        S = [T, T + 1]
        for b in range(4):
            p(f's_mov_b64 exec, s[{sMB+2*b}:{sMB+2*b+1}]')
            p(f'ds_read_b128 {vr(BQ+4*b,4)}, {lQR}')
        p('s_mov_b64 exec, -1')
        def adds(e):
            h, be = e >> 2, e & 3
            D = ACC + 4 * e
            first = True
            out = []
            for u in range(4):
                if u == be: continue
                src1 = f'v{D+be}' if first else f'v{S[h]}'
                out.append(f'v_add_f32_dpp v{S[h]}, v{D+u}, {src1} row_ror:{(4*(be-u)) % 16} row_mask:0xf bank_mask:{1<<be:#x}')
                first = False
            return out
        if vw: p('s_waitcnt vmcnt(0)')
        for b in range(4):
            self.lgkm(3 - b)
            for e in range(8):
                h, be = e >> 2, e & 3
                mb = 8 * be + 2 * b + h
                c = '0' if b == 0 else vr(ACC + 4 * e, 4)
                p(f'{MFMA} {vr(ACC+4*e,4)}, {ar(4*mb,4)}, {vr(BQ+4*b,4)}, {c}')
                if b == 3 and e >= 3:
                    for s in adds(e - 3): p(s)
            iss(b)
        for e in (5, 6, 7):
            for s in adds(e): p(s)
        M = T + 2
        p(f'v_max_f32 v{M}, v{S[0]}, v{S[1]}')
        for n in (1, 2, 4, 8):
            p(f'v_max_f32_dpp v{M}, v{M}, v{M} row_ror:{n} {DF}')
        p(f'v_max_f32_dpp v{M}, v{M}, v{M} row_bcast:15 row_mask:0xa bank_mask:0xf')
        p(f'v_max_f32_dpp v{M}, v{M}, v{M} row_bcast:31 row_mask:0xc bank_mask:0xf')
        iss(4)
        p(f'v_mul_f32 v{M}, v{M}, {vC}')
        p(f'v_readlane_b32 {sMc}, v{M}, 63')
        p(f'v_fma_f32 v{S[0]}, v{S[0]}, {vC}, -{sMc}')
        p(f'v_fma_f32 v{S[1]}, v{S[1]}, {vC}, -{sMc}')
        p(f'v_exp_f32 v{S[0]}, v{S[0]}')
        p(f'v_exp_f32 v{S[1]}, v{S[1]}')
        p(f'v_cvt_pk_bf16_f32 v{T+4}, v{S[0]}, v{S[1]}')

    def ml_ops(self, fl):
        P, M, Ls = T + 4, T + 2, T + 3
        m2, l2, mc, f = T + 6, T + 7, T + 8, T + 5
        lc = T + 9
        ops = [f'v_lshlrev_b32 v{Ls}, 16, v{P}', f'v_and_b32 v{T}, 0xffff0000, v{P}', f'v_add_f32 v{Ls}, v{Ls}, v{T}']
        for n in (1, 2, 4, 8):
            ops += [f'v_add_f32_dpp v{Ls}, v{Ls}, v{Ls} row_ror:{n} {DF}', None]
        ops += [f'v_add_f32_dpp v{Ls}, v{Ls}, v{Ls} row_bcast:15 row_mask:0xa bank_mask:0xf', None,
                f'v_add_f32_dpp v{Ls}, v{Ls}, v{Ls} row_bcast:31 row_mask:0xc bank_mask:0xf',
                f'ds_write_b64 {lMW}, {vr(M,2)}', None, None,
                lambda: (self.lgkm(0), self.p('s_barrier'), self.p(f'ds_read_b64 {vr(m2,2)}, {lMR}')), None, None, None,
                lambda: self.lgkm(0),
                f'v_max_f32_dpp v{mc}, v{m2}, v{m2} quad_perm:[1,0,3,2] {DF}', None,
                f'v_max_f32_dpp v{mc}, v{mc}, v{mc} quad_perm:[2,3,0,1] {DF}',
                f'v_sub_f32 v{f}, v{m2}, v{mc}', f'v_exp_f32 v{f}, v{f}', None,
                f'v_mul_f32 v{lc}, v{f}, v{l2}', None,
                f'v_add_f32_dpp v{lc}, v{lc}, v{lc} quad_perm:[1,0,3,2] {DF}', None,
                f'v_add_f32_dpp v{lc}, v{lc}, v{lc} quad_perm:[2,3,0,1] {DF}']
        def st():
            Ls_ = self.p.label('Lnos')
            self.p(f's_cmp_lg_u32 {sW}, 0'); self.p(f's_cbranch_scc1 {Ls_}')
            self.p('s_mov_b64 exec, 0x10001' if self.o.osc else 's_mov_b64 exec, 1')
            if fl == 'mode':
                L1, L2 = self.p.label('Lm'), self.p.label('Lm')
                self.p(f's_cmp_eq_u32 {sMode}, 0'); self.p(f's_cbranch_scc1 {L1}')
                self.vmem(f'buffer_store_dwordx2 {vr(mc,2)}, {a16}, {srd("WS")}, {sOS0} offen sc1', optional=True)
                self.p(f's_branch {L2}')
                self.p(f'{L1}:')
                self.vmem(f'buffer_store_dwordx2 {vr(mc,2)}, {a16}, {srd("WS")}, {sOS0} offen', optional=True)
                self.p(f'{L2}:')
            else:
                self.vmem(f'buffer_store_dwordx2 {vr(mc,2)}, {a16}, {srd("WS")}, {sOS} offen {fl}', optional=True)
            self.p('s_mov_b64 exec, -1')
            self.p(f'{Ls_}:')
        ops.append(st)
        return ops

    def run_op(self, o):
        if o is None: return
        if callable(o): o()
        else: self.p(o)

    def pv(self, extras, layer0, hooks={}):
        p = self.p
        P = T + 4
        Da, Db = ACC, ACC + 4
        def build(pp):
            return [f'v_mov_b32_dpp v{PA+4*(pp&1)+t}, v{P} row_newbcast:{pp} row_mask:0xf bank_mask:{1<<t:#x}' for t in range(4)]
        def perms(pp):
            A, Bq, o = VB + 2 + 8 * pp, VB + 6 + 8 * pp, VB + 8 * pp
            seq = [(0, 0), (0, 1), (1, 0), (1, 1), (3, 0), (3, 1), (2, 1), (2, 0)]
            return [f'v_perm_b32 v{o+2*dp+hi}, v{Bq+dp}, v{A+dp}, {sHi if hi else sLo}' for dp, hi in seq]
        extras = list(extras)
        for s in build(0): p(s)
        for pp in range(16):
            nb = build(pp + 1) if pp < 15 else []
            if pp in hooks: hooks[pp]()
            if layer0:
                self.wait(f'V{2*pp+1}')
                for s in perms(pp): p(s)
            c = '0' if pp == 0 else None
            p(f'{MFMA} {vr(Da,4)}, {vr(PA+4*(pp&1),4)}, {vr(VB+8*pp,4)}, {c or vr(Da,4)}')
            for s in nb[:3]: p(s)
            p(f'{MFMA} {vr(Db,4)}, {vr(PA+4*(pp&1),4)}, {vr(VB+8*pp+4,4)}, {c or vr(Db,4)}')
            for s in nb[3:]: p(s)
            for _ in range(2):
                if extras: self.run_op(extras.pop(0))
        for o in extras: self.run_op(o)

    def reduce_publish(self, y, kind, soff, ldsoff):
        p = self.p
        if kind == 'o':
            for k in range(4): p(f'v_permlane16_swap_b32 v{y+k}, v{y+4+k}')
            p(f'v_pk_add_f32 {vr(y,2)}, {vr(y,2)}, {vr(y+4,2)}')
            p(f'v_pk_add_f32 {vr(y+2,2)}, {vr(y+2,2)}, {vr(y+6,2)}')
        p(f'ds_write_b128 {lRW if kind == "o" else lRW2}, {vr(y,4)} offset:{ldsoff}')
        if self.o.pl > 1 and kind == 'h': p('s_waitcnt vmcnt(0)')
        p(f's_cmp_lg_u32 {sW}, 0')
        self.lgkm(0)
        if self.o.stamps: p(f's_cmp_lg_u32 {sW}, 0')
        p('s_barrier')
        Ls = p.label('Lsk')
        p(f's_cbranch_scc1 {Ls}')
        if self.o.acc:
            for k in range(4):
                p(f'ds_read2st64_b32 {vr(ACC+2*k,2)}, {lRR} offset0:{ldsoff//256+2*k} offset1:{ldsoff//256+2*k+1}')
            self.lgkm(2)
            p(f'v_pk_add_f32 {vr(ACC,2)}, {vr(ACC,2)}, {vr(ACC+2,2)}')
            self.lgkm(0)
            p(f'v_pk_add_f32 {vr(ACC+4,2)}, {vr(ACC+4,2)}, {vr(ACC+6,2)}')
            p(f'v_pk_add_f32 {vr(ACC,2)}, {vr(ACC,2)}, {vr(ACC+4,2)}')
            p(f'v_add_f32 v{ACC}, v{ACC}, v{ACC+1}')
            p(f'v_cvt_f64_f32 {vr(ACC+2,2)}, v{ACC}')
            p(f'v_add_f64 {vr(ACC+2,2)}, {vr(ACC+2,2)}, s[0:1]')
            p(f'v_add_u32 v{ACC+3}, {H(0x01000000 - MHI)}, v{ACC+3}')
            self.vmem(f'buffer_atomic_add_x2 {vr(ACC+2,2)}, {vXW}, {srd("WS")}, {soff} offen sc1', optional=True)
            p(f'{Ls}:')
            return
        for k in range(4):
            p(f'ds_read_b128 {vr(ACC+4*k,4)}, {lRR} offset:{ldsoff+512*k}')
        p('s_mov_b32 exec_hi, 0')
        self.lgkm(2)
        p(f'v_pk_add_f32 {vr(ACC,2)}, {vr(ACC,2)}, {vr(ACC+4,2)}')
        p(f'v_pk_add_f32 {vr(ACC+2,2)}, {vr(ACC+2,2)}, {vr(ACC+6,2)}')
        self.lgkm(0)
        p(f'v_pk_add_f32 {vr(ACC+8,2)}, {vr(ACC+8,2)}, {vr(ACC+12,2)}')
        p(f'v_pk_add_f32 {vr(ACC+10,2)}, {vr(ACC+10,2)}, {vr(ACC+14,2)}')
        p(f'v_pk_add_f32 {vr(ACC,2)}, {vr(ACC,2)}, {vr(ACC+8,2)}')
        p(f'v_pk_add_f32 {vr(ACC+2,2)}, {vr(ACC+2,2)}, {vr(ACC+10,2)}')
        for k in range(4):
            p(f'v_add_f32_dpp v{ACC+k}, v{ACC+k}, v{ACC+k} row_ror:8 {DF}')
        p('s_mov_b32 exec_lo, 0x00ff00ff')
        self.vmem(f'buffer_store_dwordx4 {vr(ACC,4)}, {vXW}, {srd("WS")}, {soff} offen sc1', optional=True)
        p('s_mov_b64 exec, -1')
        p(f'{Ls}:')

    def rm_ops(self, src, addb2):
        t, u = T + 8, T + 9
        ops = ['s_mov_b32 exec_lo, 0x00ff00ff', 's_mov_b32 exec_hi, 0x00ff00ff', f'v_lshlrev_b32 v{t}, 16, v{src}']
        if addb2:
            ops += [f'v_accvgpr_read_b32 v{u}, a{aB2}', f'v_lshlrev_b32 v{u}, 16, v{u}', f'v_add_f32 v{t}, v{t}, v{u}']
        ops += [f'v_cvt_f64_f32 {vr(RM,2)}, v{t}', f'v_add_f64 {vr(RM,2)}, {vr(RM,2)}, -s[0:1]', 's_mov_b64 exec, -1']
        return ops

    def npol(self):
        return f's_bitcmp{1-self.o.pw}_b32 {sW}, 0' if self.NH == 2 else f's_cmp_lg_u32 {sW}, {self.o.pw}'

    def x16a(self, soff, final=False, fills=(), pre=0):
        p = self.p
        o = self.o
        ND = o.nd if not final else o.ndf
        gap = o.agap if not final else o.agapf
        D, x, lw, lr = T + 6, T + 5, T + 8, T + 9
        Lb, Lp, Lok = p.label('Lb'), p.label('Lp'), p.label('Lok')
        self.flush()
        def ld(k):
            a = PP[k % ND]
            p(f'v_mov_b32 v{a}, 0'); p(f'v_mov_b32 v{a+1}, 0')
            self.vmem(f'buffer_atomic_or_x2 {vr(a,2)}, {vXR}, {srd("WS")}, {soff} offen sc0 sc1', optional=True)
        assert len(fills) <= max(ND - 1, 0)
        for k, fn in enumerate(fills):
            La = p.label('La')
            p(self.npol()); p(f's_cbranch_scc1 {La}')
            ld(k)
            p(f'{La}:')
            fn()
            self.flush()
        p(f'v_and_b32 v{lr}, 0x30, v0')
        p(self.npol()); p(f's_cbranch_scc1 {Lb}')
        if final: p('s_waitcnt vmcnt(0)')
        for _ in range(pre): p('s_nop 15')
        first = True
        for k in range(len(fills), max(ND - 1, len(fills) + 1)):
            if k < ND - 1: ld(k)
            if first:
                p(f'v_and_b32 v{lw}, 7, v0'); p(f'v_lshl_add_u32 v{lw}, v{lw}, 1, v{lr}')
                if final: p(f's_lshl_b32 {sT}, {sH}, 6')
                elif self.NH == 2: p(f's_and_b32 {sT}, {sH}, 1'); p(f's_lshl_b32 {sT}, {sT}, 6'); p(f'v_add_u32 v{lw}, {sT}, v{lw}')
                first = False
            if k < ND - 1:
                for _ in range(gap): p('s_nop 15')
        p(f'{Lp}:')
        for k in range(ND):
            ld(k + ND - 1)
            p(f's_waitcnt vmcnt({ND-1})')
            p(f'v_cmp_gt_u32 vcc, 0x41000000, v{PP[k]+1}')
            p(f'v_add_f64 {vr(D,2)}, {vr(PP[k],2)}, {vr(RM,2)}')
            p(f's_cbranch_vccz {Lok}')
        p(f's_sub_u32 {sBud}, {sBud}, 1'); p(f's_cbranch_scc0 {Lp}')
        p(f's_mov_b32 {sBud}, 0')
        p(f'{Lok}:')
        p(f'v_cvt_f32_f64 v{x}, {vr(D,2)}')
        p(f'v_add_f32_dpp v{x}, v{x}, v{x} row_ror:8 {DF}')
        p(f'v_cvt_pk_bf16_f32 v{x}, v{x}, v{x}')
        if final:
            p('s_mov_b32 exec_lo, 0x00ff00ff'); p('s_mov_b32 exec_hi, 0x00ff00ff')
            p(f'buffer_store_short v{x}, v{lw}, {srd("OUT")}, {sT} offen')
            p('s_mov_b64 exec, -1')
            p(f'{Lb}:')
            return
        p(f'ds_write_b16 v{lw}, v{x} offset:{L_X}')
        p('s_waitcnt lgkmcnt(0)')
        p(f'{Lb}:')
        p('s_barrier')
        p(f'ds_read_b128 {vr(XA,4)}, v{lr} offset:{L_X}')
        if self.NH == 2: p(f'ds_read_b128 {vr(XA2,4)}, v{lr} offset:{L_X+64}')
        p(f's_waitcnt lgkmcnt({self.NH-1})')

    def x16(self, soff, pd=0, pre=0):
        if self.o.acc: return self.x16a(soff, pre=pre)
        if self.o.xs: return self.x16s(soff)
        p = self.p
        Y = T
        for _ in range(self.o.x8delay): p('s_nop 15')
        Lp = p.label('Lp')
        p(f'{Lp}:')
        self.vmem(f'buffer_load_dwordx4 {vr(Y,4)}, {vXR}, {srd("WS")}, {soff} offen sc1', optional=True)
        self.vmem(f'buffer_load_dwordx4 {vr(Y+4,4)}, {vXR}, {srd("WS")}, {soff} offen offset:1024 sc1', optional=True)
        p('s_waitcnt vmcnt(0)')
        p(f'v_pk_add_f32 {vr(Y,2)}, {vr(Y,2)}, {vr(Y+4,2)}')
        p(f'v_pk_add_f32 {vr(Y+2,2)}, {vr(Y+2,2)}, {vr(Y+6,2)}')
        for c in ('quad_perm:[1,0,3,2]', 'quad_perm:[2,3,0,1]', 'row_half_mirror'):
            for k in range(4):
                p(f'v_add_f32_dpp v{Y+k}, v{Y+k}, v{Y+k} {c} {DF}')
        p(f'v_pk_add_f32 {vr(Y,2)}, {vr(Y,2)}, {vr(XR,2)}')
        p(f'v_pk_add_f32 {vr(Y+2,2)}, {vr(Y+2,2)}, {vr(XR+2,2)}')
        p(f'v_cvt_pk_bf16_f32 v{XA}, v{Y}, v{Y+1}')
        p(f'v_cvt_pk_bf16_f32 v{XA+1}, v{Y+2}, v{Y+3}')
        p(f'v_pk_add_f32 {vr(Y,2)}, {vr(Y,2)}, {vr(Y+2,2)}')
        p(f'v_cmp_u_f32 vcc, v{Y}, v{Y+1}')
        self.build_xa()
        Lok = p.label('Lok')
        Lr = self.retry(Lp, Lok, extra=['s_nop 15'] * pd)
        p(f's_cbranch_vccnz {Lr}')
        p(f'{Lok}:')

    def x16s(self, soff):
        p = self.p
        ND = self.o.xs
        Y = ACC
        lw, lr = T + 8, T + 9
        def ld(k):
            if self.o.xat == 2:
                p(f'v_mov_b32 v{T+2*k}, -1'); p(f'v_mov_b32 v{T+2*k+1}, -1')
                self.vmem(f'buffer_atomic_and_x2 {vr(T+2*k,2)}, {vXR}, {srd("WS")}, {soff} offen sc0 sc1', optional=True)
            elif self.o.xat:
                p(f'v_mov_b32 v{T+2*k}, 0'); p(f'v_mov_b32 v{T+2*k+1}, 0')
                self.vmem(f'buffer_atomic_or_x2 {vr(T+2*k,2)}, {vXR}, {srd("WS")}, {soff} offen sc0 sc1', optional=True)
            else:
                self.vmem(f'buffer_load_dwordx2 {vr(T+2*k,2)}, {vXR}, {srd("WS")}, {soff} offen sc1', optional=True)
        ld(0)
        p(f'v_lshrrev_b32 v{lw}, 4, v0'); p(f'v_mul_u32_u24 v{lw}, 16, v{lw}'); p(f'v_lshl_add_u32 v{lw}, v0, 3, v{lw}')
        p(f's_mul_i32 {sT}, {sW}, 576'); p(f's_add_u32 {sT}, {sT}, {L_X}'); p(f'v_add_u32 v{lw}, {sT}, v{lw}')
        p(f'v_and_b32 v{lr}, 7, v0'); p(f'v_mul_u32_u24 v{lr}, 142, v{lr}'); p(f'v_lshl_add_u32 v{lr}, v0, 1, v{lr}')
        if self.o.xat == 2:
            Lp, Lg, Lok = p.label('Lp'), p.label('Lgive'), p.label('Lok')
            p(f's_branch {Lp}w')
            p(f'{Lp}:')
            p(f's_sub_u32 {sBud}, {sBud}, 1'); p(f's_cbranch_scc1 {Lg}')
            p('s_nop 1')
            self.vmem(f'buffer_atomic_and_x2 {vr(T,2)}, {vXR}, {srd("WS")}, {soff} offen sc0 sc1', optional=True)
            self.ool.append([f'{Lg}:', f's_mov_b32 {sBud}, 0', 's_waitcnt vmcnt(0)', f's_branch {Lok}'])
            p(f'{Lp}w:')
            p('s_waitcnt vmcnt(0)')
            p(f'v_cmpx_u_f32 vcc, v{T}, v{T+1}')
            p(f's_cbranch_vccnz {Lp}')
            p(f'{Lok}:')
            p('s_mov_b64 exec, -1')
            p(f'ds_write_b64 v{lw}, {vr(T,2)}')
            ND = 0
        for k in range(1, ND - 1):
            for _ in range(self.o.xgap): p('s_nop 15')
            ld(k)
        if ND > 1:
            for _ in range(self.o.xgap): p('s_nop 15')
        Lp, Lj = p.label('Lp'), p.label('Lj')
        Ld = [p.label('Ld') for _ in range(ND)]
        if ND == 1:
            p(f's_branch {Lp}w')
        if ND: p(f'{Lp}:')
        for k in range(ND):
            ld((k - 1) % ND)
            if ND == 1: p(f'{Lp}w:')
            p(f's_waitcnt vmcnt({ND - 1})')
            p(f'v_cmp_u_f32 vcc, v{T+2*k}, v{T+2*k+1}')
            p(f's_cbranch_vccz {Ld[k]}')
        if ND:
            p(f's_sub_u32 {sBud}, {sBud}, 1'); p(f's_cbranch_scc0 {Lp}')
            p(f's_mov_b32 {sBud}, 0')
            for k in range(1, ND):
                self.ool.append([f'{Ld[k]}:', f'ds_write_b64 v{lw}, {vr(T+2*k,2)}', f's_branch {Lj}'])
            p(f'{Ld[0]}:')
            p(f'ds_write_b64 v{lw}, {vr(T,2)}')
            p(f'{Lj}:')
        p('s_waitcnt lgkmcnt(0)')
        p('s_barrier')
        p(f'ds_read_b128 {vr(Y,4)}, v{lr} offset:{L_X}')
        p(f'ds_read_b128 {vr(Y+4,4)}, v{lr} offset:{L_X+1152}')
        p('s_waitcnt lgkmcnt(0)')
        p(f'v_pk_add_f32 {vr(Y,2)}, {vr(Y,2)}, {vr(Y+4,2)}')
        p(f'v_pk_add_f32 {vr(Y+2,2)}, {vr(Y+2,2)}, {vr(Y+6,2)}')
        for c in ('quad_perm:[1,0,3,2]', 'quad_perm:[2,3,0,1]', 'row_half_mirror'):
            for k in range(4):
                p(f'v_add_f32_dpp v{Y+k}, v{Y+k}, v{Y+k} {c} {DF}')
        p(f'v_pk_add_f32 {vr(Y,2)}, {vr(Y,2)}, {vr(XR,2)}')
        p(f'v_pk_add_f32 {vr(Y+2,2)}, {vr(Y+2,2)}, {vr(XR+2,2)}')
        p(f'v_cvt_pk_bf16_f32 v{XA}, v{Y}, v{Y+1}')
        p(f'v_cvt_pk_bf16_f32 v{XA+1}, v{Y+2}, v{Y+3}')
        self.build_xa()

    def oa2a(self, pd=0, mid=None, stk=None, pre=0):
        p = self.p
        AO = T
        ml = T + 4
        M, f, Lq, ck = T + 6, T + 7, T + 8, T + 9
        y = T + 12
        DL = self.o.plo
        assert not (mid and DL > 1)
        if stk and self.o.stamps >= 2: p(f'v_writelane_b32 {vSTAMP}, {sBud}, {stk+12}')
        if pre:
            Lq_ = p.label('Lpre')
            p(f's_cmp_eq_u32 {sW}, 0'); p(f's_cbranch_scc1 {Lq_}')
            for _ in range(pre): p('s_nop 15')
            p(f'{Lq_}:')
        Lp = p.label('Lp')
        if mid:
            self.vmem(f'buffer_load_dwordx2 {vr(ml,2)}, {vOSR}, {srd("WS")}, {sL} offen sc1')
            self.vmem(f'buffer_load_dwordx4 {vr(AO,4)}, {vOR}, {srd("WS")}, {sL} offen sc1')
            mid()
            self.ool.append([f'{Lp}:', f'buffer_load_dwordx2 {vr(ml,2)}, {vOSR}, {srd("WS")}, {sL} offen sc1',
                             f'buffer_load_dwordx4 {vr(AO,4)}, {vOR}, {srd("WS")}, {sL} offen sc1', f's_branch {Lp}w'])
            p(f'{Lp}w:')
        else:
            for k in range(DL):
                if k == DL - 1: p(f'{Lp}:')
                self.vmem(f'buffer_load_dwordx2 {vr(ml,2)}, {vOSR}, {srd("WS")}, {sL} offen sc1', optional=True)
                self.vmem(f'buffer_load_dwordx4 {vr(AO,4)}, {vOR}, {srd("WS")}, {sL} offen sc1', optional=True)
                if k < DL - 1:
                    for _ in range(self.o.pgapo): p('s_nop 15')
        if self.o.inl and not mid:
            Lok = self.bud(); Lr = Lp
        else:
            Lok = p.label('Lok')
            Lr = self.retry(Lp, Lok, extra=['s_nop 15'] * pd)
        p(f's_waitcnt vmcnt({2*(DL-1)})')
        chk = [f'v_max3_u32 v{ck}, v{AO}, v{AO+1}, v{AO+2}', f'v_max3_u32 v{ck}, v{ck}, v{AO+3}, v{ml}',
               f'v_max_u32 v{ck}, v{ck}, v{ml+1}', f'v_cmp_eq_u32 vcc, -1, v{ck}']
        sc = [f'v_max_f32_dpp v{M}, v{ml}, v{ml} quad_perm:[1,0,3,2] {DF}',
              f'v_max_f32_dpp v{M}, v{M}, v{M} quad_perm:[2,3,0,1] {DF}',
              f'v_max_f32_dpp v{M}, v{M}, v{M} row_half_mirror {DF}',
              f'v_sub_f32 v{f}, v{ml}, v{M}', f'v_exp_f32 v{f}, v{f}',
              f'v_mul_f32 v{Lq}, v{f}, v{ml+1}',
              f'v_add_f32_dpp v{Lq}, v{Lq}, v{Lq} quad_perm:[1,0,3,2] {DF}',
              f'v_add_f32_dpp v{Lq}, v{Lq}, v{Lq} quad_perm:[2,3,0,1] {DF}',
              f'v_add_f32_dpp v{Lq}, v{Lq}, v{Lq} row_half_mirror {DF}',
              f'v_rcp_f32 v{Lq}, v{Lq}', f'v_mul_f32 v{f}, v{f}, v{Lq}']
        mf = [f'{MFMA} {vr(ACC+4*d,4)}, {vr(AO,4)}, {ar(aWO+4*d,4)}, 0' for d in range(8)]
        if DL > 1 or self.o.ec:
            p(chk[0]); p(chk[1]); p(mf[0]); p(chk[2]); p(chk[3]); p(sc[0])
            p(f's_cbranch_vccnz {Lr}')
            p(f'{Lok}:')
            p(mf[1]); p(sc[1]); p(mf[2])
        else:
            p(mf[0]); p(chk[0]); p(chk[1]); p(sc[0])
            p(mf[1]); p(chk[2]); p(chk[3]); p(sc[1])
            p(mf[2])
            p(f's_cbranch_vccnz {Lr}')
            p(f'{Lok}:')
        if stk and self.o.stamps >= 2:
            self.stamp(stk); p(f'v_writelane_b32 {vSTAMP}, {sBud}, {stk+10}')
        p(sc[2])
        p(mf[3]); p(sc[3]); p(sc[4])
        p(mf[4]); p(sc[5])
        p(mf[5]); p(sc[6])
        p(mf[6]); p(sc[7])
        p(mf[7]); p(sc[8]); p(sc[9]); p(sc[10])
        for r in range(4):
            for d in range(8):
                op = 'v_mul_f32_dpp' if r == 0 else 'v_fmac_f32_dpp'
                p(f'{op} v{y+d}, v{f}, v{ACC+4*d+r} row_newbcast:{r} {DF}')
        self.reduce_publish(y, 'o', sL, 0)

    def gather_stats(self, va, va3, off, second, shadow=None):
        p = self.p
        u, st, mean, sc = T, T + 1, T + 2, T + 3
        Lp = p.label('Lp')
        if shadow:
            for s_ in self.g3_list(ACC, va, va3, sL): self.vmem(s_, optional=True)
            shadow()
            p(f's_branch {Lp}w')
        p(f'{Lp}:')
        for s_ in self.g3_list(ACC, va, va3, sL): self.vmem(s_, optional=True)
        Lp = (Lp, self.bud())
        if shadow: p(f'{Lp[0]}w:')
        p('s_waitcnt vmcnt(1)')
        so = self.stats_ops(ACC + 4, st, mean, sc, second, ACC + 8)
        for s_ in so[:2]: p(s_)
        p('s_waitcnt vmcnt(0)')
        gs = self.g3_sum(ACC, f'v{u}')
        if self.o.ec:
            p(gs[0]); p(gs[1]); p(so[2])
            p(f'v_cmp_u_f32 vcc, v{ACC}, {vZ}')
            p(gs[2]); p(gs[3])
            p(f's_cbranch_vccnz {Lp[0]}')
            self.merge(so[3:], gs[4:])
        else: self.merge(gs, so[2:])
        return Lp, u, st, mean, sc

    def ha2a(self, shadow=None, stk=None):
        p = self.p
        if stk and self.o.stamps >= 2:
            p(f'v_writelane_b32 {vSTAMP}, {sBud}, {stk+14}')
            if stk == 28: self.stamp(30); self.flush()
        Lp, u, st, mean, sc = self.gather_stats(vHR, vHR3, 256, True, shadow)
        t1_, e = T + 4, T + 5
        A = T + 8
        y = T + 12
        if isinstance(Lp, tuple): Lr, Lok = Lp
        else:
            Lok = p.label('Lok')
            Lr = self.retry(Lp, Lok)
        c0 = -2.0 * math.sqrt(2.0 / math.pi) * math.log2(math.e)
        c1 = c0 * 0.044715
        p(f'v_fma_f32 v{u}, -v{mean}, {CS1}, v{u}')
        p(f'v_fma_f32 v{u}, v{u}, v{sc}, {B1v}')
        p(f'v_mul_f32 v{t1_}, v{u}, v{u}')
        p(f'v_cmp_u_f32 vcc, v{u}, v{st}')
        p(f'v_mul_f32 v{t1_}, {H(f2u(c1))}, v{t1_}')
        p(f'v_add_f32 v{t1_}, {H(f2u(c0))}, v{t1_}')
        p(f's_cbranch_vccnz {Lr}')
        p(f'{Lok}:')
        if stk and self.o.stamps >= 2:
            self.stamp(stk); p(f'v_writelane_b32 {vSTAMP}, {sBud}, {stk+12}')
        p(f'v_mul_f32 v{t1_}, v{t1_}, v{u}')
        p(f'v_exp_f32 v{e}, v{t1_}')
        p(f'v_add_f32 v{e}, 1.0, v{e}')
        p(f'v_rcp_f32 v{e}, v{e}')
        p(f'v_mul_f32 v{u}, v{u}, v{e}')
        p(f'v_cvt_pk_bf16_f32 v{u}, v{u}, v{u}')
        for k in range(4):
            p(f'v_and_b32 v{A+k}, v{u}, v{MK+k}')
        for d in range(4):
            p(f'{MFMA} {vr(ACC+4*d,4)}, {vr(A,4)}, {ar(aW2+4*d,4)}, 0')
        for d in range(4):
            p(f'v_pk_add_f32 {vr(ACC+4*d,2)}, {vr(ACC+4*d,2)}, {vr(ACC+4*d+2,2)}')
            p(f'v_add_f32 v{y+d}, v{ACC+4*d}, v{ACC+4*d+1}')
        self.reduce_publish(y, 'h', sLM, 2048)

    def combine(self, fl):
        p = self.p
        f = T + 5
        p(f'v_mul_f32_dpp v{T}, v{f}, v{ACC} quad_perm:[0,0,0,0] {DF}')
        p(f'v_mul_f32_dpp v{T+1}, v{f}, v{ACC+4} quad_perm:[0,0,0,0] {DF}')
        p(f'ds_write2_b32 {lOW}, v{T}, v{T+1} offset0:0 offset1:64')
        p(f's_cmp_lg_u32 {sW}, 0')
        self.lgkm(0)
        if self.o.stamps: p(f's_cmp_lg_u32 {sW}, 0')
        p('s_barrier')
        Ls = p.label('Lsk')
        p(f's_cbranch_scc1 {Ls}')
        p(f'ds_read2_b64 {vr(ACC,4)}, {lOR} offset0:0 offset1:64')
        p(f'ds_read2_b64 {vr(ACC+4,4)}, {lOR} offset0:128 offset1:192')
        self.lgkm(1)
        p(f'v_pk_add_f32 {vr(ACC,2)}, {vr(ACC,2)}, {vr(ACC+2,2)}')
        self.lgkm(0)
        p(f'v_pk_add_f32 {vr(ACC+4,2)}, {vr(ACC+4,2)}, {vr(ACC+6,2)}')
        p(f'v_pk_add_f32 {vr(ACC,2)}, {vr(ACC,2)}, {vr(ACC+4,2)}')
        p(f'v_cvt_pk_bf16_f32 v{ACC}, v{ACC}, v{ACC+1}')
        self.vmem(f'buffer_store_dword v{ACC}, {vOW}, {srd("WS")}, {sL} offen {fl}', optional=True)
        p(f'{Ls}:')

    def set_layer(self, off):
        p = self.p
        p(f's_mov_b32 {sL}, {H(off)}')
        p(f's_add_u32 {sOS}, {sOS0}, {H(off)}')
        p(f's_mov_b32 {sLM}, {H(off + XMo - XAo)}')

    def finish(self):
        p = self.p
        if self.o.stamps:
            self.stamp(31)
            self.flush()
            p(f'v_writelane_b32 {vSTAMP}, {sBud}, 33')
            p(f's_memtime s[{sSTAMP}:{sSTAMP+1}]'); p('s_waitcnt lgkmcnt(0)')
            p(f'v_writelane_b32 {vSTAMP}, s{sSTAMP}, 35')
            Le = p.label('Lend')
            p(f's_cmp_lg_u32 {sW}, 0'); p(f's_cbranch_scc1 {Le}')
            p(f's_lshl_b32 {sT}, s2, 8'); p(f's_add_u32 {sT}, {sT}, 0x8000000')
            p(f'v_lshlrev_b32 v{T}, 2, {vLane}')
            p(f'buffer_store_dword {vSTAMP}, v{T}, {srd("WS")}, {sT} offen')
            p(f'{Le}:')
        p('s_endpgm')

    def chain(self, A, B, fast, name):
        p = self.p
        o = self.o
        fl = '' if fast else 'sc1'
        vm0, tags0 = self.vm, dict(self.tags)
        p(f'{name}:')
        TB = ACC
        FL = vR
        for layer in range(2):
            def stp(k): self.stamp(8 + 10 * layer + k)
            stp(2)
            self.combine(fl)
            stp(3)
            if layer == 0:
                for k, f in self.rest: f()
                self.wait('FL2')
                Lfp, Lfok, Lfc = p.label('Lfp'), p.label('Lfok'), p.label('Lfc')
                self.flush()
                p(f'{Lfc}:')
                p(f'v_and_b32 v{t0}, 0x80808080, v{FL}')
                p(f'v_cmp_ne_u32 vcc, 0x80808080, v{t0}')
                Lr = self.retry(Lfp, Lfok)
                self.ool.append([f'{Lfp}:', f'buffer_load_dword v{FL}, v{T+15}, {srd("DBG")}, 0 offen sc1',
                                 's_waitcnt vmcnt(0)', f's_branch {Lfc}'])
                p(f's_cbranch_vccnz {Lr}')
                p(f'{Lfok}:')
            if B:
                def mid():
                    self.wait('WO')
                    self.stamp(28)
                    self.transpose(aWO, 4, TB, T + 12)
                if layer == 0 and o.wolate and not o.womid: mid()
                self.oa2a(o.pdo if layer == 0 else 0, mid if (layer == 0 and o.wolate and o.womid) else None, stk=26 + layer, pre=o.opre if layer else 0)
                stp(4)
                if layer == 0:
                    if o.w2bar and self.rest2: p('s_barrier')
                    for k, f in self.rest2: f()
            def w1f0():
                if o.wv: self.transpose(aW1, 2, ACC, T + 12, rd=False)
                else: self.transpose(aW1, 2, TB, TB + 16)
            def w1f1():
                if self.NH == 1: pass
                elif o.wv: self.transpose(aW1 + 16, 2, ACC + 16, T + 12, rd=False)
                else: self.transpose(aW1 + 16, 2, TB, TB + 16)
                p(f's_mov_b32 {sT2}, {H(CSL)}')
                self.w1((XB, XB), sT2, fl, False, False)
            if A and layer == 0 and o.fill < 2:
                self.wait('W1')
                w1f0()
                if not o.fill: w1f1()
            c1l = [f's_mov_b32 {sT2}, {H(CSL)}'] + self.g3_list(aC1, vHR, vHR3, sT2, acc=True)
            cql = [f's_mov_b32 {sT2}, {H(CSL)}'] + self.g3_list(aCQ, vQR, vQR3, sT2, acc=True)
            if B and layer == 0:
                self.wait('W2')
                if o.stamps >= 2: self.stamp(9)
                if not o.wv:
                    p(f'v_accvgpr_read_b32 {B1v}, a{aB1}'); p(f'v_lshlrev_b32 {B1v}, 16, {B1v}')
                    self.transpose(aW2, 2, TB, TB + 16)
                for s_ in c1l: p(s_)
            if not B and layer == 0 and (o.xgate or not A):
                Lp, Lg, Lok = p.label('Lp'), p.label('Lgive'), p.label('Lok')
                if o.opc:
                    p(f'v_bfe_u32 v{T+1}, v0, 3, 2'); p(f'v_lshlrev_b32 v{T+1}, 11, v{T+1}'); p(f'v_and_b32 v{T}, 7, v0'); p(f'v_lshl_add_u32 v{T+1}, v{T}, 4, v{T+1}')
                else:
                    p(f'v_and_b32 v{T+1}, 31, v0'); p(f'v_lshlrev_b32 v{T+1}, 8, v{T+1}')
                p(f's_add_u32 {sT}, {sBX}, {H(OP)}')
                p(f'{Lp}:')
                p(f'buffer_load_dword v{T}, v{T+1}, {srd("WS")}, {sT} offen sc1')
                p(f's_sub_u32 {sBud}, {sBud}, 1'); p(f's_cbranch_scc1 {Lg}')
                self.ool.append([f'{Lg}:', f's_mov_b32 {sBud}, 0', 's_waitcnt vmcnt(0)', f's_branch {Lok}'])
                for _ in range(o.xgate - 1): p('s_nop 15')
                p('s_waitcnt vmcnt(0)')
                p(f'v_cmp_eq_u32 vcc, -1, v{T}')
                p(f's_cbranch_vccnz {Lp}')
                p(f'{Lok}:')
                for _ in range(o.xgd): p('s_nop 15')
            LW = 's_waitcnt lgkmcnt(0)'
            if A:
                if layer == 0 and o.fill:
                    assert o.xgate
                    self.x16a(sL, fills=[w1f0, w1f1][2-o.fill:])
                else: self.x16(sL, 0, pre=o.pd1 if layer else o.pd0)
                stp(5)
                self.w1((XA, XA2), sL, fl, True, False, post=self.rm_ops(T + 5, True), w2=LW)
                stp(6)
            if layer == 0 and not B:
                for s_ in cql: p(s_)
            if B and layer == 0 and o.wv:
                def c1sh():
                    p(f'v_accvgpr_read_b32 {B1v}, a{aB1}'); p(f'v_lshlrev_b32 {B1v}, 16, {B1v}')
                    self.transpose(aW2, 2, ACC + 12, ACC + 28, rd=False)
                    self.flush()
                    Lc1, Lcp, Lcok = p.label('Lc'), p.label('Lcp'), p.label('Lcok')
                    p('s_waitcnt vmcnt(2)')
                    p(f'{Lc1}:')
                    for k in range(8): p(f'v_accvgpr_read_b32 v{ACC+12+k}, a{aC1+k}')
                    for s_ in self.g3_sum(ACC + 12, CS1): p(s_)
                    p(f'v_cmp_u_f32 vcc, {CS1}, {CS1}')
                    Lr = self.retry(Lcp, Lcok)
                    self.ool.append([f'{Lcp}:'] + c1l + ['s_waitcnt vmcnt(0)', f's_branch {Lc1}'])
                    p(f's_cbranch_vccnz {Lr}')
                    p(f'{Lcok}:')
                self.ha2a(c1sh, stk=28 + layer)
                stp(7)
                for s_ in cql: p(s_)
            elif B:
                if layer == 0:
                    self.flush()
                    Lc1, Lcp, Lcok = p.label('Lc'), p.label('Lcp'), p.label('Lcok')
                    p(f'{Lc1}:')
                    p('s_waitcnt vmcnt(0)')
                    for k in range(8): p(f'v_accvgpr_read_b32 v{ACC+k}, a{aC1+k}')
                    for s_ in self.g3_sum(ACC, CS1): p(s_)
                    p(f'v_cmp_u_f32 vcc, {CS1}, {CS1}')
                    Lr = self.retry(Lcp, Lcok)
                    self.ool.append([f'{Lcp}:'] + c1l + [f's_branch {Lc1}'])
                    p(f's_cbranch_vccnz {Lr}')
                    p(f'{Lcok}:')
                self.ha2a(stk=28 + layer)
                stp(7)
                if layer == 0:
                    for s_ in cql: p(s_)
            if layer == 1:
                if A:
                    Lf = p.label('Lfin')
                    self.flush()
                    p(f's_or_b32 {sT}, {sX}, {sW}' if not o.xs else f's_mov_b32 {sT}, {sX}')
                    p(f's_cmp_lg_u32 {sT}, 0'); p(f's_cbranch_scc1 {Lf}')
                    if o.acc:
                        self.x16a(sLM, final=True, pre=0 if B else o.pd3)
                        if o.stamps: p('s_barrier')
                    else:
                        self.x16(sLM)
                        if o.xs: p(f's_cmp_lg_u32 {sW}, 0'); p(f's_cbranch_scc1 {Lf}')
                        p(f's_mov_b64 exec, s[{sMF}:{sMF+1}]')
                        p(f's_lshl_b32 {sT}, {sIA}, 6')
                        p(f'buffer_store_dwordx2 {vr(XA,2)}, {vLane}, {srd("OUT")}, {sT} offen')
                        p('s_mov_b64 exec, -1')
                    p(f'{Lf}:')
                self.finish()
                break
            p('s_waitcnt vmcnt(0)')
            for k in range(8): p(f'v_accvgpr_read_b32 v{ACC+k}, a{aCQ+k}')
            for s_ in self.g3_sum(ACC, CSQ): p(s_)
            if A:
                self.x16(sLM, pre=o.pd2)
                stp(8)
            self.set_layer(LSTR)
            if B and o.opwarm:
                p(f'buffer_load_dwordx2 {ar(aC1,2)}, {vOSR}, {srd("WS")}, {sL} offen sc1')
                p(f'buffer_load_dwordx4 {ar(aC1+4,4)}, {vOR}, {srd("WS")}, {sL} offen sc1')
            if A:
                self.qp((XA, XA2), sL, fl, True, False, post=self.rm_ops(T + 5, False), w2=LW)
                stp(9)
            if not A and not B:
                for _ in range(o.pdC): p('s_nop 15')
            Lp, u, st, mean, sc = self.gather_stats(vQR, vQR3, 0, False)
            self.q_finish(u, st, mean, sc, Lp)
            stp(10)
            self.flush()
            self.qk_softmax(vw=o.pl > 1)
            stp(11)
            self.pv(self.ml_ops(fl), False)
            self.flush()
        for code in self.ool:
            for s_ in code: p(s_)
        self.ool = []
        self.vm, self.tags = vm0, tags0

    def kvo(self, mb):
        a = self.o.alt
        if a == 0 or a == 4: k, off = mb >> 2, mb & 3
        elif a == 1: k, off = 2 * (mb >> 3) + (mb & 1), (mb >> 1) & 3
        elif a == 2: k, off = 2 * (mb >> 3) + ((mb >> 1) & 1), (mb & 1) + 2 * ((mb >> 2) & 1)
        return f's{sKV+k} offen offset:{1024*off} nt'
    def kload(self, mb):
        self.vmem(f'buffer_load_dwordx4 {ar(4*mb,4)}, {vK}, {srd("K")}, {self.kvo(mb)}', tag=f'K{mb}')
    def vload(self, mb):
        assert self.vfree, 'V area still in use'
        self.vmem(f'buffer_load_dwordx4 {vr(VB+2+4*mb,4)}, {a16}, {srd("V")}, {self.kvo(mb)}', tag=f'V{mb}')

    def pfcode(self, lo, hi, track=True):
        p = self.p
        L = p.label('Lpc')
        n = SRD['X']
        Ls = p.label('Lpcs')
        if self.o.pfsel:
            track = False
            p(f's_and_b32 {sT}, {sC}, 7'); p(f's_cmp_lg_u32 {sT}, 5'); p(f's_cbranch_scc1 {Ls}')
        p(f's_getpc_b64 s[{n}:{n+1}]')
        p(f'{L}:')
        p(f's_add_u32 s{n}, s{n}, {lo}-{L}'); p(f's_addc_u32 s{n+1}, s{n+1}, {0 if self.fwd else -1}')
        p(f's_mov_b32 s{n+2}, {hi}-{lo}')
        p(f'v_lshlrev_b32 v{t2}, 7, v0'); p(f's_lshl_b32 {sT}, {sW}, 13')
        self.vmem(f'buffer_load_dword a{aCQ+11}, v{t2}, {srd("X")}, {sT} offen', optional=not track)
        p(f'{Ls}:')

    def head(self):
        p = self.p
        o = self.o
        p('L_top:')
        p('s_cmp_lt_u32 s2, 256'); p('s_cbranch_scc1 L_go')
        p('s_endpgm')
        p('L_go:')
        p(f's_load_dwordx16 s[{KA}:{KA+15}], s[0:1], 0')
        p(f's_load_dwordx2 s[{SRD["WS"]}:{SRD["WS"]+1}], s[0:1], {KOFF["WS"]}')
        if o.stamps:
            p('s_memrealtime s[96:97]')
            p('s_memtime s[98:99]')
        p('v_lshrrev_b32 v1, 6, v0')
        p('v_and_b32 v0, 63, v0')
        p(f'v_readfirstlane_b32 {sW}, v1')
        p(f's_and_b32 {sX}, s2, 7'); p(f's_lshr_b32 {sC}, s2, 3'); p(f's_and_b32 {sJ}, {sC}, 3'); p(f's_lshr_b32 {sS}, {sC}, 2')
        if o.jx: p(f's_xor_b32 {sJ}, {sJ}, {o.jx}')
        if o.sx: p(f's_xor_b32 {sS}, {sS}, {o.sx}')
        if o.xx: p(f's_xor_b32 {sX}, {sX}, {o.xx}')
        if o.xperm:
            cst = sum(int(ch) << (4 * i) for i, ch in enumerate(o.xperm))
            p(f's_lshl_b32 {sX}, {sX}, 2'); p(f's_lshr_b32 {sX}, {H(cst)}, {sX}'); p(f's_and_b32 {sX}, {sX}, 7')
        if o.pfa:
            n = SRD['OUT']
            p(f's_sub_u32 {sT}, {sC}, {o.pfc}'); p(f's_cmp_ge_u32 {sT}, 2'); p('s_cbranch_scc1 L_nopf')
            p(f's_getpc_b64 s[{n}:{n+1}]')
            p('L_pc:')
            p(f's_mov_b32 s{n+2}, L_fastend-L_pc+{o.pfx}'); p(f's_mov_b32 s{n+3}, 0x00020000')
            p(f's_lshl_b32 {sT}, {sT}, 2'); p(f's_add_u32 {sT}, {sT}, {sW}'); p(f's_lshl_b32 {sT}, {sT}, 13')
            p(f'v_lshlrev_b32 v{t2}, 7, v0')
            self.vmem(f'buffer_load_dword a{aCQ+11}, v{t2}, {srd("OUT")}, {sT} offen', optional=True)
            p('L_nopf:')
        vWQ, vWO, vXs = T + 12, T + 13, T + 14
        sQ, sO = sMc, sOS
        p(f'v_lshlrev_b32 {a16}, 4, v0')
        p(f'v_and_b32 v{vR}, 15, v0'); p(f'v_lshrrev_b32 v{vG}, 4, v0')
        p(f's_mov_b32 {sIA}, {sC}'); p(f's_sub_u32 {sIB}, {sC}, 12')
        for n in ('X', 'WQ', 'WO'):
            p(f's_mov_b32 s{SRD[n]+2}, {H(SIZE[n])}'); p(f's_mov_b32 s{SRD[n]+3}, 0x00020000')
        p(f'v_lshlrev_b32 v{vWQ}, 16, v{vG}'); p(f'v_lshl_add_u32 v{vWQ}, v{vR}, 4, v{vWQ}')
        p(f's_lshl_b32 {sT3}, {sC}, 1'); p(f's_add_u32 {sT2}, {sC}, 8'); p(f's_min_u32 {sT3}, {sT3}, {sT2}')
        p(f's_lshl_b32 {sQ}, {sT3}, 18'); p(f's_lshl_b32 {sT2}, {sX}, 10'); p(f's_add_u32 {sQ}, {sQ}, {sT2}')
        p(f's_lshl_b32 {sT2}, {sW}, 8'); p(f's_add_u32 {sQ}, {sQ}, {sT2}')
        p(f'v_and_b32 v{vXs}, 0x38, v0'); p(f'v_lshl_add_u32 v{vXs}, {sT3}, 6, v{vXs}')
        p(f'v_and_b32 v{t0}, 1, v{vG}'); p(f'v_lshlrev_b32 v{t0}, 6, v{t0}')
        p(f'v_lshrrev_b32 v{t2}, 3, v{vR}'); p(f'v_lshl_add_u32 v{t0}, v{t2}, 1, v{t0}')
        p(f'v_lshrrev_b32 v{t1}, 1, v{vG}'); p(f'v_add_u32 v{t0}, v{t0}, v{t1}')
        p(f'v_mul_u32_u24 v{t0}, 1280, v{t0}')
        p(f'v_and_b32 v{t1}, 7, v0'); p(f'v_lshl_add_u32 v{vWO}, v{t1}, 4, v{t0}')
        p(f's_and_b32 {sT}, {sIB}, 1'); p(f's_lshl_b32 {sT}, {sT}, 1'); p(f's_lshr_b32 {sT2}, {sW}, 1'); p(f's_add_u32 {sT}, {sT}, {sT2}')
        p(f's_lshl_b32 {sT2}, {sX}, 2'); p(f's_add_u32 {sT}, {sT}, {sT2}'); p(f's_lshl_b32 {sT}, {sT}, 7')
        p(f's_and_b32 {sT2}, {sW}, 1'); p(f's_lshl_b32 {sT2}, {sT2}, 2'); p(f's_add_u32 {sT}, {sT}, {sT2}')
        p(f's_mul_i32 {sO}, {sT}, 1280'); p(f's_lshr_b32 {sT2}, {sIB}, 1'); p(f's_lshl_b32 {sT2}, {sT2}, 7'); p(f's_add_u32 {sO}, {sO}, {sT2}')
        p(f's_cmp_ge_u32 {sC}, 12')
        p('s_waitcnt lgkmcnt(0)')
        self.mv('WO')
        p('s_cbranch_scc1 L_eB')
        self.mv('X'); self.mv('WQ')
        self.vmem(f'buffer_load_dwordx4 {vr(XF,4)}, {a16}, {srd("X")}, 0 offen', tag='XF')
        self.vmem(f'buffer_load_dwordx4 {vr(XF+4,4)}, {a16}, {srd("X")}, 0 offen offset:1024', tag='XF')
        self.vmem(f'buffer_load_dwordx2 {vr(XA,2)}, v{vXs}, {srd("X")}, 0 offen', tag='XF')
        self.vmem(f'buffer_load_dwordx2 {vr(XA2,2)}, v{vXs}, {srd("X")}, 0 offen offset:64', tag='XF')
        for jj in range(16):
            self.vmem(f'buffer_load_dwordx4 {vr((WR if jj < 8 else WOR-32)+4*jj,4)}, v{vWQ}, {srd("WQ")}, {sQ} offen nt', tag='WQ' if jj >= 8 else 'WQ0')
            if jj < 15: p(f's_add_u32 {sQ}, {sQ}, {8192*25 if jj == 7 else 8192}')
            if jj == 7:
                p(f's_cmp_ge_u32 {sC}, 8'); p('s_cbranch_scc1 L_roleC')
                self.stC = (self.vm, dict(self.tags))
        p('s_branch L_roleA')
        p('L_eB:')
        for jj in range(o.n0B):
            p(f'buffer_load_dwordx4 {vr(WOR+4*jj,4)}, v{vWO}, {srd("WO")}, {sO} offen nt')
            p(f's_add_u32 {sO}, {sO}, {8*1280}')
        if not o.order.startswith('B'): p('s_branch L_roleB')

    def mv(self, n): self.p(f's_mov_b64 s[{SRD[n]}:{SRD[n]+1}], s[{KA+KOFF[n]//4}:{KA+KOFF[n]//4+1}]')

    def late_head(self):
        p = self.p
        for n in SRD:
            if n in ('X', 'WQ', 'WO'): continue
            p(f's_mov_b32 s{SRD[n]+2}, {H(SIZE[n])}'); p(f's_mov_b32 s{SRD[n]+3}, 0x00020000')
        for k in range(4): p(f'v_mov_b32 v{SN+k}, -1')
        p(f's_mul_i32 {sBX}, {sX}, {H(GB)}')
        p(f's_lshl_b32 {sT2}, {sX}, 2'); p(f's_add_u32 {sT2}, {sT2}, {sJ}')
        p(f's_lshl_b32 s{sKV}, {sT2}, 20')
        if self.o.il != 1:
            p(f's_lshl_b32 {sT2}, {sS}, 17'); p(f's_add_u32 s{sKV}, s{sKV}, {sT2}')
        if self.o.il:
            p(f's_lshl_b32 {sT2}, {sS}, 14'); p(f's_add_u32 s{sKV}, s{sKV}, {sT2}')
            p(f's_lshl_b32 {sT2}, {sW}, 12'); p(f's_add_u32 s{sKV}, s{sKV}, {sT2}')
            seq = [0, 1, 2, 3, 4, 5, 6, 7] if self.o.il < 3 else [0, 4, 2, 6, 1, 5, 3, 7]
            for k in range(1, 8): p(f's_xor_b32 s{sKV+k}, s{sKV}, {H(seq[k] << 17)}')
        elif self.o.alt:
            p(f's_and_b32 {sT2}, {sW}, 1'); p(f's_mul_i32 {sT2}, {sT2}, {H(0x3000 if self.o.altw else 0x1000)}'); p(f's_add_u32 s{sKV}, s{sKV}, {sT2}')
            p(f's_lshr_b32 {sT2}, {sW}, 1'); p(f's_lshl_b32 {sT2}, {sT2}, 14'); p(f's_add_u32 s{sKV}, s{sKV}, {sT2}')
            p(f's_xor_b32 s{sKV+1}, s{sKV}, 0x2000')
            for k in range(2, 8): p(f's_add_u32 s{sKV+k}, s{sKV+(k&1)}, {32768*(k>>1)}')
        else:
            p(f's_lshl_b32 {sT2}, {sW}, 12'); p(f's_add_u32 s{sKV}, s{sKV}, {sT2}')
            for k in range(1, 8): p(f's_add_u32 s{sKV+k}, s{sKV}, {16384*k}')
        p(f'v_bfe_u32 v{t1}, v0, 2, 2'); p(f'v_lshlrev_b32 {vK}, 8, v{t1}')
        p(f'v_lshl_add_u32 {vK}, v{vG}, 6, {vK}')
        p(f'v_and_b32 v{t1}, 3, v0'); p(f'v_lshl_add_u32 {vK}, v{t1}, 4, {vK}')
        p(f'v_and_b32 v{t0}, 1, v{vG}'); p(f'v_lshrrev_b32 v{vD}, 1, v{vG}'); p(f'v_lshl_add_u32 v{vD}, v{t0}, 1, v{vD}')
        p(f's_mov_b32 {sLo}, 0x05040100'); p(f's_mov_b32 {sHi}, 0x07060302')

    def common_addr(self):
        p = self.p
        p(f's_mov_b32 {sBud}, 100000')
        for b in range(4):
            p(f's_mov_b32 s{sMB+2*b}, {H(0x11111111 << b)}'); p(f's_mov_b32 s{sMB+2*b+1}, {H(0x11111111 << b)}')
        p(f's_mov_b32 s{sMF}, 0x01010101'); p(f's_mov_b32 s{sMF+1}, 0x01010101')
        p(f's_lshl_b32 {sT}, {sJ}, 3'); p(f's_add_u32 {sT}, {sT}, {sS}')
        p(f's_lshl_b32 {sT2}, {sT}, 8'); p(f's_add_u32 {sT2}, {sT2}, {sBX}'); p(f's_add_u32 {sT2}, {sT2}, {H(OP)}')
        if self.o.opc:
            p(f's_lshl_b32 {sT2}, {sJ}, 11'); p(f's_lshl_b32 {sT3}, {sS}, 4'); p(f's_add_u32 {sT2}, {sT2}, {sT3}')
            p(f's_add_u32 {sT2}, {sT2}, {sBX}'); p(f's_add_u32 {sT2}, {sT2}, {H(OP)}')
            p(f'v_lshrrev_b32 v{t0}, 2, v0'); p(f'v_lshlrev_b32 {vOW}, 7, v{t0}'); p(f'v_and_b32 v{t0}, 3, v0')
            p(f'v_lshl_add_u32 {vOW}, v{t0}, 2, {vOW}'); p(f'v_add_u32 {vOW}, {sT2}, {vOW}')
        else:
            p(f'v_lshlrev_b32 {vOW}, 2, v0'); p(f'v_add_u32 {vOW}, {sT2}, {vOW}')
        if self.o.osc:
            p(f's_lshl_b32 {sOS0}, {sJ}, 9'); p(f's_lshl_b32 {sT2}, {sS}, 3'); p(f's_add_u32 {sOS0}, {sOS0}, {sT2}')
        else: p(f's_lshl_b32 {sOS0}, {sT}, 3')
        p(f's_add_u32 {sOS0}, {sOS0}, {sBX}'); p(f's_add_u32 {sOS0}, {sOS0}, {H(OS)}')
        p(f's_mul_i32 {sT}, {sJ}, {4*QS}'); p(f's_mul_i32 {sT2}, {sW}, {QS}'); p(f's_add_u32 {sT}, {sT}, {sT2}'); p(f's_add_u32 {sT}, {sT}, {sBX}')
        p(f'v_add_u32 {vQR}, {sT}, {a16}')
        p(f'v_lshlrev_b32 v{t0}, 7, v{vG}'); p(f'v_sub_u32 {vQR3}, {vQR}, v{t0}'); p(f'v_add_u32 {vQR3}, {1024-128}, {vQR3}')
        p(f'v_mov_b32 v{t1}, {H(OOB)}')
        p(f'v_and_b32 v{t0}, 1, v{vR}'); p(f'v_mul_u32_u24 v{t0}, 48, v{t0}')
        p(f'v_lshrrev_b32 v{t2}, 1, v{vR}'); p(f'v_lshl_add_u32 v{t0}, v{t2}, 4, v{t0}')
        p(f's_lshl_b32 {sT}, {sW}, 9')
        p(f's_add_u32 {sT}, {sT}, {sBX}'); p(f's_add_u32 {sT}, {sT}, {H(ST)}'); p(f'v_add_u32 v{t0}, {sT}, v{t0}')
        p(f'v_cmp_gt_u32 vcc, 6, v{vR}'); p(f'v_cndmask_b32 v{t0}, v{t1}, v{t0}, vcc')
        p(f'v_cmp_gt_u32 vcc, 8, v{vR}'); p(f'v_cndmask_b32 {vQR3}, {vQR3}, v{t0}, vcc')
        p(f'v_mov_b32 {vZ}, 0')
        p(f'v_and_b32 v{t0}, 7, v0'); p(f'v_lshl_add_u32 v{t0}, v{t0}, 2, v{vD}'); p(f's_lshl_b32 {sT}, {sW}, 5'); p(f'v_add_u32 v{t0}, {sT}, v{t0}')
        p(f'v_lshlrev_b32 {lQW}, 1, v{t0}')
        p(f'v_lshrrev_b32 v{t0}, 2, v0'); p(f'v_lshlrev_b32 {lQR}, 4, v{t0}')
        p(f'v_lshlrev_b32 {lMW}, 3, v0'); p(f'v_add_u32 {lMW}, {L_J1}, {lMW}')
        p(f's_lshl_b32 {sT}, {sW}, 3'); p(f's_add_u32 {sT}, {sT}, {L_ML}'); p(f'v_writelane_b32 {lMW}, {sT}, 63')
        p(f'v_add_u32 v{t0}, {sW}, v0'); p(f'v_and_b32 v{t0}, 3, v{t0}'); p(f'v_lshlrev_b32 v{t0}, 3, v{t0}'); p(f'v_add_u32 {lMR}, {L_ML}, v{t0}')
        p(f's_lshl_b32 {sT}, {sW}, 9'); p(f's_add_u32 {sT}, {sT}, {L_O}'); p(f'v_lshlrev_b32 {lOW}, 2, v0'); p(f'v_add_u32 {lOW}, {sT}, {lOW}')
        p(f'v_lshlrev_b32 {lOR}, 3, v0'); p(f'v_add_u32 {lOR}, {L_O}, {lOR}')
        p(f'v_mov_b32 {vC}, {H(f2u(CSC))}')
        for k in range(24): p(f'v_mov_b32 v{BQ+k}, 0')
        p(f'v_lshlrev_b32 v{T+15}, 2, v0'); p(f'v_and_b32 v{T+14}, 28, v{T+15}')

    def addrB(self):
        p = self.p
        sHF, sCB = sL, sLM
        p(f's_and_b32 {sHF}, {sIB}, 1'); p(f's_lshr_b32 {sCB}, {sIB}, 1')
        p(f'v_and_b32 v{t0}, 1, v{vG}'); p(f'v_lshlrev_b32 {vXW}, 11, v{t0}')
        p(f'v_and_b32 v{t0}, 7, v0'); p(f'v_lshl_add_u32 {vXW}, v{t0}, 4, {vXW}')
        p(f's_lshl_b32 {sT}, {sCB}, 12'); p(f's_lshl_b32 {sT2}, {sX}, 8'); p(f's_add_u32 {sT}, {sT}, {sT2}')
        p(f's_lshl_b32 {sT2}, {sHF}, 7'); p(f's_add_u32 {sT}, {sT}, {sT2}'); p(f's_add_u32 {sT}, {sT}, {H(XAo)}')
        p(f'v_add_u32 {vXW}, {sT}, {vXW}')
        if self.o.acc:
            p(f'v_lshrrev_b32 {vXW}, 5, v0'); p(f'v_lshlrev_b32 {vXW}, 11, {vXW}')
            p(f'v_bfe_u32 v{t1}, v0, 3, 2'); p(f'v_lshl_add_u32 {vXW}, v{t1}, 8, {vXW}')
            p(f'v_lshl_add_u32 {vXW}, v{t0}, 3, {vXW}')
            p(f's_lshl_b32 {sT}, {sCB}, 12'); p(f's_lshl_b32 {sT2}, {sHF}, 10'); p(f's_add_u32 {sT}, {sT}, {sT2}'); p(f's_add_u32 {sT}, {sT}, {H(XAo)}')
            p(f'v_add_u32 {vXW}, {sT}, {vXW}')
        p(f's_lshr_b32 {sT3}, {sW}, 1'); p(f's_lshl_b32 {sT}, {sHF}, 1'); p(f's_add_u32 {sT3}, {sT3}, {sT}')
        oc = 3 if self.o.opc else 0
        p(f'v_lshlrev_b32 {vOR}, {4 if oc else 8}, v{t0}')
        p(f'v_lshrrev_b32 v{t2}, 3, v{vR}'); p(f'v_lshl_add_u32 {vOR}, v{t2}, {6+oc}, {vOR}')
        p(f'v_lshl_add_u32 {vOR}, v{vG}, {4+oc}, {vOR}')
        p(f's_lshl_b32 {sT}, {sT3}, 11'); p(f's_and_b32 {sT2}, {sW}, 1'); p(f's_lshl_b32 {sT2}, {sT2}, {7+oc}'); p(f's_add_u32 {sT}, {sT}, {sT2}')
        p(f's_add_u32 {sT}, {sT}, {sBX}'); p(f's_add_u32 {sT}, {sT}, {H(OP)}'); p(f'v_add_u32 {vOR}, {sT}, {vOR}')
        p(f'v_lshl_add_u32 v{t1}, v{vG}, 2, v{vR}'); p(f'v_and_b32 v{t1}, 7, v{t1}'); p(f'v_lshlrev_b32 v{t1}, 3, v{t1}')
        if self.o.osc:
            p(f's_lshl_b32 {sT}, {sT3}, 9'); p(f's_and_b32 {sT2}, {sW}, 1'); p(f's_lshl_b32 {sT2}, {sT2}, 8'); p(f's_add_u32 {sT}, {sT}, {sT2}')
            p(f'v_lshl_add_u32 v{t1}, v{t2}, 31, v{t1}')
        else: p(f's_lshl_b32 {sT}, {sT3}, 6')
        p(f's_add_u32 {sT}, {sT}, {sBX}'); p(f's_add_u32 {sT}, {sT}, {H(OS)}'); p(f'v_add_u32 {vOSR}, {sT}, v{t1}')
        p(f's_lshl_b32 {sT}, {sHF}, 2'); p(f's_add_u32 {sT}, {sT}, {sW}'); p(f's_mul_i32 {sT}, {sT}, {QS}')
        p(f's_add_u32 {sT}, {sT}, {sBX}'); p(f's_add_u32 {sT}, {sT}, {H(HP)}'); p(f'v_add_u32 {vHR}, {sT}, {a16}')
        p(f's_cmp_eq_u32 {sW}, 3'); p(f's_cselect_b32 {sT3}, 6, 7')
        p(f'v_mov_b32 v{t1}, {H(OOB)}')
        p(f'v_cmp_gt_u32 vcc, {sT3}, v{t0}'); p(f'v_cndmask_b32 {vHR}, v{t1}, {vHR}, vcc')
        p(f'v_lshlrev_b32 v{T}, 7, v{vG}'); p(f'v_sub_u32 {vHR3}, {vHR}, v{T}'); p(f'v_add_u32 {vHR3}, {1024-128}, {vHR3}')
        p(f'v_add_u32 v{T}, 256, {vQR3}')
        p(f'v_cmp_gt_u32 vcc, 8, v{vR}'); p(f'v_cndmask_b32 {vHR3}, {vHR3}, v{T}, vcc')
        p(f'v_and_b32 v{T}, 1, v0'); p(f'v_lshlrev_b32 v{T}, 4, v{T}'); p(f'v_mov_b32 v{t1}, 0xffff'); p(f'v_lshlrev_b32 v{t1}, v{T}, v{t1}')
        p(f'v_cmp_gt_u32 vcc, {sT3}, v{vR}'); p(f'v_cndmask_b32 v{t1}, 0, v{t1}, vcc')
        p(f'v_bfe_u32 v{T}, v0, 1, 2')
        for k in range(4):
            p(f'v_cmp_eq_u32 vcc, {k}, v{T}'); p(f'v_cndmask_b32 v{MK+k}, 0, v{t1}, vcc')
        p(f's_lshl_b32 {sT}, {sW}, 9'); p(f's_add_u32 {sT}, {sT}, {L_R}')
        p(f'v_and_b32 v{T}, 1, v{vG}')
        p(f'v_lshlrev_b32 {lRR}, 8, v{t2}'); p(f'v_lshl_add_u32 {lRR}, v{t0}, 4, {lRR}'); p(f'v_lshl_add_u32 {lRR}, v{T}, 7, {lRR}')
        p(f'v_add_u32 {lRR}, {L_R}, {lRR}')
        if self.o.acc: p(f'v_lshlrev_b32 {lRR}, 2, v0'); p(f'v_add_u32 {lRR}, {L_R}, {lRR}')
        p(f'v_lshlrev_b32 {lRW}, 8, v{t2}'); p(f'v_lshl_add_u32 {lRW}, v{t0}, 5, {lRW}'); p(f'v_lshl_add_u32 {lRW}, v{T}, 4, {lRW}')
        p(f'v_add_u32 {lRW}, {sT}, {lRW}')
        p(f'v_add_u32 v{t1}, {L_J2}, {a16}')
        p(f'v_lshrrev_b32 v{T}, 1, v{vG}'); p(f'v_cmp_eq_u32 vcc, v{t2}, v{T}')
        p(f'v_cndmask_b32 {lRW}, v{t1}, {lRW}, vcc')
        p(f'v_add_u32 {lRW2}, {sT}, {a16}')
        p(f'v_cmp_gt_u32 vcc, 32, v0'); p(f'v_cndmask_b32 {lRW2}, v{t1}, {lRW2}, vcc')
        p(f'v_lshl_add_u32 v{t0}, v{t0}, 2, v{vD}'); p(f'v_lshlrev_b32 {aB1v}, 1, v{t0}')
        p(f'v_mul_u32_u24 {aW2v}, 1280, v{vD}'); p(f'v_lshl_add_u32 {aW2v}, v{vR}, 3, {aW2v}')

    def addrA(self):
        p = self.p
        p(f's_lshl_b32 {sT}, {sW}, 9'); p(f's_add_u32 {sT}, {sT}, {sBX}'); p(f's_add_u32 {sT}, {sT}, {H(ST)}')
        p(f's_lshl_b32 {sT2}, {sIA}, 2'); p(f's_add_u32 {sT3}, {sT}, {sT2}')
        p(f'v_mov_b32 {vSW}, {sT3}'); p(f's_add_u32 {sT3}, {sT3}, 48'); p(f'v_writelane_b32 {vSW}, {sT3}, 0')
        if self.NH == 2: p(f's_lshr_b32 {sH}, {sW}, 1'); p(f's_lshl_b32 {sT}, {sIA}, 1'); p(f's_add_u32 {sH}, {sH}, {sT}')
        else: p(f's_add_u32 {sH}, {sIA}, 8')
        p(f'v_bfe_u32 v{t0}, v0, 3, 1'); p(f'v_lshlrev_b32 {vXR}, 10, v{t0}')
        p(f'v_lshl_add_u32 {vXR}, v{vG}, 8, {vXR}')
        p(f'v_and_b32 v{t0}, 7, v0'); p(f'v_lshl_add_u32 {vXR}, v{t0}, 3, {vXR}')
        p(f's_lshl_b32 {sT}, {sH}, 11'); p(f's_add_u32 {sT}, {sT}, {H(XAo)}'); p(f'v_add_u32 {vXR}, {sT}, {vXR}')
        for k in range(4): p(f'v_mov_b32 v{XB+k}, 0x3f803f80')
        p(f'v_mul_u32_u24 {aW1v}, {8*3456}, v{vG}'); p(f'v_lshl_add_u32 {aW1v}, v{vR}, 3, {aW1v}')

    def prologue(self, A, B, name):
        p = self.p
        o = self.o
        vm0, tags0 = self.vm, dict(self.tags)
        self.vfree = False
        p(f'L_role{name}:')
        sSX, sSXX = sL, sLM
        D = {'A': o.dA, 'C': o.dC, 'B': o.dB}[name]
        vWQ, vWO, vXs = T + 12, T + 13, T + 14
        sQ, sO, sCL = sMc, sOS, sMode
        mv = self.mv
        if not A: self.vm, self.tags = 0, {}
        NH = self.NH = 1 if name == 'C' else 2
        if name == 'C': self.vm, self.tags = self.stC[0], dict(self.stC[1])
        if not o.hk: self.late_head()
        if A:
            p(f'v_lshrrev_b32 v{t0}, 2, v{vR}'); p(f'v_mul_u32_u24 {vQW}, {QS}, v{t0}')
            p(f'v_and_b32 v{t0}, 3, v{vR}'); p(f'v_lshl_add_u32 {vQW}, v{t0}, 5, {vQW}')
            p(f'v_lshl_add_u32 {vQW}, v{vG}, 4, {vQW}')
            p(f's_mul_i32 {sT}, {sW}, {4*QS}'); p(f's_lshl_b32 {sT2}, {sIA}, 7'); p(f's_add_u32 {sT2}, {sT2}, {sBX}'); p(f's_add_u32 {sT}, {sT}, {sT2}')
            p(f'v_add_u32 {vQW}, {sT}, {vQW}')
            p('s_mov_b32 exec_hi, 0')
            self.vmem(f'buffer_store_dwordx4 {vr(SN,4)}, {vQW}, {srd("WS")}, 0 offen sc1', tag='CLR')
            p('s_mov_b64 exec, -1')
            p(f's_lshl_b32 {sT}, {sW}, 4'); p(f'v_add_u32 v{t0}, {sT}, v{vR}')
            p(f'v_subrev_u32 v{t1}, 27, v{t0}')
            p(f'v_cmp_le_u32 vcc, 27, v{t0}'); p(f'v_cndmask_b32 v{t1}, v{t0}, v{t1}, vcc')
            p(f'v_cndmask_b32 v{t2}, 0, 4, vcc')
            p(f'v_mul_u32_u24 {vHW}, 37, v{t1}'); p(f'v_lshrrev_b32 {vHW}, 8, {vHW}')
            p(f'v_add_u32 v{t2}, v{t2}, {vHW}')
            p(f'v_mul_u32_u24 {vHW}, 7, {vHW}'); p(f'v_sub_u32 v{t1}, v{t1}, {vHW}')
            p(f'v_mul_u32_u24 {vHW}, {QS}, v{t2}'); p(f'v_lshl_add_u32 {vHW}, v{t1}, 4, {vHW}')
            p(f's_add_u32 {sT2}, {sT2}, {H(HP)}'); p(f'v_add_u32 {vHW}, {sT2}, {vHW}')
            p(f'v_mov_b32 v{t1}, {H(OOB)}')
            p(f'v_cmp_gt_u32 vcc, 54, v{t0}'); p(f'v_cndmask_b32 {vHW}, v{t1}, {vHW}, vcc')
            p(f's_mov_b32 {sT2}, {H(CSL)}')
            p('s_mov_b64 exec, 0xffff')
            self.vmem(f'buffer_store_dwordx4 {vr(SN,4)}, {vHW}, {srd("WS")}, {sT2} offen sc1', tag='CLR')
            p('s_mov_b64 exec, -1')
        else:
            p(f's_sub_u32 {sT}, {sC}, 20'); p(f's_lshl_b32 {sT}, {sT}, 2'); p(f's_add_u32 {sT3}, {sT}, {sW}')
            p(f's_lshl_b32 {sT}, {sT3}, 10')
            p(f's_add_u32 {sCL}, {sT}, {sBX}'); p(f's_add_u32 {sCL}, {sCL}, {H(OP)}')
            p(f's_mul_i32 {sT2}, {sX}, 5120'); p(f's_add_u32 {sT}, {sT}, {sT2}'); p(f's_add_u32 {sT}, {sT}, {H(XAo - NE * 1024)}')
            p(f's_cmp_lt_u32 {sT3}, {NE}'); p(f's_cselect_b32 {sCL}, {sCL}, {sT}')
            if o.acc:
                p(f's_cselect_b32 {sT}, -1, 0'); p(f's_cselect_b32 {sT2}, -1, {H(MHI - 0x08000000)}')
                for k in range(4): p(f'v_mov_b32 v{SN+k}, {sT2 if k & 1 else sT}')
            p(f's_cmp_lt_u32 {sT3}, {NE+5}'); p(f's_cselect_b32 {sCL}, {sCL}, {H(OOB)}')
            p(f'v_add_u32 v{t0}, {sCL}, {a16}')
            self.vmem(f'buffer_store_dwordx4 {vr(SN,4)}, v{t0}, {srd("WS")}, 0 offen sc1', tag='CLR')
        mv('K'); mv('V')
        p(f's_getreg_b32 {sFlag}, hwreg(HW_REG_XCC_ID)'); p(f's_and_b32 {sFlag}, {sFlag}, 15'); p(f's_or_b32 {sFlag}, {sFlag}, 0x80')
        WOl = []
        if B:
            if o.wolate: p(f'v_add_u32 v{vWO}, {sO}, v{vWO}')
            for jj in range(8):
                def f(jj=jj):
                    if o.wolate:
                        if jj: p(f's_mov_b32 {sWB}, {8*1280*jj}')
                        self.vmem(f'buffer_load_dwordx4 {ar(aWO+4*jj,4)}, v{vWO}, {srd("WO")}, {sWB if jj else 0} offen nt', tag='WO')
                        return
                    self.vmem(f'buffer_load_dwordx4 {vr(WOR+4*jj,4)}, v{vWO}, {srd("WO")}, {sO} offen nt', tag='WO')
                    if jj < 7: p(f's_add_u32 {sO}, {sO}, {8*1280}')
                WOl.append(('WO', f))
        Wl = []
        if A:
            for jj in range(8 * NH):
                def f(jj=jj):
                    if jj == 0:
                        p(f's_mul_i32 {sWA}, {sIA}, {64*3456}' if NH == 2 else f's_mul_i32 {sWA}, {sH}, {32*3456}'); p(f's_mul_i32 {sWB}, {sX}, 432'); p(f's_add_u32 {sWA}, {sWA}, {sWB}')
                        p(f's_lshl_b32 {sWB}, {sW}, 7'); p(f's_add_u32 {sWA}, {sWA}, {sWB}')
                    else: p(f's_add_u32 {sWA}, {sWA}, {3456*25 if jj == 8 else 3456}')
                    self.vmem(f'buffer_load_dwordx2 {vr(ACC+2*jj,2) if o.wv else ar(aW1+2*jj,2)}, {aW1v}, {srd("W1")}, {sWA} offen {o.w1nt}', tag='W1')
                Wl.append(('W', f))
        if B:
            for jj in range(8):
                def f(jj=jj):
                    if jj == 0:
                        p(f's_mul_i32 {sWA}, {sX}, 216'); p(f's_and_b32 {sWB}, {sIB}, 1'); p(f's_mul_i32 {sWB}, {sWB}, 108'); p(f's_add_u32 {sWA}, {sWA}, {sWB}')
                        p(f's_mul_i32 {sWB}, {sW}, 28'); p(f's_add_u32 {sWA}, {sWA}, {sWB}')
                        p(f's_lshl_b32 {sWB}, {sWA}, 1')
                        self.vmem(f'buffer_load_ushort a{aB1}, {aB1v}, {srd("B1")}, {sWB} offen', tag='B1')
                        p(f's_mul_i32 {sWA}, {sWA}, 1280'); p(f's_lshr_b32 {sWB}, {sIB}, 1'); p(f's_lshl_b32 {sWB}, {sWB}, 7'); p(f's_add_u32 {sWA}, {sWA}, {sWB}')
                    else: p(f's_add_u32 {sWA}, {sWA}, {4*1280}')
                    self.vmem(f'buffer_load_dwordx2 {vr(ACC+12+2*jj,2) if o.wv else ar(aW2+2*jj,2)}, {aW2v}, {srd("W2")}, {sWA} offen {o.w2nt}', tag='W2')
                Wl.append(('W', f))
        KV = [(f'K{m}', (lambda m=m: self.kload(m))) for m in range(32)] + [(f'V{m}', (lambda m=m: self.vload(m))) for m in range(32)]
        wi = o.wposAB if A else o.wposB
        if o.wolate:
            st = list(KV)
            for jj, it in enumerate(WOl):
                pos = min(len(st), wi + jj * (o.wolate))
                st.insert(pos, it)
            if not A and o.hk:
                st = st[o.n0B:]
                for mb in range(o.n0B): self.tags[f'K{mb}'] = 0
        else:
            if not A: WOl = WOl[o.n0B:]
            st = KV[:wi] + WOl + KV[wi:]
        FL = vR
        i2 = [k for k, f in st].index(o.fpos2)
        st.insert(i2, ('FL2', lambda: self.vmem(f'buffer_load_dword v{FL}, v{T+15}, {srd("DBG")}, 0 offen sc1', tag='FL2')))
        if A and not B and o.w2pf:
            def pf():
                Ls = p.label('Lw2pf')
                p(f's_cmp_ge_u32 {sC}, 9'); p(f's_cbranch_scc1 {Ls}')
                p(f's_lshl_b32 {sWA}, {sC}, 2'); p(f's_add_u32 {sWA}, {sWA}, {sW}'); p(f's_lshl_b32 {sWA}, {sWA}, 13')
                p(f's_mul_i32 {sWB}, {sX}, {216*1280}'); p(f's_add_u32 {sWA}, {sWA}, {sWB}')
                p(f'v_lshlrev_b32 {vXW}, 7, v0')
                self.vmem(f'buffer_load_dword a{aCQ+11}, {vXW}, {srd("W2")}, {sWA} offen', optional=True)
                p(f'{Ls}:')
            keys = [k for k, f in st]
            st.insert(keys.index(o.w2pf) + 1, ('PF', pf))
        if A and B and o.wabpos:
            assert o.w2pos & 1
            i3 = [k for k, f in st].index(o.wabpos)
            ins = Wl if not o.wab2 else Wl[8:]
            for n_, it in enumerate(ins): st.insert(i3 + n_ * (1 + o.wabsp), it)
            Wl = [] if not o.wab2 else Wl[:8]
        W1late = []
        if o.wv: assert o.w1n == 0 and not o.w1at and not o.w2at and not o.w2pos
        if A:
            if o.w1at:
                i3 = [k for k, f in st].index(o.w1at)
                for n_, it in enumerate(Wl[:o.w1e]): st.insert(min(len(st), i3 + n_ * (1 + o.w2sp)), it)
                Wl = Wl[o.w1e:]
            st += Wl[:o.w1n]; W1late = Wl[o.w1n:]; Wl = []
        if not A and not B and o.cpf:
            PF = []
            for k in range(10 if o.cpfm & 1 else 0):
                def f(k=k):
                    if k == 0:
                        p(f'v_lshrrev_b32 {vXW}, 3, v0'); p(f'v_mul_u32_u24 {vXW}, 3456, {vXW}'); p(f'v_and_b32 {vXR}, 7, v0')
                        p(f'v_mul_u32_u24 {vXR}, 60, {vXR}'); p(f'v_add_u32 {vXW}, {vXW}, {vXR}')
                        p(f's_sub_u32 {sWA}, {sC}, 10'); p(f's_lshl_b32 {sWA}, {sWA}, 2'); p(f's_add_u32 {sWA}, {sWA}, {sW}')
                        p(f's_mul_i32 {sWA}, {sWA}, {8*3456}'); p(f's_mul_i32 {sWB}, {sX}, 432'); p(f's_add_u32 {sWA}, {sWA}, {sWB}')
                    else: p(f's_add_u32 {sWA}, {sWA}, {64*3456}')
                    self.vmem(f'buffer_load_dword a{aWQ+k}, {vXW}, {srd("W1")}, {sWA} offen')
                PF.append(('PF', f))
            sd = o.cpfs
            n2 = -(-276480 // (64 * sd * 8))
            for k in range(n2 if o.cpfm & 2 else 0):
                def f(k=k):
                    if k == 0:
                        p(f'v_mul_u32_u24 {vXR}, {sd}, v0')
                        p(f's_mul_i32 {sWB}, {sX}, 276480'); p(f'v_add_u32 {vXR}, {sWB}, {vXR}')
                        p(f's_sub_u32 {sWB}, {sC}, 10'); p(f's_lshl_b32 {sWB}, {sWB}, 2'); p(f's_add_u32 {sWB}, {sWB}, {sW}')
                        p(f's_mul_i32 {sWB}, {sWB}, {64*sd}')
                    else: p(f's_add_u32 {sWB}, {sWB}, {64*sd*8}')
                    if k == n2 - 1: p(f's_min_u32 {sWB}, {sWB}, {276480 - 64*sd}')
                    self.vmem(f'buffer_load_dword a{aWQ+16+k}, {vXR}, {srd("W2")}, {sWB} offen')
                PF.append(('PF', f))
            i3 = [k for k, f in st].index(o.cpf)
            for n_, it in enumerate(PF): st.insert(min(len(st), i3 + n_ * (1 + o.cpfsp)), it)
        if B and o.w2at:
            i3 = [k for k, f in st].index(o.w2at)
            for n_, it in enumerate(Wl[:o.w2n]): st.insert(min(len(st), i3 + n_ * (1 + o.w2sp)), it)
            Wl = Wl[o.w2n:]
        if B and ((o.w2pos & 1) if A else (o.w2pos & 2)): st += Wl; Wl = []
        def adv(n, thr=True):
            while n > 0 and st:
                k, f = st.pop(0); f(); n -= 1
                if o.exit10 and k in KST: self.stamp(12 + KST.index(k))
                if thr and D + thr - 1 < 63: p(f's_waitcnt vmcnt({D + (thr - 1)})')
        def until(key, thr=True):
            keys = [k for k, f in st]
            if key in keys: adv(keys.index(key), thr)
        def flag():
            p(f's_lshl_b32 {sT}, {sX}, 5'); p(f's_add_u32 {sT}, {sT}, {sC}'); p(f's_lshl_b32 {sT2}, {sW}, 8'); p(f's_add_u32 {sT}, {sT}, {sT2}')
            p(f'v_mov_b32 v{t0}, {sFlag}'); p(f'v_mov_b32 v{t1}, {sT}')
            self.wait('CLR')
            p('s_waitcnt lgkmcnt(0)')
            if o.acc: p('s_mov_b32 s0, 0'); p(f's_mov_b32 s1, {H(MHI)}')
            p('s_barrier')
            p('s_mov_b64 exec, 1')
            self.vmem(f'buffer_store_byte v{t0}, v{t1}, {srd("DBG")}, 0 offen sc1', tag='FLAG')
            p('s_mov_b64 exec, -1')
            self.stamp(1)
        adv(o.n1C if name == 'C' else o.n1A if A else o.n1B, False)
        mv('W1'); mv('B1')
        if o.stamps:
            p(f'v_mov_b32 {vSTAMP}, 0')
            p(f'v_writelane_b32 {vSTAMP}, s96, 0')
            p(f'v_writelane_b32 {vSTAMP}, s98, 34')
        for n in ('DBG', 'B2', 'W2', 'OUT'):
            p(f's_load_dwordx2 s[{SRD[n]}:{SRD[n]+1}], s[0:1], {KOFF[n]}')
        if A:
            self.addrA()
            self.wait('XF')
            self.stamp(8)
            p(f'v_mov_b32 v{t0}, 0'); p(f'v_mov_b32 v{t1}, 0'); p(f'v_mov_b32 v{t2}, 0x3f803f80')
            for k in range(8):
                p(f'v_dot2_f32_bf16 v{t0}, v{XF+k}, v{t2}, v{t0}')
                p(f'v_dot2_f32_bf16 v{t1}, v{XF+k}, v{XF+k}, v{t1}')
            for k in range(4*NH-4): p(f'v_lshlrev_b32 v{T+4+k}, 16, v{XA2+k//2}' if k % 2 == 0 else f'v_and_b32 v{T+4+k}, 0xffff0000, v{XA2+k//2}')
            for s in self.unpack_xr(False): p(s)
            p(f'v_permlane32_swap_b32 v{t0}, v{t1}')
            p(f'v_add_f32 v{t0}, v{t0}, v{t1}')
            for n in (1, 2, 4, 8): p(f'v_add_f32_dpp v{t0}, v{t0}, v{t0} row_ror:{n} {DF}')
            p(f'v_add_f32_dpp v{t0}, v{t0}, v{t0} row_bcast:15 row_mask:0xa bank_mask:0xf')
            p(f'v_mul_f32 v{t0}, {H(f2u(1.0 / 640))}, v{t0}')
            p(f'v_readlane_b32 {sSX}, v{t0}, 31'); p(f'v_readlane_b32 {sSXX}, v{t0}, 63')
            p(f'v_mov_b32 v{t0}, {sSX}'); p(f'v_mov_b32 v{t1}, {sSXX}')
            p(f'v_fma_f32 v{t1}, -v{t0}, v{t0}, v{t1}'); p(f'v_max_f32 v{t1}, 0, v{t1}')
            p(f'v_add_f32 v{t1}, {H(f2u(EPS))}, v{t1}'); p(f'v_rsq_f32 v{t1}, v{t1}')
            p(f'v_mul_f32 v{t0}, v{t0}, v{t1}')
            for k in range(4): p(f'v_fma_f32 v{T+k}, v{XR+k}, v{t1}, -v{t0}')
            p(f'v_cvt_pk_bf16_f32 v{XA}, v{T}, v{T+1}'); p(f'v_cvt_pk_bf16_f32 v{XA+1}, v{T+2}, v{T+3}')
            self.build_xa()
            if NH == 2:
                for k in range(4): p(f'v_fma_f32 v{T+4+k}, v{T+4+k}, v{t1}, -v{t0}')
                p(f'v_cvt_pk_bf16_f32 v{XA2}, v{T+4}, v{T+5}'); p(f'v_cvt_pk_bf16_f32 v{XA2+1}, v{T+6}, v{T+7}')
                self.build_xa(XA2)
            self.lgkm(0)
            p(f's_lshl_b32 {sT}, {sH}, 6')
            if o.acc:
                p(f'v_and_b32 v{t0}, 7, v0'); p(f'v_and_b32 v{t1}, 0x30, v0'); p(f'v_lshl_add_u32 v{t0}, v{t0}, 1, v{t1}')
                self.vmem(f'buffer_load_ushort a{aB2}, v{t0}, {srd("B2")}, {sT} offen', tag='B2')
                self.vmem(f'buffer_load_ushort a{aB2+1}, v{t0}, {srd("X")}, {sT} offen', tag='B2')
            else: self.vmem(f'buffer_load_dwordx2 {ar(aB2,2)}, v{vXs}, {srd("B2")}, {sT} offen', tag='B2')
            adv(o.n2 if NH == 2 else o.n2C, False)
            if o.stamps < 2: self.stamp(29)
            self.wait('WQ0')
            self.stamp(9)
            def pre(h, d):
                dp, hi = d >> 1, d & 1
                wt, wr = (WT2, WOR) if h else (WT, WR)
                return [f'v_perm_b32 v{wt+4*d+tau}, v{wr+(2*tau+1)*4+dp}, v{wr+(2*tau)*4+dp}, {sHi if hi else sLo}' for tau in range(4)]
            self.qp((XA, XA2), '0', 'sc1', False, True, wv=(WT, WT2), pre=pre, prest=lambda: self.wait('CLR'), mid=lambda: self.wait('WQ'))
            self.stamp(2)
            flag()
            adv(2, False)
            p(f's_mov_b32 {sT2}, {H(CSL)}')
            if 'cq' not in o.skip: self.qp((XB, XB), sT2, 'sc1', False, True, wv=(WT, WT2), tag='CQ')
            adv(1, True)
            for k in range(32): p(f'v_accvgpr_write_b32 a{aWQ+k}, v{WT+k}')
            adv(1, True)
            if NH == 2:
                for k in range(32): p(f'v_accvgpr_write_b32 a{aWQ+32+k}, v{WT2+k}')
                adv(1, True)
            self.common_addr()
            self.wait('B2')
            if o.acc:
                p(f'v_mov_b32 v{RM}, 0'); p(f'v_mov_b32 v{RM+1}, {H(MHI | 0x80000000)}')
                p(f'v_accvgpr_read_b32 v{t1}, a{aB2+1}')
                for s_ in self.rm_ops(t1, False): p(s_)
            else:
                p(f'v_accvgpr_read_b32 v{t0}, a{aB2}'); p(f'v_accvgpr_read_b32 v{t1}, a{aB2+1}')
                p(f'v_lshlrev_b32 v{B2}, 16, v{t0}'); p(f'v_and_b32 v{B2+1}, 0xffff0000, v{t0}')
                p(f'v_lshlrev_b32 v{B2+2}, 16, v{t1}'); p(f'v_and_b32 v{B2+3}, 0xffff0000, v{t1}')
            adv(2, True)
            if B:
                self.addrB()
        else:
            self.common_addr()
            adv(1, True)
            if B: self.addrB()
            adv(o.n2B, True)
            flag()
        until(o.fposC if name == 'C' else o.fposA if A else o.fposB)
        self.stamp(3)
        p(f's_lshl_b32 {sT3}, {sX}, 5')
        self.vmem(f'buffer_load_dword v{FL}, v{T+14}, {srd("DBG")}, {sT3} offen sc1', tag='FL')
        nF = D + o.dFo
        if B and not o.wolate:
            assert not any(k == 'WO' for k, f in st)
            adv(2, True); nF -= 2
            self.wait('WO')
            self.transpose(aWO, 4, WOR, T, rd=False)
        self.vfree = True
        adv(min(nF, nF - o.dFo - 1), True)
        adv(max(0, o.dFo + 1), False)
        p(f's_mul_i32 {sFlag}, {sFlag}, 0x01010101')
        self.wait('FL')
        Lfp, Lfok, Lfc = p.label('Lfp'), p.label('Lfok'), p.label('Lfc')
        self.flush()
        p(f'{Lfc}:')
        p(f'v_and_b32 v{t0}, 0x80808080, v{FL}')
        p(f'v_cmp_ne_u32 vcc, 0x80808080, v{t0}')
        Lr = self.retry(Lfp, Lfok)
        self.ool.append([f'{Lfp}:', f'buffer_load_dword v{FL}, v{T+14}, {srd("DBG")}, {sT3} offen sc1',
                         's_waitcnt vmcnt(0)', f's_branch {Lfc}'])
        p(f's_cbranch_vccnz {Lr}')
        p(f'{Lfok}:')
        p(f'v_cmp_ne_u32 vcc, {sFlag}, v{FL}')
        p(f's_or_b32 {sMode}, vcc_lo, vcc_hi')
        if o.forceslow: p(f's_mov_b32 {sMode}, 1')
        adv(o.dG, True)
        for s_ in self.g3_list(ACC, vQR, vQR3, '0'):
            if 'q0' in o.skip: s_ = s_.replace(vQR3 + ',', 'v1,').replace(vQR + ',', 'v1,').replace(srd('WS'), srd('K')).replace(' sc1', '')
            self.vmem(s_, tag='Q0')
        self.stamp(4)
        adv(min(D + o.dQo, D - 1), 3)
        adv(max(0, o.dQo + 1), False)
        u, sc = T, T + 3
        self.wait('Q0')
        self.flush()
        Lq, Lqp = p.label('Lq'), p.label('Lqp')
        p(f'{Lq}:')
        for s_ in self.g3_sum(ACC, f'v{u}'): p(s_)
        self.ool.append([f'{Lqp}:'] + self.g3_list(ACC, vQR, vQR3, '0') + ['s_waitcnt vmcnt(0)', f's_branch {Lq}'])
        adv(o.dX, False)
        self.q_finish(u, None, None, sc, Lqp, ln=False)
        self.stamp(5)
        self.flush()
        until(o.qkpos)
        self.wait('K31')
        qi = [int(c) for c in o.qkiss]
        self.qk_softmax(lambda n: adv(qi[n], False))
        self.stamp(6)
        adv(qi[5], False)
        for op in self.ml_ops('mode'): self.run_op(op)
        if B:
            for k in range(4): p(f'v_mov_b32 v{SN+k}, -1')
            p(f's_lshl_b32 {sT}, {sC}, 2'); p(f's_add_u32 {sT}, {sT}, {sW}')
            p(f's_sub_u32 {sT}, {sT}, 48')
            assert NG + 15 <= 80
            Lnc, Lg, Lsl = p.label('Lnc'), p.label('Lg'), p.label('Lsl')
            p(f's_lshl_b32 {sT2}, {sT}, 10')
            if B:
                p(f's_cmp_ge_u32 {sT}, {NG}'); p(f's_cbranch_scc1 {Lg}')
            p(f's_add_u32 {sT2}, {sT2}, {sBX}'); p(f's_add_u32 {sT2}, {sT2}, {H(LSTR)}')
            if o.clrfast:
                p(f's_cmp_lg_u32 {sMode}, 0'); p(f's_cbranch_scc1 {Lsl}')
                self.vmem(f'buffer_store_dwordx4 {vr(SN,4)}, {a16}, {srd("WS")}, {sT2} offen', optional=True)
                p(f's_branch {Lnc}')
            elif B: p(f's_branch {Lsl}')
            if B:
                p(f'{Lg}:')
                p(f's_cmp_ge_u32 {sT}, {NG+15}'); p(f's_cbranch_scc1 {Lnc}')
                if o.acc:
                    for k in range(4): p(f'v_mov_b32 v{SN+k}, {H(MHI - 0x08000000) if k & 1 else 0}')
                p(f's_mul_i32 {sT3}, {sX}, {15*1024}'); p(f's_add_u32 {sT2}, {sT2}, {sT3}'); p(f's_add_u32 {sT2}, {sT2}, {H(XMo - NG*1024)}')
                p(f's_add_u32 {sT3}, {sT2}, {H(XAo)}')
                p(f's_cmp_ge_u32 {sT2}, {H(LSTR)}'); p(f's_cselect_b32 {sT2}, {sT3}, {sT2}')
            p(f'{Lsl}:')
            self.vmem(f'buffer_store_dwordx4 {vr(SN,4)}, {a16}, {srd("WS")}, {sT2} offen sc1', optional=True, tag='CLR2')
            p(f'{Lnc}:')
        if o.pf1: self.fwd = True; self.pfcode(f'L_loop{name}_fast', f'L_loop{name}_slow')
        self.stamp(7)
        self.flush()
        def hook(pp):
            keys = [k for k, f in st]
            need = f'V{2*pp+1}'
            if need in keys: adv(keys.index(need) + 1, False)
            behind = self.vm - self.tags[need]
            Dp = D + (o.dPV if pp >= o.pPV else 0)
            if o.dPV and o.kvonly:
                keys = [k for k, f in st]
                nkv = max([i + 1 for i, k in enumerate(keys) if k[0] == 'V'] + [0])
                n = max(min(Dp - behind, nkv), D - behind)
                if n > 0: adv(n, False)
            elif behind < Dp: adv(Dp - behind, False)
        hooks = {pp: (lambda pp=pp: hook(pp)) for pp in range(16)}
        self.pv([], True, hooks=hooks)
        assert 'FL2' in self.tags
        if B: self.wait('CLR2')
        if o.exit10:
            self.stamp(10); self.finish()
            for code in self.ool:
                for s in code: p(s)
            self.ool = []
            self.vm, self.tags = vm0, tags0
            return
        self.rest = list(st) + W1late; self.rest2 = Wl
        self.set_layer(0)
        self.flush()
        p(f's_cmp_eq_u32 {sMode}, 0'); p(f's_cbranch_scc1 L_loop{name}_fast')
        p(f's_branch L_loop{name}_slow')
        for code in self.ool:
            for s in code: p(s)
        self.ool = []
        self.chain(A, B, True, f'L_loop{name}_fast')
        state = (self.vm, dict(self.tags), self.rest, self.rest2)
        def slow():
            self.vm, self.tags, self.rest, self.rest2 = state[0], dict(state[1]), state[2], state[3]
            self.vfree = True; self.NH = NH
            self.chain(A, B, False, f'L_loop{name}_slow')
        if o.pfa: self.later.append(slow)
        else: slow()
        self.vm, self.tags = vm0, tags0


def main():
    ap = argparse.ArgumentParser()
    ap.add_argument('out')
    ap.add_argument('--stamps', type=int, default=0)
    ap.add_argument('--x8delay', type=int, default=0)
    ap.add_argument('--pdx', type=int, default=0)
    ap.add_argument('--pdo', type=int, default=0)
    ap.add_argument('--skip', type=str, default='')
    ap.add_argument('--exit10', type=int, default=0)
    ap.add_argument('--qkiss', type=str, default='000003')
    ap.add_argument('--clrfast', type=int, default=1)
    ap.add_argument('--xs', type=int, default=0)
    ap.add_argument('--xgap', type=int, default=6)
    ap.add_argument('--abw1', type=int, default=1)
    ap.add_argument('--abc1', type=int, default=1)
    ap.add_argument('--pf0', type=int, default=0)
    ap.add_argument('--pf1', type=int, default=0)
    ap.add_argument('--pfsel', type=int, default=1)
    ap.add_argument('--pfa', type=int, default=0)
    ap.add_argument('--order', type=str, default='A,AB,B')
    ap.add_argument('--hk', type=int, default=0)
    ap.add_argument('--xgate', type=int, default=0)
    ap.add_argument('--xgd', type=int, default=0)
    ap.add_argument('--pfx', type=int, default=0)
    ap.add_argument('--inl', type=int, default=0)
    ap.add_argument('--xat', type=int, default=0)
    ap.add_argument('--il', type=int, default=0)
    ap.add_argument('--xperm', type=str, default='')
    ap.add_argument('--alt', type=int, default=0)
    ap.add_argument('--altw', type=int, default=1)
    ap.add_argument('--jx', type=int, default=0)
    ap.add_argument('--sx', type=int, default=0)
    ap.add_argument('--xx', type=int, default=0)
    ap.add_argument('--dPV', type=int, default=0)
    ap.add_argument('--pPV', type=int, default=0)
    ap.add_argument('--kvonly', type=int, default=1)
    ap.add_argument('--wolate', type=int, default=0)
    ap.add_argument('--womid', type=int, default=1)
    ap.add_argument('--n2B', type=int, default=2)
    ap.add_argument('--n0A', type=int, default=0)
    ap.add_argument('--n0B', type=int, default=8)
    ap.add_argument('--n1A', type=int, default=6)
    ap.add_argument('--n1B', type=int, default=4)
    ap.add_argument('--n2', type=int, default=4)
    ap.add_argument('--dA', type=int, default=10)
    ap.add_argument('--dAB', type=int, default=16)
    ap.add_argument('--dB', type=int, default=10)
    ap.add_argument('--dFo', type=int, default=-1)
    ap.add_argument('--dG', type=int, default=0)
    ap.add_argument('--dQo', type=int, default=-2)
    ap.add_argument('--dX', type=int, default=2)
    ap.add_argument('--wposAB', type=int, default=0)
    ap.add_argument('--wposB', type=int, default=0)
    ap.add_argument('--fposA', type=str, default='K16')
    ap.add_argument('--fposAB', type=str, default='K8')
    ap.add_argument('--fposB', type=str, default='K12')
    ap.add_argument('--fpos2', type=str, default='V26')
    ap.add_argument('--qkpos', type=str, default='V8')
    ap.add_argument('--w1nt', type=str, default='')
    ap.add_argument('--w2nt', type=str, default='')
    ap.add_argument('--w2late', type=int, default=0)
    ap.add_argument('--pre', type=int, default=1)
    ap.add_argument('--forceslow', type=int, default=0)
    ap.add_argument('--acc', type=int, default=0)
    ap.add_argument('--ec', type=int, default=0)
    ap.add_argument('--opc', type=int, default=0)
    ap.add_argument('--osc', type=int, default=0)
    ap.add_argument('--stc', type=int, default=0)
    ap.add_argument('--opre', type=int, default=0)
    ap.add_argument('--pl', type=int, default=1)
    ap.add_argument('--plo', type=int, default=1)
    ap.add_argument('--pgap', type=int, default=3)
    ap.add_argument('--pgapo', type=int, default=2)
    ap.add_argument('--pd0', type=int, default=0)
    ap.add_argument('--pd1', type=int, default=0)
    ap.add_argument('--pd2', type=int, default=0)
    ap.add_argument('--pd3', type=int, default=0)
    ap.add_argument('--opwarm', type=int, default=0)
    ap.add_argument('--wabpos', type=str, default='')
    ap.add_argument('--wab2', type=int, default=0)
    ap.add_argument('--wabsp', type=int, default=0)
    ap.add_argument('--fill', type=int, default=0)
    ap.add_argument('--w2pos', type=int, default=0)
    ap.add_argument('--w2pf', type=str, default='')
    ap.add_argument('--nd', type=int, default=3)
    ap.add_argument('--ndf', type=int, default=3)
    ap.add_argument('--agap', type=int, default=5)
    ap.add_argument('--agapf', type=int, default=5)
    ap.add_argument('--pw', type=int, default=1)
    ap.add_argument('--n1C', type=int, default=6)
    ap.add_argument('--n2C', type=int, default=4)
    ap.add_argument('--wv', type=int, default=0)
    ap.add_argument('--w2bar', type=int, default=0)
    ap.add_argument('--w2at', type=str, default='')
    ap.add_argument('--w2n', type=int, default=1)
    ap.add_argument('--w2sp', type=int, default=1)
    ap.add_argument('--w1at', type=str, default='')
    ap.add_argument('--w1e', type=int, default=1)
    ap.add_argument('--w1n', type=int, default=16)
    ap.add_argument('--cpf', type=str, default='')
    ap.add_argument('--cpfm', type=int, default=3)
    ap.add_argument('--cpfs', type=int, default=64)
    ap.add_argument('--cpfsp', type=int, default=1)
    ap.add_argument('--qs', type=int, default=1536)
    ap.add_argument('--dC', type=int, default=6)
    ap.add_argument('--pdC', type=int, default=0)
    ap.add_argument('--pfc', type=int, default=10)
    ap.add_argument('--fposC', type=str, default='K18')
    o = ap.parse_args()
    g = G(o)
    g.head()
    for r in o.order.split(','):
        g.prologue(r != 'B', 'B' in r, r)
    g.p('L_fastend:')
    for f in g.later: f()
    body = g.p.finalize()
    ref = open('cdna_kernels/' + NAME + '.s.ref').read()
    comment = ''.join(l + '\n' for l in ref.split('\n') if l.startswith(';') and '@launch' not in l)
    open(o.out, 'w').write(header(256, 256, LDS_SIZE, comment=comment) + body + footer())
    print('instrs', len(g.p.items), 'nops inserted', g.p.nnops)

main()
```

```python
import sys, struct, math, argparse
from asmlib2 import *

def f2u(x): return struct.unpack('<I', struct.pack('<f', x))[0]
def H(x): return f'0x{x & 0xffffffff:x}'

QS = int(sys.argv[sys.argv.index('--qs') + 1]) if '--qs' in sys.argv else 1536
QP = 0x0
OP = 16 * QS
HP = OP + 0x2000
ST = HP + 8 * QS
OS = ST + 0x800
GB = OS + 0x800
assert GB % 1024 == 0 and OP % 1024 == 0
NE, NG = (GB - OP) // 1024, GB // 1024
XAo = 8 * GB
XMo = XAo + 0xA000
LSTR = XMo + 0xA000
CSL = 2 * LSTR
NDEF = (2 * LSTR - XMo) // 1024
OOB = 0x80000000
L_Q, L_ML, L_J1, L_O, L_R, L_J2 = 0, 256, 512, 1024, 3072, 7168
L_X = 10240
LDS_SIZE = 12800
sX, sC, sJ, sS, sW = 's3', 's4', 's5', 's6', 's7'
SRD = dict(K=8, V=12, WS=16, X=20, WQ=24, WO=28, W1=32, B1=36, W2=40, B2=44, OUT=48, DBG=52)
KOFF = dict(X=0, K=8, V=16, WQ=24, WO=32, W1=48, B1=56, W2=64, B2=72, OUT=80, DBG=88, WS=96)
SIZE = dict(X=1280, K=1 << 25, V=1 << 25, WQ=640 * 8192, WO=4096 * 1280, W1=640 * 3456, B1=3456, W2=1728 * 1280,
            B2=1280, OUT=1280, DBG=256, WS=1 << 28)
def srd(n): return f's[{SRD[n]}:{SRD[n]+3}]'
sKV = 56
sL, sOS, sLM, sT, sT2, sBud, sLo, sHi, sMc, sIA, sIB, sFlag, sBX, sT3 = [f's{i}' for i in range(64, 78)]
sMode = 's78'
sOS0 = 's79'
sMB = 80
sMF = 88
sWA, sWB = 's90', 's91'
sSTAMP = 92
KA = 80
vLane, a16 = 'v0', 'v1'
vQW, vQR, vQR3, vSW, vSR, vHR3, vOW, vOR, lRW2, vOSR, vXW, vXR, vHW, vHR = [f'v{i}' for i in range(2, 16)]
lQW, lQR, lMW, lMR, lOW, lOR, lRW, lRR = [f'v{i}' for i in range(16, 24)]
CSQ, CS1, B1v, vC = 'v24', 'v25', 'v26', 'v27'
MK, XA, XB, XR, B2, BQ, PA, ACC, T = 28, 32, 36, 40, 44, 48, 64, 72, 104
XA2 = MK
vZ = vSR
WT2 = 224
sH = sIB
VB = 126
vR, vG, t0, t1, t2, vD = 114, 115, 120, 121, 122, 123
XF = 40
SN = ACC + 28
vK = 'v124'
vSTAMP = 'v125'
WR, WT, WOR = 128, 160, 192
aWQ, aWO, aW1, aW2, aX, aB2, aB1, aC1, aCQ = 128, 160, 192, 208, 224, 226, 228, 232, 244
aW2v, aB1v, aW1v = CSQ, B1v, CS1
def v(i): return f'v{i}'
def vr(i, n): return f'v[{i}:{i+n-1}]'
def ar(i, n): return f'a[{i}:{i+n-1}]'
DF = 'row_mask:0xf bank_mask:0xf'
MFMA = 'v_mfma_f32_16x16x32_bf16'
CSC = (128 ** -0.5) * math.log2(math.e)
EPS = 1e-5
MHI = 0x41B80000
RM = 40
PP = [42, 44, 46, 118]
KST = ['K0', 'K4', 'K8', 'K12', 'K16', 'K20', 'K24', 'K28', 'V0', 'V4', 'V8', 'V12', 'V16', 'V20', 'V24', 'V28', 'V31']


class G:
    def __init__(self, opt):
        self.p = Prog()
        self.o = opt
        self.vm = 0
        self.tags = {}
        self.pend = []
        self.ool = []
        self.nst = 0
        self.later = []

    def __call__(self, s): self.p(s)

    def vmem(self, s, tag=None, optional=False):
        self.p(s)
        if not optional:
            self.vm += 1
        if tag: self.tags[tag] = self.vm
    def wait(self, tag):
        n = self.vm - self.tags[tag]
        assert 0 <= n
        self.p(f's_waitcnt vmcnt({min(n, 63)})')
    def stamp(self, k):
        if not self.o.stamps: return
        if len(self.pend) >= 5: self.lgkm(0)
        r = sSTAMP + 2 * (self.nst % 5); self.nst += 1
        self.p(f's_memrealtime s[{r}:{r+1}]')
        self.pend.append((k, r))
    def lgkm(self, n):
        if self.pend:
            self.p('s_waitcnt lgkmcnt(0)')
            for k, r in self.pend:
                self.p(f'v_writelane_b32 {vSTAMP}, s{r}, {k}')
            self.pend = []
        else:
            self.p(f's_waitcnt lgkmcnt({n})')
    def flush(self):
        if self.pend: self.lgkm(0)

    def transpose(self, abase, W, tmp, tmp2, rd=True):
        p = self.p
        n = 8 * W
        if rd:
            for k in range(n):
                p(f'v_accvgpr_read_b32 v{tmp+k}, a{abase+k}')
        cnt = 0
        prev = None
        for dp in range(W):
            for hi in range(2):
                for tau in range(4):
                    t = tmp2 + (cnt & 1); cnt += 1
                    p(f'v_perm_b32 v{t}, v{tmp+(2*tau+1)*W+dp}, v{tmp+(2*tau)*W+dp}, {sHi if hi else sLo}')
                    p(f'v_accvgpr_write_b32 a{abase+(2*dp+hi)*4+tau}, v{t}')

    def build_xa(self, X=XA):
        p = self.p
        p(f'v_mov_b32_dpp v{X+2}, v{X} row_ror:8 {DF}')
        p(f'v_mov_b32_dpp v{X+3}, v{X+1} row_ror:8 {DF}')

    def xb_ops(self, X=XA):
        return [f'v_mov_b32_dpp v{XB+k}, v{X+k} quad_perm:[0,1,2,3] row_mask:0xf bank_mask:0x3' for k in range(4)]

    def unpack_xr(self, addb2):
        ops = [f'v_lshlrev_b32 v{XR}, 16, v{XA}', f'v_and_b32 v{XR+1}, 0xffff0000, v{XA}',
               f'v_lshlrev_b32 v{XR+2}, 16, v{XA+1}', f'v_and_b32 v{XR+3}, 0xffff0000, v{XA+1}']
        if addb2:
            ops += [f'v_pk_add_f32 {vr(XR,2)}, {vr(XR,2)}, {vr(B2,2)}', f'v_pk_add_f32 {vr(XR+2,2)}, {vr(XR+2,2)}, {vr(B2+2,2)}']
        return ops

    def mv2(self, A, tiles, wsrc, stats, pre=None, mid=None, w2=None):
        p = self.p
        st = T + 16
        n = len(tiles)
        for h in range(self.NH):
            xb = self.xb_ops(A[h]) if stats else []
            if h and mid: mid()
            if h and w2: p(w2)
            for k, d in enumerate(tiles):
                if pre:
                    for s_ in pre(h, d): p(s_)
                p(f'{MFMA} {vr(ACC+4*d,4)}, {vr(A[h],4)}, {wsrc(h, d)}, {vr(ACC+4*d,4) if h else 0}')
                if k < 2 and xb:
                    p(xb[2*k]); p(xb[2*k+1])
                if stats and k == (min(3, n - 1) if (h == 0 or n > 4) else n - 1):
                    p(f'{MFMA} {vr(st,4)}, {vr(A[h],4)}, {vr(XB,4)}, {vr(st,4) if h else 0}')

    def qp(self, A, soff, fl, stats, track, post=(), wv=None, pre=None, tag=None, prest=None, mid=None, w2=None):
        p = self.p
        st = T + 16
        order = [0, 4, 1, 5, 2, 6, 3, 7]
        mov = {}
        for d in range(8):
            if d == 0: mov[d] = None
            elif d < 4: mov[d] = f'v_mov_b32_dpp v{ACC+d}, v{ACC+4*d} quad_perm:[0,1,2,3] row_mask:0x1 bank_mask:0xf'
            else: mov[d] = f'v_mov_b32_dpp v{ACC+d-4}, v{ACC+4*d} quad_perm:[0,1,2,3] row_mask:0x2 bank_mask:0xf'
        self.mv2(A, order, (lambda h, d: vr(wv[h]+4*d,4)) if wv else (lambda h, d: ar(aWQ+32*h+4*d,4)), stats, pre, mid, w2)
        if stats:
            p('s_mov_b64 exec, 0x101')
            self.vmem(f'buffer_store_dword v{st}, {vSW}, {srd("WS")}, {soff} offen {fl}', optional=not track)
            p('s_mov_b32 exec_lo, -1')
        else: p('s_mov_b32 exec_hi, 0')
        for d in order[1:]:
            p(mov[d])
        if prest: prest()
        self.vmem(f'buffer_store_dwordx4 {vr(ACC,4)}, {vQW}, {srd("WS")}, {soff} offen {fl}', optional=not track, tag=tag)
        p('s_mov_b64 exec, -1')
        for s in post: p(s)

    def w1(self, A, soff, fl, stats, track, post=(), w2=None):
        p = self.p
        st = T + 16
        self.mv2(A, [0, 1, 2, 3], lambda h, d: ar(aW1+16*h+4*d,4), stats, w2=w2)
        p('s_mov_b64 exec, 0xffff')
        for d in range(1, 4):
            p(f'v_mov_b32 v{ACC+d}, v{ACC+4*d}')
        self.vmem(f'buffer_store_dwordx4 {vr(ACC,4)}, {vHW}, {srd("WS")}, {soff} offen {fl}', optional=not track)
        if stats:
            p('s_mov_b64 exec, 0x101')
            self.vmem(f'buffer_store_dword v{st}, {vSW}, {srd("WS")}, {soff} offen offset:256 {fl}', optional=not track)
        p('s_mov_b64 exec, -1')
        for s in post: p(s)

    def rs4(self, a, out):
        return [f'v_permlane32_swap_b32 v{a}, v{a+1}', f'v_permlane32_swap_b32 v{a+2}, v{a+3}',
                f'v_add_f32 v{a}, v{a}, v{a+1}', f'v_add_f32 v{a+2}, v{a+2}, v{a+3}',
                f'v_permlane16_swap_b32 v{a}, v{a+2}', f'v_add_f32 {out}, v{a}, v{a+2}']

    def stats_ops(self, s4, st, mean, sc, second, d2=None):
        inv = H(f2u(1.0 / 640))
        ops = [f'v_pk_add_f32 {vr(d2,2)}, {vr(s4,2)}, {vr(s4+2,2)}',
               f'v_add_f32_dpp {vZ}, v{d2}, v{d2+1} quad_perm:[0,1,2,3] row_mask:0xf bank_mask:0x3',
               f'v_add_f32_dpp v{st}, {vZ}, {vZ} row_ror:2 {DF}',
               f'v_add_f32_dpp v{st}, v{st}, v{st} row_ror:4 {DF}',
               f'v_add_f32_dpp v{st}, v{st}, v{st} row_ror:8 {DF}',
               f'v_mul_f32 v{st}, {inv}, v{st}',
               f'v_mov_b32_dpp v{mean}, v{st} quad_perm:[0,0,2,2] {DF}',
               f'v_mov_b32_dpp v{sc}, v{st} quad_perm:[1,1,3,3] {DF}',
               f'v_fma_f32 v{sc}, -v{mean}, v{mean}, v{sc}',
               f'v_max_f32 v{sc}, 0, v{sc}']
        if second:
            ops += [f'v_mul_f32 v{sc}, {H(f2u(1.0 + EPS))}, v{sc}', f'v_add_f32 v{sc}, {H(f2u(EPS * EPS))}, v{sc}']
        else:
            ops += [f'v_add_f32 v{sc}, {H(f2u(EPS))}, v{sc}']
        ops += [f'v_rsq_f32 v{sc}, v{sc}']
        return ops

    def merge(self, *lists):
        lists = [list(l) for l in lists]
        while any(lists):
            for l in lists:
                if l: self.p(l.pop(0))

    def retry(self, Lp, Lok, extra=()):
        Lr = self.p.label('Lretry')
        code = [f'{Lr}:',
                f's_cmp_eq_u32 {sBud}, 0', f's_cbranch_scc1 {Lok}', f's_sub_u32 {sBud}, {sBud}, 1'] + list(extra) + [f's_branch {Lp}']
        self.ool.append(code)
        return Lr

    def bud(self):
        Lok, Lg = self.p.label('Lok'), self.p.label('Lgive')
        self.p(f's_sub_u32 {sBud}, {sBud}, 1'); self.p(f's_cbranch_scc1 {Lg}')
        self.ool.append([f'{Lg}:', f's_mov_b32 {sBud}, 0', 's_waitcnt vmcnt(0)', f's_branch {Lok}'])
        return Lok

    def g3_list(self, base, va, va3, soff, acc=False):
        return [f'buffer_load_dwordx4 {(ar if acc else vr)(base+4*t,4)}, {va3 if t == 1 else va}, {srd("WS")}, {soff} offen sc1' for t in (1, 0)]
    def g3_sum(self, base, out):
        return [f'v_add_f32_dpp v{base+k}, v{base+4+k}, v{base+k} quad_perm:[0,1,2,3] row_mask:0xf bank_mask:0xc' for k in range(4)] \
            + self.rs4(base, out) + [f'v_add_f32_dpp {out}, {out}, {out} row_ror:8 {DF}']

    def q_finish(self, u, st, mean, sc, Lp, ln=True):
        p = self.p
        if isinstance(Lp, tuple): Lr, Lok = Lp
        else:
            Lok = p.label('Lok')
            Lr = self.retry(Lp, Lok)
        if ln:
            p(f'v_fma_f32 v{u}, -v{mean}, {CSQ}, v{u}')
            p(f'v_mul_f32 v{u}, v{u}, v{sc}')
        p(f'v_cvt_pk_bf16_f32 v{sc}, v{u}, v{u}')
        p(f'v_cmp_u_f32 vcc, v{u}, v{st if ln else u}')
        p(f's_cbranch_vccnz {Lr}')
        p(f'{Lok}:')
        p(f'ds_write_b16 {lQW}, v{sc}')
        self.lgkm(0)
        p('s_barrier')

    def qk_softmax(self, iss=lambda n: None, vw=False):
        p = self.p
        S = [T, T + 1]
        for b in range(4):
            p(f's_mov_b64 exec, s[{sMB+2*b}:{sMB+2*b+1}]')
            p(f'ds_read_b128 {vr(BQ+4*b,4)}, {lQR}')
        p('s_mov_b64 exec, -1')
        def adds(e):
            h, be = e >> 2, e & 3
            D = ACC + 4 * e
            first = True
            out = []
            for u in range(4):
                if u == be: continue
                src1 = f'v{D+be}' if first else f'v{S[h]}'
                out.append(f'v_add_f32_dpp v{S[h]}, v{D+u}, {src1} row_ror:{(4*(be-u)) % 16} row_mask:0xf bank_mask:{1<<be:#x}')
                first = False
            return out
        if vw: p('s_waitcnt vmcnt(0)')
        for b in range(4):
            self.lgkm(3 - b)
            for e in range(8):
                h, be = e >> 2, e & 3
                mb = 8 * be + 2 * b + h
                c = '0' if b == 0 else vr(ACC + 4 * e, 4)
                p(f'{MFMA} {vr(ACC+4*e,4)}, {ar(4*mb,4)}, {vr(BQ+4*b,4)}, {c}')
                if b == 3 and e >= 3:
                    for s in adds(e - 3): p(s)
            iss(b)
        for e in (5, 6, 7):
            for s in adds(e): p(s)
        M = T + 2
        p(f'v_max_f32 v{M}, v{S[0]}, v{S[1]}')
        for n in (1, 2, 4, 8):
            p(f'v_max_f32_dpp v{M}, v{M}, v{M} row_ror:{n} {DF}')
        p(f'v_max_f32_dpp v{M}, v{M}, v{M} row_bcast:15 row_mask:0xa bank_mask:0xf')
        p(f'v_max_f32_dpp v{M}, v{M}, v{M} row_bcast:31 row_mask:0xc bank_mask:0xf')
        iss(4)
        p(f'v_mul_f32 v{M}, v{M}, {vC}')
        p(f'v_readlane_b32 {sMc}, v{M}, 63')
        p(f'v_fma_f32 v{S[0]}, v{S[0]}, {vC}, -{sMc}')
        p(f'v_fma_f32 v{S[1]}, v{S[1]}, {vC}, -{sMc}')
        p(f'v_exp_f32 v{S[0]}, v{S[0]}')
        p(f'v_exp_f32 v{S[1]}, v{S[1]}')
        p(f'v_cvt_pk_bf16_f32 v{T+4}, v{S[0]}, v{S[1]}')

    def ml_ops(self, fl):
        P, M, Ls = T + 4, T + 2, T + 3
        m2, l2, mc, f = T + 6, T + 7, T + 8, T + 5
        lc = T + 9
        ops = [f'v_lshlrev_b32 v{Ls}, 16, v{P}', f'v_and_b32 v{T}, 0xffff0000, v{P}', f'v_add_f32 v{Ls}, v{Ls}, v{T}']
        for n in (1, 2, 4, 8):
            ops += [f'v_add_f32_dpp v{Ls}, v{Ls}, v{Ls} row_ror:{n} {DF}', None]
        ops += [f'v_add_f32_dpp v{Ls}, v{Ls}, v{Ls} row_bcast:15 row_mask:0xa bank_mask:0xf', None,
                f'v_add_f32_dpp v{Ls}, v{Ls}, v{Ls} row_bcast:31 row_mask:0xc bank_mask:0xf',
                f'ds_write_b64 {lMW}, {vr(M,2)}', None, None,
                lambda: (self.lgkm(0), self.p('s_barrier'), self.p(f'ds_read_b64 {vr(m2,2)}, {lMR}')), None, None, None,
                lambda: self.lgkm(0),
                f'v_max_f32_dpp v{mc}, v{m2}, v{m2} quad_perm:[1,0,3,2] {DF}', None,
                f'v_max_f32_dpp v{mc}, v{mc}, v{mc} quad_perm:[2,3,0,1] {DF}',
                f'v_sub_f32 v{f}, v{m2}, v{mc}', f'v_exp_f32 v{f}, v{f}', None,
                f'v_mul_f32 v{lc}, v{f}, v{l2}', None,
                f'v_add_f32_dpp v{lc}, v{lc}, v{lc} quad_perm:[1,0,3,2] {DF}', None,
                f'v_add_f32_dpp v{lc}, v{lc}, v{lc} quad_perm:[2,3,0,1] {DF}']
        def st():
            Ls_ = self.p.label('Lnos')
            self.p(f's_cmp_lg_u32 {sW}, 0'); self.p(f's_cbranch_scc1 {Ls_}')
            self.p('s_mov_b64 exec, 0x10001' if self.o.osc else 's_mov_b64 exec, 1')
            if fl == 'mode':
                L1, L2 = self.p.label('Lm'), self.p.label('Lm')
                self.p(f's_cmp_eq_u32 {sMode}, 0'); self.p(f's_cbranch_scc1 {L1}')
                self.vmem(f'buffer_store_dwordx2 {vr(mc,2)}, {a16}, {srd("WS")}, {sOS0} offen sc1', optional=True)
                self.p(f's_branch {L2}')
                self.p(f'{L1}:')
                self.vmem(f'buffer_store_dwordx2 {vr(mc,2)}, {a16}, {srd("WS")}, {sOS0} offen', optional=True)
                self.p(f'{L2}:')
            else:
                self.vmem(f'buffer_store_dwordx2 {vr(mc,2)}, {a16}, {srd("WS")}, {sOS} offen {fl}', optional=True)
            self.p('s_mov_b64 exec, -1')
            self.p(f'{Ls_}:')
        ops.append(st)
        return ops

    def run_op(self, o):
        if o is None: return
        if callable(o): o()
        else: self.p(o)

    def pv(self, extras, layer0, hooks={}):
        p = self.p
        P = T + 4
        Da, Db = ACC, ACC + 4
        def build(pp):
            return [f'v_mov_b32_dpp v{PA+4*(pp&1)+t}, v{P} row_newbcast:{pp} row_mask:0xf bank_mask:{1<<t:#x}' for t in range(4)]
        def perms(pp):
            A, Bq, o = VB + 2 + 8 * pp, VB + 6 + 8 * pp, VB + 8 * pp
            seq = [(0, 0), (0, 1), (1, 0), (1, 1), (3, 0), (3, 1), (2, 1), (2, 0)]
            return [f'v_perm_b32 v{o+2*dp+hi}, v{Bq+dp}, v{A+dp}, {sHi if hi else sLo}' for dp, hi in seq]
        extras = list(extras)
        for s in build(0): p(s)
        for pp in range(16):
            nb = build(pp + 1) if pp < 15 else []
            if pp in hooks: hooks[pp]()
            if layer0:
                self.wait(f'V{2*pp+1}')
                for s in perms(pp): p(s)
            c = '0' if pp == 0 else None
            p(f'{MFMA} {vr(Da,4)}, {vr(PA+4*(pp&1),4)}, {vr(VB+8*pp,4)}, {c or vr(Da,4)}')
            for s in nb[:3]: p(s)
            p(f'{MFMA} {vr(Db,4)}, {vr(PA+4*(pp&1),4)}, {vr(VB+8*pp+4,4)}, {c or vr(Db,4)}')
            for s in nb[3:]: p(s)
            for _ in range(2):
                if extras: self.run_op(extras.pop(0))
        for o in extras: self.run_op(o)

    def reduce_publish(self, y, kind, soff, ldsoff):
        p = self.p
        if kind == 'o':
            for k in range(4): p(f'v_permlane16_swap_b32 v{y+k}, v{y+4+k}')
            p(f'v_pk_add_f32 {vr(y,2)}, {vr(y,2)}, {vr(y+4,2)}')
            p(f'v_pk_add_f32 {vr(y+2,2)}, {vr(y+2,2)}, {vr(y+6,2)}')
        p(f'ds_write_b128 {lRW if kind == "o" else lRW2}, {vr(y,4)} offset:{ldsoff}')
        if self.o.pl > 1 and kind == 'h': p('s_waitcnt vmcnt(0)')
        p(f's_cmp_lg_u32 {sW}, 0')
        self.lgkm(0)
        if self.o.stamps: p(f's_cmp_lg_u32 {sW}, 0')
        p('s_barrier')
        Ls = p.label('Lsk')
        p(f's_cbranch_scc1 {Ls}')
        if self.o.acc:
            for k in range(4):
                p(f'ds_read2st64_b32 {vr(ACC+2*k,2)}, {lRR} offset0:{ldsoff//256+2*k} offset1:{ldsoff//256+2*k+1}')
            self.lgkm(2)
            p(f'v_pk_add_f32 {vr(ACC,2)}, {vr(ACC,2)}, {vr(ACC+2,2)}')
            self.lgkm(0)
            p(f'v_pk_add_f32 {vr(ACC+4,2)}, {vr(ACC+4,2)}, {vr(ACC+6,2)}')
            p(f'v_pk_add_f32 {vr(ACC,2)}, {vr(ACC,2)}, {vr(ACC+4,2)}')
            p(f'v_add_f32 v{ACC}, v{ACC}, v{ACC+1}')
            p(f'v_cvt_f64_f32 {vr(ACC+2,2)}, v{ACC}')
            p(f'v_add_f64 {vr(ACC+2,2)}, {vr(ACC+2,2)}, s[0:1]')
            p(f'v_add_u32 v{ACC+3}, {H(0x01000000 - MHI)}, v{ACC+3}')
            self.vmem(f'buffer_atomic_add_x2 {vr(ACC+2,2)}, {vXW}, {srd("WS")}, {soff} offen sc1', optional=True)
            p(f'{Ls}:')
            return
        for k in range(4):
            p(f'ds_read_b128 {vr(ACC+4*k,4)}, {lRR} offset:{ldsoff+512*k}')
        p('s_mov_b32 exec_hi, 0')
        self.lgkm(2)
        p(f'v_pk_add_f32 {vr(ACC,2)}, {vr(ACC,2)}, {vr(ACC+4,2)}')
        p(f'v_pk_add_f32 {vr(ACC+2,2)}, {vr(ACC+2,2)}, {vr(ACC+6,2)}')
        self.lgkm(0)
        p(f'v_pk_add_f32 {vr(ACC+8,2)}, {vr(ACC+8,2)}, {vr(ACC+12,2)}')
        p(f'v_pk_add_f32 {vr(ACC+10,2)}, {vr(ACC+10,2)}, {vr(ACC+14,2)}')
        p(f'v_pk_add_f32 {vr(ACC,2)}, {vr(ACC,2)}, {vr(ACC+8,2)}')
        p(f'v_pk_add_f32 {vr(ACC+2,2)}, {vr(ACC+2,2)}, {vr(ACC+10,2)}')
        for k in range(4):
            p(f'v_add_f32_dpp v{ACC+k}, v{ACC+k}, v{ACC+k} row_ror:8 {DF}')
        p('s_mov_b32 exec_lo, 0x00ff00ff')
        self.vmem(f'buffer_store_dwordx4 {vr(ACC,4)}, {vXW}, {srd("WS")}, {soff} offen sc1', optional=True)
        p('s_mov_b64 exec, -1')
        p(f'{Ls}:')

    def rm_ops(self, src, addb2):
        t, u = T + 8, T + 9
        ops = ['s_mov_b32 exec_lo, 0x00ff00ff', 's_mov_b32 exec_hi, 0x00ff00ff', f'v_lshlrev_b32 v{t}, 16, v{src}']
        if addb2:
            ops += [f'v_accvgpr_read_b32 v{u}, a{aB2}', f'v_lshlrev_b32 v{u}, 16, v{u}', f'v_add_f32 v{t}, v{t}, v{u}']
        ops += [f'v_cvt_f64_f32 {vr(RM,2)}, v{t}', f'v_add_f64 {vr(RM,2)}, {vr(RM,2)}, -s[0:1]', 's_mov_b64 exec, -1']
        return ops

    def npol(self):
        return f's_bitcmp{1-self.o.pw}_b32 {sW}, 0' if self.NH == 2 else f's_cmp_lg_u32 {sW}, {self.o.pw}'

    def x16a(self, soff, final=False, fills=(), pre=0):
        p = self.p
        o = self.o
        ND = o.nd if not final else o.ndf
        gap = o.agap if not final else o.agapf
        D, x, lw, lr = T + 6, T + 5, T + 8, T + 9
        Lb, Lp, Lok = p.label('Lb'), p.label('Lp'), p.label('Lok')
        self.flush()
        def ld(k):
            a = PP[k % ND]
            p(f'v_mov_b32 v{a}, 0'); p(f'v_mov_b32 v{a+1}, 0')
            self.vmem(f'buffer_atomic_or_x2 {vr(a,2)}, {vXR}, {srd("WS")}, {soff} offen sc0 sc1', optional=True)
        assert len(fills) <= max(ND - 1, 0)
        for k, fn in enumerate(fills):
            La = p.label('La')
            p(f's_cmp_eq_u32 {sT3}, 0' if o.probe else self.npol()); p(f's_cbranch_scc1 {La}')
            ld(k)
            p(f'{La}:')
            fn()
            self.flush()
        p(f'v_and_b32 v{lr}, 0x30, v0')
        p(self.npol()); p(f's_cbranch_scc1 {Lb}')
        if final: p('s_waitcnt vmcnt(0)')
        for _ in range(pre): p('s_nop 15')
        first = True
        for k in range(len(fills), max(ND - 1, len(fills) + 1)):
            if k < ND - 1: ld(k)
            if first:
                p(f'v_and_b32 v{lw}, 7, v0'); p(f'v_lshl_add_u32 v{lw}, v{lw}, 1, v{lr}')
                if final: p(f's_lshl_b32 {sT}, {sH}, 6')
                elif self.NH == 2: p(f's_and_b32 {sT}, {sH}, 1'); p(f's_lshl_b32 {sT}, {sT}, 6'); p(f'v_add_u32 v{lw}, {sT}, v{lw}')
                first = False
            if k < ND - 1:
                for _ in range(gap): p('s_nop 15')
        p(f'{Lp}:')
        for k in range(ND):
            ld(k + ND - 1)
            p(f's_waitcnt vmcnt({ND-1})')
            p(f'v_cmp_gt_u32 vcc, 0x41000000, v{PP[k]+1}')
            p(f'v_add_f64 {vr(D,2)}, {vr(PP[k],2)}, {vr(RM,2)}')
            p(f's_cbranch_vccz {Lok}')
        p(f's_sub_u32 {sBud}, {sBud}, 1'); p(f's_cbranch_scc0 {Lp}')
        p(f's_mov_b32 {sBud}, 0')
        p(f'{Lok}:')
        p(f'v_cvt_f32_f64 v{x}, {vr(D,2)}')
        p(f'v_add_f32_dpp v{x}, v{x}, v{x} row_ror:8 {DF}')
        p(f'v_cvt_pk_bf16_f32 v{x}, v{x}, v{x}')
        if final:
            p('s_mov_b32 exec_lo, 0x00ff00ff'); p('s_mov_b32 exec_hi, 0x00ff00ff')
            p(f'buffer_store_short v{x}, v{lw}, {srd("OUT")}, {sT} offen')
            p('s_mov_b64 exec, -1')
            p(f'{Lb}:')
            return
        p(f'ds_write_b16 v{lw}, v{x} offset:{L_X}')
        p('s_waitcnt lgkmcnt(0)')
        p(f'{Lb}:')
        p('s_barrier')
        p(f'ds_read_b128 {vr(XA,4)}, v{lr} offset:{L_X}')
        if self.NH == 2: p(f'ds_read_b128 {vr(XA2,4)}, v{lr} offset:{L_X+64}')
        p(f's_waitcnt lgkmcnt({self.NH-1})')

    def x16(self, soff, pd=0, pre=0):
        if self.o.acc: return self.x16a(soff, pre=pre)
        if self.o.xs: return self.x16s(soff)
        p = self.p
        Y = T
        for _ in range(self.o.x8delay): p('s_nop 15')
        Lp = p.label('Lp')
        p(f'{Lp}:')
        self.vmem(f'buffer_load_dwordx4 {vr(Y,4)}, {vXR}, {srd("WS")}, {soff} offen sc1', optional=True)
        self.vmem(f'buffer_load_dwordx4 {vr(Y+4,4)}, {vXR}, {srd("WS")}, {soff} offen offset:1024 sc1', optional=True)
        p('s_waitcnt vmcnt(0)')
        p(f'v_pk_add_f32 {vr(Y,2)}, {vr(Y,2)}, {vr(Y+4,2)}')
        p(f'v_pk_add_f32 {vr(Y+2,2)}, {vr(Y+2,2)}, {vr(Y+6,2)}')
        for c in ('quad_perm:[1,0,3,2]', 'quad_perm:[2,3,0,1]', 'row_half_mirror'):
            for k in range(4):
                p(f'v_add_f32_dpp v{Y+k}, v{Y+k}, v{Y+k} {c} {DF}')
        p(f'v_pk_add_f32 {vr(Y,2)}, {vr(Y,2)}, {vr(XR,2)}')
        p(f'v_pk_add_f32 {vr(Y+2,2)}, {vr(Y+2,2)}, {vr(XR+2,2)}')
        p(f'v_cvt_pk_bf16_f32 v{XA}, v{Y}, v{Y+1}')
        p(f'v_cvt_pk_bf16_f32 v{XA+1}, v{Y+2}, v{Y+3}')
        p(f'v_pk_add_f32 {vr(Y,2)}, {vr(Y,2)}, {vr(Y+2,2)}')
        p(f'v_cmp_u_f32 vcc, v{Y}, v{Y+1}')
        self.build_xa()
        Lok = p.label('Lok')
        Lr = self.retry(Lp, Lok, extra=['s_nop 15'] * pd)
        p(f's_cbranch_vccnz {Lr}')
        p(f'{Lok}:')

    def x16s(self, soff):
        p = self.p
        ND = self.o.xs
        Y = ACC
        lw, lr = T + 8, T + 9
        def ld(k):
            if self.o.xat == 2:
                p(f'v_mov_b32 v{T+2*k}, -1'); p(f'v_mov_b32 v{T+2*k+1}, -1')
                self.vmem(f'buffer_atomic_and_x2 {vr(T+2*k,2)}, {vXR}, {srd("WS")}, {soff} offen sc0 sc1', optional=True)
            elif self.o.xat:
                p(f'v_mov_b32 v{T+2*k}, 0'); p(f'v_mov_b32 v{T+2*k+1}, 0')
                self.vmem(f'buffer_atomic_or_x2 {vr(T+2*k,2)}, {vXR}, {srd("WS")}, {soff} offen sc0 sc1', optional=True)
            else:
                self.vmem(f'buffer_load_dwordx2 {vr(T+2*k,2)}, {vXR}, {srd("WS")}, {soff} offen sc1', optional=True)
        ld(0)
        p(f'v_lshrrev_b32 v{lw}, 4, v0'); p(f'v_mul_u32_u24 v{lw}, 16, v{lw}'); p(f'v_lshl_add_u32 v{lw}, v0, 3, v{lw}')
        p(f's_mul_i32 {sT}, {sW}, 576'); p(f's_add_u32 {sT}, {sT}, {L_X}'); p(f'v_add_u32 v{lw}, {sT}, v{lw}')
        p(f'v_and_b32 v{lr}, 7, v0'); p(f'v_mul_u32_u24 v{lr}, 142, v{lr}'); p(f'v_lshl_add_u32 v{lr}, v0, 1, v{lr}')
        if self.o.xat == 2:
            Lp, Lg, Lok = p.label('Lp'), p.label('Lgive'), p.label('Lok')
            p(f's_branch {Lp}w')
            p(f'{Lp}:')
            p(f's_sub_u32 {sBud}, {sBud}, 1'); p(f's_cbranch_scc1 {Lg}')
            p('s_nop 1')
            self.vmem(f'buffer_atomic_and_x2 {vr(T,2)}, {vXR}, {srd("WS")}, {soff} offen sc0 sc1', optional=True)
            self.ool.append([f'{Lg}:', f's_mov_b32 {sBud}, 0', 's_waitcnt vmcnt(0)', f's_branch {Lok}'])
            p(f'{Lp}w:')
            p('s_waitcnt vmcnt(0)')
            p(f'v_cmpx_u_f32 vcc, v{T}, v{T+1}')
            p(f's_cbranch_vccnz {Lp}')
            p(f'{Lok}:')
            p('s_mov_b64 exec, -1')
            p(f'ds_write_b64 v{lw}, {vr(T,2)}')
            ND = 0
        for k in range(1, ND - 1):
            for _ in range(self.o.xgap): p('s_nop 15')
            ld(k)
        if ND > 1:
            for _ in range(self.o.xgap): p('s_nop 15')
        Lp, Lj = p.label('Lp'), p.label('Lj')
        Ld = [p.label('Ld') for _ in range(ND)]
        if ND == 1:
            p(f's_branch {Lp}w')
        if ND: p(f'{Lp}:')
        for k in range(ND):
            ld((k - 1) % ND)
            if ND == 1: p(f'{Lp}w:')
            p(f's_waitcnt vmcnt({ND - 1})')
            p(f'v_cmp_u_f32 vcc, v{T+2*k}, v{T+2*k+1}')
            p(f's_cbranch_vccz {Ld[k]}')
        if ND:
            p(f's_sub_u32 {sBud}, {sBud}, 1'); p(f's_cbranch_scc0 {Lp}')
            p(f's_mov_b32 {sBud}, 0')
            for k in range(1, ND):
                self.ool.append([f'{Ld[k]}:', f'ds_write_b64 v{lw}, {vr(T+2*k,2)}', f's_branch {Lj}'])
            p(f'{Ld[0]}:')
            p(f'ds_write_b64 v{lw}, {vr(T,2)}')
            p(f'{Lj}:')
        p('s_waitcnt lgkmcnt(0)')
        p('s_barrier')
        p(f'ds_read_b128 {vr(Y,4)}, v{lr} offset:{L_X}')
        p(f'ds_read_b128 {vr(Y+4,4)}, v{lr} offset:{L_X+1152}')
        p('s_waitcnt lgkmcnt(0)')
        p(f'v_pk_add_f32 {vr(Y,2)}, {vr(Y,2)}, {vr(Y+4,2)}')
        p(f'v_pk_add_f32 {vr(Y+2,2)}, {vr(Y+2,2)}, {vr(Y+6,2)}')
        for c in ('quad_perm:[1,0,3,2]', 'quad_perm:[2,3,0,1]', 'row_half_mirror'):
            for k in range(4):
                p(f'v_add_f32_dpp v{Y+k}, v{Y+k}, v{Y+k} {c} {DF}')
        p(f'v_pk_add_f32 {vr(Y,2)}, {vr(Y,2)}, {vr(XR,2)}')
        p(f'v_pk_add_f32 {vr(Y+2,2)}, {vr(Y+2,2)}, {vr(XR+2,2)}')
        p(f'v_cvt_pk_bf16_f32 v{XA}, v{Y}, v{Y+1}')
        p(f'v_cvt_pk_bf16_f32 v{XA+1}, v{Y+2}, v{Y+3}')
        self.build_xa()

    def oa2a(self, pd=0, mid=None, stk=None, pre=0):
        p = self.p
        AO = T
        ml = T + 4
        M, f, Lq, ck = T + 6, T + 7, T + 8, T + 9
        y = T + 12
        DL = self.o.plo
        assert not (mid and DL > 1)
        if stk and self.o.stamps >= 2: p(f'v_writelane_b32 {vSTAMP}, {sBud}, {stk+12}')
        if pre:
            Lq_ = p.label('Lpre')
            p(f's_cmp_eq_u32 {sW}, 0'); p(f's_cbranch_scc1 {Lq_}')
            for _ in range(pre): p('s_nop 15')
            p(f'{Lq_}:')
        Lp = p.label('Lp')
        if mid:
            self.vmem(f'buffer_load_dwordx2 {vr(ml,2)}, {vOSR}, {srd("WS")}, {sL} offen sc1')
            self.vmem(f'buffer_load_dwordx4 {vr(AO,4)}, {vOR}, {srd("WS")}, {sL} offen sc1')
            mid()
            self.ool.append([f'{Lp}:', f'buffer_load_dwordx2 {vr(ml,2)}, {vOSR}, {srd("WS")}, {sL} offen sc1',
                             f'buffer_load_dwordx4 {vr(AO,4)}, {vOR}, {srd("WS")}, {sL} offen sc1', f's_branch {Lp}w'])
            p(f'{Lp}w:')
        else:
            for k in range(DL):
                if k == DL - 1: p(f'{Lp}:')
                self.vmem(f'buffer_load_dwordx2 {vr(ml,2)}, {vOSR}, {srd("WS")}, {sL} offen sc1', optional=True)
                self.vmem(f'buffer_load_dwordx4 {vr(AO,4)}, {vOR}, {srd("WS")}, {sL} offen sc1', optional=True)
                if k < DL - 1:
                    for _ in range(self.o.pgapo): p('s_nop 15')
        if self.o.inl and not mid:
            Lok = self.bud(); Lr = Lp
        else:
            Lok = p.label('Lok')
            Lr = self.retry(Lp, Lok, extra=['s_nop 15'] * pd)
        p(f's_waitcnt vmcnt({2*(DL-1)})')
        chk = [f'v_max3_u32 v{ck}, v{AO}, v{AO+1}, v{AO+2}', f'v_max3_u32 v{ck}, v{ck}, v{AO+3}, v{ml}',
               f'v_max_u32 v{ck}, v{ck}, v{ml+1}', f'v_cmp_eq_u32 vcc, -1, v{ck}']
        sc = [f'v_max_f32_dpp v{M}, v{ml}, v{ml} quad_perm:[1,0,3,2] {DF}',
              f'v_max_f32_dpp v{M}, v{M}, v{M} quad_perm:[2,3,0,1] {DF}',
              f'v_max_f32_dpp v{M}, v{M}, v{M} row_half_mirror {DF}',
              f'v_sub_f32 v{f}, v{ml}, v{M}', f'v_exp_f32 v{f}, v{f}',
              f'v_mul_f32 v{Lq}, v{f}, v{ml+1}',
              f'v_add_f32_dpp v{Lq}, v{Lq}, v{Lq} quad_perm:[1,0,3,2] {DF}',
              f'v_add_f32_dpp v{Lq}, v{Lq}, v{Lq} quad_perm:[2,3,0,1] {DF}',
              f'v_add_f32_dpp v{Lq}, v{Lq}, v{Lq} row_half_mirror {DF}',
              f'v_rcp_f32 v{Lq}, v{Lq}', f'v_mul_f32 v{f}, v{f}, v{Lq}']
        mf = [f'{MFMA} {vr(ACC+4*d,4)}, {vr(AO,4)}, {ar(aWO+4*d,4)}, 0' for d in range(8)]
        if DL > 1 or self.o.ec:
            p(chk[0]); p(chk[1]); p(mf[0]); p(chk[2]); p(chk[3]); p(sc[0])
            p(f's_cbranch_vccnz {Lr}')
            p(f'{Lok}:')
            p(mf[1]); p(sc[1]); p(mf[2])
        else:
            p(mf[0]); p(chk[0]); p(chk[1]); p(sc[0])
            p(mf[1]); p(chk[2]); p(chk[3]); p(sc[1])
            p(mf[2])
            p(f's_cbranch_vccnz {Lr}')
            p(f'{Lok}:')
        if stk and self.o.stamps >= 2:
            self.stamp(stk); p(f'v_writelane_b32 {vSTAMP}, {sBud}, {stk+10}')
        p(sc[2])
        p(mf[3]); p(sc[3]); p(sc[4])
        p(mf[4]); p(sc[5])
        p(mf[5]); p(sc[6])
        p(mf[6]); p(sc[7])
        p(mf[7]); p(sc[8]); p(sc[9]); p(sc[10])
        for r in range(4):
            for d in range(8):
                op = 'v_mul_f32_dpp' if r == 0 else 'v_fmac_f32_dpp'
                p(f'{op} v{y+d}, v{f}, v{ACC+4*d+r} row_newbcast:{r} {DF}')
        self.reduce_publish(y, 'o', sL, 0)

    def gather_stats(self, va, va3, off, second, shadow=None):
        p = self.p
        u, st, mean, sc = T, T + 1, T + 2, T + 3
        Lp = p.label('Lp')
        if shadow:
            for s_ in self.g3_list(ACC, va, va3, sL): self.vmem(s_, optional=True)
            shadow()
            p(f's_branch {Lp}w')
        p(f'{Lp}:')
        for s_ in self.g3_list(ACC, va, va3, sL): self.vmem(s_, optional=True)
        Lp = (Lp, self.bud())
        if shadow: p(f'{Lp[0]}w:')
        p('s_waitcnt vmcnt(1)')
        so = self.stats_ops(ACC + 4, st, mean, sc, second, ACC + 8)
        for s_ in so[:2]: p(s_)
        p('s_waitcnt vmcnt(0)')
        gs = self.g3_sum(ACC, f'v{u}')
        if self.o.ec:
            p(gs[0]); p(gs[1]); p(so[2])
            p(f'v_cmp_u_f32 vcc, v{ACC}, {vZ}')
            p(gs[2]); p(gs[3])
            p(f's_cbranch_vccnz {Lp[0]}')
            self.merge(so[3:], gs[4:])
        else: self.merge(gs, so[2:])
        return Lp, u, st, mean, sc

    def ha2a(self, shadow=None, stk=None):
        p = self.p
        if stk and self.o.stamps >= 2:
            p(f'v_writelane_b32 {vSTAMP}, {sBud}, {stk+14}')
            if stk == 28: self.stamp(30); self.flush()
        Lp, u, st, mean, sc = self.gather_stats(vHR, vHR3, 256, True, shadow)
        t1_, e = T + 4, T + 5
        A = T + 8
        y = T + 12
        if isinstance(Lp, tuple): Lr, Lok = Lp
        else:
            Lok = p.label('Lok')
            Lr = self.retry(Lp, Lok)
        c0 = -2.0 * math.sqrt(2.0 / math.pi) * math.log2(math.e)
        c1 = c0 * 0.044715
        p(f'v_fma_f32 v{u}, -v{mean}, {CS1}, v{u}')
        p(f'v_fma_f32 v{u}, v{u}, v{sc}, {B1v}')
        p(f'v_mul_f32 v{t1_}, v{u}, v{u}')
        p(f'v_cmp_u_f32 vcc, v{u}, v{st}')
        p(f'v_mul_f32 v{t1_}, {H(f2u(c1))}, v{t1_}')
        p(f'v_add_f32 v{t1_}, {H(f2u(c0))}, v{t1_}')
        p(f's_cbranch_vccnz {Lr}')
        p(f'{Lok}:')
        if stk and self.o.stamps >= 2:
            self.stamp(stk); p(f'v_writelane_b32 {vSTAMP}, {sBud}, {stk+12}')
        p(f'v_mul_f32 v{t1_}, v{t1_}, v{u}')
        p(f'v_exp_f32 v{e}, v{t1_}')
        p(f'v_add_f32 v{e}, 1.0, v{e}')
        p(f'v_rcp_f32 v{e}, v{e}')
        p(f'v_mul_f32 v{u}, v{u}, v{e}')
        p(f'v_cvt_pk_bf16_f32 v{u}, v{u}, v{u}')
        for k in range(4):
            p(f'v_and_b32 v{A+k}, v{u}, v{MK+k}')
        for d in range(4):
            p(f'{MFMA} {vr(ACC+4*d,4)}, {vr(A,4)}, {ar(aW2+4*d,4)}, 0')
        for d in range(4):
            p(f'v_pk_add_f32 {vr(ACC+4*d,2)}, {vr(ACC+4*d,2)}, {vr(ACC+4*d+2,2)}')
            p(f'v_add_f32 v{y+d}, v{ACC+4*d}, v{ACC+4*d+1}')
        self.reduce_publish(y, 'h', sLM, 2048)

    def combine(self, fl):
        p = self.p
        f = T + 5
        p(f'v_mul_f32_dpp v{T}, v{f}, v{ACC} quad_perm:[0,0,0,0] {DF}')
        p(f'v_mul_f32_dpp v{T+1}, v{f}, v{ACC+4} quad_perm:[0,0,0,0] {DF}')
        p(f'ds_write2_b32 {lOW}, v{T}, v{T+1} offset0:0 offset1:64')
        p(f's_cmp_lg_u32 {sW}, 0')
        self.lgkm(0)
        if self.o.stamps: p(f's_cmp_lg_u32 {sW}, 0')
        p('s_barrier')
        Ls = p.label('Lsk')
        p(f's_cbranch_scc1 {Ls}')
        p(f'ds_read2_b64 {vr(ACC,4)}, {lOR} offset0:0 offset1:64')
        p(f'ds_read2_b64 {vr(ACC+4,4)}, {lOR} offset0:128 offset1:192')
        self.lgkm(1)
        p(f'v_pk_add_f32 {vr(ACC,2)}, {vr(ACC,2)}, {vr(ACC+2,2)}')
        self.lgkm(0)
        p(f'v_pk_add_f32 {vr(ACC+4,2)}, {vr(ACC+4,2)}, {vr(ACC+6,2)}')
        p(f'v_pk_add_f32 {vr(ACC,2)}, {vr(ACC,2)}, {vr(ACC+4,2)}')
        p(f'v_cvt_pk_bf16_f32 v{ACC}, v{ACC}, v{ACC+1}')
        self.vmem(f'buffer_store_dword v{ACC}, {vOW}, {srd("WS")}, {sL} offen {fl}', optional=True)
        p(f'{Ls}:')

    def set_layer(self, off):
        p = self.p
        p(f's_mov_b32 {sL}, {H(off)}')
        p(f's_add_u32 {sOS}, {sOS0}, {H(off)}')
        p(f's_mov_b32 {sLM}, {H(off + XMo - XAo)}')

    def finish(self):
        p = self.p
        if self.o.stamps:
            self.stamp(31)
            self.flush()
            p(f'v_writelane_b32 {vSTAMP}, {sBud}, 33')
            p(f's_memtime s[{sSTAMP}:{sSTAMP+1}]'); p('s_waitcnt lgkmcnt(0)')
            p(f'v_writelane_b32 {vSTAMP}, s{sSTAMP}, 35')
            Le = p.label('Lend')
            p(f's_cmp_lg_u32 {sW}, 0'); p(f's_cbranch_scc1 {Le}')
            p(f's_lshl_b32 {sT}, s2, 8'); p(f's_add_u32 {sT}, {sT}, 0x8000000')
            p(f'v_lshlrev_b32 v{T}, 2, {vLane}')
            p(f'buffer_store_dword {vSTAMP}, v{T}, {srd("WS")}, {sT} offen')
            p(f'{Le}:')
        p('s_endpgm')

    def chain(self, A, B, fast, name):
        p = self.p
        o = self.o
        fl = '' if fast else 'sc1'
        vm0, tags0 = self.vm, dict(self.tags)
        p(f'{name}:')
        TB = ACC
        FL = vR
        for layer in range(2):
            def stp(k): self.stamp(8 + 10 * layer + k)
            stp(2)
            self.combine(fl)
            stp(3)
            if layer == 0:
                if A and o.w1bar: p('s_barrier')
                if A and o.probe:
                    p(f'v_bfe_u32 v{T+1}, v0, 3, 2'); p(f'v_lshlrev_b32 v{T+1}, 11, v{T+1}'); p(f'v_and_b32 v{T}, 7, v0'); p(f'v_lshl_add_u32 v{T+1}, v{T}, 4, v{T+1}')
                    p(f's_add_u32 {sT}, {sBX}, {H(OP)}')
                    self.vmem(f'buffer_load_dword v{T}, v{T+1}, {srd("WS")}, {sT} offen sc1', tag='PR')
                for k, f in self.rest: f()
                self.wait('FL2')
                Lfp, Lfok, Lfc = p.label('Lfp'), p.label('Lfok'), p.label('Lfc')
                self.flush()
                p(f'{Lfc}:')
                p(f'v_and_b32 v{t0}, 0x80808080, v{FL}')
                p(f'v_cmp_ne_u32 vcc, 0x80808080, v{t0}')
                Lr = self.retry(Lfp, Lfok)
                self.ool.append([f'{Lfp}:', f'buffer_load_dword v{FL}, v{T+15}, {srd("DBG")}, 0 offen sc1',
                                 's_waitcnt vmcnt(0)', f's_branch {Lfc}'])
                p(f's_cbranch_vccnz {Lr}')
                p(f'{Lfok}:')
            if B:
                def mid():
                    self.wait('WO')
                    self.stamp(28)
                    self.transpose(aWO, 4, TB, T + 12)
                if layer == 0 and o.wolate and not o.womid: mid()
                self.oa2a(o.pdo if layer == 0 else 0, mid if (layer == 0 and o.wolate and o.womid) else None, stk=26 + layer, pre=o.opre if layer else 0)
                stp(4)
                if layer == 0:
                    if o.w2bar and self.rest2: p('s_barrier')
                    for k, f in self.rest2: f()
            def w1f0():
                if o.wv & 2: self.transpose(aW1, 2, ACC, T + 12, rd=False)
                else: self.transpose(aW1, 2, TB, TB + 16)
            def w1f1():
                if self.NH == 1: pass
                elif o.wv & 2: self.transpose(aW1 + 16, 2, ACC + 16, T + 12, rd=False)
                else: self.transpose(aW1 + 16, 2, TB, TB + 16)
                p(f's_mov_b32 {sT2}, {H(CSL)}')
                self.w1((XB, XB), sT2, fl, False, False)
            if A and layer == 0 and o.fill < 2:
                self.wait('W1')
                w1f0()
                if not o.fill: w1f1()
            c1l = [f's_mov_b32 {sT2}, {H(CSL)}'] + self.g3_list(aC1, vHR, vHR3, sT2, acc=True)
            cql = [f's_mov_b32 {sT2}, {H(CSL)}'] + self.g3_list(aCQ, vQR, vQR3, sT2, acc=True)
            if B and layer == 0:
                self.wait('W2')
                if o.stamps >= 2: self.stamp(9)
                if not o.wv:
                    p(f'v_accvgpr_read_b32 {B1v}, a{aB1}'); p(f'v_lshlrev_b32 {B1v}, 16, {B1v}')
                    self.transpose(aW2, 2, TB, TB + 16)
                for s_ in c1l: p(s_)
            if not B and layer == 0 and (o.xgate or not A):
                Lp, Lg, Lok = p.label('Lp'), p.label('Lgive'), p.label('Lok')
                if o.probe:
                    assert o.fill == 2 and o.opc and A
                    Lnp, Lfa, Lj = p.label('Lnp'), p.label('Lfa'), p.label('Lj')
                    p(f's_mov_b32 {sT3}, 0')
                    p(self.npol()); p(f's_cbranch_scc1 {Lnp}')
                    self.wait('PR')
                    p(f'v_cmp_eq_u32 vcc, -1, v{T}')
                    p(f's_cbranch_vccz {Lfa}')
                    p(f's_mov_b32 {sT3}, 1')
                    def lds(k): return [f'v_mov_b32 v{PP[k]}, 0', f'v_mov_b32 v{PP[k]+1}, 0', f'buffer_atomic_or_x2 {vr(PP[k],2)}, {vXR}, {srd("WS")}, {sL} offen sc0 sc1']
                    self.ool.append([f'{Lfa}:'] + ['s_nop 15'] * o.probe + lds(0) + ['s_nop 15'] * o.prgap + lds(1) + ['s_waitcnt vmcnt(2)', f's_branch {Lok}'])
                    self.ool.append([f'{Lnp}:', 's_waitcnt vmcnt(0)', f's_branch {Lok}'])
                else:
                    p(f'v_bfe_u32 v{T+1}, v0, 3, 2'); p(f'v_lshlrev_b32 v{T+1}, 11, v{T+1}'); p(f'v_and_b32 v{T}, 7, v0'); p(f'v_lshl_add_u32 v{T+1}, v{T}, 4, v{T+1}')
                    p(f's_add_u32 {sT}, {sBX}, {H(OP)}')
                p(f'{Lp}:')
                p(f'buffer_load_dword v{T}, v{T+1}, {srd("WS")}, {sT} offen sc1')
                p(f's_sub_u32 {sBud}, {sBud}, 1'); p(f's_cbranch_scc1 {Lg}')
                self.ool.append([f'{Lg}:', f's_mov_b32 {sBud}, 0', 's_waitcnt vmcnt(0)', f's_branch {Lok}'])
                for _ in range(o.xgate - 1): p('s_nop 15')
                p('s_waitcnt vmcnt(0)')
                p(f'v_cmp_eq_u32 vcc, -1, v{T}')
                p(f's_cbranch_vccnz {Lp}')
                p(f'{Lok}:')
                for _ in range(o.xgd): p('s_nop 15')
            LW = 's_waitcnt lgkmcnt(0)'
            if A:
                if layer == 0 and o.fill:
                    assert o.xgate
                    self.x16a(sL, fills=[w1f0, w1f1][2-o.fill:])
                else: self.x16(sL, 0, pre=o.pd1 if layer else o.pd0)
                stp(5)
                self.w1((XA, XA2), sL, fl, True, False, post=self.rm_ops(T + 5, True), w2=LW)
                stp(6)
            if layer == 0 and not B:
                for s_ in cql: p(s_)
            if B and layer == 0 and o.wv:
                def c1sh():
                    p(f'v_accvgpr_read_b32 {B1v}, a{aB1}'); p(f'v_lshlrev_b32 {B1v}, 16, {B1v}')
                    self.transpose(aW2, 2, ACC + 12, ACC + 28, rd=False)
                    self.flush()
                    Lc1, Lcp, Lcok = p.label('Lc'), p.label('Lcp'), p.label('Lcok')
                    p('s_waitcnt vmcnt(2)')
                    p(f'{Lc1}:')
                    for k in range(8): p(f'v_accvgpr_read_b32 v{ACC+12+k}, a{aC1+k}')
                    for s_ in self.g3_sum(ACC + 12, CS1): p(s_)
                    p(f'v_cmp_u_f32 vcc, {CS1}, {CS1}')
                    Lr = self.retry(Lcp, Lcok)
                    self.ool.append([f'{Lcp}:'] + c1l + ['s_waitcnt vmcnt(0)', f's_branch {Lc1}'])
                    p(f's_cbranch_vccnz {Lr}')
                    p(f'{Lcok}:')
                self.ha2a(c1sh, stk=28 + layer)
                stp(7)
                for s_ in cql: p(s_)
            elif B:
                if layer == 0:
                    self.flush()
                    Lc1, Lcp, Lcok = p.label('Lc'), p.label('Lcp'), p.label('Lcok')
                    p(f'{Lc1}:')
                    p('s_waitcnt vmcnt(0)')
                    for k in range(8): p(f'v_accvgpr_read_b32 v{ACC+k}, a{aC1+k}')
                    for s_ in self.g3_sum(ACC, CS1): p(s_)
                    p(f'v_cmp_u_f32 vcc, {CS1}, {CS1}')
                    Lr = self.retry(Lcp, Lcok)
                    self.ool.append([f'{Lcp}:'] + c1l + [f's_branch {Lc1}'])
                    p(f's_cbranch_vccnz {Lr}')
                    p(f'{Lcok}:')
                self.ha2a(stk=28 + layer)
                stp(7)
                if layer == 0:
                    for s_ in cql: p(s_)
            if layer == 1:
                if A:
                    Lf = p.label('Lfin')
                    self.flush()
                    p(f's_or_b32 {sT}, {sX}, {sW}' if not o.xs else f's_mov_b32 {sT}, {sX}')
                    p(f's_cmp_lg_u32 {sT}, 0'); p(f's_cbranch_scc1 {Lf}')
                    if o.acc:
                        self.x16a(sLM, final=True, pre=0 if B else o.pd3)
                        if o.stamps: p('s_barrier')
                    else:
                        self.x16(sLM)
                        if o.xs: p(f's_cmp_lg_u32 {sW}, 0'); p(f's_cbranch_scc1 {Lf}')
                        p(f's_mov_b64 exec, s[{sMF}:{sMF+1}]')
                        p(f's_lshl_b32 {sT}, {sIA}, 6')
                        p(f'buffer_store_dwordx2 {vr(XA,2)}, {vLane}, {srd("OUT")}, {sT} offen')
                        p('s_mov_b64 exec, -1')
                    p(f'{Lf}:')
                self.finish()
                break
            p('s_waitcnt vmcnt(0)')
            for k in range(8): p(f'v_accvgpr_read_b32 v{ACC+k}, a{aCQ+k}')
            for s_ in self.g3_sum(ACC, CSQ): p(s_)
            if A:
                self.x16(sLM, pre=o.pd2)
                stp(8)
            self.set_layer(LSTR)
            if B and o.opwarm:
                p(f'buffer_load_dwordx2 {ar(aC1,2)}, {vOSR}, {srd("WS")}, {sL} offen sc1')
                p(f'buffer_load_dwordx4 {ar(aC1+4,4)}, {vOR}, {srd("WS")}, {sL} offen sc1')
            if A:
                self.qp((XA, XA2), sL, fl, True, False, post=self.rm_ops(T + 5, False), w2=LW)
                stp(9)
            if not A and not B:
                for _ in range(o.pdC): p('s_nop 15')
            Lp, u, st, mean, sc = self.gather_stats(vQR, vQR3, 0, False)
            self.q_finish(u, st, mean, sc, Lp)
            stp(10)
            self.flush()
            self.qk_softmax(vw=o.pl > 1)
            stp(11)
            self.pv(self.ml_ops(fl), False)
            self.flush()
        for code in self.ool:
            for s_ in code: p(s_)
        self.ool = []
        self.vm, self.tags = vm0, tags0

    def kvo(self, mb):
        a = self.o.alt
        if a == 0 or a == 4: k, off = mb >> 2, mb & 3
        elif a == 1: k, off = 2 * (mb >> 3) + (mb & 1), (mb >> 1) & 3
        elif a == 2: k, off = 2 * (mb >> 3) + ((mb >> 1) & 1), (mb & 1) + 2 * ((mb >> 2) & 1)
        return f's{sKV+k} offen offset:{1024*off} nt'
    def kload(self, mb):
        self.vmem(f'buffer_load_dwordx4 {ar(4*mb,4)}, {vK}, {srd("K")}, {self.kvo(mb)}', tag=f'K{mb}')
    def vload(self, mb):
        assert self.vfree, 'V area still in use'
        self.vmem(f'buffer_load_dwordx4 {vr(VB+2+4*mb,4)}, {a16}, {srd("V")}, {self.kvo(mb)}', tag=f'V{mb}')

    def pfcode(self, lo, hi, track=True):
        p = self.p
        L = p.label('Lpc')
        n = SRD['X']
        Ls = p.label('Lpcs')
        if self.o.pfsel:
            track = False
            p(f's_and_b32 {sT}, {sC}, 7'); p(f's_cmp_lg_u32 {sT}, 5'); p(f's_cbranch_scc1 {Ls}')
        p(f's_getpc_b64 s[{n}:{n+1}]')
        p(f'{L}:')
        p(f's_add_u32 s{n}, s{n}, {lo}-{L}'); p(f's_addc_u32 s{n+1}, s{n+1}, {0 if self.fwd else -1}')
        p(f's_mov_b32 s{n+2}, {hi}-{lo}')
        p(f'v_lshlrev_b32 v{t2}, 7, v0'); p(f's_lshl_b32 {sT}, {sW}, 13')
        self.vmem(f'buffer_load_dword a{aCQ+11}, v{t2}, {srd("X")}, {sT} offen', optional=not track)
        p(f'{Ls}:')

    def head(self):
        p = self.p
        o = self.o
        p('L_top:')
        p('s_cmp_lt_u32 s2, 256'); p('s_cbranch_scc1 L_go')
        p('s_endpgm')
        p('L_go:')
        p(f's_load_dwordx16 s[{KA}:{KA+15}], s[0:1], 0')
        p(f's_load_dwordx2 s[{SRD["WS"]}:{SRD["WS"]+1}], s[0:1], {KOFF["WS"]}')
        if o.stamps:
            p('s_memrealtime s[96:97]')
            p('s_memtime s[98:99]')
        p('v_lshrrev_b32 v1, 6, v0')
        p('v_and_b32 v0, 63, v0')
        p(f'v_readfirstlane_b32 {sW}, v1')
        p(f's_and_b32 {sX}, s2, 7'); p(f's_lshr_b32 {sC}, s2, 3'); p(f's_and_b32 {sJ}, {sC}, 3'); p(f's_lshr_b32 {sS}, {sC}, 2')
        if o.jx: p(f's_xor_b32 {sJ}, {sJ}, {o.jx}')
        if o.sx: p(f's_xor_b32 {sS}, {sS}, {o.sx}')
        if o.xx: p(f's_xor_b32 {sX}, {sX}, {o.xx}')
        if o.xperm:
            cst = sum(int(ch) << (4 * i) for i, ch in enumerate(o.xperm))
            p(f's_lshl_b32 {sX}, {sX}, 2'); p(f's_lshr_b32 {sX}, {H(cst)}, {sX}'); p(f's_and_b32 {sX}, {sX}, 7')
        if o.pfa:
            n = SRD['OUT']
            p(f's_sub_u32 {sT}, {sC}, {o.pfc}'); p(f's_cmp_ge_u32 {sT}, 2'); p('s_cbranch_scc1 L_nopf')
            p(f's_getpc_b64 s[{n}:{n+1}]')
            p('L_pc:')
            p(f's_mov_b32 s{n+2}, L_fastend-L_pc+{o.pfx}'); p(f's_mov_b32 s{n+3}, 0x00020000')
            p(f's_lshl_b32 {sT}, {sT}, 2'); p(f's_add_u32 {sT}, {sT}, {sW}'); p(f's_lshl_b32 {sT}, {sT}, 13')
            p(f'v_lshlrev_b32 v{t2}, 7, v0')
            self.vmem(f'buffer_load_dword a{aCQ+11}, v{t2}, {srd("OUT")}, {sT} offen', optional=True)
            p('L_nopf:')
        vWQ, vWO, vXs = T + 12, T + 13, T + 14
        sQ, sO = sMc, sOS
        p(f'v_lshlrev_b32 {a16}, 4, v0')
        p(f'v_and_b32 v{vR}, 15, v0'); p(f'v_lshrrev_b32 v{vG}, 4, v0')
        p(f's_mov_b32 {sIA}, {sC}'); p(f's_sub_u32 {sIB}, {sC}, 12')
        for n in ('X', 'WQ', 'WO'):
            p(f's_mov_b32 s{SRD[n]+2}, {H(SIZE[n])}'); p(f's_mov_b32 s{SRD[n]+3}, 0x00020000')
        p(f'v_lshlrev_b32 v{vWQ}, 16, v{vG}'); p(f'v_lshl_add_u32 v{vWQ}, v{vR}, 4, v{vWQ}')
        p(f's_lshl_b32 {sT3}, {sC}, 1'); p(f's_add_u32 {sT2}, {sC}, 8'); p(f's_min_u32 {sT3}, {sT3}, {sT2}')
        p(f's_lshl_b32 {sQ}, {sT3}, 18'); p(f's_lshl_b32 {sT2}, {sX}, 10'); p(f's_add_u32 {sQ}, {sQ}, {sT2}')
        p(f's_lshl_b32 {sT2}, {sW}, 8'); p(f's_add_u32 {sQ}, {sQ}, {sT2}')
        p(f'v_and_b32 v{vXs}, 0x38, v0'); p(f'v_lshl_add_u32 v{vXs}, {sT3}, 6, v{vXs}')
        p(f'v_and_b32 v{t0}, 1, v{vG}'); p(f'v_lshlrev_b32 v{t0}, 6, v{t0}')
        p(f'v_lshrrev_b32 v{t2}, 3, v{vR}'); p(f'v_lshl_add_u32 v{t0}, v{t2}, 1, v{t0}')
        p(f'v_lshrrev_b32 v{t1}, 1, v{vG}'); p(f'v_add_u32 v{t0}, v{t0}, v{t1}')
        p(f'v_mul_u32_u24 v{t0}, 1280, v{t0}')
        p(f'v_and_b32 v{t1}, 7, v0'); p(f'v_lshl_add_u32 v{vWO}, v{t1}, 4, v{t0}')
        p(f's_and_b32 {sT}, {sIB}, 1'); p(f's_lshl_b32 {sT}, {sT}, 1'); p(f's_lshr_b32 {sT2}, {sW}, 1'); p(f's_add_u32 {sT}, {sT}, {sT2}')
        p(f's_lshl_b32 {sT2}, {sX}, 2'); p(f's_add_u32 {sT}, {sT}, {sT2}'); p(f's_lshl_b32 {sT}, {sT}, 7')
        p(f's_and_b32 {sT2}, {sW}, 1'); p(f's_lshl_b32 {sT2}, {sT2}, 2'); p(f's_add_u32 {sT}, {sT}, {sT2}')
        p(f's_mul_i32 {sO}, {sT}, 1280'); p(f's_lshr_b32 {sT2}, {sIB}, 1'); p(f's_lshl_b32 {sT2}, {sT2}, 7'); p(f's_add_u32 {sO}, {sO}, {sT2}')
        p(f's_cmp_ge_u32 {sC}, 12')
        p('s_waitcnt lgkmcnt(0)')
        self.mv('WO')
        p('s_cbranch_scc1 L_eB')
        self.mv('X'); self.mv('WQ')
        self.vmem(f'buffer_load_dwordx4 {vr(XF,4)}, {a16}, {srd("X")}, 0 offen', tag='XF')
        self.vmem(f'buffer_load_dwordx4 {vr(XF+4,4)}, {a16}, {srd("X")}, 0 offen offset:1024', tag='XF')
        self.vmem(f'buffer_load_dwordx2 {vr(XA,2)}, v{vXs}, {srd("X")}, 0 offen', tag='XF')
        self.vmem(f'buffer_load_dwordx2 {vr(XA2,2)}, v{vXs}, {srd("X")}, 0 offen offset:64', tag='XF')
        for jj in range(16):
            self.vmem(f'buffer_load_dwordx4 {vr((WR if jj < 8 else WOR-32)+4*jj,4)}, v{vWQ}, {srd("WQ")}, {sQ} offen nt', tag='WQ' if jj >= 8 else 'WQ0')
            if jj < 15: p(f's_add_u32 {sQ}, {sQ}, {8192*25 if jj == 7 else 8192}')
            if jj == 7:
                p(f's_cmp_ge_u32 {sC}, 8'); p('s_cbranch_scc1 L_roleC')
                self.stC = (self.vm, dict(self.tags))
        p('s_branch L_roleA')
        p('L_eB:')
        for jj in range(o.n0B):
            p(f'buffer_load_dwordx4 {vr(WOR+4*jj,4)}, v{vWO}, {srd("WO")}, {sO} offen nt')
            p(f's_add_u32 {sO}, {sO}, {8*1280}')
        if not o.order.startswith('B'): p('s_branch L_roleB')

    def mv(self, n): self.p(f's_mov_b64 s[{SRD[n]}:{SRD[n]+1}], s[{KA+KOFF[n]//4}:{KA+KOFF[n]//4+1}]')

    def late_head(self):
        p = self.p
        for n in SRD:
            if n in ('X', 'WQ', 'WO'): continue
            p(f's_mov_b32 s{SRD[n]+2}, {H(SIZE[n])}'); p(f's_mov_b32 s{SRD[n]+3}, 0x00020000')
        for k in range(4): p(f'v_mov_b32 v{SN+k}, -1')
        p(f's_mul_i32 {sBX}, {sX}, {H(GB)}')
        p(f's_lshl_b32 {sT2}, {sX}, 2'); p(f's_add_u32 {sT2}, {sT2}, {sJ}')
        p(f's_lshl_b32 s{sKV}, {sT2}, 20')
        if self.o.il != 1:
            p(f's_lshl_b32 {sT2}, {sS}, 17'); p(f's_add_u32 s{sKV}, s{sKV}, {sT2}')
        if self.o.il:
            p(f's_lshl_b32 {sT2}, {sS}, 14'); p(f's_add_u32 s{sKV}, s{sKV}, {sT2}')
            p(f's_lshl_b32 {sT2}, {sW}, 12'); p(f's_add_u32 s{sKV}, s{sKV}, {sT2}')
            seq = [0, 1, 2, 3, 4, 5, 6, 7] if self.o.il < 3 else [0, 4, 2, 6, 1, 5, 3, 7]
            for k in range(1, 8): p(f's_xor_b32 s{sKV+k}, s{sKV}, {H(seq[k] << 17)}')
        elif self.o.alt:
            p(f's_and_b32 {sT2}, {sW}, 1'); p(f's_mul_i32 {sT2}, {sT2}, {H(0x3000 if self.o.altw else 0x1000)}'); p(f's_add_u32 s{sKV}, s{sKV}, {sT2}')
            p(f's_lshr_b32 {sT2}, {sW}, 1'); p(f's_lshl_b32 {sT2}, {sT2}, 14'); p(f's_add_u32 s{sKV}, s{sKV}, {sT2}')
            p(f's_xor_b32 s{sKV+1}, s{sKV}, 0x2000')
            for k in range(2, 8): p(f's_add_u32 s{sKV+k}, s{sKV+(k&1)}, {32768*(k>>1)}')
        else:
            p(f's_lshl_b32 {sT2}, {sW}, 12'); p(f's_add_u32 s{sKV}, s{sKV}, {sT2}')
            for k in range(1, 8): p(f's_add_u32 s{sKV+k}, s{sKV}, {16384*k}')
        p(f'v_bfe_u32 v{t1}, v0, 2, 2'); p(f'v_lshlrev_b32 {vK}, 8, v{t1}')
        p(f'v_lshl_add_u32 {vK}, v{vG}, 6, {vK}')
        p(f'v_and_b32 v{t1}, 3, v0'); p(f'v_lshl_add_u32 {vK}, v{t1}, 4, {vK}')
        p(f'v_and_b32 v{t0}, 1, v{vG}'); p(f'v_lshrrev_b32 v{vD}, 1, v{vG}'); p(f'v_lshl_add_u32 v{vD}, v{t0}, 1, v{vD}')
        p(f's_mov_b32 {sLo}, 0x05040100'); p(f's_mov_b32 {sHi}, 0x07060302')

    def common_addr(self):
        p = self.p
        p(f's_mov_b32 {sBud}, 100000')
        for b in range(4):
            p(f's_mov_b32 s{sMB+2*b}, {H(0x11111111 << b)}'); p(f's_mov_b32 s{sMB+2*b+1}, {H(0x11111111 << b)}')
        p(f's_mov_b32 s{sMF}, 0x01010101'); p(f's_mov_b32 s{sMF+1}, 0x01010101')
        p(f's_lshl_b32 {sT}, {sJ}, 3'); p(f's_add_u32 {sT}, {sT}, {sS}')
        p(f's_lshl_b32 {sT2}, {sT}, 8'); p(f's_add_u32 {sT2}, {sT2}, {sBX}'); p(f's_add_u32 {sT2}, {sT2}, {H(OP)}')
        if self.o.opc:
            p(f's_lshl_b32 {sT2}, {sJ}, 11'); p(f's_lshl_b32 {sT3}, {sS}, 4'); p(f's_add_u32 {sT2}, {sT2}, {sT3}')
            p(f's_add_u32 {sT2}, {sT2}, {sBX}'); p(f's_add_u32 {sT2}, {sT2}, {H(OP)}')
            p(f'v_lshrrev_b32 v{t0}, 2, v0'); p(f'v_lshlrev_b32 {vOW}, 7, v{t0}'); p(f'v_and_b32 v{t0}, 3, v0')
            p(f'v_lshl_add_u32 {vOW}, v{t0}, 2, {vOW}'); p(f'v_add_u32 {vOW}, {sT2}, {vOW}')
        else:
            p(f'v_lshlrev_b32 {vOW}, 2, v0'); p(f'v_add_u32 {vOW}, {sT2}, {vOW}')
        if self.o.osc:
            p(f's_lshl_b32 {sOS0}, {sJ}, 9'); p(f's_lshl_b32 {sT2}, {sS}, 3'); p(f's_add_u32 {sOS0}, {sOS0}, {sT2}')
        else: p(f's_lshl_b32 {sOS0}, {sT}, 3')
        p(f's_add_u32 {sOS0}, {sOS0}, {sBX}'); p(f's_add_u32 {sOS0}, {sOS0}, {H(OS)}')
        p(f's_mul_i32 {sT}, {sJ}, {4*QS}'); p(f's_mul_i32 {sT2}, {sW}, {QS}'); p(f's_add_u32 {sT}, {sT}, {sT2}'); p(f's_add_u32 {sT}, {sT}, {sBX}')
        p(f'v_add_u32 {vQR}, {sT}, {a16}')
        p(f'v_lshlrev_b32 v{t0}, 7, v{vG}'); p(f'v_sub_u32 {vQR3}, {vQR}, v{t0}'); p(f'v_add_u32 {vQR3}, {1024-128}, {vQR3}')
        p(f'v_mov_b32 v{t1}, {H(OOB)}')
        p(f'v_and_b32 v{t0}, 1, v{vR}'); p(f'v_mul_u32_u24 v{t0}, 48, v{t0}')
        p(f'v_lshrrev_b32 v{t2}, 1, v{vR}'); p(f'v_lshl_add_u32 v{t0}, v{t2}, 4, v{t0}')
        p(f's_lshl_b32 {sT}, {sW}, 9')
        p(f's_add_u32 {sT}, {sT}, {sBX}'); p(f's_add_u32 {sT}, {sT}, {H(ST)}'); p(f'v_add_u32 v{t0}, {sT}, v{t0}')
        p(f'v_cmp_gt_u32 vcc, 6, v{vR}'); p(f'v_cndmask_b32 v{t0}, v{t1}, v{t0}, vcc')
        p(f'v_cmp_gt_u32 vcc, 8, v{vR}'); p(f'v_cndmask_b32 {vQR3}, {vQR3}, v{t0}, vcc')
        p(f'v_mov_b32 {vZ}, 0')
        p(f'v_and_b32 v{t0}, 7, v0'); p(f'v_lshl_add_u32 v{t0}, v{t0}, 2, v{vD}'); p(f's_lshl_b32 {sT}, {sW}, 5'); p(f'v_add_u32 v{t0}, {sT}, v{t0}')
        p(f'v_lshlrev_b32 {lQW}, 1, v{t0}')
        p(f'v_lshrrev_b32 v{t0}, 2, v0'); p(f'v_lshlrev_b32 {lQR}, 4, v{t0}')
        p(f'v_lshlrev_b32 {lMW}, 3, v0'); p(f'v_add_u32 {lMW}, {L_J1}, {lMW}')
        p(f's_lshl_b32 {sT}, {sW}, 3'); p(f's_add_u32 {sT}, {sT}, {L_ML}'); p(f'v_writelane_b32 {lMW}, {sT}, 63')
        p(f'v_add_u32 v{t0}, {sW}, v0'); p(f'v_and_b32 v{t0}, 3, v{t0}'); p(f'v_lshlrev_b32 v{t0}, 3, v{t0}'); p(f'v_add_u32 {lMR}, {L_ML}, v{t0}')
        p(f's_lshl_b32 {sT}, {sW}, 9'); p(f's_add_u32 {sT}, {sT}, {L_O}'); p(f'v_lshlrev_b32 {lOW}, 2, v0'); p(f'v_add_u32 {lOW}, {sT}, {lOW}')
        p(f'v_lshlrev_b32 {lOR}, 3, v0'); p(f'v_add_u32 {lOR}, {L_O}, {lOR}')
        p(f'v_mov_b32 {vC}, {H(f2u(CSC))}')
        for k in range(24): p(f'v_mov_b32 v{BQ+k}, 0')
        p(f'v_lshlrev_b32 v{T+15}, 2, v0'); p(f'v_and_b32 v{T+14}, 28, v{T+15}')

    def addrB(self):
        p = self.p
        sHF, sCB = sL, sLM
        p(f's_and_b32 {sHF}, {sIB}, 1'); p(f's_lshr_b32 {sCB}, {sIB}, 1')
        p(f'v_and_b32 v{t0}, 1, v{vG}'); p(f'v_lshlrev_b32 {vXW}, 11, v{t0}')
        p(f'v_and_b32 v{t0}, 7, v0'); p(f'v_lshl_add_u32 {vXW}, v{t0}, 4, {vXW}')
        p(f's_lshl_b32 {sT}, {sCB}, 12'); p(f's_lshl_b32 {sT2}, {sX}, 8'); p(f's_add_u32 {sT}, {sT}, {sT2}')
        p(f's_lshl_b32 {sT2}, {sHF}, 7'); p(f's_add_u32 {sT}, {sT}, {sT2}'); p(f's_add_u32 {sT}, {sT}, {H(XAo)}')
        p(f'v_add_u32 {vXW}, {sT}, {vXW}')
        if self.o.acc:
            p(f'v_lshrrev_b32 {vXW}, 5, v0'); p(f'v_lshlrev_b32 {vXW}, 11, {vXW}')
            p(f'v_bfe_u32 v{t1}, v0, 3, 2'); p(f'v_lshl_add_u32 {vXW}, v{t1}, 8, {vXW}')
            p(f'v_lshl_add_u32 {vXW}, v{t0}, 3, {vXW}')
            p(f's_lshl_b32 {sT}, {sCB}, 12'); p(f's_lshl_b32 {sT2}, {sHF}, 10'); p(f's_add_u32 {sT}, {sT}, {sT2}'); p(f's_add_u32 {sT}, {sT}, {H(XAo)}')
            p(f'v_add_u32 {vXW}, {sT}, {vXW}')
        p(f's_lshr_b32 {sT3}, {sW}, 1'); p(f's_lshl_b32 {sT}, {sHF}, 1'); p(f's_add_u32 {sT3}, {sT3}, {sT}')
        oc = 3 if self.o.opc else 0
        p(f'v_lshlrev_b32 {vOR}, {4 if oc else 8}, v{t0}')
        p(f'v_lshrrev_b32 v{t2}, 3, v{vR}'); p(f'v_lshl_add_u32 {vOR}, v{t2}, {6+oc}, {vOR}')
        p(f'v_lshl_add_u32 {vOR}, v{vG}, {4+oc}, {vOR}')
        p(f's_lshl_b32 {sT}, {sT3}, 11'); p(f's_and_b32 {sT2}, {sW}, 1'); p(f's_lshl_b32 {sT2}, {sT2}, {7+oc}'); p(f's_add_u32 {sT}, {sT}, {sT2}')
        p(f's_add_u32 {sT}, {sT}, {sBX}'); p(f's_add_u32 {sT}, {sT}, {H(OP)}'); p(f'v_add_u32 {vOR}, {sT}, {vOR}')
        p(f'v_lshl_add_u32 v{t1}, v{vG}, 2, v{vR}'); p(f'v_and_b32 v{t1}, 7, v{t1}'); p(f'v_lshlrev_b32 v{t1}, 3, v{t1}')
        if self.o.osc:
            p(f's_lshl_b32 {sT}, {sT3}, 9'); p(f's_and_b32 {sT2}, {sW}, 1'); p(f's_lshl_b32 {sT2}, {sT2}, 8'); p(f's_add_u32 {sT}, {sT}, {sT2}')
            p(f'v_lshl_add_u32 v{t1}, v{t2}, 31, v{t1}')
        else: p(f's_lshl_b32 {sT}, {sT3}, 6')
        p(f's_add_u32 {sT}, {sT}, {sBX}'); p(f's_add_u32 {sT}, {sT}, {H(OS)}'); p(f'v_add_u32 {vOSR}, {sT}, v{t1}')
        p(f's_lshl_b32 {sT}, {sHF}, 2'); p(f's_add_u32 {sT}, {sT}, {sW}'); p(f's_mul_i32 {sT}, {sT}, {QS}')
        p(f's_add_u32 {sT}, {sT}, {sBX}'); p(f's_add_u32 {sT}, {sT}, {H(HP)}'); p(f'v_add_u32 {vHR}, {sT}, {a16}')
        p(f's_cmp_eq_u32 {sW}, 3'); p(f's_cselect_b32 {sT3}, 6, 7')
        p(f'v_mov_b32 v{t1}, {H(OOB)}')
        p(f'v_cmp_gt_u32 vcc, {sT3}, v{t0}'); p(f'v_cndmask_b32 {vHR}, v{t1}, {vHR}, vcc')
        p(f'v_lshlrev_b32 v{T}, 7, v{vG}'); p(f'v_sub_u32 {vHR3}, {vHR}, v{T}'); p(f'v_add_u32 {vHR3}, {1024-128}, {vHR3}')
        p(f'v_add_u32 v{T}, 256, {vQR3}')
        p(f'v_cmp_gt_u32 vcc, 8, v{vR}'); p(f'v_cndmask_b32 {vHR3}, {vHR3}, v{T}, vcc')
        p(f'v_and_b32 v{T}, 1, v0'); p(f'v_lshlrev_b32 v{T}, 4, v{T}'); p(f'v_mov_b32 v{t1}, 0xffff'); p(f'v_lshlrev_b32 v{t1}, v{T}, v{t1}')
        p(f'v_cmp_gt_u32 vcc, {sT3}, v{vR}'); p(f'v_cndmask_b32 v{t1}, 0, v{t1}, vcc')
        p(f'v_bfe_u32 v{T}, v0, 1, 2')
        for k in range(4):
            p(f'v_cmp_eq_u32 vcc, {k}, v{T}'); p(f'v_cndmask_b32 v{MK+k}, 0, v{t1}, vcc')
        p(f's_lshl_b32 {sT}, {sW}, 9'); p(f's_add_u32 {sT}, {sT}, {L_R}')
        p(f'v_and_b32 v{T}, 1, v{vG}')
        p(f'v_lshlrev_b32 {lRR}, 8, v{t2}'); p(f'v_lshl_add_u32 {lRR}, v{t0}, 4, {lRR}'); p(f'v_lshl_add_u32 {lRR}, v{T}, 7, {lRR}')
        p(f'v_add_u32 {lRR}, {L_R}, {lRR}')
        if self.o.acc: p(f'v_lshlrev_b32 {lRR}, 2, v0'); p(f'v_add_u32 {lRR}, {L_R}, {lRR}')
        p(f'v_lshlrev_b32 {lRW}, 8, v{t2}'); p(f'v_lshl_add_u32 {lRW}, v{t0}, 5, {lRW}'); p(f'v_lshl_add_u32 {lRW}, v{T}, 4, {lRW}')
        p(f'v_add_u32 {lRW}, {sT}, {lRW}')
        p(f'v_add_u32 v{t1}, {L_J2}, {a16}')
        p(f'v_lshrrev_b32 v{T}, 1, v{vG}'); p(f'v_cmp_eq_u32 vcc, v{t2}, v{T}')
        p(f'v_cndmask_b32 {lRW}, v{t1}, {lRW}, vcc')
        p(f'v_add_u32 {lRW2}, {sT}, {a16}')
        p(f'v_cmp_gt_u32 vcc, 32, v0'); p(f'v_cndmask_b32 {lRW2}, v{t1}, {lRW2}, vcc')
        p(f'v_lshl_add_u32 v{t0}, v{t0}, 2, v{vD}'); p(f'v_lshlrev_b32 {aB1v}, 1, v{t0}')
        p(f'v_mul_u32_u24 {aW2v}, 1280, v{vD}'); p(f'v_lshl_add_u32 {aW2v}, v{vR}, 3, {aW2v}')

    def addrA(self):
        p = self.p
        p(f's_lshl_b32 {sT}, {sW}, 9'); p(f's_add_u32 {sT}, {sT}, {sBX}'); p(f's_add_u32 {sT}, {sT}, {H(ST)}')
        p(f's_lshl_b32 {sT2}, {sIA}, 2'); p(f's_add_u32 {sT3}, {sT}, {sT2}')
        p(f'v_mov_b32 {vSW}, {sT3}'); p(f's_add_u32 {sT3}, {sT3}, 48'); p(f'v_writelane_b32 {vSW}, {sT3}, 0')
        if self.NH == 2: p(f's_lshr_b32 {sH}, {sW}, 1'); p(f's_lshl_b32 {sT}, {sIA}, 1'); p(f's_add_u32 {sH}, {sH}, {sT}')
        else: p(f's_add_u32 {sH}, {sIA}, 8')
        p(f'v_bfe_u32 v{t0}, v0, 3, 1'); p(f'v_lshlrev_b32 {vXR}, 10, v{t0}')
        p(f'v_lshl_add_u32 {vXR}, v{vG}, 8, {vXR}')
        p(f'v_and_b32 v{t0}, 7, v0'); p(f'v_lshl_add_u32 {vXR}, v{t0}, 3, {vXR}')
        p(f's_lshl_b32 {sT}, {sH}, 11'); p(f's_add_u32 {sT}, {sT}, {H(XAo)}'); p(f'v_add_u32 {vXR}, {sT}, {vXR}')
        for k in range(4): p(f'v_mov_b32 v{XB+k}, 0x3f803f80')
        p(f'v_mul_u32_u24 {aW1v}, {8*3456}, v{vG}'); p(f'v_lshl_add_u32 {aW1v}, v{vR}, 3, {aW1v}')

    def prologue(self, A, B, name):
        p = self.p
        o = self.o
        vm0, tags0 = self.vm, dict(self.tags)
        self.vfree = False
        p(f'L_role{name}:')
        sSX, sSXX = sL, sLM
        D = {'A': o.dA, 'C': o.dC, 'B': o.dB}[name]
        vWQ, vWO, vXs = T + 12, T + 13, T + 14
        sQ, sO, sCL = sMc, sOS, sMode
        mv = self.mv
        if not A: self.vm, self.tags = 0, {}
        NH = self.NH = 1 if name == 'C' else 2
        if name == 'C': self.vm, self.tags = self.stC[0], dict(self.stC[1])
        if not o.hk: self.late_head()
        if A:
            p(f'v_lshrrev_b32 v{t0}, 2, v{vR}'); p(f'v_mul_u32_u24 {vQW}, {QS}, v{t0}')
            p(f'v_and_b32 v{t0}, 3, v{vR}'); p(f'v_lshl_add_u32 {vQW}, v{t0}, 5, {vQW}')
            p(f'v_lshl_add_u32 {vQW}, v{vG}, 4, {vQW}')
            p(f's_mul_i32 {sT}, {sW}, {4*QS}'); p(f's_lshl_b32 {sT2}, {sIA}, 7'); p(f's_add_u32 {sT2}, {sT2}, {sBX}'); p(f's_add_u32 {sT}, {sT}, {sT2}')
            p(f'v_add_u32 {vQW}, {sT}, {vQW}')
            p('s_mov_b32 exec_hi, 0')
            self.vmem(f'buffer_store_dwordx4 {vr(SN,4)}, {vQW}, {srd("WS")}, 0 offen sc1', tag='CLR')
            p('s_mov_b64 exec, -1')
            p(f's_lshl_b32 {sT}, {sW}, 4'); p(f'v_add_u32 v{t0}, {sT}, v{vR}')
            p(f'v_subrev_u32 v{t1}, 27, v{t0}')
            p(f'v_cmp_le_u32 vcc, 27, v{t0}'); p(f'v_cndmask_b32 v{t1}, v{t0}, v{t1}, vcc')
            p(f'v_cndmask_b32 v{t2}, 0, 4, vcc')
            p(f'v_mul_u32_u24 {vHW}, 37, v{t1}'); p(f'v_lshrrev_b32 {vHW}, 8, {vHW}')
            p(f'v_add_u32 v{t2}, v{t2}, {vHW}')
            p(f'v_mul_u32_u24 {vHW}, 7, {vHW}'); p(f'v_sub_u32 v{t1}, v{t1}, {vHW}')
            p(f'v_mul_u32_u24 {vHW}, {QS}, v{t2}'); p(f'v_lshl_add_u32 {vHW}, v{t1}, 4, {vHW}')
            p(f's_add_u32 {sT2}, {sT2}, {H(HP)}'); p(f'v_add_u32 {vHW}, {sT2}, {vHW}')
            p(f'v_mov_b32 v{t1}, {H(OOB)}')
            p(f'v_cmp_gt_u32 vcc, 54, v{t0}'); p(f'v_cndmask_b32 {vHW}, v{t1}, {vHW}, vcc')
            p(f's_mov_b32 {sT2}, {H(CSL)}')
            p('s_mov_b64 exec, 0xffff')
            self.vmem(f'buffer_store_dwordx4 {vr(SN,4)}, {vHW}, {srd("WS")}, {sT2} offen sc1', tag='CLR')
            p('s_mov_b64 exec, -1')
        else:
            p(f's_sub_u32 {sT}, {sC}, 20'); p(f's_lshl_b32 {sT}, {sT}, 2'); p(f's_add_u32 {sT3}, {sT}, {sW}')
            p(f's_lshl_b32 {sT}, {sT3}, 10')
            p(f's_add_u32 {sCL}, {sT}, {sBX}'); p(f's_add_u32 {sCL}, {sCL}, {H(OP)}')
            p(f's_mul_i32 {sT2}, {sX}, 5120'); p(f's_add_u32 {sT}, {sT}, {sT2}'); p(f's_add_u32 {sT}, {sT}, {H(XAo - NE * 1024)}')
            p(f's_cmp_lt_u32 {sT3}, {NE}'); p(f's_cselect_b32 {sCL}, {sCL}, {sT}')
            if o.acc:
                p(f's_cselect_b32 {sT}, -1, 0'); p(f's_cselect_b32 {sT2}, -1, {H(MHI - 0x08000000)}')
                for k in range(4): p(f'v_mov_b32 v{SN+k}, {sT2 if k & 1 else sT}')
            p(f's_cmp_lt_u32 {sT3}, {NE+5}'); p(f's_cselect_b32 {sCL}, {sCL}, {H(OOB)}')
            p(f'v_add_u32 v{t0}, {sCL}, {a16}')
            self.vmem(f'buffer_store_dwordx4 {vr(SN,4)}, v{t0}, {srd("WS")}, 0 offen sc1', tag='CLR')
        mv('K'); mv('V')
        p(f's_getreg_b32 {sFlag}, hwreg(HW_REG_XCC_ID)'); p(f's_and_b32 {sFlag}, {sFlag}, 15'); p(f's_or_b32 {sFlag}, {sFlag}, 0x80')
        WOl = []
        if B:
            if o.wolate: p(f'v_add_u32 v{vWO}, {sO}, v{vWO}')
            for jj in range(8):
                def f(jj=jj):
                    if o.wolate:
                        if jj: p(f's_mov_b32 {sWB}, {8*1280*jj}')
                        self.vmem(f'buffer_load_dwordx4 {ar(aWO+4*jj,4)}, v{vWO}, {srd("WO")}, {sWB if jj else 0} offen nt', tag='WO')
                        return
                    self.vmem(f'buffer_load_dwordx4 {vr(WOR+4*jj,4)}, v{vWO}, {srd("WO")}, {sO} offen nt', tag='WO')
                    if jj < 7: p(f's_add_u32 {sO}, {sO}, {8*1280}')
                WOl.append(('WO', f))
        Wl = []
        if A:
            for jj in range(8 * NH):
                def f(jj=jj):
                    if jj == 0:
                        p(f's_mul_i32 {sWA}, {sIA}, {64*3456}' if NH == 2 else f's_mul_i32 {sWA}, {sH}, {32*3456}'); p(f's_mul_i32 {sWB}, {sX}, 432'); p(f's_add_u32 {sWA}, {sWA}, {sWB}')
                        p(f's_lshl_b32 {sWB}, {sW}, 7'); p(f's_add_u32 {sWA}, {sWA}, {sWB}')
                    else: p(f's_add_u32 {sWA}, {sWA}, {3456*25 if jj == 8 else 3456}')
                    self.vmem(f'buffer_load_dwordx2 {vr(ACC+2*jj,2) if o.wv & 2 else ar(aW1+2*jj,2)}, {aW1v}, {srd("W1")}, {sWA} offen {o.w1nt}', tag='W1')
                Wl.append(('W', f))
        if B:
            for jj in range(8):
                def f(jj=jj):
                    if jj == 0:
                        p(f's_mul_i32 {sWA}, {sX}, 216'); p(f's_and_b32 {sWB}, {sIB}, 1'); p(f's_mul_i32 {sWB}, {sWB}, 108'); p(f's_add_u32 {sWA}, {sWA}, {sWB}')
                        p(f's_mul_i32 {sWB}, {sW}, 28'); p(f's_add_u32 {sWA}, {sWA}, {sWB}')
                        p(f's_lshl_b32 {sWB}, {sWA}, 1')
                        self.vmem(f'buffer_load_ushort a{aB1}, {aB1v}, {srd("B1")}, {sWB} offen', tag='B1')
                        p(f's_mul_i32 {sWA}, {sWA}, 1280'); p(f's_lshr_b32 {sWB}, {sIB}, 1'); p(f's_lshl_b32 {sWB}, {sWB}, 7'); p(f's_add_u32 {sWA}, {sWA}, {sWB}')
                    else: p(f's_add_u32 {sWA}, {sWA}, {4*1280}')
                    self.vmem(f'buffer_load_dwordx2 {vr(ACC+12+2*jj,2) if o.wv else ar(aW2+2*jj,2)}, {aW2v}, {srd("W2")}, {sWA} offen {o.w2nt}', tag='W2')
                Wl.append(('W', f))
        KV = [(f'K{m}', (lambda m=m: self.kload(m))) for m in range(32)] + [(f'V{m}', (lambda m=m: self.vload(m))) for m in range(32)]
        wi = o.wposAB if A else o.wposB
        if o.wolate:
            st = list(KV)
            for jj, it in enumerate(WOl):
                pos = min(len(st), wi + jj * (o.wolate))
                st.insert(pos, it)
            if not A and o.hk:
                st = st[o.n0B:]
                for mb in range(o.n0B): self.tags[f'K{mb}'] = 0
        else:
            if not A: WOl = WOl[o.n0B:]
            st = KV[:wi] + WOl + KV[wi:]
        FL = vR
        i2 = [k for k, f in st].index(o.fpos2)
        st.insert(i2, ('FL2', lambda: self.vmem(f'buffer_load_dword v{FL}, v{T+15}, {srd("DBG")}, 0 offen sc1', tag='FL2')))
        if A and not B and o.w2pf:
            def pf():
                Ls = p.label('Lw2pf')
                p(f's_cmp_ge_u32 {sC}, 9'); p(f's_cbranch_scc1 {Ls}')
                p(f's_lshl_b32 {sWA}, {sC}, 2'); p(f's_add_u32 {sWA}, {sWA}, {sW}'); p(f's_lshl_b32 {sWA}, {sWA}, 13')
                p(f's_mul_i32 {sWB}, {sX}, {216*1280}'); p(f's_add_u32 {sWA}, {sWA}, {sWB}')
                p(f'v_lshlrev_b32 {vXW}, 7, v0')
                self.vmem(f'buffer_load_dword a{aCQ+11}, {vXW}, {srd("W2")}, {sWA} offen', optional=True)
                p(f'{Ls}:')
            keys = [k for k, f in st]
            st.insert(keys.index(o.w2pf) + 1, ('PF', pf))
        if A and B and o.wabpos:
            assert o.w2pos & 1
            i3 = [k for k, f in st].index(o.wabpos)
            ins = Wl if not o.wab2 else Wl[8:]
            for n_, it in enumerate(ins): st.insert(i3 + n_ * (1 + o.wabsp), it)
            Wl = [] if not o.wab2 else Wl[:8]
        if name != 'A' and o.hp:
            assert o.il == 3
            seq = [0, 4, 2, 6, 1, 5, 3, 7]
            n_ = o.hpn
            tbl = []
            for part in range(3):
                mb = o.hpe - 3 * n_ + part * n_
                assert (mb >> 2) == ((mb + n_ - 1) >> 2)
                tbl.append((seq[mb >> 2] << 17) | ((mb & 3) << 10))
            def hpf():
                p(f's_and_b32 {sWA}, {sC}, 3'); p(f's_lshl_b32 {sWB}, {sX}, 2'); p(f's_add_u32 {sWA}, {sWA}, {sWB}'); p(f's_lshl_b32 {sWA}, {sWA}, 20')
                p(f's_bfe_u32 {sWB}, {sC}, 0x10002'); p(f's_mul_i32 {sWB}, {sWB}, {H((1 << 17) + (1 << 14))}'); p(f's_add_u32 {sWA}, {sWA}, {sWB}')
                p(f's_lshl_b32 {sWB}, {sW}, 12'); p(f's_add_u32 {sWA}, {sWA}, {sWB}')
                p(f's_cmp_lt_u32 {sC}, 16'); p(f's_cselect_b32 {sWB}, {H(tbl[0])}, {tbl[1] if tbl[1] < 64 else sT3}' if False else f's_cselect_b32 {sWB}, {H(tbl[0] ^ tbl[1])}, 0')
                p(f's_xor_b32 {sWA}, {sWA}, {sWB}')
                p(f's_cmp_ge_u32 {sC}, 24'); p(f's_cselect_b32 {sWB}, {H(tbl[2] ^ tbl[1])}, 0')
                p(f's_xor_b32 {sWA}, {sWA}, {sWB}'); p(f's_xor_b32 {sWA}, {sWA}, {H(tbl[1])}')
                p(f'v_mul_u32_u24 v{t2}, {16*n_}, v0')
                self.vmem(f'buffer_load_dword a{aCQ+11}, v{t2}, {srd("V")}, {sWA} offen')
            st.insert([k for k, f in st].index(o.hp), ('HP', hpf))
        W1late = []
        if o.wv & 2: assert o.w1n == 0 and not o.w1at
        if o.wv: assert o.wv & 1 and not o.w2at and not o.w2pos
        if A:
            if o.w1at:
                i3 = [k for k, f in st].index(o.w1at)
                for n_, it in enumerate(Wl[:o.w1e]): st.insert(min(len(st), i3 + n_ * (1 + o.w2sp)), it)
                Wl = Wl[o.w1e:]
            if o.w1burst:
                bl = Wl[:o.w1n]
                for i_ in range(0, len(bl), o.w1burst):
                    st.append(('W', lambda ch=bl[i_:i_+o.w1burst]: [f() for k, f in ch]))
            else: st += Wl[:o.w1n]
            W1late = Wl[o.w1n:]; Wl = []
        if not A and not B and o.cpf:
            PF = []
            for k in range(10 if o.cpfm & 1 else 0):
                def f(k=k):
                    if k == 0:
                        p(f'v_lshrrev_b32 {vXW}, 3, v0'); p(f'v_mul_u32_u24 {vXW}, 3456, {vXW}'); p(f'v_and_b32 {vXR}, 7, v0')
                        p(f'v_mul_u32_u24 {vXR}, 60, {vXR}'); p(f'v_add_u32 {vXW}, {vXW}, {vXR}')
                        p(f's_sub_u32 {sWA}, {sC}, 10'); p(f's_lshl_b32 {sWA}, {sWA}, 2'); p(f's_add_u32 {sWA}, {sWA}, {sW}')
                        p(f's_mul_i32 {sWA}, {sWA}, {8*3456}'); p(f's_mul_i32 {sWB}, {sX}, 432'); p(f's_add_u32 {sWA}, {sWA}, {sWB}')
                    else: p(f's_add_u32 {sWA}, {sWA}, {64*3456}')
                    self.vmem(f'buffer_load_dword a{aWQ+k}, {vXW}, {srd("W1")}, {sWA} offen')
                PF.append(('PF', f))
            sd = o.cpfs
            n2 = -(-276480 // (64 * sd * 8))
            for k in range(n2 if o.cpfm & 2 else 0):
                def f(k=k):
                    if k == 0:
                        p(f'v_mul_u32_u24 {vXR}, {sd}, v0')
                        p(f's_mul_i32 {sWB}, {sX}, 276480'); p(f'v_add_u32 {vXR}, {sWB}, {vXR}')
                        p(f's_sub_u32 {sWB}, {sC}, 10'); p(f's_lshl_b32 {sWB}, {sWB}, 2'); p(f's_add_u32 {sWB}, {sWB}, {sW}')
                        p(f's_mul_i32 {sWB}, {sWB}, {64*sd}')
                    else: p(f's_add_u32 {sWB}, {sWB}, {64*sd*8}')
                    if k == n2 - 1: p(f's_min_u32 {sWB}, {sWB}, {276480 - 64*sd}')
                    self.vmem(f'buffer_load_dword a{aWQ+16+k}, {vXR}, {srd("W2")}, {sWB} offen')
                PF.append(('PF', f))
            i3 = [k for k, f in st].index(o.cpf)
            for n_, it in enumerate(PF): st.insert(min(len(st), i3 + n_ * (1 + o.cpfsp)), it)
        if B and o.w2at:
            i3 = [k for k, f in st].index(o.w2at)
            for n_, it in enumerate(Wl[:o.w2n]): st.insert(min(len(st), i3 + n_ * (1 + o.w2sp)), it)
            Wl = Wl[o.w2n:]
        if B and ((o.w2pos & 1) if A else (o.w2pos & 2)): st += Wl; Wl = []
        def adv(n, thr=True):
            while n > 0 and st:
                k, f = st.pop(0); f(); n -= 1
                if o.exit10 and k in KST: self.stamp(12 + KST.index(k))
                if thr and D + thr - 1 < 63: p(f's_waitcnt vmcnt({D + (thr - 1)})')
        def until(key, thr=True):
            keys = [k for k, f in st]
            if key in keys: adv(keys.index(key), thr)
        def flag():
            p(f's_lshl_b32 {sT}, {sX}, 5'); p(f's_add_u32 {sT}, {sT}, {sC}'); p(f's_lshl_b32 {sT2}, {sW}, 8'); p(f's_add_u32 {sT}, {sT}, {sT2}')
            p(f'v_mov_b32 v{t0}, {sFlag}'); p(f'v_mov_b32 v{t1}, {sT}')
            self.wait('CLR')
            p('s_waitcnt lgkmcnt(0)')
            if o.acc: p('s_mov_b32 s0, 0'); p(f's_mov_b32 s1, {H(MHI)}')
            p('s_barrier')
            p('s_mov_b64 exec, 1')
            self.vmem(f'buffer_store_byte v{t0}, v{t1}, {srd("DBG")}, 0 offen sc1', tag='FLAG')
            p('s_mov_b64 exec, -1')
            self.stamp(1)
        adv(o.n1C if name == 'C' else o.n1A if A else o.n1B, False)
        mv('W1'); mv('B1')
        if o.stamps:
            p(f'v_mov_b32 {vSTAMP}, 0')
            p(f'v_writelane_b32 {vSTAMP}, s96, 0')
            p(f'v_writelane_b32 {vSTAMP}, s98, 34')
        for n in ('DBG', 'B2', 'W2', 'OUT'):
            p(f's_load_dwordx2 s[{SRD[n]}:{SRD[n]+1}], s[0:1], {KOFF[n]}')
        if A:
            self.addrA()
            self.wait('XF')
            self.stamp(8)
            p(f'v_mov_b32 v{t0}, 0'); p(f'v_mov_b32 v{t1}, 0'); p(f'v_mov_b32 v{t2}, 0x3f803f80')
            for k in range(8):
                p(f'v_dot2_f32_bf16 v{t0}, v{XF+k}, v{t2}, v{t0}')
                p(f'v_dot2_f32_bf16 v{t1}, v{XF+k}, v{XF+k}, v{t1}')
            for k in range(4*NH-4): p(f'v_lshlrev_b32 v{T+4+k}, 16, v{XA2+k//2}' if k % 2 == 0 else f'v_and_b32 v{T+4+k}, 0xffff0000, v{XA2+k//2}')
            for s in self.unpack_xr(False): p(s)
            p(f'v_permlane32_swap_b32 v{t0}, v{t1}')
            p(f'v_add_f32 v{t0}, v{t0}, v{t1}')
            for n in (1, 2, 4, 8): p(f'v_add_f32_dpp v{t0}, v{t0}, v{t0} row_ror:{n} {DF}')
            p(f'v_add_f32_dpp v{t0}, v{t0}, v{t0} row_bcast:15 row_mask:0xa bank_mask:0xf')
            p(f'v_mul_f32 v{t0}, {H(f2u(1.0 / 640))}, v{t0}')
            p(f'v_readlane_b32 {sSX}, v{t0}, 31'); p(f'v_readlane_b32 {sSXX}, v{t0}, 63')
            p(f'v_mov_b32 v{t0}, {sSX}'); p(f'v_mov_b32 v{t1}, {sSXX}')
            p(f'v_fma_f32 v{t1}, -v{t0}, v{t0}, v{t1}'); p(f'v_max_f32 v{t1}, 0, v{t1}')
            p(f'v_add_f32 v{t1}, {H(f2u(EPS))}, v{t1}'); p(f'v_rsq_f32 v{t1}, v{t1}')
            p(f'v_mul_f32 v{t0}, v{t0}, v{t1}')
            for k in range(4): p(f'v_fma_f32 v{T+k}, v{XR+k}, v{t1}, -v{t0}')
            p(f'v_cvt_pk_bf16_f32 v{XA}, v{T}, v{T+1}'); p(f'v_cvt_pk_bf16_f32 v{XA+1}, v{T+2}, v{T+3}')
            self.build_xa()
            if NH == 2:
                for k in range(4): p(f'v_fma_f32 v{T+4+k}, v{T+4+k}, v{t1}, -v{t0}')
                p(f'v_cvt_pk_bf16_f32 v{XA2}, v{T+4}, v{T+5}'); p(f'v_cvt_pk_bf16_f32 v{XA2+1}, v{T+6}, v{T+7}')
                self.build_xa(XA2)
            self.lgkm(0)
            p(f's_lshl_b32 {sT}, {sH}, 6')
            if o.acc:
                p(f'v_and_b32 v{t0}, 7, v0'); p(f'v_and_b32 v{t1}, 0x30, v0'); p(f'v_lshl_add_u32 v{t0}, v{t0}, 1, v{t1}')
                self.vmem(f'buffer_load_ushort a{aB2}, v{t0}, {srd("B2")}, {sT} offen', tag='B2')
                self.vmem(f'buffer_load_ushort a{aB2+1}, v{t0}, {srd("X")}, {sT} offen', tag='B2')
            else: self.vmem(f'buffer_load_dwordx2 {ar(aB2,2)}, v{vXs}, {srd("B2")}, {sT} offen', tag='B2')
            adv(o.n2 if NH == 2 else o.n2C, False)
            if o.stamps < 2: self.stamp(29)
            self.wait('WQ0')
            self.stamp(9)
            def pre(h, d):
                dp, hi = d >> 1, d & 1
                wt, wr = (WT2, WOR) if h else (WT, WR)
                return [f'v_perm_b32 v{wt+4*d+tau}, v{wr+(2*tau+1)*4+dp}, v{wr+(2*tau)*4+dp}, {sHi if hi else sLo}' for tau in range(4)]
            self.qp((XA, XA2), '0', 'sc1', False, True, wv=(WT, WT2), pre=pre, prest=lambda: self.wait('CLR'), mid=lambda: self.wait('WQ'))
            self.stamp(2)
            flag()
            adv(2, False)
            p(f's_mov_b32 {sT2}, {H(CSL)}')
            if 'cq' not in o.skip: self.qp((XB, XB), sT2, 'sc1', False, True, wv=(WT, WT2), tag='CQ')
            adv(1, True)
            for k in range(32): p(f'v_accvgpr_write_b32 a{aWQ+k}, v{WT+k}')
            adv(1, True)
            if NH == 2:
                for k in range(32): p(f'v_accvgpr_write_b32 a{aWQ+32+k}, v{WT2+k}')
                adv(1, True)
            self.common_addr()
            self.wait('B2')
            if o.acc:
                p(f'v_mov_b32 v{RM}, 0'); p(f'v_mov_b32 v{RM+1}, {H(MHI | 0x80000000)}')
                p(f'v_accvgpr_read_b32 v{t1}, a{aB2+1}')
                for s_ in self.rm_ops(t1, False): p(s_)
            else:
                p(f'v_accvgpr_read_b32 v{t0}, a{aB2}'); p(f'v_accvgpr_read_b32 v{t1}, a{aB2+1}')
                p(f'v_lshlrev_b32 v{B2}, 16, v{t0}'); p(f'v_and_b32 v{B2+1}, 0xffff0000, v{t0}')
                p(f'v_lshlrev_b32 v{B2+2}, 16, v{t1}'); p(f'v_and_b32 v{B2+3}, 0xffff0000, v{t1}')
            adv(2, True)
            if B:
                self.addrB()
        else:
            self.common_addr()
            adv(1, True)
            if B: self.addrB()
            adv(o.n2B, True)
            flag()
        until(o.fposC if name == 'C' else o.fposA if A else o.fposB)
        self.stamp(3)
        p(f's_lshl_b32 {sT3}, {sX}, 5')
        self.vmem(f'buffer_load_dword v{FL}, v{T+14}, {srd("DBG")}, {sT3} offen sc1', tag='FL')
        nF = D + o.dFo
        if B and not o.wolate:
            assert not any(k == 'WO' for k, f in st)
            adv(2, True); nF -= 2
            self.wait('WO')
            self.transpose(aWO, 4, WOR, T, rd=False)
        self.vfree = True
        adv(min(nF, nF - o.dFo - 1), True)
        adv(max(0, o.dFo + 1), False)
        p(f's_mul_i32 {sFlag}, {sFlag}, 0x01010101')
        self.wait('FL')
        Lfp, Lfok, Lfc = p.label('Lfp'), p.label('Lfok'), p.label('Lfc')
        self.flush()
        p(f'{Lfc}:')
        p(f'v_and_b32 v{t0}, 0x80808080, v{FL}')
        p(f'v_cmp_ne_u32 vcc, 0x80808080, v{t0}')
        Lr = self.retry(Lfp, Lfok)
        self.ool.append([f'{Lfp}:', f'buffer_load_dword v{FL}, v{T+14}, {srd("DBG")}, {sT3} offen sc1',
                         's_waitcnt vmcnt(0)', f's_branch {Lfc}'])
        p(f's_cbranch_vccnz {Lr}')
        p(f'{Lfok}:')
        p(f'v_cmp_ne_u32 vcc, {sFlag}, v{FL}')
        p(f's_or_b32 {sMode}, vcc_lo, vcc_hi')
        if o.forceslow: p(f's_mov_b32 {sMode}, 1')
        adv(o.dG, True)
        for s_ in self.g3_list(ACC, vQR, vQR3, '0'):
            if 'q0' in o.skip: s_ = s_.replace(vQR3 + ',', 'v1,').replace(vQR + ',', 'v1,').replace(srd('WS'), srd('K')).replace(' sc1', '')
            self.vmem(s_, tag='Q0')
        self.stamp(4)
        adv(min(D + o.dQo, D - 1), 3)
        adv(max(0, o.dQo + 1), False)
        u, sc = T, T + 3
        self.wait('Q0')
        self.flush()
        Lq, Lqp = p.label('Lq'), p.label('Lqp')
        p(f'{Lq}:')
        for s_ in self.g3_sum(ACC, f'v{u}'): p(s_)
        self.ool.append([f'{Lqp}:'] + self.g3_list(ACC, vQR, vQR3, '0') + ['s_waitcnt vmcnt(0)', f's_branch {Lq}'])
        adv(o.dX, False)
        self.q_finish(u, None, None, sc, Lqp, ln=False)
        self.stamp(5)
        self.flush()
        until(o.qkpos)
        self.wait('K31')
        qi = [int(c) for c in o.qkiss]
        self.qk_softmax(lambda n: adv(qi[n], False))
        self.stamp(6)
        adv(qi[5], False)
        for op in self.ml_ops('mode'): self.run_op(op)
        if B:
            for k in range(4): p(f'v_mov_b32 v{SN+k}, -1')
            p(f's_lshl_b32 {sT}, {sC}, 2'); p(f's_add_u32 {sT}, {sT}, {sW}')
            p(f's_sub_u32 {sT}, {sT}, 48')
            assert NG + 15 <= 80
            Lnc, Lg, Lsl = p.label('Lnc'), p.label('Lg'), p.label('Lsl')
            p(f's_lshl_b32 {sT2}, {sT}, 10')
            if B:
                p(f's_cmp_ge_u32 {sT}, {NG}'); p(f's_cbranch_scc1 {Lg}')
            p(f's_add_u32 {sT2}, {sT2}, {sBX}'); p(f's_add_u32 {sT2}, {sT2}, {H(LSTR)}')
            if o.clrfast:
                p(f's_cmp_lg_u32 {sMode}, 0'); p(f's_cbranch_scc1 {Lsl}')
                self.vmem(f'buffer_store_dwordx4 {vr(SN,4)}, {a16}, {srd("WS")}, {sT2} offen', optional=True)
                p(f's_branch {Lnc}')
            elif B: p(f's_branch {Lsl}')
            if B:
                p(f'{Lg}:')
                p(f's_cmp_ge_u32 {sT}, {NG+15}'); p(f's_cbranch_scc1 {Lnc}')
                if o.acc:
                    for k in range(4): p(f'v_mov_b32 v{SN+k}, {H(MHI - 0x08000000) if k & 1 else 0}')
                p(f's_mul_i32 {sT3}, {sX}, {15*1024}'); p(f's_add_u32 {sT2}, {sT2}, {sT3}'); p(f's_add_u32 {sT2}, {sT2}, {H(XMo - NG*1024)}')
                p(f's_add_u32 {sT3}, {sT2}, {H(XAo)}')
                p(f's_cmp_ge_u32 {sT2}, {H(LSTR)}'); p(f's_cselect_b32 {sT2}, {sT3}, {sT2}')
            p(f'{Lsl}:')
            self.vmem(f'buffer_store_dwordx4 {vr(SN,4)}, {a16}, {srd("WS")}, {sT2} offen sc1', optional=True, tag='CLR2')
            p(f'{Lnc}:')
        if o.pf1: self.fwd = True; self.pfcode(f'L_loop{name}_fast', f'L_loop{name}_slow')
        self.stamp(7)
        self.flush()
        def hook(pp):
            keys = [k for k, f in st]
            need = f'V{2*pp+1}'
            if need in keys: adv(keys.index(need) + 1, False)
            behind = self.vm - self.tags[need]
            Dp = D + (o.dPV if (pp >= o.pPV and name in o.dPVr) else 0)
            if o.dPV and o.kvonly:
                keys = [k for k, f in st]
                nkv = max([i + 1 for i, k in enumerate(keys) if k[0] == 'V'] + [0])
                n = max(min(Dp - behind, nkv), D - behind)
                if n > 0: adv(n, False)
            elif behind < Dp: adv(Dp - behind, False)
        hooks = {pp: (lambda pp=pp: hook(pp)) for pp in range(16)}
        self.pv([], True, hooks=hooks)
        assert 'FL2' in self.tags
        if B: self.wait('CLR2')
        if o.exit10:
            self.stamp(10); self.finish()
            for code in self.ool:
                for s in code: p(s)
            self.ool = []
            self.vm, self.tags = vm0, tags0
            return
        self.rest = list(st) + W1late; self.rest2 = Wl
        self.set_layer(0)
        self.flush()
        p(f's_cmp_eq_u32 {sMode}, 0'); p(f's_cbranch_scc1 L_loop{name}_fast')
        p(f's_branch L_loop{name}_slow')
        for code in self.ool:
            for s in code: p(s)
        self.ool = []
        self.chain(A, B, True, f'L_loop{name}_fast')
        state = (self.vm, dict(self.tags), self.rest, self.rest2)
        def slow():
            self.vm, self.tags, self.rest, self.rest2 = state[0], dict(state[1]), state[2], state[3]
            self.vfree = True; self.NH = NH
            self.chain(A, B, False, f'L_loop{name}_slow')
        if o.pfa: self.later.append(slow)
        else: slow()
        self.vm, self.tags = vm0, tags0


def main():
    ap = argparse.ArgumentParser()
    ap.add_argument('out')
    ap.add_argument('--stamps', type=int, default=0)
    ap.add_argument('--x8delay', type=int, default=0)
    ap.add_argument('--pdx', type=int, default=0)
    ap.add_argument('--pdo', type=int, default=0)
    ap.add_argument('--skip', type=str, default='')
    ap.add_argument('--exit10', type=int, default=0)
    ap.add_argument('--qkiss', type=str, default='000003')
    ap.add_argument('--clrfast', type=int, default=1)
    ap.add_argument('--xs', type=int, default=0)
    ap.add_argument('--xgap', type=int, default=6)
    ap.add_argument('--abw1', type=int, default=1)
    ap.add_argument('--abc1', type=int, default=1)
    ap.add_argument('--pf0', type=int, default=0)
    ap.add_argument('--pf1', type=int, default=0)
    ap.add_argument('--pfsel', type=int, default=1)
    ap.add_argument('--pfa', type=int, default=0)
    ap.add_argument('--order', type=str, default='A,AB,B')
    ap.add_argument('--hk', type=int, default=0)
    ap.add_argument('--xgate', type=int, default=0)
    ap.add_argument('--xgd', type=int, default=0)
    ap.add_argument('--pfx', type=int, default=0)
    ap.add_argument('--inl', type=int, default=0)
    ap.add_argument('--xat', type=int, default=0)
    ap.add_argument('--il', type=int, default=0)
    ap.add_argument('--xperm', type=str, default='')
    ap.add_argument('--alt', type=int, default=0)
    ap.add_argument('--altw', type=int, default=1)
    ap.add_argument('--jx', type=int, default=0)
    ap.add_argument('--sx', type=int, default=0)
    ap.add_argument('--xx', type=int, default=0)
    ap.add_argument('--dPV', type=int, default=0)
    ap.add_argument('--pPV', type=int, default=0)
    ap.add_argument('--kvonly', type=int, default=1)
    ap.add_argument('--wolate', type=int, default=0)
    ap.add_argument('--womid', type=int, default=1)
    ap.add_argument('--n2B', type=int, default=2)
    ap.add_argument('--n0A', type=int, default=0)
    ap.add_argument('--n0B', type=int, default=8)
    ap.add_argument('--n1A', type=int, default=6)
    ap.add_argument('--n1B', type=int, default=4)
    ap.add_argument('--n2', type=int, default=4)
    ap.add_argument('--dA', type=int, default=10)
    ap.add_argument('--dAB', type=int, default=16)
    ap.add_argument('--dB', type=int, default=10)
    ap.add_argument('--dFo', type=int, default=-1)
    ap.add_argument('--dG', type=int, default=0)
    ap.add_argument('--dQo', type=int, default=-2)
    ap.add_argument('--dX', type=int, default=2)
    ap.add_argument('--wposAB', type=int, default=0)
    ap.add_argument('--wposB', type=int, default=0)
    ap.add_argument('--fposA', type=str, default='K16')
    ap.add_argument('--fposAB', type=str, default='K8')
    ap.add_argument('--fposB', type=str, default='K12')
    ap.add_argument('--fpos2', type=str, default='V26')
    ap.add_argument('--qkpos', type=str, default='V8')
    ap.add_argument('--w1nt', type=str, default='')
    ap.add_argument('--w2nt', type=str, default='')
    ap.add_argument('--w2late', type=int, default=0)
    ap.add_argument('--pre', type=int, default=1)
    ap.add_argument('--forceslow', type=int, default=0)
    ap.add_argument('--acc', type=int, default=0)
    ap.add_argument('--ec', type=int, default=0)
    ap.add_argument('--opc', type=int, default=0)
    ap.add_argument('--osc', type=int, default=0)
    ap.add_argument('--stc', type=int, default=0)
    ap.add_argument('--opre', type=int, default=0)
    ap.add_argument('--pl', type=int, default=1)
    ap.add_argument('--plo', type=int, default=1)
    ap.add_argument('--pgap', type=int, default=3)
    ap.add_argument('--pgapo', type=int, default=2)
    ap.add_argument('--pd0', type=int, default=0)
    ap.add_argument('--pd1', type=int, default=0)
    ap.add_argument('--pd2', type=int, default=0)
    ap.add_argument('--pd3', type=int, default=0)
    ap.add_argument('--opwarm', type=int, default=0)
    ap.add_argument('--wabpos', type=str, default='')
    ap.add_argument('--wab2', type=int, default=0)
    ap.add_argument('--wabsp', type=int, default=0)
    ap.add_argument('--fill', type=int, default=0)
    ap.add_argument('--w2pos', type=int, default=0)
    ap.add_argument('--w2pf', type=str, default='')
    ap.add_argument('--nd', type=int, default=3)
    ap.add_argument('--ndf', type=int, default=3)
    ap.add_argument('--agap', type=int, default=5)
    ap.add_argument('--agapf', type=int, default=5)
    ap.add_argument('--pw', type=int, default=1)
    ap.add_argument('--dPVr', type=str, default='ABC')
    ap.add_argument('--hp', type=str, default='')
    ap.add_argument('--hpn', type=int, default=2)
    ap.add_argument('--hpe', type=int, default=32)
    ap.add_argument('--w1burst', type=int, default=0)
    ap.add_argument('--w1bar', type=int, default=0)
    ap.add_argument('--probe', type=int, default=0)
    ap.add_argument('--prgap', type=int, default=16)
    ap.add_argument('--n1C', type=int, default=6)
    ap.add_argument('--n2C', type=int, default=4)
    ap.add_argument('--wv', type=int, default=0)
    ap.add_argument('--w2bar', type=int, default=0)
    ap.add_argument('--w2at', type=str, default='')
    ap.add_argument('--w2n', type=int, default=1)
    ap.add_argument('--w2sp', type=int, default=1)
    ap.add_argument('--w1at', type=str, default='')
    ap.add_argument('--w1e', type=int, default=1)
    ap.add_argument('--w1n', type=int, default=16)
    ap.add_argument('--cpf', type=str, default='')
    ap.add_argument('--cpfm', type=int, default=3)
    ap.add_argument('--cpfs', type=int, default=64)
    ap.add_argument('--cpfsp', type=int, default=1)
    ap.add_argument('--qs', type=int, default=1536)
    ap.add_argument('--dC', type=int, default=6)
    ap.add_argument('--pdC', type=int, default=0)
    ap.add_argument('--pfc', type=int, default=10)
    ap.add_argument('--fposC', type=str, default='K18')
    o = ap.parse_args()
    g = G(o)
    g.head()
    for r in o.order.split(','):
        g.prologue(r != 'B', 'B' in r, r)
    g.p('L_fastend:')
    for f in g.later: f()
    body = g.p.finalize()
    ref = open('cdna_kernels/' + NAME + '.s.ref').read()
    comment = ''.join(l + '\n' for l in ref.split('\n') if l.startswith(';') and '@launch' not in l)
    open(o.out, 'w').write(header(256, 256, LDS_SIZE, comment=comment) + body + footer())
    print('instrs', len(g.p.items), 'nops inserted', g.p.nnops)

main()
```

```python
import sys, struct, math, argparse
from asmlib2 import *

def f2u(x): return struct.unpack('<I', struct.pack('<f', x))[0]
def H(x): return f'0x{x & 0xffffffff:x}'

QS = int(sys.argv[sys.argv.index('--qs') + 1]) if '--qs' in sys.argv else 1536
QP = 0x0
OP = 16 * QS
HP = OP + 0x2000
ST = HP + 8 * QS
OS = ST + 0x800
GB = OS + 0x800
assert GB % 1024 == 0 and OP % 1024 == 0
NE, NG = (GB - OP) // 1024, GB // 1024
XAo = 8 * GB
XMo = XAo + 0xA000
LSTR = XMo + 0xA000
CSL = 2 * LSTR
NDEF = (2 * LSTR - XMo) // 1024
OOB = 0x80000000
L_Q, L_ML, L_J1, L_O, L_R, L_J2 = 0, 256, 512, 1024, 3072, 7168
L_X = 10240
LDS_SIZE = 12800
sX, sC, sJ, sS, sW = 's3', 's4', 's5', 's6', 's7'
SRD = dict(K=8, V=12, WS=16, X=20, WQ=24, WO=28, W1=32, B1=36, W2=40, B2=44, OUT=48, DBG=52)
KOFF = dict(X=0, K=8, V=16, WQ=24, WO=32, W1=48, B1=56, W2=64, B2=72, OUT=80, DBG=88, WS=96)
SIZE = dict(X=1280, K=1 << 25, V=1 << 25, WQ=640 * 8192, WO=4096 * 1280, W1=640 * 3456, B1=3456, W2=1728 * 1280,
            B2=1280, OUT=1280, DBG=256, WS=1 << 28)
def srd(n): return f's[{SRD[n]}:{SRD[n]+3}]'
sKV = 56
sL, sOS, sLM, sT, sT2, sBud, sLo, sHi, sMc, sIA, sIB, sFlag, sBX, sT3 = [f's{i}' for i in range(64, 78)]
sMode = 's78'
sOS0 = 's79'
sMB = 80
sMF = 88
sWA, sWB = 's90', 's91'
sSTAMP = 92
KA = 80
vLane, a16 = 'v0', 'v1'
vQW, vQR, vQR3, vSW, vSR, vHR3, vOW, vOR, lRW2, vOSR, vXW, vXR, vHW, vHR = [f'v{i}' for i in range(2, 16)]
lQW, lQR, lMW, lMR, lOW, lOR, lRW, lRR = [f'v{i}' for i in range(16, 24)]
CSQ, CS1, B1v, vC = 'v24', 'v25', 'v26', 'v27'
MK, XA, XB, XR, B2, BQ, PA, ACC, T = 28, 32, 36, 40, 44, 48, 64, 72, 104
XA2 = MK
vZ = vSR
WT2 = 224
sH = sIB
VB = 126
vR, vG, t0, t1, t2, vD = 114, 115, 120, 121, 122, 123
XF = 40
SN = ACC + 28
vK = 'v124'
vSTAMP = 'v125'
WR, WT, WOR = 128, 160, 192
aWQ, aWO, aW1, aW2, aX, aB2, aB1, aC1, aCQ = 128, 160, 192, 208, 224, 226, 228, 232, 244
aW2v, aB1v, aW1v = CSQ, B1v, CS1
def v(i): return f'v{i}'
def vr(i, n): return f'v[{i}:{i+n-1}]'
def ar(i, n): return f'a[{i}:{i+n-1}]'
DF = 'row_mask:0xf bank_mask:0xf'
MFMA = 'v_mfma_f32_16x16x32_bf16'
CSC = (128 ** -0.5) * math.log2(math.e)
EPS = 1e-5
MHI = 0x41B80000
RM = 40
PP = [42, 44, 46, 118]
KST = ['K0', 'K4', 'K8', 'K12', 'K16', 'K20', 'K24', 'K28', 'V0', 'V4', 'V8', 'V12', 'V16', 'V20', 'V24', 'V28', 'V31']


class G:
    def __init__(self, opt):
        self.p = Prog()
        self.o = opt
        self.vm = 0
        self.tags = {}
        self.pend = []
        self.ool = []
        self.nst = 0
        self.later = []

    def __call__(self, s): self.p(s)

    def vmem(self, s, tag=None, optional=False):
        self.p(s)
        if not optional:
            self.vm += 1
        if tag: self.tags[tag] = self.vm
    def wait(self, tag):
        n = self.vm - self.tags[tag]
        assert 0 <= n
        self.p(f's_waitcnt vmcnt({min(n, 63)})')
    def stamp(self, k):
        if not self.o.stamps: return
        if len(self.pend) >= 5: self.lgkm(0)
        r = sSTAMP + 2 * (self.nst % 5); self.nst += 1
        self.p(f's_memrealtime s[{r}:{r+1}]')
        self.pend.append((k, r))
    def lgkm(self, n):
        if self.pend:
            self.p('s_waitcnt lgkmcnt(0)')
            for k, r in self.pend:
                self.p(f'v_writelane_b32 {vSTAMP}, s{r}, {k}')
            self.pend = []
        else:
            self.p(f's_waitcnt lgkmcnt({n})')
    def flush(self):
        if self.pend: self.lgkm(0)

    def transpose(self, abase, W, tmp, tmp2, rd=True):
        p = self.p
        n = 8 * W
        if rd:
            for k in range(n):
                p(f'v_accvgpr_read_b32 v{tmp+k}, a{abase+k}')
        cnt = 0
        prev = None
        for dp in range(W):
            for hi in range(2):
                for tau in range(4):
                    t = tmp2 + (cnt & 1); cnt += 1
                    p(f'v_perm_b32 v{t}, v{tmp+(2*tau+1)*W+dp}, v{tmp+(2*tau)*W+dp}, {sHi if hi else sLo}')
                    p(f'v_accvgpr_write_b32 a{abase+(2*dp+hi)*4+tau}, v{t}')

    def build_xa(self, X=XA):
        p = self.p
        p(f'v_mov_b32_dpp v{X+2}, v{X} row_ror:8 {DF}')
        p(f'v_mov_b32_dpp v{X+3}, v{X+1} row_ror:8 {DF}')

    def xb_ops(self, X=XA):
        return [f'v_mov_b32_dpp v{XB+k}, v{X+k} quad_perm:[0,1,2,3] row_mask:0xf bank_mask:0x3' for k in range(4)]

    def unpack_xr(self, addb2):
        ops = [f'v_lshlrev_b32 v{XR}, 16, v{XA}', f'v_and_b32 v{XR+1}, 0xffff0000, v{XA}',
               f'v_lshlrev_b32 v{XR+2}, 16, v{XA+1}', f'v_and_b32 v{XR+3}, 0xffff0000, v{XA+1}']
        if addb2:
            ops += [f'v_pk_add_f32 {vr(XR,2)}, {vr(XR,2)}, {vr(B2,2)}', f'v_pk_add_f32 {vr(XR+2,2)}, {vr(XR+2,2)}, {vr(B2+2,2)}']
        return ops

    def mv2(self, A, tiles, wsrc, stats, pre=None, mid=None, w2=None):
        p = self.p
        st = T + 16
        n = len(tiles)
        for h in range(self.NH):
            xb = self.xb_ops(A[h]) if stats else []
            if h and mid: mid()
            if h and w2: p(w2)
            for k, d in enumerate(tiles):
                if pre:
                    for s_ in pre(h, d): p(s_)
                p(f'{MFMA} {vr(ACC+4*d,4)}, {vr(A[h],4)}, {wsrc(h, d)}, {vr(ACC+4*d,4) if h else 0}')
                if k < 2 and xb:
                    p(xb[2*k]); p(xb[2*k+1])
                if stats and k == (min(3, n - 1) if (h == 0 or n > 4) else n - 1):
                    p(f'{MFMA} {vr(st,4)}, {vr(A[h],4)}, {vr(XB,4)}, {vr(st,4) if h else 0}')

    def qp(self, A, soff, fl, stats, track, post=(), wv=None, pre=None, tag=None, prest=None, mid=None, w2=None):
        p = self.p
        st = T + 16
        order = [0, 4, 1, 5, 2, 6, 3, 7]
        mov = {}
        for d in range(8):
            if d == 0: mov[d] = None
            elif d < 4: mov[d] = f'v_mov_b32_dpp v{ACC+d}, v{ACC+4*d} quad_perm:[0,1,2,3] row_mask:0x1 bank_mask:0xf'
            else: mov[d] = f'v_mov_b32_dpp v{ACC+d-4}, v{ACC+4*d} quad_perm:[0,1,2,3] row_mask:0x2 bank_mask:0xf'
        self.mv2(A, order, (lambda h, d: vr(wv[h]+4*d,4)) if wv else (lambda h, d: ar(aWQ+32*h+4*d,4)), stats, pre, mid, w2)
        if stats:
            p('s_mov_b64 exec, 0x101')
            self.vmem(f'buffer_store_dword v{st}, {vSW}, {srd("WS")}, {soff} offen {fl}', optional=not track)
            p('s_mov_b32 exec_lo, -1')
        else: p('s_mov_b32 exec_hi, 0')
        for d in order[1:]:
            p(mov[d])
        if prest: prest()
        self.vmem(f'buffer_store_dwordx4 {vr(ACC,4)}, {vQW}, {srd("WS")}, {soff} offen {fl}', optional=not track, tag=tag)
        p('s_mov_b64 exec, -1')
        for s in post: p(s)

    def w1(self, A, soff, fl, stats, track, post=(), w2=None):
        p = self.p
        st = T + 16
        self.mv2(A, [0, 1, 2, 3], lambda h, d: ar(aW1+16*h+4*d,4), stats, w2=w2)
        p('s_mov_b64 exec, 0xffff')
        for d in range(1, 4):
            p(f'v_mov_b32 v{ACC+d}, v{ACC+4*d}')
        self.vmem(f'buffer_store_dwordx4 {vr(ACC,4)}, {vHW}, {srd("WS")}, {soff} offen {fl}', optional=not track)
        if stats:
            p('s_mov_b64 exec, 0x101')
            self.vmem(f'buffer_store_dword v{st}, {vSW}, {srd("WS")}, {soff} offen offset:256 {fl}', optional=not track)
        p('s_mov_b64 exec, -1')
        for s in post: p(s)

    def rs4(self, a, out):
        return [f'v_permlane32_swap_b32 v{a}, v{a+1}', f'v_permlane32_swap_b32 v{a+2}, v{a+3}',
                f'v_add_f32 v{a}, v{a}, v{a+1}', f'v_add_f32 v{a+2}, v{a+2}, v{a+3}',
                f'v_permlane16_swap_b32 v{a}, v{a+2}', f'v_add_f32 {out}, v{a}, v{a+2}']

    def stats_ops(self, s4, st, mean, sc, second, d2=None):
        inv = H(f2u(1.0 / 640))
        ops = [f'v_pk_add_f32 {vr(d2,2)}, {vr(s4,2)}, {vr(s4+2,2)}',
               f'v_add_f32_dpp {vZ}, v{d2}, v{d2+1} quad_perm:[0,1,2,3] row_mask:0xf bank_mask:0x3',
               f'v_add_f32_dpp v{st}, {vZ}, {vZ} row_ror:2 {DF}',
               f'v_add_f32_dpp v{st}, v{st}, v{st} row_ror:4 {DF}',
               f'v_add_f32_dpp v{st}, v{st}, v{st} row_ror:8 {DF}',
               f'v_mul_f32 v{st}, {inv}, v{st}',
               f'v_mov_b32_dpp v{mean}, v{st} quad_perm:[0,0,2,2] {DF}',
               f'v_mov_b32_dpp v{sc}, v{st} quad_perm:[1,1,3,3] {DF}',
               f'v_fma_f32 v{sc}, -v{mean}, v{mean}, v{sc}',
               f'v_max_f32 v{sc}, 0, v{sc}']
        if second:
            ops += [f'v_mul_f32 v{sc}, {H(f2u(1.0 + EPS))}, v{sc}', f'v_add_f32 v{sc}, {H(f2u(EPS * EPS))}, v{sc}']
        else:
            ops += [f'v_add_f32 v{sc}, {H(f2u(EPS))}, v{sc}']
        ops += [f'v_rsq_f32 v{sc}, v{sc}']
        return ops

    def merge(self, *lists):
        lists = [list(l) for l in lists]
        while any(lists):
            for l in lists:
                if l: self.p(l.pop(0))

    def retry(self, Lp, Lok, extra=()):
        Lr = self.p.label('Lretry')
        code = [f'{Lr}:',
                f's_cmp_eq_u32 {sBud}, 0', f's_cbranch_scc1 {Lok}', f's_sub_u32 {sBud}, {sBud}, 1'] + list(extra) + [f's_branch {Lp}']
        self.ool.append(code)
        return Lr

    def bud(self):
        Lok, Lg = self.p.label('Lok'), self.p.label('Lgive')
        self.p(f's_sub_u32 {sBud}, {sBud}, 1'); self.p(f's_cbranch_scc1 {Lg}')
        self.ool.append([f'{Lg}:', f's_mov_b32 {sBud}, 0', 's_waitcnt vmcnt(0)', f's_branch {Lok}'])
        return Lok

    def g3_list(self, base, va, va3, soff, acc=False):
        return [f'buffer_load_dwordx4 {(ar if acc else vr)(base+4*t,4)}, {va3 if t == 1 else va}, {srd("WS")}, {soff} offen sc1' for t in (1, 0)]
    def g3_sum(self, base, out):
        return [f'v_add_f32_dpp v{base+k}, v{base+4+k}, v{base+k} quad_perm:[0,1,2,3] row_mask:0xf bank_mask:0xc' for k in range(4)] \
            + self.rs4(base, out) + [f'v_add_f32_dpp {out}, {out}, {out} row_ror:8 {DF}']

    def q_finish(self, u, st, mean, sc, Lp, ln=True):
        p = self.p
        if isinstance(Lp, tuple): Lr, Lok = Lp
        else:
            Lok = p.label('Lok')
            Lr = self.retry(Lp, Lok)
        if ln:
            p(f'v_fma_f32 v{u}, -v{mean}, {CSQ}, v{u}')
            p(f'v_mul_f32 v{u}, v{u}, v{sc}')
        p(f'v_cvt_pk_bf16_f32 v{sc}, v{u}, v{u}')
        p(f'v_cmp_u_f32 vcc, v{u}, v{st if ln else u}')
        p(f's_cbranch_vccnz {Lr}')
        p(f'{Lok}:')
        p(f'ds_write_b16 {lQW}, v{sc}')
        self.lgkm(0)
        p('s_barrier')

    def qk_softmax(self, iss=lambda n: None, vw=False):
        p = self.p
        S = [T, T + 1]
        for b in range(4):
            p(f's_mov_b64 exec, s[{sMB+2*b}:{sMB+2*b+1}]')
            p(f'ds_read_b128 {vr(BQ+4*b,4)}, {lQR}')
        p('s_mov_b64 exec, -1')
        def adds(e):
            h, be = e >> 2, e & 3
            D = ACC + 4 * e
            first = True
            out = []
            for u in range(4):
                if u == be: continue
                src1 = f'v{D+be}' if first else f'v{S[h]}'
                out.append(f'v_add_f32_dpp v{S[h]}, v{D+u}, {src1} row_ror:{(4*(be-u)) % 16} row_mask:0xf bank_mask:{1<<be:#x}')
                first = False
            return out
        if vw: p('s_waitcnt vmcnt(0)')
        for b in range(4):
            self.lgkm(3 - b)
            for e in range(8):
                h, be = e >> 2, e & 3
                mb = 8 * be + 2 * b + h
                c = '0' if b == 0 else vr(ACC + 4 * e, 4)
                p(f'{MFMA} {vr(ACC+4*e,4)}, {ar(4*mb,4)}, {vr(BQ+4*b,4)}, {c}')
                if b == 3 and e >= 3:
                    for s in adds(e - 3): p(s)
            iss(b)
        for e in (5, 6, 7):
            for s in adds(e): p(s)
        M = T + 2
        p(f'v_max_f32 v{M}, v{S[0]}, v{S[1]}')
        for n in (1, 2, 4, 8):
            p(f'v_max_f32_dpp v{M}, v{M}, v{M} row_ror:{n} {DF}')
        p(f'v_max_f32_dpp v{M}, v{M}, v{M} row_bcast:15 row_mask:0xa bank_mask:0xf')
        p(f'v_max_f32_dpp v{M}, v{M}, v{M} row_bcast:31 row_mask:0xc bank_mask:0xf')
        iss(4)
        p(f'v_mul_f32 v{M}, v{M}, {vC}')
        p(f'v_readlane_b32 {sMc}, v{M}, 63')
        p(f'v_fma_f32 v{S[0]}, v{S[0]}, {vC}, -{sMc}')
        p(f'v_fma_f32 v{S[1]}, v{S[1]}, {vC}, -{sMc}')
        p(f'v_exp_f32 v{S[0]}, v{S[0]}')
        p(f'v_exp_f32 v{S[1]}, v{S[1]}')
        p(f'v_cvt_pk_bf16_f32 v{T+4}, v{S[0]}, v{S[1]}')

    def ml_ops(self, fl):
        P, M, Ls = T + 4, T + 2, T + 3
        m2, l2, mc, f = T + 6, T + 7, T + 8, T + 5
        lc = T + 9
        ops = [f'v_lshlrev_b32 v{Ls}, 16, v{P}', f'v_and_b32 v{T}, 0xffff0000, v{P}', f'v_add_f32 v{Ls}, v{Ls}, v{T}']
        for n in (1, 2, 4, 8):
            ops += [f'v_add_f32_dpp v{Ls}, v{Ls}, v{Ls} row_ror:{n} {DF}', None]
        ops += [f'v_add_f32_dpp v{Ls}, v{Ls}, v{Ls} row_bcast:15 row_mask:0xa bank_mask:0xf', None,
                f'v_add_f32_dpp v{Ls}, v{Ls}, v{Ls} row_bcast:31 row_mask:0xc bank_mask:0xf',
                f'ds_write_b64 {lMW}, {vr(M,2)}', None, None,
                lambda: (self.lgkm(0), self.p('s_barrier'), self.p(f'ds_read_b64 {vr(m2,2)}, {lMR}')), None, None, None,
                lambda: self.lgkm(0),
                f'v_max_f32_dpp v{mc}, v{m2}, v{m2} quad_perm:[1,0,3,2] {DF}', None,
                f'v_max_f32_dpp v{mc}, v{mc}, v{mc} quad_perm:[2,3,0,1] {DF}',
                f'v_sub_f32 v{f}, v{m2}, v{mc}', f'v_exp_f32 v{f}, v{f}', None,
                f'v_mul_f32 v{lc}, v{f}, v{l2}', None,
                f'v_add_f32_dpp v{lc}, v{lc}, v{lc} quad_perm:[1,0,3,2] {DF}', None,
                f'v_add_f32_dpp v{lc}, v{lc}, v{lc} quad_perm:[2,3,0,1] {DF}']
        def st():
            Ls_ = self.p.label('Lnos')
            self.p(f's_cmp_lg_u32 {sW}, 0'); self.p(f's_cbranch_scc1 {Ls_}')
            self.p('s_mov_b64 exec, 0x10001' if self.o.osc else 's_mov_b64 exec, 1')
            if fl == 'mode':
                L1, L2 = self.p.label('Lm'), self.p.label('Lm')
                self.p(f's_cmp_eq_u32 {sMode}, 0'); self.p(f's_cbranch_scc1 {L1}')
                self.vmem(f'buffer_store_dwordx2 {vr(mc,2)}, {a16}, {srd("WS")}, {sOS0} offen sc1', optional=True)
                self.p(f's_branch {L2}')
                self.p(f'{L1}:')
                self.vmem(f'buffer_store_dwordx2 {vr(mc,2)}, {a16}, {srd("WS")}, {sOS0} offen', optional=True)
                self.p(f'{L2}:')
            else:
                self.vmem(f'buffer_store_dwordx2 {vr(mc,2)}, {a16}, {srd("WS")}, {sOS} offen {fl}', optional=True)
            self.p('s_mov_b64 exec, -1')
            self.p(f'{Ls_}:')
        ops.append(st)
        return ops

    def run_op(self, o):
        if o is None: return
        if callable(o): o()
        else: self.p(o)

    def pv(self, extras, layer0, hooks={}):
        p = self.p
        P = T + 4
        Da, Db = ACC, ACC + 4
        def build(pp):
            return [f'v_mov_b32_dpp v{PA+4*(pp&1)+t}, v{P} row_newbcast:{pp} row_mask:0xf bank_mask:{1<<t:#x}' for t in range(4)]
        def perms(pp):
            A, Bq, o = VB + 2 + 8 * pp, VB + 6 + 8 * pp, VB + 8 * pp
            seq = [(0, 0), (0, 1), (1, 0), (1, 1), (3, 0), (3, 1), (2, 1), (2, 0)]
            return [f'v_perm_b32 v{o+2*dp+hi}, v{Bq+dp}, v{A+dp}, {sHi if hi else sLo}' for dp, hi in seq]
        extras = list(extras)
        for s in build(0): p(s)
        for pp in range(16):
            nb = build(pp + 1) if pp < 15 else []
            if pp in hooks: hooks[pp]()
            if layer0:
                self.wait(f'V{2*pp+1}')
                for s in perms(pp): p(s)
            c = '0' if pp == 0 else None
            p(f'{MFMA} {vr(Da,4)}, {vr(PA+4*(pp&1),4)}, {vr(VB+8*pp,4)}, {c or vr(Da,4)}')
            for s in nb[:3]: p(s)
            p(f'{MFMA} {vr(Db,4)}, {vr(PA+4*(pp&1),4)}, {vr(VB+8*pp+4,4)}, {c or vr(Db,4)}')
            for s in nb[3:]: p(s)
            for _ in range(2):
                if extras: self.run_op(extras.pop(0))
        for o in extras: self.run_op(o)

    def reduce_publish(self, y, kind, soff, ldsoff):
        p = self.p
        if kind == 'o':
            for k in range(4): p(f'v_permlane16_swap_b32 v{y+k}, v{y+4+k}')
            p(f'v_pk_add_f32 {vr(y,2)}, {vr(y,2)}, {vr(y+4,2)}')
            p(f'v_pk_add_f32 {vr(y+2,2)}, {vr(y+2,2)}, {vr(y+6,2)}')
        p(f'ds_write_b128 {lRW if kind == "o" else lRW2}, {vr(y,4)} offset:{ldsoff}')
        if self.o.pl > 1 and kind == 'h': p('s_waitcnt vmcnt(0)')
        p(f's_cmp_lg_u32 {sW}, 0')
        self.lgkm(0)
        if self.o.stamps: p(f's_cmp_lg_u32 {sW}, 0')
        p('s_barrier')
        Ls = p.label('Lsk')
        p(f's_cbranch_scc1 {Ls}')
        if self.o.acc:
            for k in range(4):
                p(f'ds_read2st64_b32 {vr(ACC+2*k,2)}, {lRR} offset0:{ldsoff//256+2*k} offset1:{ldsoff//256+2*k+1}')
            self.lgkm(2)
            p(f'v_pk_add_f32 {vr(ACC,2)}, {vr(ACC,2)}, {vr(ACC+2,2)}')
            self.lgkm(0)
            p(f'v_pk_add_f32 {vr(ACC+4,2)}, {vr(ACC+4,2)}, {vr(ACC+6,2)}')
            p(f'v_pk_add_f32 {vr(ACC,2)}, {vr(ACC,2)}, {vr(ACC+4,2)}')
            p(f'v_add_f32 v{ACC}, v{ACC}, v{ACC+1}')
            p(f'v_cvt_f64_f32 {vr(ACC+2,2)}, v{ACC}')
            p(f'v_add_f64 {vr(ACC+2,2)}, {vr(ACC+2,2)}, s[0:1]')
            p(f'v_add_u32 v{ACC+3}, {H(0x01000000 - MHI)}, v{ACC+3}')
            self.vmem(f'buffer_atomic_add_x2 {vr(ACC+2,2)}, {vXW}, {srd("WS")}, {soff} offen sc1', optional=True)
            p(f'{Ls}:')
            return
        for k in range(4):
            p(f'ds_read_b128 {vr(ACC+4*k,4)}, {lRR} offset:{ldsoff+512*k}')
        p('s_mov_b32 exec_hi, 0')
        self.lgkm(2)
        p(f'v_pk_add_f32 {vr(ACC,2)}, {vr(ACC,2)}, {vr(ACC+4,2)}')
        p(f'v_pk_add_f32 {vr(ACC+2,2)}, {vr(ACC+2,2)}, {vr(ACC+6,2)}')
        self.lgkm(0)
        p(f'v_pk_add_f32 {vr(ACC+8,2)}, {vr(ACC+8,2)}, {vr(ACC+12,2)}')
        p(f'v_pk_add_f32 {vr(ACC+10,2)}, {vr(ACC+10,2)}, {vr(ACC+14,2)}')
        p(f'v_pk_add_f32 {vr(ACC,2)}, {vr(ACC,2)}, {vr(ACC+8,2)}')
        p(f'v_pk_add_f32 {vr(ACC+2,2)}, {vr(ACC+2,2)}, {vr(ACC+10,2)}')
        for k in range(4):
            p(f'v_add_f32_dpp v{ACC+k}, v{ACC+k}, v{ACC+k} row_ror:8 {DF}')
        p('s_mov_b32 exec_lo, 0x00ff00ff')
        self.vmem(f'buffer_store_dwordx4 {vr(ACC,4)}, {vXW}, {srd("WS")}, {soff} offen sc1', optional=True)
        p('s_mov_b64 exec, -1')
        p(f'{Ls}:')

    def rm_ops(self, src, addb2):
        t, u = T + 8, T + 9
        ops = ['s_mov_b32 exec_lo, 0x00ff00ff', 's_mov_b32 exec_hi, 0x00ff00ff', f'v_lshlrev_b32 v{t}, 16, v{src}']
        if addb2:
            ops += [f'v_accvgpr_read_b32 v{u}, a{aB2}', f'v_lshlrev_b32 v{u}, 16, v{u}', f'v_add_f32 v{t}, v{t}, v{u}']
        ops += [f'v_cvt_f64_f32 {vr(RM,2)}, v{t}', f'v_add_f64 {vr(RM,2)}, {vr(RM,2)}, -s[0:1]', 's_mov_b64 exec, -1']
        return ops

    def npol(self):
        return f's_bitcmp{1-self.o.pw}_b32 {sW}, 0' if self.NH == 2 else f's_cmp_lg_u32 {sW}, {self.o.pw}'

    def x16a(self, soff, final=False, fills=(), pre=0):
        p = self.p
        o = self.o
        ND = o.nd if not final else o.ndf
        gap = o.agap if not final else o.agapf
        D, x, lw, lr = T + 6, T + 5, T + 8, T + 9
        Lb, Lp, Lok = p.label('Lb'), p.label('Lp'), p.label('Lok')
        self.flush()
        def ld(k):
            a = PP[k % ND]
            p(f'v_mov_b32 v{a}, 0'); p(f'v_mov_b32 v{a+1}, 0')
            self.vmem(f'buffer_atomic_or_x2 {vr(a,2)}, {vXR}, {srd("WS")}, {soff} offen sc0 sc1', optional=True)
        assert len(fills) <= max(ND - 1, 0)
        for k, fn in enumerate(fills):
            La = p.label('La')
            p(f's_cmp_eq_u32 {sT3}, 0' if o.probe else self.npol()); p(f's_cbranch_scc1 {La}')
            ld(k)
            p(f'{La}:')
            fn()
            self.flush()
        p(f'v_and_b32 v{lr}, 0x30, v0')
        p(self.npol()); p(f's_cbranch_scc1 {Lb}')
        if final: p('s_waitcnt vmcnt(0)')
        for _ in range(pre): p('s_nop 15')
        first = True
        for k in range(len(fills), max(ND - 1, len(fills) + 1)):
            if k < ND - 1: ld(k)
            if first:
                p(f'v_and_b32 v{lw}, 7, v0'); p(f'v_lshl_add_u32 v{lw}, v{lw}, 1, v{lr}')
                if final: p(f's_lshl_b32 {sT}, {sH}, 6')
                elif self.NH == 2: p(f's_and_b32 {sT}, {sH}, 1'); p(f's_lshl_b32 {sT}, {sT}, 6'); p(f'v_add_u32 v{lw}, {sT}, v{lw}')
                first = False
            if k < ND - 1:
                for _ in range(gap): p('s_nop 15')
        p(f'{Lp}:')
        for k in range(ND):
            ld(k + ND - 1)
            p(f's_waitcnt vmcnt({ND-1})')
            p(f'v_cmp_gt_u32 vcc, 0x41000000, v{PP[k]+1}')
            p(f'v_add_f64 {vr(D,2)}, {vr(PP[k],2)}, {vr(RM,2)}')
            p(f's_cbranch_vccz {Lok}')
        p(f's_sub_u32 {sBud}, {sBud}, 1'); p(f's_cbranch_scc0 {Lp}')
        p(f's_mov_b32 {sBud}, 0')
        p(f'{Lok}:')
        p(f'v_cvt_f32_f64 v{x}, {vr(D,2)}')
        p(f'v_add_f32_dpp v{x}, v{x}, v{x} row_ror:8 {DF}')
        p(f'v_cvt_pk_bf16_f32 v{x}, v{x}, v{x}')
        if final:
            p('s_mov_b32 exec_lo, 0x00ff00ff'); p('s_mov_b32 exec_hi, 0x00ff00ff')
            p(f'buffer_store_short v{x}, v{lw}, {srd("OUT")}, {sT} offen')
            p('s_mov_b64 exec, -1')
            p(f'{Lb}:')
            return
        p(f'ds_write_b16 v{lw}, v{x} offset:{L_X}')
        p('s_waitcnt lgkmcnt(0)')
        p(f'{Lb}:')
        p('s_barrier')
        p(f'ds_read_b128 {vr(XA,4)}, v{lr} offset:{L_X}')
        if self.NH == 2: p(f'ds_read_b128 {vr(XA2,4)}, v{lr} offset:{L_X+64}')
        p(f's_waitcnt lgkmcnt({self.NH-1})')

    def x16(self, soff, pd=0, pre=0):
        if self.o.acc: return self.x16a(soff, pre=pre)
        if self.o.xs: return self.x16s(soff)
        p = self.p
        Y = T
        for _ in range(self.o.x8delay): p('s_nop 15')
        Lp = p.label('Lp')
        p(f'{Lp}:')
        self.vmem(f'buffer_load_dwordx4 {vr(Y,4)}, {vXR}, {srd("WS")}, {soff} offen sc1', optional=True)
        self.vmem(f'buffer_load_dwordx4 {vr(Y+4,4)}, {vXR}, {srd("WS")}, {soff} offen offset:1024 sc1', optional=True)
        p('s_waitcnt vmcnt(0)')
        p(f'v_pk_add_f32 {vr(Y,2)}, {vr(Y,2)}, {vr(Y+4,2)}')
        p(f'v_pk_add_f32 {vr(Y+2,2)}, {vr(Y+2,2)}, {vr(Y+6,2)}')
        for c in ('quad_perm:[1,0,3,2]', 'quad_perm:[2,3,0,1]', 'row_half_mirror'):
            for k in range(4):
                p(f'v_add_f32_dpp v{Y+k}, v{Y+k}, v{Y+k} {c} {DF}')
        p(f'v_pk_add_f32 {vr(Y,2)}, {vr(Y,2)}, {vr(XR,2)}')
        p(f'v_pk_add_f32 {vr(Y+2,2)}, {vr(Y+2,2)}, {vr(XR+2,2)}')
        p(f'v_cvt_pk_bf16_f32 v{XA}, v{Y}, v{Y+1}')
        p(f'v_cvt_pk_bf16_f32 v{XA+1}, v{Y+2}, v{Y+3}')
        p(f'v_pk_add_f32 {vr(Y,2)}, {vr(Y,2)}, {vr(Y+2,2)}')
        p(f'v_cmp_u_f32 vcc, v{Y}, v{Y+1}')
        self.build_xa()
        Lok = p.label('Lok')
        Lr = self.retry(Lp, Lok, extra=['s_nop 15'] * pd)
        p(f's_cbranch_vccnz {Lr}')
        p(f'{Lok}:')

    def x16s(self, soff):
        p = self.p
        ND = self.o.xs
        Y = ACC
        lw, lr = T + 8, T + 9
        def ld(k):
            if self.o.xat == 2:
                p(f'v_mov_b32 v{T+2*k}, -1'); p(f'v_mov_b32 v{T+2*k+1}, -1')
                self.vmem(f'buffer_atomic_and_x2 {vr(T+2*k,2)}, {vXR}, {srd("WS")}, {soff} offen sc0 sc1', optional=True)
            elif self.o.xat:
                p(f'v_mov_b32 v{T+2*k}, 0'); p(f'v_mov_b32 v{T+2*k+1}, 0')
                self.vmem(f'buffer_atomic_or_x2 {vr(T+2*k,2)}, {vXR}, {srd("WS")}, {soff} offen sc0 sc1', optional=True)
            else:
                self.vmem(f'buffer_load_dwordx2 {vr(T+2*k,2)}, {vXR}, {srd("WS")}, {soff} offen sc1', optional=True)
        ld(0)
        p(f'v_lshrrev_b32 v{lw}, 4, v0'); p(f'v_mul_u32_u24 v{lw}, 16, v{lw}'); p(f'v_lshl_add_u32 v{lw}, v0, 3, v{lw}')
        p(f's_mul_i32 {sT}, {sW}, 576'); p(f's_add_u32 {sT}, {sT}, {L_X}'); p(f'v_add_u32 v{lw}, {sT}, v{lw}')
        p(f'v_and_b32 v{lr}, 7, v0'); p(f'v_mul_u32_u24 v{lr}, 142, v{lr}'); p(f'v_lshl_add_u32 v{lr}, v0, 1, v{lr}')
        if self.o.xat == 2:
            Lp, Lg, Lok = p.label('Lp'), p.label('Lgive'), p.label('Lok')
            p(f's_branch {Lp}w')
            p(f'{Lp}:')
            p(f's_sub_u32 {sBud}, {sBud}, 1'); p(f's_cbranch_scc1 {Lg}')
            p('s_nop 1')
            self.vmem(f'buffer_atomic_and_x2 {vr(T,2)}, {vXR}, {srd("WS")}, {soff} offen sc0 sc1', optional=True)
            self.ool.append([f'{Lg}:', f's_mov_b32 {sBud}, 0', 's_waitcnt vmcnt(0)', f's_branch {Lok}'])
            p(f'{Lp}w:')
            p('s_waitcnt vmcnt(0)')
            p(f'v_cmpx_u_f32 vcc, v{T}, v{T+1}')
            p(f's_cbranch_vccnz {Lp}')
            p(f'{Lok}:')
            p('s_mov_b64 exec, -1')
            p(f'ds_write_b64 v{lw}, {vr(T,2)}')
            ND = 0
        for k in range(1, ND - 1):
            for _ in range(self.o.xgap): p('s_nop 15')
            ld(k)
        if ND > 1:
            for _ in range(self.o.xgap): p('s_nop 15')
        Lp, Lj = p.label('Lp'), p.label('Lj')
        Ld = [p.label('Ld') for _ in range(ND)]
        if ND == 1:
            p(f's_branch {Lp}w')
        if ND: p(f'{Lp}:')
        for k in range(ND):
            ld((k - 1) % ND)
            if ND == 1: p(f'{Lp}w:')
            p(f's_waitcnt vmcnt({ND - 1})')
            p(f'v_cmp_u_f32 vcc, v{T+2*k}, v{T+2*k+1}')
            p(f's_cbranch_vccz {Ld[k]}')
        if ND:
            p(f's_sub_u32 {sBud}, {sBud}, 1'); p(f's_cbranch_scc0 {Lp}')
            p(f's_mov_b32 {sBud}, 0')
            for k in range(1, ND):
                self.ool.append([f'{Ld[k]}:', f'ds_write_b64 v{lw}, {vr(T+2*k,2)}', f's_branch {Lj}'])
            p(f'{Ld[0]}:')
            p(f'ds_write_b64 v{lw}, {vr(T,2)}')
            p(f'{Lj}:')
        p('s_waitcnt lgkmcnt(0)')
        p('s_barrier')
        p(f'ds_read_b128 {vr(Y,4)}, v{lr} offset:{L_X}')
        p(f'ds_read_b128 {vr(Y+4,4)}, v{lr} offset:{L_X+1152}')
        p('s_waitcnt lgkmcnt(0)')
        p(f'v_pk_add_f32 {vr(Y,2)}, {vr(Y,2)}, {vr(Y+4,2)}')
        p(f'v_pk_add_f32 {vr(Y+2,2)}, {vr(Y+2,2)}, {vr(Y+6,2)}')
        for c in ('quad_perm:[1,0,3,2]', 'quad_perm:[2,3,0,1]', 'row_half_mirror'):
            for k in range(4):
                p(f'v_add_f32_dpp v{Y+k}, v{Y+k}, v{Y+k} {c} {DF}')
        p(f'v_pk_add_f32 {vr(Y,2)}, {vr(Y,2)}, {vr(XR,2)}')
        p(f'v_pk_add_f32 {vr(Y+2,2)}, {vr(Y+2,2)}, {vr(XR+2,2)}')
        p(f'v_cvt_pk_bf16_f32 v{XA}, v{Y}, v{Y+1}')
        p(f'v_cvt_pk_bf16_f32 v{XA+1}, v{Y+2}, v{Y+3}')
        self.build_xa()

    def oa2a(self, pd=0, mid=None, stk=None, pre=0):
        p = self.p
        AO = T
        ml = T + 4
        M, f, Lq, ck = T + 6, T + 7, T + 8, T + 9
        y = T + 12
        DL = self.o.plo
        assert not (mid and DL > 1)
        if stk and self.o.stamps >= 2: p(f'v_writelane_b32 {vSTAMP}, {sBud}, {stk+12}')
        if pre:
            Lq_ = p.label('Lpre')
            p(f's_cmp_eq_u32 {sW}, 0'); p(f's_cbranch_scc1 {Lq_}')
            for _ in range(pre): p('s_nop 15')
            p(f'{Lq_}:')
        Lp = p.label('Lp')
        if mid:
            self.vmem(f'buffer_load_dwordx2 {vr(ml,2)}, {vOSR}, {srd("WS")}, {sL} offen sc1')
            self.vmem(f'buffer_load_dwordx4 {vr(AO,4)}, {vOR}, {srd("WS")}, {sL} offen sc1')
            mid()
            self.ool.append([f'{Lp}:', f'buffer_load_dwordx2 {vr(ml,2)}, {vOSR}, {srd("WS")}, {sL} offen sc1',
                             f'buffer_load_dwordx4 {vr(AO,4)}, {vOR}, {srd("WS")}, {sL} offen sc1', f's_branch {Lp}w'])
            p(f'{Lp}w:')
        else:
            for k in range(DL):
                if k == DL - 1: p(f'{Lp}:')
                self.vmem(f'buffer_load_dwordx2 {vr(ml,2)}, {vOSR}, {srd("WS")}, {sL} offen sc1', optional=True)
                self.vmem(f'buffer_load_dwordx4 {vr(AO,4)}, {vOR}, {srd("WS")}, {sL} offen sc1', optional=True)
                if k < DL - 1:
                    for _ in range(self.o.pgapo): p('s_nop 15')
        if self.o.inl and not mid:
            Lok = self.bud(); Lr = Lp
        else:
            Lok = p.label('Lok')
            Lr = self.retry(Lp, Lok, extra=['s_nop 15'] * pd)
        p(f's_waitcnt vmcnt({2*(DL-1)})')
        chk = [f'v_max3_u32 v{ck}, v{AO}, v{AO+1}, v{AO+2}', f'v_max3_u32 v{ck}, v{ck}, v{AO+3}, v{ml}',
               f'v_max_u32 v{ck}, v{ck}, v{ml+1}', f'v_cmp_eq_u32 vcc, -1, v{ck}']
        sc = [f'v_max_f32_dpp v{M}, v{ml}, v{ml} quad_perm:[1,0,3,2] {DF}',
              f'v_max_f32_dpp v{M}, v{M}, v{M} quad_perm:[2,3,0,1] {DF}',
              f'v_max_f32_dpp v{M}, v{M}, v{M} row_half_mirror {DF}',
              f'v_sub_f32 v{f}, v{ml}, v{M}', f'v_exp_f32 v{f}, v{f}',
              f'v_mul_f32 v{Lq}, v{f}, v{ml+1}',
              f'v_add_f32_dpp v{Lq}, v{Lq}, v{Lq} quad_perm:[1,0,3,2] {DF}',
              f'v_add_f32_dpp v{Lq}, v{Lq}, v{Lq} quad_perm:[2,3,0,1] {DF}',
              f'v_add_f32_dpp v{Lq}, v{Lq}, v{Lq} row_half_mirror {DF}',
              f'v_rcp_f32 v{Lq}, v{Lq}', f'v_mul_f32 v{f}, v{f}, v{Lq}']
        mf = [f'{MFMA} {vr(ACC+4*d,4)}, {vr(AO,4)}, {ar(aWO+4*d,4)}, 0' for d in range(8)]
        if DL > 1 or self.o.ec:
            p(chk[0]); p(chk[1]); p(mf[0]); p(chk[2]); p(chk[3]); p(sc[0])
            p(f's_cbranch_vccnz {Lr}')
            p(f'{Lok}:')
            p(mf[1]); p(sc[1]); p(mf[2])
        else:
            p(mf[0]); p(chk[0]); p(chk[1]); p(sc[0])
            p(mf[1]); p(chk[2]); p(chk[3]); p(sc[1])
            p(mf[2])
            p(f's_cbranch_vccnz {Lr}')
            p(f'{Lok}:')
        if stk and self.o.stamps >= 2:
            self.stamp(stk); p(f'v_writelane_b32 {vSTAMP}, {sBud}, {stk+10}')
        p(sc[2])
        p(mf[3]); p(sc[3]); p(sc[4])
        p(mf[4]); p(sc[5])
        p(mf[5]); p(sc[6])
        p(mf[6]); p(sc[7])
        p(mf[7]); p(sc[8]); p(sc[9]); p(sc[10])
        for r in range(4):
            for d in range(8):
                op = 'v_mul_f32_dpp' if r == 0 else 'v_fmac_f32_dpp'
                p(f'{op} v{y+d}, v{f}, v{ACC+4*d+r} row_newbcast:{r} {DF}')
        self.reduce_publish(y, 'o', sL, 0)

    def gather_stats(self, va, va3, off, second, shadow=None):
        p = self.p
        u, st, mean, sc = T, T + 1, T + 2, T + 3
        Lp = p.label('Lp')
        if shadow:
            for s_ in self.g3_list(ACC, va, va3, sL): self.vmem(s_, optional=True)
            shadow()
            p(f's_branch {Lp}w')
        p(f'{Lp}:')
        for s_ in self.g3_list(ACC, va, va3, sL): self.vmem(s_, optional=True)
        Lp = (Lp, self.bud())
        if shadow: p(f'{Lp[0]}w:')
        p('s_waitcnt vmcnt(1)')
        so = self.stats_ops(ACC + 4, st, mean, sc, second, ACC + 8)
        for s_ in so[:2]: p(s_)
        p('s_waitcnt vmcnt(0)')
        gs = self.g3_sum(ACC, f'v{u}')
        if self.o.ec:
            p(gs[0]); p(gs[1]); p(so[2])
            p(f'v_cmp_u_f32 vcc, v{ACC}, {vZ}')
            p(gs[2]); p(gs[3])
            p(f's_cbranch_vccnz {Lp[0]}')
            self.merge(so[3:], gs[4:])
        else: self.merge(gs, so[2:])
        return Lp, u, st, mean, sc

    def ha2a(self, shadow=None, stk=None):
        p = self.p
        if stk and self.o.stamps >= 2:
            p(f'v_writelane_b32 {vSTAMP}, {sBud}, {stk+14}')
            if stk == 28: self.stamp(30); self.flush()
        Lp, u, st, mean, sc = self.gather_stats(vHR, vHR3, 256, True, shadow)
        t1_, e = T + 4, T + 5
        A = T + 8
        y = T + 12
        if isinstance(Lp, tuple): Lr, Lok = Lp
        else:
            Lok = p.label('Lok')
            Lr = self.retry(Lp, Lok)
        c0 = -2.0 * math.sqrt(2.0 / math.pi) * math.log2(math.e)
        c1 = c0 * 0.044715
        p(f'v_fma_f32 v{u}, -v{mean}, {CS1}, v{u}')
        p(f'v_fma_f32 v{u}, v{u}, v{sc}, {B1v}')
        p(f'v_mul_f32 v{t1_}, v{u}, v{u}')
        p(f'v_cmp_u_f32 vcc, v{u}, v{st}')
        p(f'v_mul_f32 v{t1_}, {H(f2u(c1))}, v{t1_}')
        p(f'v_add_f32 v{t1_}, {H(f2u(c0))}, v{t1_}')
        p(f's_cbranch_vccnz {Lr}')
        p(f'{Lok}:')
        if stk and self.o.stamps >= 2:
            self.stamp(stk); p(f'v_writelane_b32 {vSTAMP}, {sBud}, {stk+12}')
        p(f'v_mul_f32 v{t1_}, v{t1_}, v{u}')
        p(f'v_exp_f32 v{e}, v{t1_}')
        p(f'v_add_f32 v{e}, 1.0, v{e}')
        p(f'v_rcp_f32 v{e}, v{e}')
        p(f'v_mul_f32 v{u}, v{u}, v{e}')
        p(f'v_cvt_pk_bf16_f32 v{u}, v{u}, v{u}')
        for k in range(4):
            p(f'v_and_b32 v{A+k}, v{u}, v{MK+k}')
        for d in range(4):
            p(f'{MFMA} {vr(ACC+4*d,4)}, {vr(A,4)}, {ar(aW2+4*d,4)}, 0')
        for d in range(4):
            p(f'v_pk_add_f32 {vr(ACC+4*d,2)}, {vr(ACC+4*d,2)}, {vr(ACC+4*d+2,2)}')
            p(f'v_add_f32 v{y+d}, v{ACC+4*d}, v{ACC+4*d+1}')
        self.reduce_publish(y, 'h', sLM, 2048)

    def combine(self, fl):
        p = self.p
        f = T + 5
        p(f'v_mul_f32_dpp v{T}, v{f}, v{ACC} quad_perm:[0,0,0,0] {DF}')
        p(f'v_mul_f32_dpp v{T+1}, v{f}, v{ACC+4} quad_perm:[0,0,0,0] {DF}')
        p(f'ds_write2_b32 {lOW}, v{T}, v{T+1} offset0:0 offset1:64')
        p(f's_cmp_lg_u32 {sW}, 0')
        self.lgkm(0)
        if self.o.stamps: p(f's_cmp_lg_u32 {sW}, 0')
        p('s_barrier')
        Ls = p.label('Lsk')
        p(f's_cbranch_scc1 {Ls}')
        p(f'ds_read2_b64 {vr(ACC,4)}, {lOR} offset0:0 offset1:64')
        p(f'ds_read2_b64 {vr(ACC+4,4)}, {lOR} offset0:128 offset1:192')
        self.lgkm(1)
        p(f'v_pk_add_f32 {vr(ACC,2)}, {vr(ACC,2)}, {vr(ACC+2,2)}')
        self.lgkm(0)
        p(f'v_pk_add_f32 {vr(ACC+4,2)}, {vr(ACC+4,2)}, {vr(ACC+6,2)}')
        p(f'v_pk_add_f32 {vr(ACC,2)}, {vr(ACC,2)}, {vr(ACC+4,2)}')
        p(f'v_cvt_pk_bf16_f32 v{ACC}, v{ACC}, v{ACC+1}')
        self.vmem(f'buffer_store_dword v{ACC}, {vOW}, {srd("WS")}, {sL} offen {fl}', optional=True)
        p(f'{Ls}:')

    def set_layer(self, off):
        p = self.p
        p(f's_mov_b32 {sL}, {H(off)}')
        p(f's_add_u32 {sOS}, {sOS0}, {H(off)}')
        p(f's_mov_b32 {sLM}, {H(off + XMo - XAo)}')

    def finish(self):
        p = self.p
        if self.o.stamps:
            self.stamp(31)
            self.flush()
            p(f'v_writelane_b32 {vSTAMP}, {sBud}, 33')
            p(f's_memtime s[{sSTAMP}:{sSTAMP+1}]'); p('s_waitcnt lgkmcnt(0)')
            p(f'v_writelane_b32 {vSTAMP}, s{sSTAMP}, 35')
            Le = p.label('Lend')
            p(f's_cmp_lg_u32 {sW}, 0'); p(f's_cbranch_scc1 {Le}')
            p(f's_lshl_b32 {sT}, s2, 8'); p(f's_add_u32 {sT}, {sT}, 0x8000000')
            p(f'v_lshlrev_b32 v{T}, 2, {vLane}')
            p(f'buffer_store_dword {vSTAMP}, v{T}, {srd("WS")}, {sT} offen')
            p(f'{Le}:')
        p('s_endpgm')

    def chain(self, A, B, fast, name):
        p = self.p
        o = self.o
        fl = '' if fast else 'sc1'
        vm0, tags0 = self.vm, dict(self.tags)
        p(f'{name}:')
        TB = ACC
        FL = vR
        for layer in range(2):
            def stp(k): self.stamp(8 + 10 * layer + k)
            stp(2)
            self.combine(fl)
            stp(3)
            if layer == 0:
                if A and o.w1bar: p('s_barrier')
                if A and o.probe:
                    p(f'v_bfe_u32 v{T+1}, v0, 3, 2'); p(f'v_lshlrev_b32 v{T+1}, 11, v{T+1}'); p(f'v_and_b32 v{T}, 7, v0'); p(f'v_lshl_add_u32 v{T+1}, v{T}, 4, v{T+1}')
                    p(f's_add_u32 {sT}, {sBX}, {H(OP)}')
                    self.vmem(f'buffer_load_dword v{T}, v{T+1}, {srd("WS")}, {sT} offen sc1', tag='PR')
                for k, f in self.rest: f()
                self.wait('FL2')
                Lfp, Lfok, Lfc = p.label('Lfp'), p.label('Lfok'), p.label('Lfc')
                self.flush()
                p(f'{Lfc}:')
                p(f'v_and_b32 v{t0}, 0x80808080, v{FL}')
                p(f'v_cmp_ne_u32 vcc, 0x80808080, v{t0}')
                Lr = self.retry(Lfp, Lfok)
                self.ool.append([f'{Lfp}:', f'buffer_load_dword v{FL}, v{T+15}, {srd("DBG")}, 0 offen sc1',
                                 's_waitcnt vmcnt(0)', f's_branch {Lfc}'])
                p(f's_cbranch_vccnz {Lr}')
                p(f'{Lfok}:')
            if B:
                def mid():
                    self.wait('WO')
                    self.stamp(28)
                    self.transpose(aWO, 4, TB, T + 12)
                if layer == 0 and o.wolate and not o.womid: mid()
                self.oa2a(o.pdo if layer == 0 else 0, mid if (layer == 0 and o.wolate and o.womid) else None, stk=26 + layer, pre=o.opre if layer else 0)
                stp(4)
                if layer == 0:
                    if o.w2bar and self.rest2: p('s_barrier')
                    for k, f in self.rest2: f()
            def w1f0():
                if o.wv & 2: self.transpose(aW1, 2, ACC, T + 12, rd=False)
                else: self.transpose(aW1, 2, TB, TB + 16)
            def w1f1():
                if self.NH == 1: pass
                elif o.wv & 2: self.transpose(aW1 + 16, 2, ACC + 16, T + 12, rd=False)
                else: self.transpose(aW1 + 16, 2, TB, TB + 16)
                p(f's_mov_b32 {sT2}, {H(CSL)}')
                self.w1((XB, XB), sT2, fl, False, False)
            if A and layer == 0 and o.fill < 2:
                self.wait('W1')
                w1f0()
                if not o.fill: w1f1()
            c1l = [f's_mov_b32 {sT2}, {H(CSL)}'] + self.g3_list(aC1, vHR, vHR3, sT2, acc=True)
            cql = [f's_mov_b32 {sT2}, {H(CSL)}'] + self.g3_list(aCQ, vQR, vQR3, sT2, acc=True)
            if B and layer == 0:
                self.wait('W2')
                if o.stamps >= 2: self.stamp(9)
                if not o.wv:
                    p(f'v_accvgpr_read_b32 {B1v}, a{aB1}'); p(f'v_lshlrev_b32 {B1v}, 16, {B1v}')
                    self.transpose(aW2, 2, TB, TB + 16)
                for s_ in c1l: p(s_)
            if not B and layer == 0 and (o.xgate or not A):
                Lp, Lg, Lok = p.label('Lp'), p.label('Lgive'), p.label('Lok')
                if o.probe:
                    assert o.fill == 2 and o.opc and A
                    Lnp, Lfa, Lj = p.label('Lnp'), p.label('Lfa'), p.label('Lj')
                    p(f's_mov_b32 {sT3}, 0')
                    p(self.npol()); p(f's_cbranch_scc1 {Lnp}')
                    self.wait('PR')
                    p(f'v_cmp_eq_u32 vcc, -1, v{T}')
                    p(f's_cbranch_vccz {Lfa}')
                    p(f's_mov_b32 {sT3}, 1')
                    def lds(k): return [f'v_mov_b32 v{PP[k]}, 0', f'v_mov_b32 v{PP[k]+1}, 0', f'buffer_atomic_or_x2 {vr(PP[k],2)}, {vXR}, {srd("WS")}, {sL} offen sc0 sc1']
                    self.ool.append([f'{Lfa}:'] + ['s_nop 15'] * o.probe + lds(0) + ['s_nop 15'] * o.prgap + lds(1) + ['s_waitcnt vmcnt(2)', f's_branch {Lok}'])
                    self.ool.append([f'{Lnp}:', 's_waitcnt vmcnt(0)', f's_branch {Lok}'])
                else:
                    p(f'v_bfe_u32 v{T+1}, v0, 3, 2'); p(f'v_lshlrev_b32 v{T+1}, 11, v{T+1}'); p(f'v_and_b32 v{T}, 7, v0'); p(f'v_lshl_add_u32 v{T+1}, v{T}, 4, v{T+1}')
                    p(f's_add_u32 {sT}, {sBX}, {H(OP)}')
                p(f'{Lp}:')
                p(f'buffer_load_dword v{T}, v{T+1}, {srd("WS")}, {sT} offen sc1')
                p(f's_sub_u32 {sBud}, {sBud}, 1'); p(f's_cbranch_scc1 {Lg}')
                self.ool.append([f'{Lg}:', f's_mov_b32 {sBud}, 0', 's_waitcnt vmcnt(0)', f's_branch {Lok}'])
                for _ in range(o.xgate - 1): p('s_nop 15')
                p('s_waitcnt vmcnt(0)')
                p(f'v_cmp_eq_u32 vcc, -1, v{T}')
                p(f's_cbranch_vccnz {Lp}')
                p(f'{Lok}:')
                for _ in range(o.xgd): p('s_nop 15')
            LW = 's_waitcnt lgkmcnt(0)'
            if A:
                if layer == 0 and o.fill:
                    assert o.xgate
                    self.x16a(sL, fills=[w1f0, w1f1][2-o.fill:])
                else: self.x16(sL, 0, pre=o.pd1 if layer else o.pd0)
                stp(5)
                self.w1((XA, XA2), sL, fl, True, False, post=self.rm_ops(T + 5, True), w2=LW)
                stp(6)
            if layer == 0 and not B:
                for s_ in cql: p(s_)
            if B and layer == 0 and o.wv:
                def c1sh():
                    p(f'v_accvgpr_read_b32 {B1v}, a{aB1}'); p(f'v_lshlrev_b32 {B1v}, 16, {B1v}')
                    self.transpose(aW2, 2, ACC + 12, ACC + 28, rd=False)
                    self.flush()
                    Lc1, Lcp, Lcok = p.label('Lc'), p.label('Lcp'), p.label('Lcok')
                    p('s_waitcnt vmcnt(2)')
                    p(f'{Lc1}:')
                    for k in range(8): p(f'v_accvgpr_read_b32 v{ACC+12+k}, a{aC1+k}')
                    for s_ in self.g3_sum(ACC + 12, CS1): p(s_)
                    p(f'v_cmp_u_f32 vcc, {CS1}, {CS1}')
                    Lr = self.retry(Lcp, Lcok)
                    self.ool.append([f'{Lcp}:'] + c1l + ['s_waitcnt vmcnt(0)', f's_branch {Lc1}'])
                    p(f's_cbranch_vccnz {Lr}')
                    p(f'{Lcok}:')
                self.ha2a(c1sh, stk=28 + layer)
                stp(7)
                for s_ in cql: p(s_)
            elif B:
                if layer == 0:
                    self.flush()
                    Lc1, Lcp, Lcok = p.label('Lc'), p.label('Lcp'), p.label('Lcok')
                    p(f'{Lc1}:')
                    p('s_waitcnt vmcnt(0)')
                    for k in range(8): p(f'v_accvgpr_read_b32 v{ACC+k}, a{aC1+k}')
                    for s_ in self.g3_sum(ACC, CS1): p(s_)
                    p(f'v_cmp_u_f32 vcc, {CS1}, {CS1}')
                    Lr = self.retry(Lcp, Lcok)
                    self.ool.append([f'{Lcp}:'] + c1l + [f's_branch {Lc1}'])
                    p(f's_cbranch_vccnz {Lr}')
                    p(f'{Lcok}:')
                self.ha2a(stk=28 + layer)
                stp(7)
                if layer == 0:
                    for s_ in cql: p(s_)
            if layer == 1:
                if A:
                    Lf = p.label('Lfin')
                    self.flush()
                    p(f's_or_b32 {sT}, {sX}, {sW}' if not o.xs else f's_mov_b32 {sT}, {sX}')
                    p(f's_cmp_lg_u32 {sT}, 0'); p(f's_cbranch_scc1 {Lf}')
                    if o.acc:
                        self.x16a(sLM, final=True, pre=0 if B else o.pd3)
                        if o.stamps: p('s_barrier')
                    else:
                        self.x16(sLM)
                        if o.xs: p(f's_cmp_lg_u32 {sW}, 0'); p(f's_cbranch_scc1 {Lf}')
                        p(f's_mov_b64 exec, s[{sMF}:{sMF+1}]')
                        p(f's_lshl_b32 {sT}, {sIA}, 6')
                        p(f'buffer_store_dwordx2 {vr(XA,2)}, {vLane}, {srd("OUT")}, {sT} offen')
                        p('s_mov_b64 exec, -1')
                    p(f'{Lf}:')
                self.finish()
                break
            p('s_waitcnt vmcnt(0)')
            for k in range(8): p(f'v_accvgpr_read_b32 v{ACC+k}, a{aCQ+k}')
            for s_ in self.g3_sum(ACC, CSQ): p(s_)
            if A:
                self.x16(sLM, pre=o.pd2)
                stp(8)
            self.set_layer(LSTR)
            if B and o.opwarm:
                p(f'buffer_load_dwordx2 {ar(aC1,2)}, {vOSR}, {srd("WS")}, {sL} offen sc1')
                p(f'buffer_load_dwordx4 {ar(aC1+4,4)}, {vOR}, {srd("WS")}, {sL} offen sc1')
            if A:
                self.qp((XA, XA2), sL, fl, True, False, post=self.rm_ops(T + 5, False), w2=LW)
                stp(9)
            if not A and not B:
                for _ in range(o.pdC): p('s_nop 15')
            Lp, u, st, mean, sc = self.gather_stats(vQR, vQR3, 0, False)
            self.q_finish(u, st, mean, sc, Lp)
            stp(10)
            self.flush()
            self.qk_softmax(vw=o.pl > 1)
            stp(11)
            self.pv(self.ml_ops(fl), False)
            self.flush()
        for code in self.ool:
            for s_ in code: p(s_)
        self.ool = []
        self.vm, self.tags = vm0, tags0

    def kvo(self, mb):
        a = self.o.alt
        if a == 0 or a == 4: k, off = mb >> 2, mb & 3
        elif a == 1: k, off = 2 * (mb >> 3) + (mb & 1), (mb >> 1) & 3
        elif a == 2: k, off = 2 * (mb >> 3) + ((mb >> 1) & 1), (mb & 1) + 2 * ((mb >> 2) & 1)
        return f's{sKV+k} offen offset:{1024*off} nt'
    def kload(self, mb):
        self.vmem(f'buffer_load_dwordx4 {ar(4*mb,4)}, {vK}, {srd("K")}, {self.kvo(mb)}', tag=f'K{mb}')
    def vload(self, mb):
        assert self.vfree, 'V area still in use'
        if mb == 0 and self.o.loc and self.o.loc[0] != self.o.loc[1]:
            for k in range(8): self.p(f's_xor_b32 s{sKV+k}, s{sKV+k}, 0x2000')
        self.vmem(f'buffer_load_dwordx4 {vr(VB+2+4*mb,4)}, {a16}, {srd("V")}, {self.kvo(mb)}', tag=f'V{mb}')

    def pfcode(self, lo, hi, track=True):
        p = self.p
        L = p.label('Lpc')
        n = SRD['X']
        Ls = p.label('Lpcs')
        if self.o.pfsel:
            track = False
            p(f's_and_b32 {sT}, {sC}, 7'); p(f's_cmp_lg_u32 {sT}, 5'); p(f's_cbranch_scc1 {Ls}')
        p(f's_getpc_b64 s[{n}:{n+1}]')
        p(f'{L}:')
        p(f's_add_u32 s{n}, s{n}, {lo}-{L}'); p(f's_addc_u32 s{n+1}, s{n+1}, {0 if self.fwd else -1}')
        p(f's_mov_b32 s{n+2}, {hi}-{lo}')
        p(f'v_lshlrev_b32 v{t2}, 7, v0'); p(f's_lshl_b32 {sT}, {sW}, 13')
        self.vmem(f'buffer_load_dword a{aCQ+11}, v{t2}, {srd("X")}, {sT} offen', optional=not track)
        p(f'{Ls}:')

    def head(self):
        p = self.p
        o = self.o
        p('L_top:')
        p('s_cmp_lt_u32 s2, 256'); p('s_cbranch_scc1 L_go')
        p('s_endpgm')
        p('L_go:')
        p(f's_load_dwordx16 s[{KA}:{KA+15}], s[0:1], 0')
        p(f's_load_dwordx2 s[{SRD["WS"]}:{SRD["WS"]+1}], s[0:1], {KOFF["WS"]}')
        if o.stamps:
            p('s_memrealtime s[96:97]')
            p('s_memtime s[98:99]')
        p('v_lshrrev_b32 v1, 6, v0')
        p('v_and_b32 v0, 63, v0')
        p(f'v_readfirstlane_b32 {sW}, v1')
        p(f's_and_b32 {sX}, s2, 7'); p(f's_lshr_b32 {sC}, s2, 3'); p(f's_and_b32 {sJ}, {sC}, 3'); p(f's_lshr_b32 {sS}, {sC}, 2')
        if o.jx: p(f's_xor_b32 {sJ}, {sJ}, {o.jx}')
        if o.sx: p(f's_xor_b32 {sS}, {sS}, {o.sx}')
        if o.xx: p(f's_xor_b32 {sX}, {sX}, {o.xx}')
        if o.xperm:
            cst = sum(int(ch) << (4 * i) for i, ch in enumerate(o.xperm))
            p(f's_lshl_b32 {sX}, {sX}, 2'); p(f's_lshr_b32 {sX}, {H(cst)}, {sX}'); p(f's_and_b32 {sX}, {sX}, 7')
        a = o.ja
        if a == 0: p(f's_lshl_b32 {sFlag}, {sX}, 2')
        elif a == 3: p(f's_mov_b32 {sFlag}, {sX}')
        else:
            p(f's_lshr_b32 {sFlag}, {sX}, {a}'); p(f's_lshl_b32 {sFlag}, {sFlag}, {a+2}'); p(f's_and_b32 {sT}, {sX}, {(1<<a)-1}'); p(f's_or_b32 {sFlag}, {sFlag}, {sT}')
        if o.pfa:
            n = SRD['OUT']
            p(f's_sub_u32 {sT}, {sC}, {o.pfc}'); p(f's_cmp_ge_u32 {sT}, 2'); p('s_cbranch_scc1 L_nopf')
            p(f's_getpc_b64 s[{n}:{n+1}]')
            p('L_pc:')
            p(f's_mov_b32 s{n+2}, L_fastend-L_pc+{o.pfx}'); p(f's_mov_b32 s{n+3}, 0x00020000')
            p(f's_lshl_b32 {sT}, {sT}, 2'); p(f's_add_u32 {sT}, {sT}, {sW}'); p(f's_lshl_b32 {sT}, {sT}, 13')
            p(f'v_lshlrev_b32 v{t2}, 7, v0')
            self.vmem(f'buffer_load_dword a{aCQ+11}, v{t2}, {srd("OUT")}, {sT} offen', optional=True)
            p('L_nopf:')
        vWQ, vWO, vXs = T + 12, T + 13, T + 14
        sQ, sO = sMc, sOS
        p(f'v_lshlrev_b32 {a16}, 4, v0')
        p(f'v_and_b32 v{vR}, 15, v0'); p(f'v_lshrrev_b32 v{vG}, 4, v0')
        p(f's_mov_b32 {sIA}, {sC}'); p(f's_sub_u32 {sIB}, {sC}, 12')
        for n in ('X', 'WQ', 'WO'):
            p(f's_mov_b32 s{SRD[n]+2}, {H(SIZE[n])}'); p(f's_mov_b32 s{SRD[n]+3}, 0x00020000')
        p(f'v_lshlrev_b32 v{vWQ}, 16, v{vG}'); p(f'v_lshl_add_u32 v{vWQ}, v{vR}, 4, v{vWQ}')
        p(f's_lshl_b32 {sT3}, {sC}, 1'); p(f's_add_u32 {sT2}, {sC}, 8'); p(f's_min_u32 {sT3}, {sT3}, {sT2}')
        p(f's_lshl_b32 {sQ}, {sT3}, 18')
        if o.jm:
            p(f's_mul_i32 {sT2}, {sW}, {o.jm}'); p(f's_xor_b32 {sT2}, {sT2}, {sFlag}'); p(f's_lshl_b32 {sT2}, {sT2}, 8'); p(f's_add_u32 {sQ}, {sQ}, {sT2}')
        else:
            p(f's_lshl_b32 {sT2}, {sFlag}, 8'); p(f's_add_u32 {sQ}, {sQ}, {sT2}')
            p(f's_lshl_b32 {sT2}, {sW}, {8+a}'); p(f's_add_u32 {sQ}, {sQ}, {sT2}')
        p(f'v_and_b32 v{vXs}, 0x38, v0'); p(f'v_lshl_add_u32 v{vXs}, {sT3}, 6, v{vXs}')
        if o.wqtest:
            p(f'v_lshlrev_b32 v{vWQ}, 4, v0')
            p(f's_mul_i32 {sQ}, {sX}, 20'); p(f's_add_u32 {sQ}, {sQ}, {sT3}'); p(f's_lshl_b32 {sQ}, {sQ}, 15'); p(f's_lshl_b32 {sT2}, {sW}, 10'); p(f's_add_u32 {sQ}, {sQ}, {sT2}')
        p(f'v_and_b32 v{t0}, 1, v{vG}'); p(f'v_lshlrev_b32 v{t0}, 6, v{t0}')
        p(f'v_lshrrev_b32 v{t2}, 3, v{vR}'); p(f'v_lshl_add_u32 v{t0}, v{t2}, 1, v{t0}')
        p(f'v_lshrrev_b32 v{t1}, 1, v{vG}'); p(f'v_add_u32 v{t0}, v{t0}, v{t1}')
        p(f'v_mul_u32_u24 v{t0}, 1280, v{t0}')
        p(f'v_and_b32 v{t1}, 7, v0'); p(f'v_lshl_add_u32 v{vWO}, v{t1}, 4, v{t0}')
        p(f's_and_b32 {sT}, {sIB}, 1'); p(f's_lshl_b32 {sT}, {sT}, 1'); p(f's_lshr_b32 {sT2}, {sW}, 1'); p(f's_add_u32 {sT}, {sT}, {sT2}')
        (p(f's_mul_i32 {sT}, {sT}, {o.jm}') if o.jm else p(f's_lshl_b32 {sT}, {sT}, {a}') if a else None); p(f's_xor_b32 {sT}, {sT}, {sFlag}'); p(f's_lshl_b32 {sT}, {sT}, 7')
        p(f's_and_b32 {sT2}, {sW}, 1'); p(f's_lshl_b32 {sT2}, {sT2}, 2'); p(f's_add_u32 {sT}, {sT}, {sT2}')
        p(f's_mul_i32 {sO}, {sT}, 1280'); p(f's_lshr_b32 {sT2}, {sIB}, 1'); p(f's_lshl_b32 {sT2}, {sT2}, 7'); p(f's_add_u32 {sO}, {sO}, {sT2}')
        p(f's_cmp_ge_u32 {sC}, 12')
        p('s_waitcnt lgkmcnt(0)')
        self.mv('WO')
        p('s_cbranch_scc1 L_eB')
        self.mv('X'); self.mv('WQ')
        self.vmem(f'buffer_load_dwordx4 {vr(XF,4)}, {a16}, {srd("X")}, 0 offen', tag='XF')
        self.vmem(f'buffer_load_dwordx4 {vr(XF+4,4)}, {a16}, {srd("X")}, 0 offen offset:1024', tag='XF')
        self.vmem(f'buffer_load_dwordx2 {vr(XA,2)}, v{vXs}, {srd("X")}, 0 offen', tag='XF')
        self.vmem(f'buffer_load_dwordx2 {vr(XA2,2)}, v{vXs}, {srd("X")}, 0 offen offset:64', tag='XF')
        for jj in range(16):
            self.vmem(f'buffer_load_dwordx4 {vr((WR if jj < 8 else WOR-32)+4*jj,4)}, v{vWQ}, {srd("WQ")}, {sQ} offen nt', tag='WQ' if jj >= 8 else 'WQ0')
            if jj < 15: p(f's_add_u32 {sQ}, {sQ}, {4096 if o.wqtest else 8192*25 if jj == 7 else 8192}')
            if jj == 7:
                p(f's_cmp_ge_u32 {sC}, 8'); p('s_cbranch_scc1 L_roleC')
                self.stC = (self.vm, dict(self.tags))
        p('s_branch L_roleA')
        p('L_eB:')
        for jj in range(o.n0B):
            p(f'buffer_load_dwordx4 {vr(WOR+4*jj,4)}, v{vWO}, {srd("WO")}, {sO} offen nt')
            p(f's_add_u32 {sO}, {sO}, {8*1280}')
        if not o.order.startswith('B'): p('s_branch L_roleB')

    def mv(self, n): self.p(f's_mov_b64 s[{SRD[n]}:{SRD[n]+1}], s[{KA+KOFF[n]//4}:{KA+KOFF[n]//4+1}]')

    def late_head(self):
        p = self.p
        for n in SRD:
            if n in ('X', 'WQ', 'WO'): continue
            p(f's_mov_b32 s{SRD[n]+2}, {H(SIZE[n])}'); p(f's_mov_b32 s{SRD[n]+3}, 0x00020000')
        for k in range(4): p(f'v_mov_b32 v{SN+k}, -1')
        p(f's_mul_i32 {sBX}, {sX}, {H(GB)}')
        p(f's_mul_i32 {sT2}, {sJ}, {self.o.jm}' if self.o.jm else f's_lshl_b32 {sT2}, {sJ}, {self.o.ja}'); p(f's_xor_b32 {sT2}, {sT2}, {sFlag}')
        p(f's_lshl_b32 s{sKV}, {sT2}, 20')
        if self.o.smap:
            cst = sum(int(ch) << (4 * i) for i, ch in enumerate(self.o.smap))
            p(f's_lshl_b32 {sT2}, {sS}, 2'); p(f's_lshr_b32 {sT2}, {H(cst)}, {sT2}'); p(f's_and_b32 {sT2}, {sT2}, 7')
            p(f's_lshl_b32 {sT2}, {sT2}, 17'); p(f's_add_u32 s{sKV}, s{sKV}, {sT2}')
        elif self.o.il != 1:
            p(f's_lshl_b32 {sT2}, {sS}, 17'); p(f's_add_u32 s{sKV}, s{sKV}, {sT2}')
        if self.o.wx:
            p(f's_mul_i32 {sT2}, {sW}, {self.o.wx << 17}'); p(f's_and_b32 {sT2}, {sT2}, {H(7 << 17)}'); p(f's_xor_b32 s{sKV}, s{sKV}, {sT2}')
        if self.o.jxs:
            p(f's_mul_i32 {sT2}, {sJ}, {self.o.jxs << 17}'); p(f's_and_b32 {sT2}, {sT2}, {H(7 << 17)}'); p(f's_xor_b32 s{sKV}, s{sKV}, {sT2}')
        if self.o.xxs:
            p(f's_mul_i32 {sT2}, {sX}, {self.o.xxs << 17}'); p(f's_and_b32 {sT2}, {sT2}, {H(7 << 17)}'); p(f's_xor_b32 s{sKV}, s{sKV}, {sT2}')
        if self.o.il:
            p(f's_lshl_b32 {sT2}, {sS}, 14'); p(f's_add_u32 s{sKV}, s{sKV}, {sT2}')
            p(f's_lshl_b32 {sT2}, {sW}, 12'); p(f's_add_u32 s{sKV}, s{sKV}, {sT2}')
            seq = [0, 1, 2, 3, 4, 5, 6, 7] if self.o.il < 3 else [0, 4, 2, 6, 1, 5, 3, 7]
            if self.o.seq: seq = [int(ch) for ch in self.o.seq]; assert seq[0] == 0 and sorted(seq) == list(range(8))
            for k in range(1, 8): p(f's_xor_b32 s{sKV+k}, s{sKV}, {H((seq[k] << 17) | ((((k >> (self.o.b13 - 1)) & 1) << 13) if self.o.b13 else 0))}')
        elif self.o.alt:
            p(f's_and_b32 {sT2}, {sW}, 1'); p(f's_mul_i32 {sT2}, {sT2}, {H(0x3000 if self.o.altw else 0x1000)}'); p(f's_add_u32 s{sKV}, s{sKV}, {sT2}')
            p(f's_lshr_b32 {sT2}, {sW}, 1'); p(f's_lshl_b32 {sT2}, {sT2}, 14'); p(f's_add_u32 s{sKV}, s{sKV}, {sT2}')
            p(f's_xor_b32 s{sKV+1}, s{sKV}, 0x2000')
            for k in range(2, 8): p(f's_add_u32 s{sKV+k}, s{sKV+(k&1)}, {32768*(k>>1)}')
        else:
            p(f's_lshl_b32 {sT2}, {sW}, 12'); p(f's_add_u32 s{sKV}, s{sKV}, {sT2}')
            for k in range(1, 8): p(f's_add_u32 s{sKV+k}, s{sKV}, {16384*k}')
        if self.o.loc:
            p(f's_and_b32 {sT}, s2, 3'); p(f's_lshl_b32 {sT}, {sT}, 3'); p(f's_and_b32 {sT2}, {sC}, 7'); p(f's_add_u32 {sT}, {sT}, {sT2}')
            p(f's_lshl_b32 s{sKV}, {sT}, 20')
            p(f's_lshr_b32 {sT}, {sT}, 1'); p(f's_lshr_b32 {sT2}, s2, 2'); p(f's_xor_b32 {sT}, {sT}, {sT2}')
            p(f's_xor_b32 {sT}, {sT}, {self.o.loc[0]}'); p(f's_and_b32 {sT}, {sT}, 1'); p(f's_lshl_b32 {sT}, {sT}, 13'); p(f's_add_u32 s{sKV}, s{sKV}, {sT}')
            p(f's_lshr_b32 {sT}, {sC}, 3'); p(f's_lshl_b32 {sT}, {sT}, 1'); p(f's_lshr_b32 {sT2}, {sW}, 1'); p(f's_add_u32 {sT}, {sT}, {sT2}')
            p(f's_mul_i32 {sT}, {sT}, {H((1 << 14) + (1 << 17))}'); p(f's_add_u32 s{sKV}, s{sKV}, {sT}')
            p(f's_and_b32 {sT}, {sW}, 1'); p(f's_lshl_b32 {sT}, {sT}, 12'); p(f's_add_u32 s{sKV}, s{sKV}, {sT}')
            seq = [0, 4, 2, 6, 1, 5, 3, 7]
            for k in range(1, 8):
                m = seq[k] << 17
                if self.o.loc[2:] == 'a': m |= (k & 1) << 13
                if self.o.loc[2:] == 'b': m |= ((k >> 1) & 1) << 13
                p(f's_xor_b32 s{sKV+k}, s{sKV}, {H(m)}')
        p(f'v_bfe_u32 v{t1}, v0, 2, 2'); p(f'v_lshlrev_b32 {vK}, 8, v{t1}')
        p(f'v_lshl_add_u32 {vK}, v{vG}, 6, {vK}')
        p(f'v_and_b32 v{t1}, 3, v0'); p(f'v_lshl_add_u32 {vK}, v{t1}, 4, {vK}')
        p(f'v_and_b32 v{t0}, 1, v{vG}'); p(f'v_lshrrev_b32 v{vD}, 1, v{vG}'); p(f'v_lshl_add_u32 v{vD}, v{t0}, 1, v{vD}')
        p(f's_mov_b32 {sLo}, 0x05040100'); p(f's_mov_b32 {sHi}, 0x07060302')

    def common_addr(self):
        p = self.p
        p(f's_mov_b32 {sBud}, 100000')
        for b in range(4):
            p(f's_mov_b32 s{sMB+2*b}, {H(0x11111111 << b)}'); p(f's_mov_b32 s{sMB+2*b+1}, {H(0x11111111 << b)}')
        p(f's_mov_b32 s{sMF}, 0x01010101'); p(f's_mov_b32 s{sMF+1}, 0x01010101')
        p(f's_lshl_b32 {sT}, {sJ}, 3'); p(f's_add_u32 {sT}, {sT}, {sS}')
        p(f's_lshl_b32 {sT2}, {sT}, 8'); p(f's_add_u32 {sT2}, {sT2}, {sBX}'); p(f's_add_u32 {sT2}, {sT2}, {H(OP)}')
        if self.o.opc:
            p(f's_lshl_b32 {sT2}, {sJ}, 11'); p(f's_lshl_b32 {sT3}, {sS}, 4'); p(f's_add_u32 {sT2}, {sT2}, {sT3}')
            p(f's_add_u32 {sT2}, {sT2}, {sBX}'); p(f's_add_u32 {sT2}, {sT2}, {H(OP)}')
            p(f'v_lshrrev_b32 v{t0}, 2, v0'); p(f'v_lshlrev_b32 {vOW}, 7, v{t0}'); p(f'v_and_b32 v{t0}, 3, v0')
            p(f'v_lshl_add_u32 {vOW}, v{t0}, 2, {vOW}'); p(f'v_add_u32 {vOW}, {sT2}, {vOW}')
        else:
            p(f'v_lshlrev_b32 {vOW}, 2, v0'); p(f'v_add_u32 {vOW}, {sT2}, {vOW}')
        if self.o.osc:
            p(f's_lshl_b32 {sOS0}, {sJ}, 9'); p(f's_lshl_b32 {sT2}, {sS}, 3'); p(f's_add_u32 {sOS0}, {sOS0}, {sT2}')
        else: p(f's_lshl_b32 {sOS0}, {sT}, 3')
        p(f's_add_u32 {sOS0}, {sOS0}, {sBX}'); p(f's_add_u32 {sOS0}, {sOS0}, {H(OS)}')
        p(f's_mul_i32 {sT}, {sJ}, {4*QS}'); p(f's_mul_i32 {sT2}, {sW}, {QS}'); p(f's_add_u32 {sT}, {sT}, {sT2}'); p(f's_add_u32 {sT}, {sT}, {sBX}')
        p(f'v_add_u32 {vQR}, {sT}, {a16}')
        p(f'v_lshlrev_b32 v{t0}, 7, v{vG}'); p(f'v_sub_u32 {vQR3}, {vQR}, v{t0}'); p(f'v_add_u32 {vQR3}, {1024-128}, {vQR3}')
        p(f'v_mov_b32 v{t1}, {H(OOB)}')
        p(f'v_and_b32 v{t0}, 1, v{vR}'); p(f'v_mul_u32_u24 v{t0}, 48, v{t0}')
        p(f'v_lshrrev_b32 v{t2}, 1, v{vR}'); p(f'v_lshl_add_u32 v{t0}, v{t2}, 4, v{t0}')
        p(f's_lshl_b32 {sT}, {sW}, 9')
        p(f's_add_u32 {sT}, {sT}, {sBX}'); p(f's_add_u32 {sT}, {sT}, {H(ST)}'); p(f'v_add_u32 v{t0}, {sT}, v{t0}')
        p(f'v_cmp_gt_u32 vcc, 6, v{vR}'); p(f'v_cndmask_b32 v{t0}, v{t1}, v{t0}, vcc')
        p(f'v_cmp_gt_u32 vcc, 8, v{vR}'); p(f'v_cndmask_b32 {vQR3}, {vQR3}, v{t0}, vcc')
        p(f'v_mov_b32 {vZ}, 0')
        p(f'v_and_b32 v{t0}, 7, v0'); p(f'v_lshl_add_u32 v{t0}, v{t0}, 2, v{vD}'); p(f's_lshl_b32 {sT}, {sW}, 5'); p(f'v_add_u32 v{t0}, {sT}, v{t0}')
        p(f'v_lshlrev_b32 {lQW}, 1, v{t0}')
        p(f'v_lshrrev_b32 v{t0}, 2, v0'); p(f'v_lshlrev_b32 {lQR}, 4, v{t0}')
        p(f'v_lshlrev_b32 {lMW}, 3, v0'); p(f'v_add_u32 {lMW}, {L_J1}, {lMW}')
        p(f's_lshl_b32 {sT}, {sW}, 3'); p(f's_add_u32 {sT}, {sT}, {L_ML}'); p(f'v_writelane_b32 {lMW}, {sT}, 63')
        p(f'v_add_u32 v{t0}, {sW}, v0'); p(f'v_and_b32 v{t0}, 3, v{t0}'); p(f'v_lshlrev_b32 v{t0}, 3, v{t0}'); p(f'v_add_u32 {lMR}, {L_ML}, v{t0}')
        p(f's_lshl_b32 {sT}, {sW}, 9'); p(f's_add_u32 {sT}, {sT}, {L_O}'); p(f'v_lshlrev_b32 {lOW}, 2, v0'); p(f'v_add_u32 {lOW}, {sT}, {lOW}')
        p(f'v_lshlrev_b32 {lOR}, 3, v0'); p(f'v_add_u32 {lOR}, {L_O}, {lOR}')
        p(f'v_mov_b32 {vC}, {H(f2u(CSC))}')
        for k in range(24): p(f'v_mov_b32 v{BQ+k}, 0')
        p(f'v_lshlrev_b32 v{T+15}, 2, v0'); p(f'v_and_b32 v{T+14}, 28, v{T+15}')

    def addrB(self):
        p = self.p
        sHF, sCB = sL, sLM
        p(f's_and_b32 {sHF}, {sIB}, 1'); p(f's_lshr_b32 {sCB}, {sIB}, 1')
        p(f'v_and_b32 v{t0}, 1, v{vG}'); p(f'v_lshlrev_b32 {vXW}, 11, v{t0}')
        p(f'v_and_b32 v{t0}, 7, v0'); p(f'v_lshl_add_u32 {vXW}, v{t0}, 4, {vXW}')
        p(f's_lshl_b32 {sT}, {sCB}, 12'); p(f's_lshl_b32 {sT2}, {sX}, 8'); p(f's_add_u32 {sT}, {sT}, {sT2}')
        p(f's_lshl_b32 {sT2}, {sHF}, 7'); p(f's_add_u32 {sT}, {sT}, {sT2}'); p(f's_add_u32 {sT}, {sT}, {H(XAo)}')
        p(f'v_add_u32 {vXW}, {sT}, {vXW}')
        if self.o.acc:
            p(f'v_lshrrev_b32 {vXW}, 5, v0'); p(f'v_lshlrev_b32 {vXW}, 11, {vXW}')
            p(f'v_bfe_u32 v{t1}, v0, 3, 2'); p(f'v_lshl_add_u32 {vXW}, v{t1}, 8, {vXW}')
            p(f'v_lshl_add_u32 {vXW}, v{t0}, 3, {vXW}')
            p(f's_lshl_b32 {sT}, {sCB}, 12'); p(f's_lshl_b32 {sT2}, {sHF}, 10'); p(f's_add_u32 {sT}, {sT}, {sT2}'); p(f's_add_u32 {sT}, {sT}, {H(XAo)}')
            p(f'v_add_u32 {vXW}, {sT}, {vXW}')
        p(f's_lshr_b32 {sT3}, {sW}, 1'); p(f's_lshl_b32 {sT}, {sHF}, 1'); p(f's_add_u32 {sT3}, {sT3}, {sT}')
        oc = 3 if self.o.opc else 0
        p(f'v_lshlrev_b32 {vOR}, {4 if oc else 8}, v{t0}')
        p(f'v_lshrrev_b32 v{t2}, 3, v{vR}'); p(f'v_lshl_add_u32 {vOR}, v{t2}, {6+oc}, {vOR}')
        p(f'v_lshl_add_u32 {vOR}, v{vG}, {4+oc}, {vOR}')
        p(f's_lshl_b32 {sT}, {sT3}, 11'); p(f's_and_b32 {sT2}, {sW}, 1'); p(f's_lshl_b32 {sT2}, {sT2}, {7+oc}'); p(f's_add_u32 {sT}, {sT}, {sT2}')
        p(f's_add_u32 {sT}, {sT}, {sBX}'); p(f's_add_u32 {sT}, {sT}, {H(OP)}'); p(f'v_add_u32 {vOR}, {sT}, {vOR}')
        p(f'v_lshl_add_u32 v{t1}, v{vG}, 2, v{vR}'); p(f'v_and_b32 v{t1}, 7, v{t1}'); p(f'v_lshlrev_b32 v{t1}, 3, v{t1}')
        if self.o.osc:
            p(f's_lshl_b32 {sT}, {sT3}, 9'); p(f's_and_b32 {sT2}, {sW}, 1'); p(f's_lshl_b32 {sT2}, {sT2}, 8'); p(f's_add_u32 {sT}, {sT}, {sT2}')
            p(f'v_lshl_add_u32 v{t1}, v{t2}, 31, v{t1}')
        else: p(f's_lshl_b32 {sT}, {sT3}, 6')
        p(f's_add_u32 {sT}, {sT}, {sBX}'); p(f's_add_u32 {sT}, {sT}, {H(OS)}'); p(f'v_add_u32 {vOSR}, {sT}, v{t1}')
        p(f's_lshl_b32 {sT}, {sHF}, 2'); p(f's_add_u32 {sT}, {sT}, {sW}'); p(f's_mul_i32 {sT}, {sT}, {QS}')
        p(f's_add_u32 {sT}, {sT}, {sBX}'); p(f's_add_u32 {sT}, {sT}, {H(HP)}'); p(f'v_add_u32 {vHR}, {sT}, {a16}')
        p(f's_cmp_eq_u32 {sW}, 3'); p(f's_cselect_b32 {sT3}, 6, 7')
        p(f'v_mov_b32 v{t1}, {H(OOB)}')
        p(f'v_cmp_gt_u32 vcc, {sT3}, v{t0}'); p(f'v_cndmask_b32 {vHR}, v{t1}, {vHR}, vcc')
        p(f'v_lshlrev_b32 v{T}, 7, v{vG}'); p(f'v_sub_u32 {vHR3}, {vHR}, v{T}'); p(f'v_add_u32 {vHR3}, {1024-128}, {vHR3}')
        p(f'v_add_u32 v{T}, 256, {vQR3}')
        p(f'v_cmp_gt_u32 vcc, 8, v{vR}'); p(f'v_cndmask_b32 {vHR3}, {vHR3}, v{T}, vcc')
        p(f'v_and_b32 v{T}, 1, v0'); p(f'v_lshlrev_b32 v{T}, 4, v{T}'); p(f'v_mov_b32 v{t1}, 0xffff'); p(f'v_lshlrev_b32 v{t1}, v{T}, v{t1}')
        p(f'v_cmp_gt_u32 vcc, {sT3}, v{vR}'); p(f'v_cndmask_b32 v{t1}, 0, v{t1}, vcc')
        p(f'v_bfe_u32 v{T}, v0, 1, 2')
        for k in range(4):
            p(f'v_cmp_eq_u32 vcc, {k}, v{T}'); p(f'v_cndmask_b32 v{MK+k}, 0, v{t1}, vcc')
        p(f's_lshl_b32 {sT}, {sW}, 9'); p(f's_add_u32 {sT}, {sT}, {L_R}')
        p(f'v_and_b32 v{T}, 1, v{vG}')
        p(f'v_lshlrev_b32 {lRR}, 8, v{t2}'); p(f'v_lshl_add_u32 {lRR}, v{t0}, 4, {lRR}'); p(f'v_lshl_add_u32 {lRR}, v{T}, 7, {lRR}')
        p(f'v_add_u32 {lRR}, {L_R}, {lRR}')
        if self.o.acc: p(f'v_lshlrev_b32 {lRR}, 2, v0'); p(f'v_add_u32 {lRR}, {L_R}, {lRR}')
        p(f'v_lshlrev_b32 {lRW}, 8, v{t2}'); p(f'v_lshl_add_u32 {lRW}, v{t0}, 5, {lRW}'); p(f'v_lshl_add_u32 {lRW}, v{T}, 4, {lRW}')
        p(f'v_add_u32 {lRW}, {sT}, {lRW}')
        p(f'v_add_u32 v{t1}, {L_J2}, {a16}')
        p(f'v_lshrrev_b32 v{T}, 1, v{vG}'); p(f'v_cmp_eq_u32 vcc, v{t2}, v{T}')
        p(f'v_cndmask_b32 {lRW}, v{t1}, {lRW}, vcc')
        p(f'v_add_u32 {lRW2}, {sT}, {a16}')
        p(f'v_cmp_gt_u32 vcc, 32, v0'); p(f'v_cndmask_b32 {lRW2}, v{t1}, {lRW2}, vcc')
        p(f'v_lshl_add_u32 v{t0}, v{t0}, 2, v{vD}'); p(f'v_lshlrev_b32 {aB1v}, 1, v{t0}')
        p(f'v_mul_u32_u24 {aW2v}, 1280, v{vD}'); p(f'v_lshl_add_u32 {aW2v}, v{vR}, 3, {aW2v}')

    def addrA(self):
        p = self.p
        p(f's_lshl_b32 {sT}, {sW}, 9'); p(f's_add_u32 {sT}, {sT}, {sBX}'); p(f's_add_u32 {sT}, {sT}, {H(ST)}')
        p(f's_lshl_b32 {sT2}, {sIA}, 2'); p(f's_add_u32 {sT3}, {sT}, {sT2}')
        p(f'v_mov_b32 {vSW}, {sT3}'); p(f's_add_u32 {sT3}, {sT3}, 48'); p(f'v_writelane_b32 {vSW}, {sT3}, 0')
        if self.NH == 2: p(f's_lshr_b32 {sH}, {sW}, 1'); p(f's_lshl_b32 {sT}, {sIA}, 1'); p(f's_add_u32 {sH}, {sH}, {sT}')
        else: p(f's_add_u32 {sH}, {sIA}, 8')
        p(f'v_bfe_u32 v{t0}, v0, 3, 1'); p(f'v_lshlrev_b32 {vXR}, 10, v{t0}')
        p(f'v_lshl_add_u32 {vXR}, v{vG}, 8, {vXR}')
        p(f'v_and_b32 v{t0}, 7, v0'); p(f'v_lshl_add_u32 {vXR}, v{t0}, 3, {vXR}')
        p(f's_lshl_b32 {sT}, {sH}, 11'); p(f's_add_u32 {sT}, {sT}, {H(XAo)}'); p(f'v_add_u32 {vXR}, {sT}, {vXR}')
        for k in range(4): p(f'v_mov_b32 v{XB+k}, 0x3f803f80')
        p(f'v_mul_u32_u24 {aW1v}, {8*3456}, v{vG}'); p(f'v_lshl_add_u32 {aW1v}, v{vR}, 3, {aW1v}')

    def prologue(self, A, B, name):
        p = self.p
        o = self.o
        vm0, tags0 = self.vm, dict(self.tags)
        self.vfree = False
        p(f'L_role{name}:')
        sSX, sSXX = sL, sLM
        D = {'A': o.dA, 'C': o.dC, 'B': o.dB}[name]
        vWQ, vWO, vXs = T + 12, T + 13, T + 14
        sQ, sO, sCL = sMc, sOS, sMode
        mv = self.mv
        if not A: self.vm, self.tags = 0, {}
        NH = self.NH = 1 if name == 'C' else 2
        if name == 'C': self.vm, self.tags = self.stC[0], dict(self.stC[1])
        if not o.hk: self.late_head()
        if A:
            p(f'v_lshrrev_b32 v{t0}, 2, v{vR}'); p(f'v_mul_u32_u24 {vQW}, {QS}, v{t0}')
            p(f'v_and_b32 v{t0}, 3, v{vR}'); p(f'v_lshl_add_u32 {vQW}, v{t0}, 5, {vQW}')
            p(f'v_lshl_add_u32 {vQW}, v{vG}, 4, {vQW}')
            p(f's_mul_i32 {sT}, {sW}, {4*QS}'); p(f's_lshl_b32 {sT2}, {sIA}, 7'); p(f's_add_u32 {sT2}, {sT2}, {sBX}'); p(f's_add_u32 {sT}, {sT}, {sT2}')
            p(f'v_add_u32 {vQW}, {sT}, {vQW}')
            p('s_mov_b32 exec_hi, 0')
            self.vmem(f'buffer_store_dwordx4 {vr(SN,4)}, {vQW}, {srd("WS")}, 0 offen sc1', tag='CLR')
            p('s_mov_b64 exec, -1')
            p(f's_lshl_b32 {sT}, {sW}, 4'); p(f'v_add_u32 v{t0}, {sT}, v{vR}')
            p(f'v_subrev_u32 v{t1}, 27, v{t0}')
            p(f'v_cmp_le_u32 vcc, 27, v{t0}'); p(f'v_cndmask_b32 v{t1}, v{t0}, v{t1}, vcc')
            p(f'v_cndmask_b32 v{t2}, 0, 4, vcc')
            p(f'v_mul_u32_u24 {vHW}, 37, v{t1}'); p(f'v_lshrrev_b32 {vHW}, 8, {vHW}')
            p(f'v_add_u32 v{t2}, v{t2}, {vHW}')
            p(f'v_mul_u32_u24 {vHW}, 7, {vHW}'); p(f'v_sub_u32 v{t1}, v{t1}, {vHW}')
            p(f'v_mul_u32_u24 {vHW}, {QS}, v{t2}'); p(f'v_lshl_add_u32 {vHW}, v{t1}, 4, {vHW}')
            p(f's_add_u32 {sT2}, {sT2}, {H(HP)}'); p(f'v_add_u32 {vHW}, {sT2}, {vHW}')
            p(f'v_mov_b32 v{t1}, {H(OOB)}')
            p(f'v_cmp_gt_u32 vcc, 54, v{t0}'); p(f'v_cndmask_b32 {vHW}, v{t1}, {vHW}, vcc')
            p(f's_mov_b32 {sT2}, {H(CSL)}')
            p('s_mov_b64 exec, 0xffff')
            self.vmem(f'buffer_store_dwordx4 {vr(SN,4)}, {vHW}, {srd("WS")}, {sT2} offen sc1', tag='CLR')
            p('s_mov_b64 exec, -1')
        else:
            p(f's_sub_u32 {sT}, {sC}, 20'); p(f's_lshl_b32 {sT}, {sT}, 2'); p(f's_add_u32 {sT3}, {sT}, {sW}')
            p(f's_lshl_b32 {sT}, {sT3}, 10')
            p(f's_add_u32 {sCL}, {sT}, {sBX}'); p(f's_add_u32 {sCL}, {sCL}, {H(OP)}')
            p(f's_mul_i32 {sT2}, {sX}, 5120'); p(f's_add_u32 {sT}, {sT}, {sT2}'); p(f's_add_u32 {sT}, {sT}, {H(XAo - NE * 1024)}')
            p(f's_cmp_lt_u32 {sT3}, {NE}'); p(f's_cselect_b32 {sCL}, {sCL}, {sT}')
            if o.acc:
                p(f's_cselect_b32 {sT}, -1, 0'); p(f's_cselect_b32 {sT2}, -1, {H(MHI - 0x08000000)}')
                for k in range(4): p(f'v_mov_b32 v{SN+k}, {sT2 if k & 1 else sT}')
            p(f's_cmp_lt_u32 {sT3}, {NE+5}'); p(f's_cselect_b32 {sCL}, {sCL}, {H(OOB)}')
            p(f'v_add_u32 v{t0}, {sCL}, {a16}')
            self.vmem(f'buffer_store_dwordx4 {vr(SN,4)}, v{t0}, {srd("WS")}, 0 offen sc1', tag='CLR')
        mv('K'); mv('V')
        p(f's_getreg_b32 {sFlag}, hwreg(HW_REG_XCC_ID)'); p(f's_and_b32 {sFlag}, {sFlag}, 15'); p(f's_or_b32 {sFlag}, {sFlag}, 0x80')
        WOl = []
        if B:
            if o.wolate: p(f'v_add_u32 v{vWO}, {sO}, v{vWO}')
            for jj in range(8):
                def f(jj=jj):
                    if o.wolate:
                        if jj: p(f's_mov_b32 {sWB}, {8*1280*jj}')
                        self.vmem(f'buffer_load_dwordx4 {ar(aWO+4*jj,4)}, v{vWO}, {srd("WO")}, {sWB if jj else 0} offen nt', tag='WO')
                        return
                    self.vmem(f'buffer_load_dwordx4 {vr(WOR+4*jj,4)}, v{vWO}, {srd("WO")}, {sO} offen nt', tag='WO')
                    if jj < 7: p(f's_add_u32 {sO}, {sO}, {8*1280}')
                WOl.append(('WO', f))
        Wl = []
        if A:
            for jj in range(8 * NH):
                def f(jj=jj):
                    if jj == 0:
                        p(f's_mul_i32 {sWA}, {sIA}, {64*3456}' if NH == 2 else f's_mul_i32 {sWA}, {sH}, {32*3456}'); p(f's_mul_i32 {sWB}, {sX}, 432'); p(f's_add_u32 {sWA}, {sWA}, {sWB}')
                        p(f's_lshl_b32 {sWB}, {sW}, 7'); p(f's_add_u32 {sWA}, {sWA}, {sWB}')
                    else: p(f's_add_u32 {sWA}, {sWA}, {3456*25 if jj == 8 else 3456}')
                    self.vmem(f'buffer_load_dwordx2 {vr(ACC+2*jj,2) if o.wv & 2 else ar(aW1+2*jj,2)}, {aW1v}, {srd("W1")}, {sWA} offen {o.w1nt}', tag='W1')
                Wl.append(('W', f))
        if B:
            for jj in range(8):
                def f(jj=jj):
                    if jj == 0:
                        p(f's_mul_i32 {sWA}, {sX}, 216'); p(f's_and_b32 {sWB}, {sIB}, 1'); p(f's_mul_i32 {sWB}, {sWB}, 108'); p(f's_add_u32 {sWA}, {sWA}, {sWB}')
                        p(f's_mul_i32 {sWB}, {sW}, 28'); p(f's_add_u32 {sWA}, {sWA}, {sWB}')
                        p(f's_lshl_b32 {sWB}, {sWA}, 1')
                        self.vmem(f'buffer_load_ushort a{aB1}, {aB1v}, {srd("B1")}, {sWB} offen', tag='B1')
                        p(f's_mul_i32 {sWA}, {sWA}, 1280'); p(f's_lshr_b32 {sWB}, {sIB}, 1'); p(f's_lshl_b32 {sWB}, {sWB}, 7'); p(f's_add_u32 {sWA}, {sWA}, {sWB}')
                    else: p(f's_add_u32 {sWA}, {sWA}, {4*1280}')
                    self.vmem(f'buffer_load_dwordx2 {vr(ACC+12+2*jj,2) if o.wv else ar(aW2+2*jj,2)}, {aW2v}, {srd("W2")}, {sWA} offen {o.w2nt}', tag='W2')
                Wl.append(('W', f))
        KV = [(f'K{m}', (lambda m=m: self.kload(m))) for m in range(32)] + [(f'V{m}', (lambda m=m: self.vload(m))) for m in range(32)]
        wi = o.wposAB if A else o.wposB
        if o.wolate:
            st = list(KV)
            for jj, it in enumerate(WOl):
                pos = min(len(st), wi + jj * (o.wolate))
                st.insert(pos, it)
            if not A and o.hk:
                st = st[o.n0B:]
                for mb in range(o.n0B): self.tags[f'K{mb}'] = 0
        else:
            if not A: WOl = WOl[o.n0B:]
            st = KV[:wi] + WOl + KV[wi:]
        FL = vR
        i2 = [k for k, f in st].index(o.fpos2)
        st.insert(i2, ('FL2', lambda: self.vmem(f'buffer_load_dword v{FL}, v{T+15}, {srd("DBG")}, 0 offen sc1', tag='FL2')))
        if A and not B and o.w2pf:
            def pf():
                Ls = p.label('Lw2pf')
                p(f's_cmp_ge_u32 {sC}, 9'); p(f's_cbranch_scc1 {Ls}')
                p(f's_lshl_b32 {sWA}, {sC}, 2'); p(f's_add_u32 {sWA}, {sWA}, {sW}'); p(f's_lshl_b32 {sWA}, {sWA}, 13')
                p(f's_mul_i32 {sWB}, {sX}, {216*1280}'); p(f's_add_u32 {sWA}, {sWA}, {sWB}')
                p(f'v_lshlrev_b32 {vXW}, 7, v0')
                self.vmem(f'buffer_load_dword a{aCQ+11}, {vXW}, {srd("W2")}, {sWA} offen', optional=True)
                p(f'{Ls}:')
            keys = [k for k, f in st]
            st.insert(keys.index(o.w2pf) + 1, ('PF', pf))
        if A and B and o.wabpos:
            assert o.w2pos & 1
            i3 = [k for k, f in st].index(o.wabpos)
            ins = Wl if not o.wab2 else Wl[8:]
            for n_, it in enumerate(ins): st.insert(i3 + n_ * (1 + o.wabsp), it)
            Wl = [] if not o.wab2 else Wl[:8]
        if name != 'A' and o.hp:
            assert o.il == 3
            seq = [0, 4, 2, 6, 1, 5, 3, 7]
            n_ = o.hpn
            tbl = []
            for part in range(3):
                mb = o.hpe - 3 * n_ + part * n_
                assert (mb >> 2) == ((mb + n_ - 1) >> 2)
                tbl.append((seq[mb >> 2] << 17) | ((mb & 3) << 10))
            def hpf():
                p(f's_and_b32 {sWA}, {sC}, 3'); p(f's_lshl_b32 {sWB}, {sX}, 2'); p(f's_add_u32 {sWA}, {sWA}, {sWB}'); p(f's_lshl_b32 {sWA}, {sWA}, 20')
                p(f's_bfe_u32 {sWB}, {sC}, 0x10002'); p(f's_mul_i32 {sWB}, {sWB}, {H((1 << 17) + (1 << 14))}'); p(f's_add_u32 {sWA}, {sWA}, {sWB}')
                p(f's_lshl_b32 {sWB}, {sW}, 12'); p(f's_add_u32 {sWA}, {sWA}, {sWB}')
                p(f's_cmp_lt_u32 {sC}, 16'); p(f's_cselect_b32 {sWB}, {H(tbl[0])}, {tbl[1] if tbl[1] < 64 else sT3}' if False else f's_cselect_b32 {sWB}, {H(tbl[0] ^ tbl[1])}, 0')
                p(f's_xor_b32 {sWA}, {sWA}, {sWB}')
                p(f's_cmp_ge_u32 {sC}, 24'); p(f's_cselect_b32 {sWB}, {H(tbl[2] ^ tbl[1])}, 0')
                p(f's_xor_b32 {sWA}, {sWA}, {sWB}'); p(f's_xor_b32 {sWA}, {sWA}, {H(tbl[1])}')
                p(f'v_mul_u32_u24 v{t2}, {16*n_}, v0')
                self.vmem(f'buffer_load_dword a{aCQ+11}, v{t2}, {srd("V")}, {sWA} offen')
            st.insert([k for k, f in st].index(o.hp), ('HP', hpf))
        W1late = []
        if o.wv & 2: assert o.w1n == 0 and not o.w1at
        if o.wv: assert o.wv & 1 and not o.w2at and not o.w2pos
        if A:
            if o.w1at:
                i3 = [k for k, f in st].index(o.w1at)
                for n_, it in enumerate(Wl[:o.w1e]): st.insert(min(len(st), i3 + n_ * (1 + o.w2sp)), it)
                Wl = Wl[o.w1e:]
            if o.w1burst:
                bl = Wl[:o.w1n]
                for i_ in range(0, len(bl), o.w1burst):
                    st.append(('W', lambda ch=bl[i_:i_+o.w1burst]: [f() for k, f in ch]))
            else: st += Wl[:o.w1n]
            W1late = Wl[o.w1n:]; Wl = []
        if not A and not B and o.cpf:
            PF = []
            for k in range(10 if o.cpfm & 1 else 0):
                def f(k=k):
                    if k == 0:
                        p(f'v_lshrrev_b32 {vXW}, 3, v0'); p(f'v_mul_u32_u24 {vXW}, 3456, {vXW}'); p(f'v_and_b32 {vXR}, 7, v0')
                        p(f'v_mul_u32_u24 {vXR}, 60, {vXR}'); p(f'v_add_u32 {vXW}, {vXW}, {vXR}')
                        p(f's_sub_u32 {sWA}, {sC}, 10'); p(f's_lshl_b32 {sWA}, {sWA}, 2'); p(f's_add_u32 {sWA}, {sWA}, {sW}')
                        p(f's_mul_i32 {sWA}, {sWA}, {8*3456}'); p(f's_mul_i32 {sWB}, {sX}, 432'); p(f's_add_u32 {sWA}, {sWA}, {sWB}')
                    else: p(f's_add_u32 {sWA}, {sWA}, {64*3456}')
                    self.vmem(f'buffer_load_dword a{aWQ+k}, {vXW}, {srd("W1")}, {sWA} offen')
                PF.append(('PF', f))
            sd = o.cpfs
            n2 = -(-276480 // (64 * sd * 8))
            for k in range(n2 if o.cpfm & 2 else 0):
                def f(k=k):
                    if k == 0:
                        p(f'v_mul_u32_u24 {vXR}, {sd}, v0')
                        p(f's_mul_i32 {sWB}, {sX}, 276480'); p(f'v_add_u32 {vXR}, {sWB}, {vXR}')
                        p(f's_sub_u32 {sWB}, {sC}, 10'); p(f's_lshl_b32 {sWB}, {sWB}, 2'); p(f's_add_u32 {sWB}, {sWB}, {sW}')
                        p(f's_mul_i32 {sWB}, {sWB}, {64*sd}')
                    else: p(f's_add_u32 {sWB}, {sWB}, {64*sd*8}')
                    if k == n2 - 1: p(f's_min_u32 {sWB}, {sWB}, {276480 - 64*sd}')
                    self.vmem(f'buffer_load_dword a{aWQ+16+k}, {vXR}, {srd("W2")}, {sWB} offen')
                PF.append(('PF', f))
            i3 = [k for k, f in st].index(o.cpf)
            for n_, it in enumerate(PF): st.insert(min(len(st), i3 + n_ * (1 + o.cpfsp)), it)
        if B and o.w2at:
            i3 = [k for k, f in st].index(o.w2at)
            for n_, it in enumerate(Wl[:o.w2n]): st.insert(min(len(st), i3 + n_ * (1 + o.w2sp)), it)
            Wl = Wl[o.w2n:]
        if B and ((o.w2pos & 1) if A else (o.w2pos & 2)): st += Wl; Wl = []
        def adv(n, thr=True):
            while n > 0 and st:
                k, f = st.pop(0); f(); n -= 1
                if o.exit10 and k in KST: self.stamp(12 + KST.index(k))
                if thr and D + thr - 1 < 63: p(f's_waitcnt vmcnt({D + (thr - 1)})')
        def until(key, thr=True):
            keys = [k for k, f in st]
            if key in keys: adv(keys.index(key), thr)
        def flag():
            p(f's_lshl_b32 {sT}, {sX}, 5'); p(f's_add_u32 {sT}, {sT}, {sC}'); p(f's_lshl_b32 {sT2}, {sW}, 8'); p(f's_add_u32 {sT}, {sT}, {sT2}')
            p(f'v_mov_b32 v{t0}, {sFlag}'); p(f'v_mov_b32 v{t1}, {sT}')
            self.wait('CLR')
            p('s_waitcnt lgkmcnt(0)')
            if o.acc: p('s_mov_b32 s0, 0'); p(f's_mov_b32 s1, {H(MHI)}')
            p('s_barrier')
            p('s_mov_b64 exec, 1')
            self.vmem(f'buffer_store_byte v{t0}, v{t1}, {srd("DBG")}, 0 offen sc1', tag='FLAG')
            p('s_mov_b64 exec, -1')
            self.stamp(1)
        adv(o.n1C if name == 'C' else o.n1A if A else o.n1B, False)
        mv('W1'); mv('B1')
        if o.stamps:
            p(f'v_mov_b32 {vSTAMP}, 0')
            p(f'v_writelane_b32 {vSTAMP}, s96, 0')
            p(f'v_writelane_b32 {vSTAMP}, s98, 34')
        for n in ('DBG', 'B2', 'W2', 'OUT'):
            p(f's_load_dwordx2 s[{SRD[n]}:{SRD[n]+1}], s[0:1], {KOFF[n]}')
        if A:
            self.addrA()
            self.wait('XF')
            self.stamp(8)
            p(f'v_mov_b32 v{t0}, 0'); p(f'v_mov_b32 v{t1}, 0'); p(f'v_mov_b32 v{t2}, 0x3f803f80')
            for k in range(8):
                p(f'v_dot2_f32_bf16 v{t0}, v{XF+k}, v{t2}, v{t0}')
                p(f'v_dot2_f32_bf16 v{t1}, v{XF+k}, v{XF+k}, v{t1}')
            for k in range(4*NH-4): p(f'v_lshlrev_b32 v{T+4+k}, 16, v{XA2+k//2}' if k % 2 == 0 else f'v_and_b32 v{T+4+k}, 0xffff0000, v{XA2+k//2}')
            for s in self.unpack_xr(False): p(s)
            p(f'v_permlane32_swap_b32 v{t0}, v{t1}')
            p(f'v_add_f32 v{t0}, v{t0}, v{t1}')
            for n in (1, 2, 4, 8): p(f'v_add_f32_dpp v{t0}, v{t0}, v{t0} row_ror:{n} {DF}')
            p(f'v_add_f32_dpp v{t0}, v{t0}, v{t0} row_bcast:15 row_mask:0xa bank_mask:0xf')
            p(f'v_mul_f32 v{t0}, {H(f2u(1.0 / 640))}, v{t0}')
            p(f'v_readlane_b32 {sSX}, v{t0}, 31'); p(f'v_readlane_b32 {sSXX}, v{t0}, 63')
            p(f'v_mov_b32 v{t0}, {sSX}'); p(f'v_mov_b32 v{t1}, {sSXX}')
            p(f'v_fma_f32 v{t1}, -v{t0}, v{t0}, v{t1}'); p(f'v_max_f32 v{t1}, 0, v{t1}')
            p(f'v_add_f32 v{t1}, {H(f2u(EPS))}, v{t1}'); p(f'v_rsq_f32 v{t1}, v{t1}')
            p(f'v_mul_f32 v{t0}, v{t0}, v{t1}')
            for k in range(4): p(f'v_fma_f32 v{T+k}, v{XR+k}, v{t1}, -v{t0}')
            p(f'v_cvt_pk_bf16_f32 v{XA}, v{T}, v{T+1}'); p(f'v_cvt_pk_bf16_f32 v{XA+1}, v{T+2}, v{T+3}')
            self.build_xa()
            if NH == 2:
                for k in range(4): p(f'v_fma_f32 v{T+4+k}, v{T+4+k}, v{t1}, -v{t0}')
                p(f'v_cvt_pk_bf16_f32 v{XA2}, v{T+4}, v{T+5}'); p(f'v_cvt_pk_bf16_f32 v{XA2+1}, v{T+6}, v{T+7}')
                self.build_xa(XA2)
            self.lgkm(0)
            p(f's_lshl_b32 {sT}, {sH}, 6')
            if o.acc:
                p(f'v_and_b32 v{t0}, 7, v0'); p(f'v_and_b32 v{t1}, 0x30, v0'); p(f'v_lshl_add_u32 v{t0}, v{t0}, 1, v{t1}')
                self.vmem(f'buffer_load_ushort a{aB2}, v{t0}, {srd("B2")}, {sT} offen', tag='B2')
                self.vmem(f'buffer_load_ushort a{aB2+1}, v{t0}, {srd("X")}, {sT} offen', tag='B2')
            else: self.vmem(f'buffer_load_dwordx2 {ar(aB2,2)}, v{vXs}, {srd("B2")}, {sT} offen', tag='B2')
            adv(o.n2 if NH == 2 else o.n2C, False)
            if o.stamps < 2: self.stamp(29)
            self.wait('WQ0')
            self.stamp(9)
            def pre(h, d):
                dp, hi = d >> 1, d & 1
                wt, wr = (WT2, WOR) if h else (WT, WR)
                return [f'v_perm_b32 v{wt+4*d+tau}, v{wr+(2*tau+1)*4+dp}, v{wr+(2*tau)*4+dp}, {sHi if hi else sLo}' for tau in range(4)]
            self.qp((XA, XA2), '0', 'sc1', False, True, wv=(WT, WT2), pre=pre, prest=lambda: self.wait('CLR'), mid=lambda: self.wait('WQ'))
            self.stamp(2)
            flag()
            adv(2, False)
            p(f's_mov_b32 {sT2}, {H(CSL)}')
            if 'cq' not in o.skip: self.qp((XB, XB), sT2, 'sc1', False, True, wv=(WT, WT2), tag='CQ')
            adv(1, True)
            for k in range(32): p(f'v_accvgpr_write_b32 a{aWQ+k}, v{WT+k}')
            adv(1, True)
            if NH == 2:
                for k in range(32): p(f'v_accvgpr_write_b32 a{aWQ+32+k}, v{WT2+k}')
                adv(1, True)
            self.common_addr()
            self.wait('B2')
            if o.acc:
                p(f'v_mov_b32 v{RM}, 0'); p(f'v_mov_b32 v{RM+1}, {H(MHI | 0x80000000)}')
                p(f'v_accvgpr_read_b32 v{t1}, a{aB2+1}')
                for s_ in self.rm_ops(t1, False): p(s_)
            else:
                p(f'v_accvgpr_read_b32 v{t0}, a{aB2}'); p(f'v_accvgpr_read_b32 v{t1}, a{aB2+1}')
                p(f'v_lshlrev_b32 v{B2}, 16, v{t0}'); p(f'v_and_b32 v{B2+1}, 0xffff0000, v{t0}')
                p(f'v_lshlrev_b32 v{B2+2}, 16, v{t1}'); p(f'v_and_b32 v{B2+3}, 0xffff0000, v{t1}')
            adv(2, True)
            if B:
                self.addrB()
        else:
            self.common_addr()
            adv(1, True)
            if B: self.addrB()
            adv(o.n2B, True)
            flag()
        until(o.fposC if name == 'C' else o.fposA if A else o.fposB)
        self.stamp(3)
        p(f's_lshl_b32 {sT3}, {sX}, 5')
        self.vmem(f'buffer_load_dword v{FL}, v{T+14}, {srd("DBG")}, {sT3} offen sc1', tag='FL')
        nF = D + o.dFo
        if B and not o.wolate:
            assert not any(k == 'WO' for k, f in st)
            adv(2, True); nF -= 2
            self.wait('WO')
            self.transpose(aWO, 4, WOR, T, rd=False)
        self.vfree = True
        adv(min(nF, nF - o.dFo - 1), True)
        adv(max(0, o.dFo + 1), False)
        p(f's_mul_i32 {sFlag}, {sFlag}, 0x01010101')
        self.wait('FL')
        Lfp, Lfok, Lfc = p.label('Lfp'), p.label('Lfok'), p.label('Lfc')
        self.flush()
        p(f'{Lfc}:')
        p(f'v_and_b32 v{t0}, 0x80808080, v{FL}')
        p(f'v_cmp_ne_u32 vcc, 0x80808080, v{t0}')
        Lr = self.retry(Lfp, Lfok)
        self.ool.append([f'{Lfp}:', f'buffer_load_dword v{FL}, v{T+14}, {srd("DBG")}, {sT3} offen sc1',
                         's_waitcnt vmcnt(0)', f's_branch {Lfc}'])
        p(f's_cbranch_vccnz {Lr}')
        p(f'{Lfok}:')
        p(f'v_cmp_ne_u32 vcc, {sFlag}, v{FL}')
        p(f's_or_b32 {sMode}, vcc_lo, vcc_hi')
        if o.forceslow: p(f's_mov_b32 {sMode}, 1')
        adv(o.dG, True)
        for s_ in self.g3_list(ACC, vQR, vQR3, '0'):
            if 'q0' in o.skip: s_ = s_.replace(vQR3 + ',', 'v1,').replace(vQR + ',', 'v1,').replace(srd('WS'), srd('K')).replace(' sc1', '')
            self.vmem(s_, tag='Q0')
        self.stamp(4)
        adv(min(D + o.dQo, D - 1), 3)
        adv(max(0, o.dQo + 1), False)
        u, sc = T, T + 3
        self.wait('Q0')
        self.flush()
        Lq, Lqp = p.label('Lq'), p.label('Lqp')
        p(f'{Lq}:')
        for s_ in self.g3_sum(ACC, f'v{u}'): p(s_)
        self.ool.append([f'{Lqp}:'] + self.g3_list(ACC, vQR, vQR3, '0') + ['s_waitcnt vmcnt(0)', f's_branch {Lq}'])
        adv(o.dX, False)
        self.q_finish(u, None, None, sc, Lqp, ln=False)
        self.stamp(5)
        self.flush()
        until(o.qkpos)
        self.wait('K31')
        qi = [int(c) for c in o.qkiss]
        self.qk_softmax(lambda n: adv(qi[n], False))
        self.stamp(6)
        adv(qi[5], False)
        for op in self.ml_ops('mode'): self.run_op(op)
        if B:
            for k in range(4): p(f'v_mov_b32 v{SN+k}, -1')
            p(f's_lshl_b32 {sT}, {sC}, 2'); p(f's_add_u32 {sT}, {sT}, {sW}')
            p(f's_sub_u32 {sT}, {sT}, 48')
            assert NG + 15 <= 80
            Lnc, Lg, Lsl = p.label('Lnc'), p.label('Lg'), p.label('Lsl')
            p(f's_lshl_b32 {sT2}, {sT}, 10')
            if B:
                p(f's_cmp_ge_u32 {sT}, {NG}'); p(f's_cbranch_scc1 {Lg}')
            p(f's_add_u32 {sT2}, {sT2}, {sBX}'); p(f's_add_u32 {sT2}, {sT2}, {H(LSTR)}')
            if o.clrfast:
                p(f's_cmp_lg_u32 {sMode}, 0'); p(f's_cbranch_scc1 {Lsl}')
                self.vmem(f'buffer_store_dwordx4 {vr(SN,4)}, {a16}, {srd("WS")}, {sT2} offen', optional=True)
                p(f's_branch {Lnc}')
            elif B: p(f's_branch {Lsl}')
            if B:
                p(f'{Lg}:')
                p(f's_cmp_ge_u32 {sT}, {NG+15}'); p(f's_cbranch_scc1 {Lnc}')
                if o.acc:
                    for k in range(4): p(f'v_mov_b32 v{SN+k}, {H(MHI - 0x08000000) if k & 1 else 0}')
                p(f's_mul_i32 {sT3}, {sX}, {15*1024}'); p(f's_add_u32 {sT2}, {sT2}, {sT3}'); p(f's_add_u32 {sT2}, {sT2}, {H(XMo - NG*1024)}')
                p(f's_add_u32 {sT3}, {sT2}, {H(XAo)}')
                p(f's_cmp_ge_u32 {sT2}, {H(LSTR)}'); p(f's_cselect_b32 {sT2}, {sT3}, {sT2}')
            p(f'{Lsl}:')
            self.vmem(f'buffer_store_dwordx4 {vr(SN,4)}, {a16}, {srd("WS")}, {sT2} offen sc1', optional=True, tag='CLR2')
            p(f'{Lnc}:')
        if o.pf1: self.fwd = True; self.pfcode(f'L_loop{name}_fast', f'L_loop{name}_slow')
        self.stamp(7)
        self.flush()
        def hook(pp):
            keys = [k for k, f in st]
            need = f'V{2*pp+1}'
            if need in keys: adv(keys.index(need) + 1, False)
            behind = self.vm - self.tags[need]
            Dp = D + (o.dPV if (pp >= o.pPV and name in o.dPVr) else 0)
            if o.dPV and o.kvonly:
                keys = [k for k, f in st]
                nkv = max([i + 1 for i, k in enumerate(keys) if k[0] == 'V'] + [0])
                n = max(min(Dp - behind, nkv), D - behind)
                if n > 0: adv(n, False)
            elif behind < Dp: adv(Dp - behind, False)
        hooks = {pp: (lambda pp=pp: hook(pp)) for pp in range(16)}
        self.pv([], True, hooks=hooks)
        assert 'FL2' in self.tags
        if B: self.wait('CLR2')
        if o.exit10:
            self.stamp(10); self.finish()
            for code in self.ool:
                for s in code: p(s)
            self.ool = []
            self.vm, self.tags = vm0, tags0
            return
        self.rest = list(st) + W1late; self.rest2 = Wl
        self.set_layer(0)
        self.flush()
        p(f's_cmp_eq_u32 {sMode}, 0'); p(f's_cbranch_scc1 L_loop{name}_fast')
        p(f's_branch L_loop{name}_slow')
        for code in self.ool:
            for s in code: p(s)
        self.ool = []
        self.chain(A, B, True, f'L_loop{name}_fast')
        state = (self.vm, dict(self.tags), self.rest, self.rest2)
        def slow():
            self.vm, self.tags, self.rest, self.rest2 = state[0], dict(state[1]), state[2], state[3]
            self.vfree = True; self.NH = NH
            self.chain(A, B, False, f'L_loop{name}_slow')
        if o.pfa: self.later.append(slow)
        else: slow()
        self.vm, self.tags = vm0, tags0


def main():
    ap = argparse.ArgumentParser()
    ap.add_argument('out')
    ap.add_argument('--stamps', type=int, default=0)
    ap.add_argument('--x8delay', type=int, default=0)
    ap.add_argument('--pdx', type=int, default=0)
    ap.add_argument('--pdo', type=int, default=0)
    ap.add_argument('--skip', type=str, default='')
    ap.add_argument('--exit10', type=int, default=0)
    ap.add_argument('--qkiss', type=str, default='000003')
    ap.add_argument('--clrfast', type=int, default=1)
    ap.add_argument('--xs', type=int, default=0)
    ap.add_argument('--xgap', type=int, default=6)
    ap.add_argument('--abw1', type=int, default=1)
    ap.add_argument('--abc1', type=int, default=1)
    ap.add_argument('--pf0', type=int, default=0)
    ap.add_argument('--pf1', type=int, default=0)
    ap.add_argument('--pfsel', type=int, default=1)
    ap.add_argument('--pfa', type=int, default=0)
    ap.add_argument('--order', type=str, default='A,AB,B')
    ap.add_argument('--hk', type=int, default=0)
    ap.add_argument('--xgate', type=int, default=0)
    ap.add_argument('--xgd', type=int, default=0)
    ap.add_argument('--pfx', type=int, default=0)
    ap.add_argument('--inl', type=int, default=0)
    ap.add_argument('--xat', type=int, default=0)
    ap.add_argument('--il', type=int, default=0)
    ap.add_argument('--xperm', type=str, default='')
    ap.add_argument('--alt', type=int, default=0)
    ap.add_argument('--altw', type=int, default=1)
    ap.add_argument('--jx', type=int, default=0)
    ap.add_argument('--sx', type=int, default=0)
    ap.add_argument('--xx', type=int, default=0)
    ap.add_argument('--dPV', type=int, default=0)
    ap.add_argument('--pPV', type=int, default=0)
    ap.add_argument('--kvonly', type=int, default=1)
    ap.add_argument('--wolate', type=int, default=0)
    ap.add_argument('--womid', type=int, default=1)
    ap.add_argument('--n2B', type=int, default=2)
    ap.add_argument('--n0A', type=int, default=0)
    ap.add_argument('--n0B', type=int, default=8)
    ap.add_argument('--n1A', type=int, default=6)
    ap.add_argument('--n1B', type=int, default=4)
    ap.add_argument('--n2', type=int, default=4)
    ap.add_argument('--dA', type=int, default=10)
    ap.add_argument('--dAB', type=int, default=16)
    ap.add_argument('--dB', type=int, default=10)
    ap.add_argument('--dFo', type=int, default=-1)
    ap.add_argument('--dG', type=int, default=0)
    ap.add_argument('--dQo', type=int, default=-2)
    ap.add_argument('--dX', type=int, default=2)
    ap.add_argument('--wposAB', type=int, default=0)
    ap.add_argument('--wposB', type=int, default=0)
    ap.add_argument('--fposA', type=str, default='K16')
    ap.add_argument('--fposAB', type=str, default='K8')
    ap.add_argument('--fposB', type=str, default='K12')
    ap.add_argument('--fpos2', type=str, default='V26')
    ap.add_argument('--qkpos', type=str, default='V8')
    ap.add_argument('--w1nt', type=str, default='')
    ap.add_argument('--w2nt', type=str, default='')
    ap.add_argument('--w2late', type=int, default=0)
    ap.add_argument('--pre', type=int, default=1)
    ap.add_argument('--forceslow', type=int, default=0)
    ap.add_argument('--acc', type=int, default=0)
    ap.add_argument('--ec', type=int, default=0)
    ap.add_argument('--opc', type=int, default=0)
    ap.add_argument('--osc', type=int, default=0)
    ap.add_argument('--stc', type=int, default=0)
    ap.add_argument('--opre', type=int, default=0)
    ap.add_argument('--pl', type=int, default=1)
    ap.add_argument('--plo', type=int, default=1)
    ap.add_argument('--pgap', type=int, default=3)
    ap.add_argument('--pgapo', type=int, default=2)
    ap.add_argument('--pd0', type=int, default=0)
    ap.add_argument('--pd1', type=int, default=0)
    ap.add_argument('--pd2', type=int, default=0)
    ap.add_argument('--pd3', type=int, default=0)
    ap.add_argument('--opwarm', type=int, default=0)
    ap.add_argument('--wabpos', type=str, default='')
    ap.add_argument('--wab2', type=int, default=0)
    ap.add_argument('--wabsp', type=int, default=0)
    ap.add_argument('--fill', type=int, default=0)
    ap.add_argument('--w2pos', type=int, default=0)
    ap.add_argument('--w2pf', type=str, default='')
    ap.add_argument('--nd', type=int, default=3)
    ap.add_argument('--ndf', type=int, default=3)
    ap.add_argument('--agap', type=int, default=5)
    ap.add_argument('--agapf', type=int, default=5)
    ap.add_argument('--pw', type=int, default=1)
    ap.add_argument('--wqtest', type=int, default=0)
    ap.add_argument('--dPVr', type=str, default='ABC')
    ap.add_argument('--hp', type=str, default='')
    ap.add_argument('--hpn', type=int, default=2)
    ap.add_argument('--hpe', type=int, default=32)
    ap.add_argument('--w1burst', type=int, default=0)
    ap.add_argument('--w1bar', type=int, default=0)
    ap.add_argument('--probe', type=int, default=0)
    ap.add_argument('--prgap', type=int, default=16)
    ap.add_argument('--n1C', type=int, default=6)
    ap.add_argument('--n2C', type=int, default=4)
    ap.add_argument('--wv', type=int, default=0)
    ap.add_argument('--w2bar', type=int, default=0)
    ap.add_argument('--w2at', type=str, default='')
    ap.add_argument('--w2n', type=int, default=1)
    ap.add_argument('--w2sp', type=int, default=1)
    ap.add_argument('--w1at', type=str, default='')
    ap.add_argument('--w1e', type=int, default=1)
    ap.add_argument('--w1n', type=int, default=16)
    ap.add_argument('--cpf', type=str, default='')
    ap.add_argument('--cpfm', type=int, default=3)
    ap.add_argument('--cpfs', type=int, default=64)
    ap.add_argument('--cpfsp', type=int, default=1)
    ap.add_argument('--qs', type=int, default=1536)
    ap.add_argument('--dC', type=int, default=6)
    ap.add_argument('--pdC', type=int, default=0)
    ap.add_argument('--pfc', type=int, default=10)
    ap.add_argument('--ja', type=int, default=0)
    ap.add_argument('--loc', type=str, default='')
    ap.add_argument('--seq', type=str, default='')
    ap.add_argument('--smap', type=str, default='')
    ap.add_argument('--wx', type=int, default=0)
    ap.add_argument('--jxs', type=int, default=0)
    ap.add_argument('--xxs', type=int, default=0)
    ap.add_argument('--jm', type=int, default=0)
    ap.add_argument('--b13', type=int, default=0)
    ap.add_argument('--fposC', type=str, default='K18')
    o = ap.parse_args()
    g = G(o)
    g.head()
    for r in o.order.split(','):
        g.prologue(r != 'B', 'B' in r, r)
    g.p('L_fastend:')
    for f in g.later: f()
    body = g.p.finalize()
    ref = open('cdna_kernels/' + NAME + '.s.ref').read()
    comment = ''.join(l + '\n' for l in ref.split('\n') if l.startswith(';') and '@launch' not in l)
    open(o.out, 'w').write(header(256, 256, LDS_SIZE, comment=comment) + body + footer())
    print('instrs', len(g.p.items), 'nops inserted', g.p.nnops)

main()
```
